```python
import torch

def _softmax(x, axis=-1):
    return torch.softmax(x, dim=axis)
def _gelu(x):
    return torch.nn.functional.gelu(x, approximate="tanh")
def _silu(x):
    return torch.nn.functional.silu(x)
def _sigmoid(x):
    return torch.sigmoid(x)
def _layernorm(x, axis=-1, eps=1e-5):
    m = x.mean(dim=axis, keepdim=True)
    v = x.var(dim=axis, keepdim=True, unbiased=False)
    return (x - m) / torch.sqrt(v + eps)
def _scatter_add(tgt, idx, src, axis=0):
    return tgt.clone().index_add_(axis, idx, src)
def _segment_sum(src, seg, n):
    out = torch.zeros((n,) + src.shape[1:], dtype=src.dtype)
    return out.index_add_(0, seg, src)
def _pad(x, pw):
    flat = tuple(v for pair in reversed(pw) for v in pair)
    return torch.nn.functional.pad(x, flat)

kernel_name = 'parallel_sum__ssm_conv_h3__dense_activation_silu__prompt'

def setup_inputs():

    _w = (lambda a: (lambda t: t.to(torch.bfloat16) if t.is_floating_point() else t)(torch.as_tensor(a)))
    def _A_setup():
        B, S, D = 1, 2048, 512
        ks = 4
        return {
            "q": _w((lambda *s: torch.randn(*s, dtype=torch.bfloat16) * 0.05)(B, S, D)),
            "k": _w((lambda *s: torch.randn(*s, dtype=torch.bfloat16) * 0.2)(B, S, D)),
            "v": _w((lambda *s: torch.randn(*s, dtype=torch.bfloat16) * 0.2)(B, S, D)),
            "shift_k": _w((lambda *s: torch.randn(*s, dtype=torch.bfloat16) * 0.2)(D, ks) * 0.5),
            "ssm_k": _w((lambda *s: torch.randn(*s, dtype=torch.bfloat16) * 0.8)(D, S) * (1.0 / S ** 0.5)),
            "ssm_D": _w((lambda *s: torch.randn(*s, dtype=torch.bfloat16) * 0.2)(D)),
        }
    _A_in = _A_setup()

    def _B_setup():
        B, S, D, F = 1, 2048, 512, 1376
        return {
            "x": _w((lambda *s: torch.randn(*s, dtype=torch.bfloat16) * 0.05)(B, S, D)),
            "w1": _w((lambda *s: torch.randn(*s, dtype=torch.bfloat16) * 0.8)(D, F) * (D ** -0.5)),
            "w2": _w((lambda *s: torch.randn(*s, dtype=torch.bfloat16) * 0.1)(F, D) * (F ** -0.5)),
        }
    _B_in = _B_setup()

    return {
        "A_q": _A_in["q"],
        "A_k": _A_in["k"],
        "A_v": _A_in["v"],
        "A_shift_k": _A_in["shift_k"],
        "A_ssm_k": _A_in["ssm_k"],
        "A_ssm_D": _A_in["ssm_D"],
        "B_x": _B_in["x"],
        "B_w1": _B_in["w1"],
        "B_w2": _B_in["w2"],
    }

def reference(A_q, A_k, A_v, A_shift_k, A_ssm_k, A_ssm_D, B_x, B_w1, B_w2):
    def _A_ref(q, k, v, shift_k, ssm_k, ssm_D):
        B, S, D = q.shape
        ks = shift_k.shape[-1]
        k_pad = _pad(k, ((0, 0), (ks - 1, 0), (0, 0)))
        k_shift = torch.zeros_like(k)
        for t in range(ks):
            k_shift = k_shift + k_pad[:, t:t + S, :] * shift_k[:, ks - 1 - t][None, None, :]
        kv = k_shift * v
        L = 2 * S
        kv_pad = _pad(kv, ((0, 0), (0, S), (0, 0)))
        kf_pad = _pad(ssm_k, ((0, 0), (0, S)))
        kv_f = (lambda x, axes=(-2,-1): torch.fft.rfft2(x.float(), dim=axes))(kv_pad[:, None, :, :], axes=(1, 2))
        kf_f = (lambda x, axes=(-2,-1): torch.fft.rfft2(x.float(), dim=axes))(kf_pad[:, None, :], axes=(1, 2))
        kf_f = (lambda x, *d: x.permute(*d))(kf_f, 1, 2, 0)
        y_f = kv_f * kf_f[None, :, :, :]
        y = (lambda x, s, axes=(-2,-1): torch.fft.irfft2(x, s=s, dim=axes).to(torch.bfloat16))(y_f, (1, L), axes=(1, 2))[:, 0, :S, :]
        y = y + kv * ssm_D[None, None, :]
        return q * y

    def _B_ref(x, w1, w2):
        h = torch.einsum("bsd,df->bsf", x, w1)
        h = _silu(h)
        out = torch.einsum("bsf,fd->bsd", h, w2)
        return out

    x = A_q
    xn = _layernorm(x, axis=-1)
    return x + _A_ref(xn, A_k, A_v, A_shift_k, A_ssm_k, A_ssm_D) + _B_ref(xn, B_w1, B_w2)
```

```python
import re

def regs_of(tok):
    tok = tok.strip()
    tok = re.sub(r'^-|^\||\|$', '', tok)
    m = re.match(r'^abs\((.*)\)$', tok)
    if m: tok = m.group(1)
    m = re.match(r'^([vas])(\d+)$', tok)
    if m: return {(m.group(1), int(m.group(2)))}
    m = re.match(r'^([vas])\[(\d+):(\d+)\]$', tok)
    if m: return {(m.group(1), i) for i in range(int(m.group(2)), int(m.group(3)) + 1)}
    if tok == 'vcc': return {('s', 'vcc')}
    if tok == 'exec': return {('s', 'exec')}
    if tok == 'm0': return {('s', 'm0')}
    return set()

TRANS = ('v_exp_f32', 'v_rcp_f32', 'v_sqrt_f32', 'v_rsq_f32', 'v_log_f32')

class Ins:
    def __init__(self, text):
        self.text = text
        parts = text.split(None, 1)
        self.mn = parts[0]
        rest = parts[1] if len(parts) > 1 else ''
        ops, depth, cur = [], 0, ''
        for ch in rest:
            if ch in '[(': depth += 1
            if ch in '])': depth -= 1
            if ch == ',' and depth == 0: ops.append(cur.strip()); cur = ''
            else: cur += ch
        if cur.strip(): ops.append(cur.strip())
        self.mods = ''
        if ops:
            sp = ops[-1].split(None, 1)
            ops[-1] = sp[0]
            if len(sp) > 1: self.mods = sp[1]
        self.ops = ops
        mn = self.mn
        self.kind = ('mfma' if mn.startswith('v_mfma') else 'valu' if mn.startswith('v_') else
                     'ds' if mn.startswith('ds_') else 'vmem' if mn.startswith(('buffer_', 'global_')) else 'salu')
        R = [regs_of(o) for o in ops]
        self.w, self.r = set(), set()
        self.states = 1
        self.lds_dma = False
        self.wide_store = False
        if self.kind == 'mfma':
            self.w = R[0]; self.A, self.B, self.C = R[1], R[2], R[3]; self.r = R[1] | R[2] | R[3]
            self.passes = 8 if '32x32x16' in mn else 4
        elif self.kind == 'valu':
            if mn == 'v_nop': pass
            else:
                self.w = set(R[0]); self.r = set().union(*R[1:]) if len(R) > 1 else set()
                if mn.startswith(('v_fmac', 'v_dot2c', 'v_permlane')): self.r |= R[0]
                if mn.startswith('v_permlane'): self.w |= R[1]
                if mn.startswith(('v_add_co', 'v_sub_co', 'v_addc_co')): self.w |= R[1];
                if mn.startswith('v_cndmask') and len(ops) == 3: self.r |= {('s', 'vcc')}
        elif self.kind == 'ds':
            if mn.startswith('ds_read'): self.w = R[0]; self.r = set().union(*R[1:])
            else: self.r = set().union(*R)
        elif self.kind == 'vmem':
            if mn == 'buffer_wbl2' or mn == 'buffer_inv': pass
            elif 'lds' in self.mods.split():
                self.lds_dma = True; self.r = set().union(*R) | {('s', 'm0')}
            elif '_load_' in mn:
                self.w = R[0]; self.r = set().union(*R[1:])
                if 'd16' in mn: self.r |= R[0]
            else:
                self.r = set().union(*R)
                self.data = R[1] if mn.startswith('global_') else R[0]
                self.wide_store = mn.endswith(('x3', 'x4'))
        else:
            if mn == 's_nop': self.states = int(ops[0]) + 1
            elif mn.startswith(('s_cmp', 's_cbranch', 's_branch', 's_waitcnt', 's_barrier', 's_sleep', 's_setprio', 's_endpgm')):
                self.r = set().union(*R) if R else set()
            else:
                self.w = set(R[0]) if R else set(); self.r = set().union(*R[1:]) if len(R) > 1 else set()
                if 'saveexec' in mn: self.w |= {('s', 'exec')}

def vec(x): return {r for r in x if r[0] in 'va'}
def sca(x): return {r for r in x if r[0] == 's'}

def need(p, c):
    n = 0
    if p.kind == 'valu':
        wv, ws = vec(p.w), sca(p.w)
        isdot = p.mn.startswith('v_dot')
        if c.kind == 'mfma' and wv & c.r: n = max(n, 3 if isdot else 2)
        if c.kind == 'valu':
            if wv & c.r:
                if c.mn.startswith(('v_readfirstlane', 'v_readlane')): n = max(n, 1)
                if c.mn.startswith('v_permlane') or 'dpp' in c.mn or 'row_' in c.mods or 'quad_perm' in c.mods: n = max(n, 2)
                if p.mn in TRANS and c.mn not in TRANS: n = max(n, 1)
            if ws & c.r: n = max(n, 2)
        if isdot and (wv & (c.r | c.w)):
            same_acc = c.mn == p.mn and c.w == p.w and not (wv & set().union(*[regs_of(o) for o in c.ops[1:3]]))
            if not same_acc: n = max(n, 3)
        if c.kind == 'vmem' and ws & c.r: n = max(n, 5)
    elif p.kind == 'mfma':
        P = p.passes
        if c.kind == 'mfma':
            if p.w & (c.A | c.B): n = max(n, P + 4)
            if p.w & c.C and not (c.C == p.w and c.mn == p.mn): n = max(n, P + 2)
            if p.w & c.w and not (c.w == p.w and c.mn == p.mn): n = max(n, P + 2)
        elif c.kind in ('valu', 'ds', 'vmem'):
            if p.w & (c.r | c.w): n = max(n, P + 4)
            if c.kind == 'valu' and p.C & c.w: n = max(n, P - 1)
    elif p.kind == 'vmem' and p.wide_store:
        if p.data & c.w: n = max(n, 2 if c.kind in ('valu', 'mfma') else 1)
    elif p.kind == 'salu':
        if ('s', 'm0') in p.w and c.lds_dma: n = max(n, 1)
    return n

class Asm:
    def __init__(self):
        self.lines = []
        self.hist = []
        self.vm_n = 0; self.vm_done = 0
        self.lg_n = 0; self.lg_done = 0
        self.pend = {}
        self.nlabel = 0
        self.nops = 0
    def raw(self, s): self.lines.append(s)
    def comment(self, s): self.lines.append('    ; ' + s)
    def _push(self, ins):
        self.lines.append('    ' + ins.text)
        self.hist.append(ins)
        if len(self.hist) > 24: self.hist.pop(0)
    def wait_vm(self, seq):
        if seq <= self.vm_done: return
        n = min(self.vm_n - seq, 63)
        self._push(Ins(f's_waitcnt vmcnt({n})'))
        self.vm_done = self.vm_n - n
    def wait_lg(self, seq):
        if seq <= self.lg_done: return
        n = min(self.lg_n - seq, 15)
        self._push(Ins(f's_waitcnt lgkmcnt({n})'))
        self.lg_done = self.lg_n - n
    def wait_all_lg(self): self.wait_lg(self.lg_n)
    def wait_all_vm(self): self.wait_vm(self.vm_n)
    def __call__(self, text, track=True):
        ins = Ins(text)
        vm = lg = 0
        for r in (ins.r | ins.w):
            if r in self.pend:
                cls, seq = self.pend[r]
                if cls == 'vm': vm = max(vm, seq)
                else: lg = max(lg, seq)
        if vm: self.wait_vm(vm)
        if lg: self.wait_lg(lg)
        for r in (ins.r | ins.w): self.pend.pop(r, None)
        dist = 0; pad = 0
        for p in reversed(self.hist):
            pad = max(pad, need(p, ins) - dist)
            dist += p.states
        while pad > 0:
            k = min(pad, 16)
            self._push(Ins(f's_nop {k-1}')); pad -= k; self.nops += k
        self._push(ins)
        if not track: return None
        if ins.kind == 'vmem':
            self.vm_n += 1
            assert self.vm_n - self.vm_done <= 63, "too many vm ops in flight: " + text
            for r in ins.w: self.pend[r] = ('vm', self.vm_n)
            return self.vm_n
        if ins.kind == 'ds':
            self.lg_n += 1
            for r in ins.w: self.pend[r] = ('lg', self.lg_n)
            return self.lg_n
        return None
    def label(self, name=None):
        if name is None:
            self.nlabel += 1; name = f'L{self.nlabel}'
        return name
    def place(self, name): self.lines.append(name + ':')
    def text(self): return '\n'.join(self.lines) + '\n'

def interleave(a, main, fill, first=0, per=1):
    def do(x):
        if callable(x): x()
        else: a(x)
    fi = 0; acc = 0.0
    for i, m in enumerate(main):
        do(m)
        if i >= first:
            acc += per
            while acc >= 1 and fi < len(fill):
                do(fill[fi]); fi += 1; acc -= 1
    while fi < len(fill):
        do(fill[fi]); fi += 1
```

```python
import sys
from emit import Asm, interleave

NAME = "parallel_sum__ssm_conv_h3__dense_activation_silu__prompt_kernel"
OPT = dict(stamps=0, fast=1, nt=0, wb=1)
for x in sys.argv[2:]:
    k, v = x.split('='); OPT[k] = int(v)

WS_E, WS_FLAG, WS_STAMP, WS_U, WS_Y, WS_H, WS_SIZE = 0, 0x10000, 0x40000, 0x100000, 0x300000, 0x500000, 0x1000000
OOB = 0x7f000000
SLOT = 28672
CV = 114688; CVCH = 17664; U1OFF = 4640; HAOFF = 9184; HBD = 4228
XST = 150016; STATS = 158208; CSUM = 159232
LDS_SIZE = 163840
def w2slot(s): return s * 4096 if s < 36 else (s - 36) * 4096
Q, K, V, SH, HK, W1, W2, OUT, WS = 4, 8, 12, 16, 20, 24, 28, 32, 36
def srd(r): return f's[{r}:{r+3}]'
sD, sE, sT, sM1, st, sDS, sCP, sW, sXCC, sTAG, sBASE, sP0 = [f's{i}' for i in range(42, 54)]
sXO, sW1O, sHS, sHS3, sW2O, sHL, sA, sB, sM0W, sW4K, sW3K, sSELLO, sSELHI, sONES = [f's{i}' for i in range(54, 68)]
sPAIR = 's[68:69]'
sSPIN, sTH, sKH, sMASK, sFLG, sI = [f's{i}' for i in range(70, 76)]
sFAST = 's100'; sT0 = 's[98:99]'
sA, sB, sF = 's81', 's82', 's83'
def v(n, c=1): return f'v{n}' if c == 1 else f'v[{n}:{n+c-1}]'
def a_(n, c=1): return f'a{n}' if c == 1 else f'a[{n}:{n+c-1}]'
vLANE, vL16 = 1, 2
vXA, vWA, vXR, vWR = 4, 8, 12, 20
vFL, vP13, vP2, vPX = 28, 29, 30, 31
NT = ' nt' if OPT['nt'] else ''

a = Asm()
nstamp = [0]
def stamp():
    if not OPT['stamps']: return
    k = nstamp[0]; nstamp[0] += 1
    a.wait_all_lg()
    a(f's_memtime s[96:97]'); a('s_waitcnt lgkmcnt(0)')
    if k == 0: a(f's_mov_b64 {sT0}, s[96:97]')
    a(f's_sub_u32 s96, s96, s98')
    a(f'v_mov_b32 v3, s96')
    a(f'v_accvgpr_write_b32 a{240+k}, v3')

def dma(vaddr, rs, soff, m0expr, extra=''):
    a(m0expr)
    return a(f'buffer_load_dwordx4 {v(vaddr)}, {srd(rs)}, {soff} offen{extra} lds')

def flag_store(phase):
    a(f's_add_u32 {sF}, {sFLG}, {8*phase}')
    a(f'v_mov_b32 v252, {sF}')
    a(f'v_mov_b32 v253, {sTAG}')
    a('s_mov_b64 exec, 1')
    r = a(f'buffer_store_dwordx2 v[252:253], {v(vFL)}, {srd(WS)}, 0 offen sc1')
    a('s_mov_b64 exec, -1')
    return r

def poll_issue(vaddr, dst):
    return a(f'buffer_load_dwordx2 {v(dst,2)}, {v(vaddr)}, {srd(WS)}, 0 offen sc1')

def poll_check(vaddr, dst, phase, tmp):
    top, done = a.label(), a.label()
    a(f's_add_u32 {sF}, {sBASE}, {8*phase}')
    a(f's_mov_b32 {sSPIN}, 0')
    a(f'v_mov_b32 {v(tmp)}, {v(dst)}')
    a.place(top)
    a(f'v_subrev_u32 {v(tmp)}, {sF}, {v(dst)}')
    a(f'v_cmp_gt_u32 vcc, {32-8*phase}, {v(tmp)}')
    a(f'v_cmp_eq_u32 {sPAIR}, {sTAG}, {v(dst+1)}')
    a(f's_and_b64 vcc, vcc, {sPAIR}')
    a('s_cmp_eq_u64 vcc, exec')
    a(f's_cbranch_scc1 {done}')
    a(f's_add_u32 {sSPIN}, {sSPIN}, 1')
    a(f's_cmp_gt_u32 {sSPIN}, 0x20000')
    a(f's_cbranch_scc1 {done}')
    a('s_sleep 2')
    a(f'buffer_load_dwordx2 {v(dst,2)}, {v(vaddr)}, {srd(WS)}, 0 offen sc1', track=False)
    a('s_waitcnt vmcnt(0)')
    a(f's_branch {top}')
    a.place(done)

a('s_cmp_ge_u32 s2, 256')
a('s_cbranch_scc1 L_end')
a('s_load_dwordx16 s[76:91], s[0:1], 0')
a('s_load_dwordx8 s[92:99], s[0:1], 64')
a('v_and_b32 v1, 63, v0')
a('v_lshrrev_b32 v3, 6, v0')
a('s_lshr_b32 %s, s2, 3' % sI)
a(f'v_readfirstlane_b32 {sW}, v3')
a('s_getpc_b64 s[60:61]')
a.place('L_pc')
a(f's_and_b32 s62, {sI}, 3')
a('s_lshl_b32 s62, s62, 13')
a(f's_lshl_b32 s63, {sW}, 11')
a('s_add_u32 s62, s62, s63')
a('v_lshlrev_b32 v3, 7, v1')
a('v_add_u32 v3, s62, v3')
a('v_min_u32 v3, L_end-L_pc, v3')
a('s_mov_b64 exec, 0xffff')
a('global_load_dword v255, v3, s[60:61]')
a('s_mov_b64 exec, -1')
a('s_and_b32 s60, s2, 7')
a(f's_and_b32 s61, {sI}, 1')
a(f's_lshl_b32 {sT}, s60, 1')
a(f's_add_u32 {sT}, {sT}, s61')
a(f's_lshr_b32 {sM1}, {sI}, 1')
a(f's_and_b32 s61, {sM1}, 1')
a(f's_lshl_b32 {st}, {sT}, 1')
a(f's_add_u32 {st}, {st}, s61')
a(f's_lshr_b32 {sDS}, {sI}, 2')
a(f's_lshl_b32 {sCP}, {sDS}, 5')
a(f's_add_u32 {sCP}, {sCP}, {st}')
a('v_and_b32 v131, 15, v1')
a('v_lshrrev_b32 v132, 4, v1')
a(f's_lshl_b32 s60, {st}, 16')
a(f's_lshl_b32 s61, {sW}, 14')
a('s_add_u32 s60, s60, s61')
a(f's_lshl_b32 s61, {sDS}, 7')
a('s_add_u32 s60, s60, s61')
a('v_lshlrev_b32 v128, 12, v132')
a('v_lshl_add_u32 v128, v131, 3, v128')
a('v_add_u32 v128, s60, v128')
a('v_subrev_u32 v129, 3072, v128')
a(f's_lshl_b32 s61, {sDS}, 9')
a('v_lshlrev_b32 v130, 5, v131')
a('v_add_u32 v130, s61, v130')
a('s_mov_b32 s101, s60')
for r, n in ((Q, 2097152), (K, 2097152), (V, 2097152), (SH, 4096), (HK, 2097152), (W1, 1409024), (W2, 1409024), (OUT, 2097152), (WS, WS_SIZE)):
    a(f's_mov_b32 s{r+2}, {n}'); a(f's_mov_b32 s{r+3}, 0x20000')
a('s_waitcnt lgkmcnt(0)')
a(f's_mov_b64 s[{K}:{K+1}], s[78:79]')
a(f's_mov_b64 s[{V}:{V+1}], s[80:81]')
a(f's_mov_b64 s[{SH}:{SH+1}], s[82:83]')
KR, VR, SR = 136, 150, 160
for r in range(7):
    if r < 3: a(f'buffer_load_dwordx2 {v(KR+2*r,2)}, v129, {srd(K)}, 0 offen offset:{1024*r}{NT}')
    else: a(f'buffer_load_dwordx2 {v(KR+2*r,2)}, v128, {srd(K)}, 0 offen offset:{1024*(r-3)}{NT}')
a(f'buffer_load_dwordx4 {v(SR,4)}, v130, {srd(SH)}, 0 offen')
a(f'buffer_load_dwordx4 {v(SR+4,4)}, v130, {srd(SH)}, 0 offen offset:16')
for r in range(4):
    a(f'buffer_load_dwordx2 {v(VR+2*r,2)}, v128, {srd(V)}, 0 offen offset:{1024*r}{NT}')
a(f's_mov_b64 s[{Q}:{Q+1}], s[76:77]')
a(f's_mov_b64 s[{HK}:{HK+1}], s[84:85]')
a(f's_mov_b64 s[40:41], s[86:87]')
a(f's_mov_b64 s[{W1}:{W1+1}], s[90:91]')
a(f's_mov_b64 s[{W2}:{W2+1}], s[92:93]')
a(f's_mov_b64 s[{OUT}:{OUT+1}], s[94:95]')
a(f's_mov_b64 s[{WS}:{WS+1}], s[98:99]')
a(f's_load_dword {sE}, s[{WS}:{WS+1}], {WS_E}')
a(f's_lshl_b32 s60, {sCP}, 2')
a(f's_load_dword {sD}, s[40:41], s60')
a(f's_getreg_b32 {sXCC}, hwreg(HW_REG_XCC_ID, 0, 3)')
a('v_lshrrev_b32 v133, 3, v1')
a('v_and_b32 v134, 7, v1')
a('v_xor_b32 v135, v134, v132')
a('v_lshlrev_b32 v133, 10, v133')
a(f'v_lshl_add_u32 {v(vXA)}, v135, 4, v133')
a(f'v_xor_b32 {v(vXA+1)}, 64, {v(vXA)}')
a(f'v_add_u32 {v(vXA+1)}, 8192, {v(vXA+1)}')
a(f'v_add_u32 {v(vXA+2)}, 16384, {v(vXA)}')
a(f'v_add_u32 {v(vXA+3)}, 16384, {v(vXA+1)}')
a(f's_lshl_b32 {sXO}, {sT}, 17')
a(f's_lshl_b32 s60, {sW}, 15')
a(f's_add_u32 {sXO}, {sXO}, s60')
a(f's_lshl_b32 {sW4K}, {sW}, 12')
a(f's_lshl_b32 {sM0W}, {sW}, 10')
a(f's_mul_i32 {sW3K}, {sW}, 3072')
a(f's_mul_i32 {sP0}, {sM1}, 3')
a(f's_lshl_b32 s60, {sM1}, 1')
a('s_add_u32 s60, s60, 11')
a(f's_min_u32 {sP0}, {sP0}, s60')
a(f's_cmp_lt_u32 {sM1}, 11')
a('s_cselect_b32 s61, 12, 8')
for j in range(3):
    a(f'v_add_u32 v133, {64*j}, v1')
    a('v_mul_u32_u24 v134, 5462, v133')
    a('v_lshrrev_b32 v134, 16, v134')
    a('v_mul_u32_u24 v135, 12, v134')
    a('v_sub_u32 v135, v133, v135')
    a('v_mul_u32_u24 v134, 2752, v134')
    a(f'v_lshl_add_u32 {v(vWA+j)}, v135, 4, v134')
    a('v_cmp_gt_u32 vcc, s61, v135')
    a(f'v_mov_b32 v133, {OOB}')
    a(f'v_cndmask_b32 {v(vWA+j)}, v133, {v(vWA+j)}, vcc')
a(f's_mul_i32 {sW1O}, {sW}, {16*2752}')
a(f's_lshl_b32 s60, {sP0}, 6')
a(f's_add_u32 {sW1O}, {sW1O}, s60')

chunk_last = {}
def g1_dma_ops(c):
    slot = (c % 4) * SLOT
    ops = []
    def xop(n):
        def f():
            if n == 0: a(f's_add_u32 {sA}, {sXO}, {c*128}')
            chunk_last[c] = dma(vXA+n, Q, sA, f's_add_u32 m0, {sW4K}, {slot + n*1024}')
        return f
    def wop(j):
        def f():
            if j == 0: a(f's_add_u32 {sB}, {sW1O}, {c*64*2752}')
            chunk_last[c] = dma(vWA+j, W1, sB, f's_add_u32 m0, {sW3K}, {slot + 16384 + j*1024}')
        return f
    return [wop(0), wop(1), wop(2), xop(0), xop(1), xop(2), xop(3)]
for c in (0, 1):
    for f in g1_dma_ops(c): f()
stamp()
a(f'v_lshlrev_b32 {v(vL16)}, 4, v1')
a(f's_mov_b32 {sSELLO}, 0x05040100'); a(f's_mov_b32 {sSELHI}, 0x07060302')
a(f's_mov_b32 {sONES}, 0x3f803f80'); a(f's_mov_b32 {sMASK}, 0xffff0000')
a(f's_and_b32 {sTH}, {sW}, 1'); a(f's_lshr_b32 {sKH}, {sW}, 1')
a('v_and_b32 v133, 31, v1')
a('v_lshrrev_b32 v134, 5, v1')
a('v_bfe_u32 v135, v1, 1, 3')
a('v_xor_b32 v135, v135, v134')
a('v_lshlrev_b32 v135, 4, v135')
a('v_lshl_add_u32 v135, v133, 7, v135')
a('v_mov_b32 v250, v135')
a(f'v_add_u32 v135, {sW4K}, v135')
a('v_bfe_u32 v133, v1, 2, 2')
a('v_lshl_add_u32 v133, v134, 3, v133')
a('v_mul_u32_u24 v133, 192, v133')
a('v_bfe_u32 v168, v1, 4, 1')
a('v_lshl_add_u32 v133, v168, 5, v133')
a('v_and_b32 v168, 3, v1')
a('v_lshl_add_u32 v133, v168, 3, v133')
for i in range(4):
    a(f's_add_u32 s60, {sW}, {i}')
    a('s_and_b32 s60, s60, 3')
    a('s_lshl_b32 s61, s60, 5')
    a(f'v_xor_b32 {v(vXR+i)}, s61, v135')
    a(f'v_add_u32 {v(vXR+4+i)}, {2*SLOT}, {v(vXR+i)}')
    a('s_mul_i32 s61, s60, 3072')
    a(f'v_add_u32 {v(vWR+i)}, s61, v133')
    a(f'v_add_u32 {v(vWR+4+i)}, {2*SLOT}, {v(vWR+i)}')
a(f's_lshl_b32 s60, {sCP}, 7'); a(f's_lshl_b32 s61, {sW}, 3'); a('s_add_u32 s60, s60, s61'); a(f's_add_u32 s60, s60, {WS_FLAG}')
a(f'v_mov_b32 {v(vFL)}, s60')
a(f's_lshl_b32 s60, {sDS}, 12'); a(f's_lshr_b32 s61, {st}, 3'); a('s_lshl_b32 s61, s61, 3'); a('s_add_u32 s60, s60, s61'); a(f's_add_u32 s60, s60, {WS_FLAG}')
a('v_and_b32 v133, 31, v1')
a('v_lshlrev_b32 v133, 7, v133')
a(f'v_add_u32 {v(vP13)}, s60, v133')
a('v_and_b32 v133, 7, v1')
a('v_lshlrev_b32 v133, 12, v133')
a('v_bfe_u32 v134, v1, 3, 1')
a('v_lshl_add_u32 v134, v134, 7, v133')
a(f's_lshl_b32 s60, {sT}, 8'); a(f's_add_u32 s60, s60, {WS_FLAG}')
a(f's_and_b32 s61, {st}, 1'); a('s_lshl_b32 s61, s61, 1'); a(f's_add_u32 s61, s61, {sTH}'); a('s_lshl_b32 s61, s61, 3')
a('s_add_u32 s61, s61, s60')
a(f'v_add_u32 {v(vP2)}, s61, v134')
a(f's_lshl_b32 s61, {sKH}, 7'); a('s_add_u32 s61, s61, s60')
a(f'v_add_u32 {v(vPX)}, s61, v133')
a('s_waitcnt lgkmcnt(0)')
a(f's_add_u32 {sTAG}, {sE}, 1')
a(f's_not_b32 {sBASE}, {sTAG}')
a(f's_lshl_b32 {sBASE}, {sBASE}, 5')
a(f's_add_u32 {sFLG}, {sBASE}, {sXCC}')
flag_store(0)

WP, KU, VU, TP, OP = 168, 184, 212, 228, 236
def unpack(dlo, dhi, src):
    a(f'v_lshlrev_b32 {v(dlo)}, 16, {v(src)}'); a(f'v_and_b32 {v(dhi)}, {sMASK}, {v(src)}')
for r in range(7):
    for p in range(2): unpack(KU+4*r+2*p, KU+4*r+2*p+1, KR+2*r+p)
for c in range(4):
    p, e = c >> 1, c & 1
    for jj in range(2):
        unpack(WP+8*p+4*jj+e, WP+8*p+4*jj+2+e, SR+2*c+jj)
for r in range(4):
    for p in range(2): unpack(VU+4*r+2*p, VU+4*r+2*p+1, VR+2*r+p)
for p in range(2):
    for i in range(4): a(f'v_pk_mul_f32 {v(TP+2*i,2)}, {v(KU+4*i+2*p,2)}, {v(WP+8*p+6,2)}')
    for j in (2, 1, 0):
        for i in range(4): a(f'v_pk_fma_f32 {v(TP+2*i,2)}, {v(KU+4*(i+3-j)+2*p,2)}, {v(WP+8*p+2*j,2)}, {v(TP+2*i,2)}')
    for i in range(4): a(f'v_pk_mul_f32 {v(TP+2*i,2)}, {v(TP+2*i,2)}, {v(VU+4*i+2*p,2)}')
    for i in range(4): a(f'v_cvt_pk_bf16_f32 {v(OP+4*p+i)}, {v(TP+2*i)}, {v(TP+2*i+1)}')
a(f's_lshl_b32 s60, {sW}, 2')
a('v_add_u32 v133, s60, v132')
a('v_and_b32 v134, 7, v131')
a('v_xor_b32 v133, v133, v134')
a('v_lshlrev_b32 v133, 4, v133')
a('v_lshl_add_u32 v133, v131, 9, v133')
a(f'v_add_u32 v133, {XST}, v133')
a(f'ds_write_b128 v133, {v(OP,4)}')
a(f'ds_write_b128 v133, {v(OP+4,4)} offset:256')
a(f's_lshl_b32 s60, {sW}, 3')
a('v_add_u32 v134, s60, v132')
a('v_bfe_u32 v135, v134, 1, 3')
a('v_xor_b32 v135, v135, v131')
a('v_lshlrev_b32 v135, 4, v135')
a('v_lshl_add_u32 v135, v134, 8, v135')
a(f'v_add_u32 v135, {XST}, v135')
a('v_xor_b32 v133, 32, v135')
a('v_lshlrev_b32 v134, 13, v134')
a('v_lshl_add_u32 v134, v131, 4, v134')
a('v_add_u32 v130, 32768, v134')
a(f's_lshl_b32 s60, {sDS}, 18'); a(f's_lshl_b32 s61, {st}, 8'); a('s_add_u32 s60, s60, s61'); a(f's_add_u32 s60, s60, {WS_U}')
a.wait_all_lg()
a('s_barrier')
a(f'ds_read_b128 {v(OP,4)}, v135')
a(f'ds_read_b128 {v(OP+4,4)}, v133 offset:1024')
a(f'buffer_store_dwordx4 {v(OP,4)}, v134, {srd(WS)}, s60 offen sc1')
u_st = a(f'buffer_store_dwordx4 {v(OP+4,4)}, v130, {srd(WS)}, s60 offen sc1')
stamp()
for f in g1_dma_ops(2): f()

a(f's_mul_i32 s60, {sKH}, {CVCH}')
a(f's_add_u32 s60, s60, {CV}')
a(f's_mul_i32 s61, {sTH}, {U1OFF}')
a('s_add_u32 s61, s61, s60')
a('v_min_u32 v133, 27, v1')
a('v_lshlrev_b32 v133, 4, v133')
a('v_add_u32 v133, s61, v133')
for i in range(4): a(f'v_mov_b32 v{140+i}, 0')
a('ds_write_b128 v133, v[140:143]')
a(f's_mul_i32 s61, {sTH}, {HBD}')
a('s_add_u32 s61, s61, s60')
a(f's_add_u32 s61, s61, {HAOFF}')
a('v_lshlrev_b32 v133, 2, v131')
a('v_add_u32 v133, s61, v133')
a('ds_write_b32 v133, v140')
sHM0, sHSO = 's76', 's77'
a(f's_add_u32 {sHM0}, s61, 64')
a(f's_lshl_b32 {sHSO}, {sCP}, 13'); a(f's_lshl_b32 s61, {sKH}, 12'); a(f's_add_u32 {sHSO}, {sHSO}, s61')
def h_dma_ops():
    def f(n):
        def g():
            a(f's_mov_b32 m0, {sHM0}')
            chunk_last['h'] = a(f'buffer_load_dwordx4 {v(vL16)}, {srd(HK)}, {sHSO} offen offset:{n*1024}{NT} lds')
        return g
    return [f(n) for n in range(4)]
def stash_ops():
    def f(n):
        def g():
            a(f's_lshl_b32 s60, {sW}, 11')
            chunk_last['st'] = dma(vXA+n, Q, 's101', f's_add_u32 m0, s60, {XST + n*1024}')
        return g
    return [f(0), f(1)]

ACC, XF, WF, SU, SQ, CS = 32, 80, 96, 120, 122, 124
for r in range(SU, CS+3): a(f'v_mov_b32 {v(r)}, 0')
UR = 240
for c in range(8):
    a.wait_vm(chunk_last[c])
    if c == 2: flag_store(1)
    a('s_barrier')
    st_ = 4 * ((c % 4) >> 1); off = (c & 1) * SLOT
    def rdx(i): return f'ds_read_b128 {v(XF+4*i,4)}, {v(vXR+st_+i)} offset:{off}'
    def rdw(i):
        return [f'ds_read_b64_tr_b16 {v(WF+12*(i&1)+4*ft+2*rd,2)}, {v(vWR+st_+i)} offset:{off+16384+rd*768+ft*64}' for ft in range(3) for rd in range(2)]
    a(rdx(0))
    for x in rdw(0): a(x)
    for i in (1, 2, 3): a(rdx(i))
    extra = []
    if c + 3 < 8: extra = g1_dma_ops(c + 3)
    elif c == 5: extra = h_dma_ops() + stash_ops()
    elif c == 6: extra = [lambda: poll_issue(vPX, 246)]
    elif c == 7: extra = [lambda: poll_issue(vP13, 244)]
    if c == 7:
        a(f'v_subrev_u32 v128, {sFLG}, v246')
        a('v_and_b32 v128, 0xffffffe7, v128')
        a('v_cmp_eq_u32 vcc, 0, v128')
        a(f'v_cmp_eq_u32 {sPAIR}, {sTAG}, v247')
        a(f's_and_b64 vcc, vcc, {sPAIR}')
        a('s_cmp_eq_u64 vcc, exec')
        a(f's_cselect_b32 {sFAST}, {OPT["fast"]}, 0')
    for i in range(4):
        fill = []
        if i < 3: fill += rdw(i + 1)
        if i == 0:
            fill += [f'v_dot2c_f32_bf16 {v(CS+ft)}, {sONES}, {v(WF+4*ft+d)}' for d in range(4) for ft in range(3)]
        for d in range(4):
            fill += [f'v_dot2c_f32_bf16 {v(SU+(d&1))}, {sONES}, {v(XF+4*i+d)}', f'v_dot2c_f32_bf16 {v(SQ+(d&1))}, {v(XF+4*i+d)}, {v(XF+4*i+d)}']
        if i >= 1:
            k = (len(extra) + 2) // 3
            fill += extra[(i-1)*k:i*k]
        mm = []
        for ft in range(3):
            cin = '0' if (c == 0 and i == 0) else v(ACC+16*ft, 16)
            mm.append(f'v_mfma_f32_32x32x16_bf16 {v(ACC+16*ft,16)}, {v(WF+12*(i&1)+4*ft,4)}, {v(XF+4*i,4)}, {cin}')
        interleave(a, mm, fill, per=(len(fill) + 2) // 3)
        if c == 7 and i == 0:
            a(f's_lshl_b32 s60, {sW}, 2'); a(f's_add_u32 s60, s60, {CSUM}')
            a(f'v_add_u32 v128, s60, {v(vL16)}')
            for ft in range(3):
                a(f'v_and_b32 v{130+ft}, {sMASK}, {v(CS+ft)}')
                a(f'v_sub_f32 v{133+ft}, {v(CS+ft)}, v{130+ft}')
                a(f'v_cvt_pk_bf16_f32 v{130+ft}, v{130+ft}, v{133+ft}')
                a(f'ds_write_b32 v128, v{130+ft} offset:{1024*ft}')
        if c == 7 and i == 2:
            a.wait_all_lg()
            a('s_barrier')
            a(f'v_add_u32 v128, {CSUM}, {v(vL16)}')
            for ft in range(3): a(f'ds_read_b128 {v(136+4*ft,4)}, v128 offset:{1024*ft}')
stamp()
a(f'v_add_f32 {v(SU)}, {v(SU)}, {v(SU+1)}'); a(f'v_add_f32 {v(SQ)}, {v(SQ)}, {v(SQ+1)}')
a(f'v_mov_b32 {v(SU+1)}, {v(SU)}'); a(f'v_mov_b32 {v(SQ+1)}, {v(SQ)}')
a(f'v_permlane32_swap_b32 {v(SU)}, {v(SU+1)}'); a(f'v_permlane32_swap_b32 {v(SQ)}, {v(SQ+1)}')
a(f'v_add_f32 {v(SU)}, {v(SU)}, {v(SU+1)}'); a(f'v_add_f32 {v(SQ)}, {v(SQ)}, {v(SQ+1)}')
a(f'v_mul_f32 {v(SU)}, 0x3b000000, {v(SU)}')
a(f'v_mul_f32 {v(SQ)}, 0x3b000000, {v(SQ)}')
a(f'v_fma_f32 {v(SQ)}, -{v(SU)}, {v(SU)}, {v(SQ)}')
a(f'v_max_f32 {v(SQ)}, 0, {v(SQ)}')
a(f'v_cvt_pk_bf16_f32 v128, {v(SU)}, {v(SQ)}')
a('v_xor_b32 v129, 0x8000, v128')
a(f'v_perm_b32 v148, v129, v129, {sSELLO}')
for i in range(1, 4): a(f'v_mov_b32 v{148+i}, v148')
for ft in range(3):
    a(f'v_mfma_f32_32x32x16_bf16 {v(ACC+16*ft,16)}, {v(136+4*ft,4)}, v[148:151], {v(ACC+16*ft,16)}')
vM, vRS, vS, vC3 = 152, 153, 154, 156
a(f'v_lshlrev_b32 {v(vM)}, 16, v128')
a(f'v_and_b32 v129, {sMASK}, v128')
a('v_add_f32 v129, 0x3727c5ac, v129')
a('v_cvt_pk_bf16_f32 v129, v129, v129')
a('v_lshlrev_b32 v129, 16, v129')
a('v_sqrt_f32 v129, v129')
a('v_cvt_pk_bf16_f32 v129, v129, v129')
a(f'v_lshlrev_b32 {v(vS)}, 16, v129')
a(f'v_rcp_f32 {v(vRS)}, {v(vS)}')
a(f'v_mul_f32 {v(vC3)}, 0xbfb8aa3b, {v(vRS)}')
a(f's_lshl_b32 s60, {sW}, 8'); a(f's_add_u32 s60, s60, {STATS}')
a('v_and_b32 v129, 31, v1'); a('v_lshlrev_b32 v129, 3, v129'); a('v_add_u32 v129, s60, v129')
a(f'ds_write_b64 v129, {v(vM,2)}')
poll_check(vP13, 244, 1, 129)
a('v_lshlrev_b32 v129, 5, v0')
a('v_subrev_u32 v130, 4, v129')
a(f's_lshl_b32 s60, {sCP}, 13'); a(f's_add_u32 s60, s60, {WS_U}')
a(f'buffer_load_dwordx4 {v(UR,4)}, v129, {srd(WS)}, s60 offen sc1')
a(f'buffer_load_dwordx4 {v(UR+4,4)}, v129, {srd(WS)}, s60 offen offset:16 sc1')
a(f'buffer_load_dword {v(UR+8)}, v130, {srd(WS)}, s60 offen sc1')
a(f's_lshl_b32 s60, {sT}, 2'); a(f's_add_u32 s60, s60, {sW}'); a('s_mul_i32 s60, s60, 86')
a(f's_lshl_b32 s61, {sP0}, 1'); a('s_add_u32 s60, s60, s61'); a('s_lshl_b32 s60, s60, 10')
a(f's_add_u32 {sHS}, s60, {WS_H}')
a(f's_add_u32 {sHS3}, {sHS}, 4096')
a(f's_cmp_lt_u32 {sM1}, 11'); a(f's_cselect_b32 {sHS3}, {sHS3}, {OOB}')
TS, HO = 160, 176
h_st = None
for fr in range(6):
    base = ACC + 8*fr; t = TS + 8*(fr & 1); o = HO + 4*fr
    for p in range(4): a(f'v_pk_mul_f32 {v(t+2*p,2)}, {v(base+2*p,2)}, {v(vC3,2)} op_sel_hi:[1,0]')
    for e in range(8): a(f'v_exp_f32 {v(t+e)}, {v(t+e)}')
    for p in range(4): a(f'v_pk_fma_f32 {v(t+2*p,2)}, {v(t+2*p,2)}, {v(vS,2)}, {v(vS,2)} op_sel_hi:[1,0,0]')
    for e in range(8): a(f'v_rcp_f32 {v(t+e)}, {v(t+e)}')
    for p in range(4): a(f'v_pk_mul_f32 {v(t+2*p,2)}, {v(t+2*p,2)}, {v(base+2*p,2)}')
    for p in range(4): a(f'v_cvt_pk_bf16_f32 {v(o+p)}, {v(t+2*p)}, {v(t+2*p+1)}')
    so, im = (sHS, fr*1024) if fr < 4 else (sHS3, (fr-4)*1024)
    slow, join = a.label(), a.label()
    a(f's_cmp_eq_u32 {sFAST}, 0')
    a(f's_cbranch_scc1 {slow}')
    a(f'buffer_store_dwordx4 {v(o,4)}, {v(vL16)}, {srd(WS)}, {so} offen offset:{im}', track=False)
    a(f's_branch {join}')
    a.place(slow)
    h_st = a(f'buffer_store_dwordx4 {v(o,4)}, {v(vL16)}, {srd(WS)}, {so} offen offset:{im} sc1')
    a.place(join)
stamp()

vUA, vHA, vDU, vW2A, vAR = 208, 209, 210, 211, 212
PO = 160
for c in range(2):
    sel = sSELLO if c == 0 else sSELHI
    for k in range(4):
        hi0 = UR + 5 - 2*k if k < 3 else UR + 8
        a(f'v_perm_b32 {v(PO+8*c+k)}, {v(hi0)}, {v(UR+6-2*k)}, {sel}')
        a(f'v_perm_b32 {v(PO+8*c+4+k)}, {v(UR+6-2*k)}, {v(UR+7-2*k)}, {sel}')
a('v_lshlrev_b32 v129, 4, v0')
a(f'v_add_u32 v129, {CV+448}, v129')
for c in range(2):
    a(f'ds_write_b128 v129, {v(PO+8*c,4)} offset:{c*CVCH}')
    a(f'ds_write_b128 v129, {v(PO+8*c+4,4)} offset:{c*CVCH+U1OFF}')
a(f's_mul_i32 s60, {sKH}, {CVCH}'); a(f's_add_u32 s60, s60, {CV}')
a(f's_lshl_b32 s61, {sTH}, 8')
a('v_and_b32 v130, 15, v1'); a('v_lshrrev_b32 v131, 4, v1'); a('v_and_b32 v132, 1, v1')
a(f'v_mul_u32_u24 {v(vUA)}, {U1OFF}, v132')
a('v_lshrrev_b32 v133, 1, v130')
a('v_lshl_add_u32 v133, v133, 2, v131')
a(f'v_lshl_add_u32 {v(vUA)}, v133, 4, {v(vUA)}')
a(f's_sub_u32 {sA}, s60, s61'); a(f's_add_u32 {sA}, {sA}, {448-192}')
a(f'v_add_u32 {v(vUA)}, {sA}, {v(vUA)}')
a('v_xor_b32 v132, 1, v132')
a(f'v_mul_u32_u24 {v(vHA)}, {HBD}, v132')
a(f'v_lshl_add_u32 {v(vHA)}, v130, 2, {v(vHA)}')
a('v_lshlrev_b32 v133, 4, v131')
a(f'v_sub_u32 {v(vHA)}, {v(vHA)}, v133')
a(f's_add_u32 {sA}, s60, s61'); a(f's_add_u32 {sA}, {sA}, {HAOFF+64-12}')
a(f'v_add_u32 {v(vHA)}, {sA}, {v(vHA)}')
a('v_lshrrev_b32 v133, 2, v130')
a('v_lshlrev_b32 v133, 4, v133')
a('v_lshl_add_u32 v133, v131, 7, v133')
a('v_and_b32 v132, 3, v130'); a('v_xor_b32 v132, 3, v132')
a('v_lshl_add_u32 v133, v132, 2, v133')
a(f's_add_u32 {sA}, {sM0W}, {CV+U1OFF+448}')
a(f'v_add_u32 {v(vDU)}, {sA}, v133')
a('v_lshrrev_b32 v133, 3, v1'); a('v_and_b32 v132, 7, v1'); a('v_bfe_u32 v134, v1, 4, 1')
a('v_lshlrev_b32 v134, 2, v134'); a('v_xor_b32 v132, v132, v134')
a('v_lshlrev_b32 v133, 10, v133')
a(f'v_lshl_add_u32 {v(vW2A)}, v132, 4, v133')
a(f's_mul_i32 {sW2O}, {sKH}, {43*16*1024}'); a(f's_lshl_b32 s61, {sTH}, 13'); a(f's_add_u32 {sW2O}, {sW2O}, s61')
a(f's_lshl_b32 s61, {sDS}, 7'); a(f's_add_u32 {sW2O}, {sW2O}, s61')
a(f's_lshl_b32 s60, {st}, 1'); a(f's_add_u32 s60, s60, {sTH}'); a('s_mul_i32 s60, s60, 86')
a(f's_mul_i32 s61, {sKH}, 43'); a('s_add_u32 s60, s60, s61'); a('s_lshl_b32 s60, s60, 10')
a(f's_add_u32 {sHL}, s60, {WS_H}')
w2_seq = {}
def w2op(s):
    def f():
        a(f's_add_u32 {sB}, {sW2O}, {s*16384}')
        w2_seq[s] = dma(vW2A, W2, sB, f's_add_u32 m0, {sM0W}, {w2slot(s)}')
    return f
def hop(s):
    def f():
        if s % 4 == 0: a(f's_add_u32 s78, {sHL}, {s*1024}')
        a(f'buffer_load_dwordx4 {a_(4*s,4)}, {v(vL16)}, {srd(WS)}, s78 offen offset:{(s%4)*1024} sc1')
    return f
a.wait_vm(chunk_last['h'])
a.wait_all_lg()
a('s_barrier')
CA = 32
def FA(set_, mu): return 64 + 64*set_ + 4*mu
def FB(set_, nu): return 96 + 64*set_ + 4*nu
def rdA(rp, mu): return f'ds_read_b128 {v(FA(rp&1,mu),4)}, {v(vUA)} offset:{512*mu - 64*rp + 192}'
def rdB(rp, nu): return [f'ds_read_b64 {v(FB(rp&1,nu)+2*h,2)}, {v(vHA)} offset:{512*nu + 64*rp + 8*h}' for h in range(2)]
def reads(rp):
    r = rdB(rp, 0) + [rdA(rp, mu) for mu in range(8)]
    for nu in range(1, 8): r += rdB(rp, nu)
    return r
DU, DR = 192, 216
for x in reads(0)[:12]: a(x)
NH0 = 12
for rp in range(4):
    mm = []
    for nu in range(8):
        for mu in range(8 - nu):
            j = nu + mu
            cin = '0' if (rp == 0 and nu == 0) else v(CA+4*j, 4)
            mm.append(f'v_mfma_f32_16x16x32_bf16 {v(CA+4*j,4)}, {v(FA(rp&1,mu),4)}, {v(FB(rp&1,nu),4)}, {cin}')
    rd = (reads(0)[12:] if rp == 0 else []) + (reads(rp + 1) if rp < 3 else [])
    oth = []
    if rp == 0: oth = [w2op(s) for s in range(0, 8)]
    if rp == 1:
        def sig2():
            a.wait_vm(h_st); flag_store(2)
        oth = [sig2] + [w2op(s) for s in range(8, 18)]
        rd += [f'ds_read_b32 {v(DR+4*c+2*jj+h)}, {v(vDU)} offset:{c*CVCH + 512*jj + 64*h}' for c in range(2) for jj in range(2) for h in range(2)]
    if rp == 2:
        oth = [w2op(s) for s in range(18, 22)] + [lambda: poll_issue(vP2, 244)] + [w2op(s) for s in range(22, 28)]
        a(f's_lshl_b32 s79, {sD}, 16'); a(f's_and_b32 s80, {sD}, {sMASK}')
        for c in range(2):
            for jj in range(2):
                for h in range(2):
                    src = DR+4*c+2*jj+h; d = DU+8*jj+4*c+2*h
                    oth += [f'v_and_b32 {v(d)}, {sMASK}, {v(src)}', f'v_lshlrev_b32 {v(d+1)}, 16, {v(src)}',
                            f'v_mul_f32 {v(d)}, s{79+c}, {v(d)}', f'v_mul_f32 {v(d+1)}, s{79+c}, {v(d+1)}']
    if rp == 3:
        poll_check(vP2, 244, 2, 224)
        oth = [hop(s) for s in range(NH0)]
    fill = []
    n = max(len(rd), len(oth), 1)
    ir = io = 0
    for k in range(n):
        while ir < len(rd) and ir * n <= k * len(rd): fill.append(rd[ir]); ir += 1
        while io < len(oth) and io * n <= k * len(oth): fill.append(oth[io]); io += 1
    fill += rd[ir:] + oth[io:]
    if rp == 0: fill = rd[:12] + [x for x in fill if x not in rd[:12]]
    interleave(a, mm, fill, per=max(len(fill) / 34.0, 1.5 if rp == 0 else 0))
stamp()
a.wait_all_lg()
a('s_barrier')
a(f's_lshl_b32 s60, {sW}, 13'); a(f's_add_u32 s60, s60, {CV}')
a(f'v_add_u32 v224, s60, {v(vL16)}')
for j in range(8): a(f'ds_write_b128 v224, {v(CA+4*j,4)} offset:{1024*j}')
a(f's_lshl_b32 s60, {sW}, 11'); a(f's_add_u32 s60, s60, {CV}')
a(f'v_add_u32 v225, s60, {v(vL16)}')
a('v_lshrrev_b32 v226, 4, v1'); a('v_lshlrev_b32 v226, 16, v226'); a('v_and_b32 v227, 15, v1')
a('v_lshl_add_u32 v226, v227, 4, v226')
a(f's_lshl_b32 s60, {sW}, 19'); a(f's_lshl_b32 s61, {sCP}, 8'); a('s_add_u32 s60, s60, s61'); a(f's_add_u32 s79, s60, {WS_Y}')
a('s_add_u32 s80, s79, 0x40000')
a.wait_all_lg()
a('s_barrier')
XR = 64
for jj in range(2):
    for sw in range(4): a(f'ds_read_b128 {v(XR+16*jj+4*sw,4)}, v225 offset:{8192*sw + 1024*jj}')
y_st = None
for jj in range(2):
    for c in range(2):
        for hh in range(2):
            d = DU+8*jj+4*c+2*hh
            a(f'v_pk_add_f32 {v(d,2)}, {v(d,2)}, {v(XR+16*jj+8*c+2*hh,2)}')
            a(f'v_pk_add_f32 {v(d,2)}, {v(d,2)}, {v(XR+16*jj+8*c+4+2*hh,2)}')
    for r in range(4): a(f'v_cvt_pk_bf16_f32 {v(228+4*jj+r)}, {v(DU+8*jj+r)}, {v(DU+8*jj+4+r)}')
    y_st = a(f'buffer_store_dwordx4 {v(228+4*jj,4)}, v226, {srd(WS)}, s{79+jj} offen sc1')
stamp()

a('v_bfe_u32 v130, v1, 2, 2'); a('v_lshrrev_b32 v131, 5, v1')
a('v_lshl_add_u32 v132, v131, 2, v130'); a('v_lshlrev_b32 v132, 7, v132')
a('v_bfe_u32 v133, v1, 3, 1'); a('v_lshl_add_u32 v132, v133, 6, v132')
a('v_bfe_u32 v133, v1, 4, 1'); a('v_lshl_add_u32 v132, v133, 5, v132')
a('v_and_b32 v133, 1, v1'); a('v_lshl_add_u32 v132, v133, 4, v132')
a('v_bfe_u32 v133, v1, 1, 1'); a('v_lshl_add_u32 v132, v133, 3, v132')
a(f's_lshl_b32 s60, {sKH}, 6'); a('v_xor_b32 v132, s60, v132')
a(f's_lshl_b32 s60, {sKH}, 11')
AR = 212
a(f'v_add_u32 {v(AR)}, s60, v132'); a(f'v_xor_b32 {v(AR+1)}, 64, {v(AR)}')
for k in (1, 2):
    a(f'v_add_u32 {v(AR+2*k)}, {61440*k}, {v(AR)}'); a(f'v_add_u32 {v(AR+2*k+1)}, {61440*k}, {v(AR+1)}')
a.wait_vm(w2_seq[27])
a.wait_all_lg()
a('s_barrier')
G2A, AF = 32, 96
def rdA2(s):
    ad = w2slot(s); k = ad // 61440; o = ad - 61440*k
    return [f'ds_read_b64_tr_b16 {v(AF+8*(s%3)+4*dt+2*rd,2)}, {v(AR+2*k+dt)} offset:{o + rd*1024}' for dt in range(2) for rd in range(2)]
for x in rdA2(0) + rdA2(1): a(x)
later = [hop(s) for s in range(NH0, 43)]
q = []
for k in range(8): q += [later[2*k], later[2*k+1], w2op(28+k)]
q += later[16:]
YR, XS = 128, 136
for s in range(43):
    if s == 9:
        a.wait_all_lg(); a('s_barrier')
        q = q[:2] + [w2op(k) for k in range(36, 43)] + q[2:]
    if s == 12:
        a.wait_vm(y_st); flag_store(3)
    if s == 26:
        a.wait_vm(w2_seq[42]); a('s_barrier')
    if s == 34: poll_issue(vP13, 244)
    if s == 39:
        poll_check(vP13, 244, 3, 224)
        a('v_lshrrev_b32 v146, 5, v1'); a('v_lshlrev_b32 v146, 10, v146')
        a('v_bfe_u32 v147, v1, 1, 4'); a('v_lshl_add_u32 v146, v147, 4, v146')
        a('v_and_b32 v147, 1, v1'); a('v_lshl_add_u32 v146, v147, 2, v146')
        a(f's_lshl_b32 s60, {st}, 16'); a(f's_lshl_b32 s61, {sDS}, 13'); a('s_add_u32 s60, s60, s61')
        a(f's_lshl_b32 s61, {sKH}, 12'); a('s_add_u32 s60, s60, s61'); a(f's_lshl_b32 s61, {sTH}, 3'); a('s_add_u32 s60, s60, s61')
        a(f's_add_u32 s60, s60, {WS_Y}')
        for grp in range(2):
            for e in range(4): a(f'buffer_load_dword {v(YR+4*grp+e)}, v146, {srd(WS)}, s60 offen offset:{(8*grp+e)*256} sc1')
    fill = rdA2(s + 2) if s + 2 < 43 else []
    take = 3 if s < 8 else 2
    fill += q[:take]; q = q[take:]
    mm = []
    for dt in range(2):
        cin = '0' if s == 0 else v(G2A+16*dt, 16)
        mm.append(f'v_mfma_f32_32x32x16_bf16 {v(G2A+16*dt,16)}, {v(AF+8*(s%3)+4*dt,4)}, {a_(4*s,4)}, {cin}')
    interleave(a, mm, fill, per=(len(fill) + 1) // 2)
assert not q
stamp()
EX, OT = 10*4096, 14*4096
a(f'v_add_u32 v148, {sW4K}, {v(vL16)}')
for k in range(4): a(f'ds_write_b128 v148, {v(G2A+16+4*k,4)} offset:{EX + 1024*k}')
a(f's_lshl_b32 s60, {sTH}, 12'); a(f's_add_u32 s60, s60, {XST}')
a(f's_lshl_b32 s61, {sKH}, 6')
a('v_xor_b32 v149, s61, v250'); a('v_add_u32 v149, s60, v149'); a('v_xor_b32 v150, 32, v149')
a(f's_and_b32 s60, {st}, 1'); a('s_lshl_b32 s60, s60, 1'); a(f's_add_u32 s60, s60, {sTH}'); a('s_lshl_b32 s60, s60, 8'); a(f's_add_u32 s60, s60, {STATS}')
a('v_and_b32 v151, 31, v1'); a('v_lshlrev_b32 v152, 3, v151'); a('v_add_u32 v152, s60, v152')
a(f'ds_read_b128 {v(XS,4)}, v149'); a(f'ds_read_b128 {v(XS+4,4)}, v150'); a('ds_read_b64 v[144:145], v152')
a('v_xor_b32 v148, 8192, v148')
a.wait_all_lg()
a('s_barrier')
for k in range(4): a(f'ds_read_b128 {v(64+4*k,4)}, v148 offset:{EX + 1024*k}')
XU, YU = 160, 176
for k in range(8):
    unpack(XU+2*k, XU+2*k+1, XS+k); unpack(YU+2*k, YU+2*k+1, YR+k)
a('v_mov_b32 v146, v145')
for k in range(8):
    a(f'v_pk_mul_f32 {v(YU+2*k,2)}, {v(YU+2*k,2)}, v[146:147] op_sel_hi:[1,0]')
    a(f'v_pk_add_f32 {v(192+2*k,2)}, {v(XU+2*k,2)}, v[144:145] op_sel_hi:[1,0] neg_lo:[0,1] neg_hi:[0,1]')
for k in range(8):
    a(f'v_pk_fma_f32 {v(XU+2*k,2)}, {v(192+2*k,2)}, {v(YU+2*k,2)}, {v(XU+2*k,2)}')
    a(f'v_pk_add_f32 {v(G2A+2*k,2)}, {v(G2A+2*k,2)}, {v(64+2*k,2)}')
for k in range(8): a(f'v_pk_add_f32 {v(XU+2*k,2)}, {v(XU+2*k,2)}, {v(G2A+2*k,2)}')
for k in range(8): a(f'v_cvt_pk_bf16_f32 {v(208+k)}, {v(XU+2*k)}, {v(XU+2*k+1)}')
a(f's_lshl_b32 s60, {sW}, 11'); a(f's_add_u32 s60, s60, {OT}')
a('v_lshrrev_b32 v153, 5, v1'); a('v_bfe_u32 v154, v1, 1, 2'); a('v_xor_b32 v153, v153, v154')
a('v_lshlrev_b32 v153, 4, v153'); a('v_lshl_add_u32 v153, v151, 6, v153'); a('v_add_u32 v153, s60, v153')
a('v_xor_b32 v154, 32, v153')
a('ds_write_b128 v153, v[208:211]'); a('ds_write_b128 v154, v[212:215]')
a('v_lshrrev_b32 v155, 2, v1'); a('v_and_b32 v156, 3, v1'); a('v_bfe_u32 v157, v1, 3, 2'); a('v_xor_b32 v157, v157, v156')
a('v_lshlrev_b32 v157, 4, v157'); a('v_lshl_add_u32 v157, v155, 6, v157'); a('v_add_u32 v157, s60, v157')
a('v_lshlrev_b32 v155, 10, v155'); a('v_lshl_add_u32 v155, v156, 4, v155')
a(f's_lshl_b32 s60, {st}, 16'); a(f's_lshl_b32 s61, {sTH}, 15'); a('s_add_u32 s60, s60, s61')
a(f's_lshl_b32 s61, {sDS}, 7'); a('s_add_u32 s60, s60, s61'); a(f's_lshl_b32 s61, {sKH}, 6'); a('s_add_u32 s60, s60, s61')
a('s_add_u32 s61, s60, 16384')
a.wait_all_lg()
a('ds_read_b128 v[216:219], v157'); a('ds_read_b128 v[220:223], v157 offset:1024')
a(f'buffer_store_dwordx4 v[216:219], v155, {srd(OUT)}, s60 offen sc1')
a(f'buffer_store_dwordx4 v[220:223], v155, {srd(OUT)}, s61 offen sc1')
stamp()
a(f's_or_b32 s60, {sCP}, {sW}')
a('s_cmp_lg_u32 s60, 0')
a('s_cbranch_scc1 L_noep')
for k in range(4):
    a('v_lshlrev_b32 v128, 7, v1')
    a(f'v_add_u32 v128, {WS_FLAG + 8192*k}, v128')
    poll_issue(128, 244)
    poll_check(128, 244, 1, 224)
a(f'v_mov_b32 v128, {WS_E}'); a(f'v_mov_b32 v129, {sTAG}')
a('s_mov_b64 exec, 1')
a(f'buffer_store_dword v129, v128, {srd(WS)}, 0 offen sc1')
a('s_mov_b64 exec, -1')
a.place('L_noep')
if OPT['stamps']:
    a('s_waitcnt vmcnt(0)')
    stamp()
    a(f's_lshl_b32 s60, s2, 2'); a(f's_add_u32 s60, s60, {sW}'); a('s_lshl_b32 s60, s60, 6'); a(f's_add_u32 s60, s60, {WS_STAMP}')
    a('v_mov_b32 v128, s60')
    a('s_mov_b64 exec, 1')
    for k in range(4): a(f'buffer_store_dwordx4 {a_(240+4*k,4)}, v128, {srd(WS)}, 0 offen offset:{16*k}')
a.place('L_end')
a('s_endpgm')

hdr = open('parallel_sum__ssm_conv_h3__dense_activation_silu__prompt.s.ref').read().split('\n')
hdr = [l for l in hdr if l.startswith(';') and '@launch' not in l]
out = '\n'.join(hdr) + f'\n; @launch grid=(256,1,1) block=(256,1,1) lds={LDS_SIZE}\n'
out += f'''.amdgcn_target "amdgcn-amd-amdhsa--gfx950"
.text
.globl {NAME}
.p2align 8
.type {NAME},@function
{NAME}:
''' + a.text() + f'''.section .rodata,"a"
.p2align 6
.amdhsa_kernel {NAME}
  .amdhsa_next_free_vgpr 512
  .amdhsa_next_free_sgpr 102
  .amdhsa_accum_offset 256
  .amdhsa_group_segment_fixed_size 0
  .amdhsa_kernarg_size 96
  .amdhsa_user_sgpr_count 2
  .amdhsa_user_sgpr_kernarg_segment_ptr 1
  .amdhsa_system_sgpr_workgroup_id_x 1
.end_amdhsa_kernel
'''
open(sys.argv[1], 'w').write(out)
print('lines', len(a.lines), 'nop states', a.nops, file=sys.stderr)
```

```python
import sys
from emit import Asm, interleave

NAME = "parallel_sum__ssm_conv_h3__dense_activation_silu__prompt_kernel"
OPT = dict(stamps=0, fast=1, nt=0, wb=1)
for x in sys.argv[2:]:
    k, v = x.split('='); OPT[k] = int(v)

WS_E, WS_FLAG, WS_STAMP, WS_U, WS_Y, WS_H, WS_SIZE = 0, 0x10000, 0x40000, 0x100000, 0x300000, 0x500000, 0x1000000
OOB = 0x7f000000
SLOT = 28672
CV = 114688; CVCH = 17664; U1OFF = 4640; HAOFF = 9184; HBD = 4228
XST = 150016; STATS = 158208; CSUM = 159232
LDS_SIZE = 163840
def w2slot(s): return s * 4096 if s < 36 else (s - 36) * 4096
Q, K, V, SH, HK, W1, W2, OUT, WS = 4, 8, 12, 16, 20, 24, 28, 32, 36
def srd(r): return f's[{r}:{r+3}]'
sD, sE, sT, sM1, st, sDS, sCP, sW, sXCC, sTAG, sBASE, sP0 = [f's{i}' for i in range(42, 54)]
sXO, sW1O, sHS, sHS3, sW2O, sHL, sA, sB, sM0W, sW4K, sW3K, sSELLO, sSELHI, sONES = [f's{i}' for i in range(54, 68)]
sPAIR = 's[68:69]'
sSPIN, sTH, sKH, sMASK, sFLG, sI = [f's{i}' for i in range(70, 76)]
sFAST = 's100'; sT0 = 's[98:99]'
sA, sB, sF = 's81', 's82', 's83'
def v(n, c=1): return f'v{n}' if c == 1 else f'v[{n}:{n+c-1}]'
def a_(n, c=1): return f'a{n}' if c == 1 else f'a[{n}:{n+c-1}]'
vLANE, vL16 = 1, 2
vXA, vWA, vXR, vWR = 4, 8, 12, 20
vFL, vP13, vP2, vPX = 28, 29, 30, 31
NT = ' nt' if OPT['nt'] else ''

a = Asm()
nstamp = [0]
def stamp():
    if not OPT['stamps']: return
    k = nstamp[0]; nstamp[0] += 1
    a.wait_all_lg()
    a(f's_memtime s[96:97]'); a('s_waitcnt lgkmcnt(0)')
    a(f's_sub_u32 s96, s96, s3')
    a(f'v_mov_b32 v3, s96')
    a(f'v_accvgpr_write_b32 a{240+k}, v3')

def dma(vaddr, rs, soff, m0expr, extra=''):
    a(m0expr)
    return a(f'buffer_load_dwordx4 {v(vaddr)}, {srd(rs)}, {soff} offen{extra} lds')

def flag_store(phase):
    a(f's_add_u32 {sF}, {sFLG}, {8*phase}')
    a(f'v_mov_b32 v252, {sF}')
    a(f'v_mov_b32 v253, {sTAG}')
    a('s_mov_b64 exec, 1')
    r = a(f'buffer_store_dwordx2 v[252:253], {v(vFL)}, {srd(WS)}, 0 offen sc1')
    a('s_mov_b64 exec, -1')
    return r

def poll_issue(vaddr, dst):
    return a(f'buffer_load_dwordx2 {v(dst,2)}, {v(vaddr)}, {srd(WS)}, 0 offen sc1')

def poll_check(vaddr, dst, phase, tmp):
    top, done = a.label(), a.label()
    a(f's_add_u32 {sF}, {sBASE}, {8*phase}')
    a(f's_mov_b32 {sSPIN}, 0')
    a(f'v_mov_b32 {v(tmp)}, {v(dst)}')
    a.place(top)
    a(f'v_subrev_u32 {v(tmp)}, {sF}, {v(dst)}')
    a(f'v_cmp_gt_u32 vcc, {32-8*phase}, {v(tmp)}')
    a(f'v_cmp_eq_u32 {sPAIR}, {sTAG}, {v(dst+1)}')
    a(f's_and_b64 vcc, vcc, {sPAIR}')
    a('s_cmp_eq_u64 vcc, exec')
    a(f's_cbranch_scc1 {done}')
    a(f's_add_u32 {sSPIN}, {sSPIN}, 1')
    a(f's_cmp_gt_u32 {sSPIN}, 0x20000')
    a(f's_cbranch_scc1 {done}')
    a('s_sleep 2')
    a(f'buffer_load_dwordx2 {v(dst,2)}, {v(vaddr)}, {srd(WS)}, 0 offen sc1', track=False)
    a('s_waitcnt vmcnt(0)')
    a(f's_branch {top}')
    a.place(done)

a('s_cmp_ge_u32 s2, 256')
a('s_cbranch_scc1 L_end')
if OPT['stamps']:
    a('s_memtime s[68:69]'); a('s_waitcnt lgkmcnt(0)'); a('s_mov_b32 s3, s68')
a('s_load_dwordx16 s[76:91], s[0:1], 0')
a('s_load_dwordx8 s[92:99], s[0:1], 64')
a('v_and_b32 v1, 63, v0')
a('v_lshrrev_b32 v3, 6, v0')
a('s_lshr_b32 %s, s2, 3' % sI)
a(f'v_readfirstlane_b32 {sW}, v3')
a('s_getpc_b64 s[60:61]')
a.place('L_pc')
a(f's_and_b32 s62, {sI}, 3')
a('s_lshl_b32 s62, s62, 13')
a(f's_lshl_b32 s63, {sW}, 11')
a('s_add_u32 s62, s62, s63')
a('v_lshlrev_b32 v3, 7, v1')
a('v_add_u32 v3, s62, v3')
a('v_min_u32 v3, L_end-L_pc, v3')
a('s_mov_b64 exec, 0xffff')
a('global_load_dword v255, v3, s[60:61]')
a('s_mov_b64 exec, -1')
a('s_and_b32 s60, s2, 7')
a(f's_and_b32 s61, {sI}, 1')
a(f's_lshl_b32 {sT}, s60, 1')
a(f's_add_u32 {sT}, {sT}, s61')
a(f's_lshr_b32 {sM1}, {sI}, 1')
a(f's_and_b32 s61, {sM1}, 1')
a(f's_lshl_b32 {st}, {sT}, 1')
a(f's_add_u32 {st}, {st}, s61')
a(f's_lshr_b32 {sDS}, {sI}, 2')
a(f's_lshl_b32 {sCP}, {sDS}, 5')
a(f's_add_u32 {sCP}, {sCP}, {st}')
a('v_and_b32 v131, 15, v1')
a('v_lshrrev_b32 v132, 4, v1')
a(f's_lshl_b32 s60, {st}, 16')
a(f's_lshl_b32 s61, {sW}, 14')
a('s_add_u32 s60, s60, s61')
a(f's_lshl_b32 s61, {sDS}, 7')
a('s_add_u32 s60, s60, s61')
a('v_lshlrev_b32 v128, 12, v132')
a('v_lshl_add_u32 v128, v131, 3, v128')
a('v_add_u32 v128, s60, v128')
a('v_subrev_u32 v129, 3072, v128')
a(f's_lshl_b32 s61, {sDS}, 9')
a('v_lshlrev_b32 v130, 5, v131')
a('v_add_u32 v130, s61, v130')
a('s_mov_b32 s101, s60')
for r, n in ((Q, 2097152), (K, 2097152), (V, 2097152), (SH, 4096), (HK, 2097152), (W1, 1409024), (W2, 1409024), (OUT, 2097152), (WS, WS_SIZE)):
    a(f's_mov_b32 s{r+2}, {n}'); a(f's_mov_b32 s{r+3}, 0x20000')
a('s_waitcnt lgkmcnt(0)')
a(f's_mov_b64 s[{K}:{K+1}], s[78:79]')
a(f's_mov_b64 s[{V}:{V+1}], s[80:81]')
a(f's_mov_b64 s[{SH}:{SH+1}], s[82:83]')
KR, VR, SR = 136, 150, 160
for r in range(7):
    if r < 3: a(f'buffer_load_dwordx2 {v(KR+2*r,2)}, v129, {srd(K)}, 0 offen offset:{1024*r}{NT}')
    else: a(f'buffer_load_dwordx2 {v(KR+2*r,2)}, v128, {srd(K)}, 0 offen offset:{1024*(r-3)}{NT}')
a(f'buffer_load_dwordx4 {v(SR,4)}, v130, {srd(SH)}, 0 offen')
a(f'buffer_load_dwordx4 {v(SR+4,4)}, v130, {srd(SH)}, 0 offen offset:16')
for r in range(4):
    a(f'buffer_load_dwordx2 {v(VR+2*r,2)}, v128, {srd(V)}, 0 offen offset:{1024*r}{NT}')
a(f's_mov_b64 s[{Q}:{Q+1}], s[76:77]')
a(f's_mov_b64 s[{HK}:{HK+1}], s[84:85]')
a(f's_mov_b64 s[40:41], s[86:87]')
a(f's_mov_b64 s[{W1}:{W1+1}], s[90:91]')
a(f's_mov_b64 s[{W2}:{W2+1}], s[92:93]')
a(f's_mov_b64 s[{OUT}:{OUT+1}], s[94:95]')
a(f's_mov_b64 s[{WS}:{WS+1}], s[98:99]')
a(f's_load_dword {sE}, s[{WS}:{WS+1}], {WS_E}')
a(f's_lshl_b32 s60, {sCP}, 2')
a(f's_load_dword {sD}, s[40:41], s60')
a(f's_getreg_b32 {sXCC}, hwreg(HW_REG_XCC_ID, 0, 3)')
a('v_lshrrev_b32 v133, 3, v1')
a('v_and_b32 v134, 7, v1')
a('v_xor_b32 v135, v134, v132')
a('v_lshlrev_b32 v133, 10, v133')
a(f'v_lshl_add_u32 {v(vXA)}, v135, 4, v133')
a(f'v_xor_b32 {v(vXA+1)}, 64, {v(vXA)}')
a(f'v_add_u32 {v(vXA+1)}, 8192, {v(vXA+1)}')
a(f'v_add_u32 {v(vXA+2)}, 16384, {v(vXA)}')
a(f'v_add_u32 {v(vXA+3)}, 16384, {v(vXA+1)}')
a(f's_lshl_b32 {sXO}, {sT}, 17')
a(f's_lshl_b32 s60, {sW}, 15')
a(f's_add_u32 {sXO}, {sXO}, s60')
a(f's_lshl_b32 {sW4K}, {sW}, 12')
a(f's_lshl_b32 {sM0W}, {sW}, 10')
a(f's_mul_i32 {sW3K}, {sW}, 3072')
a(f's_mul_i32 {sP0}, {sM1}, 3')
a(f's_lshl_b32 s60, {sM1}, 1')
a('s_add_u32 s60, s60, 11')
a(f's_min_u32 {sP0}, {sP0}, s60')
a(f's_cmp_lt_u32 {sM1}, 11')
a('s_cselect_b32 s61, 12, 8')
for j in range(3):
    a(f'v_add_u32 v133, {64*j}, v1')
    a('v_mul_u32_u24 v134, 5462, v133')
    a('v_lshrrev_b32 v134, 16, v134')
    a('v_mul_u32_u24 v135, 12, v134')
    a('v_sub_u32 v135, v133, v135')
    a('v_mul_u32_u24 v134, 2752, v134')
    a(f'v_lshl_add_u32 {v(vWA+j)}, v135, 4, v134')
    a('v_cmp_gt_u32 vcc, s61, v135')
    a(f'v_mov_b32 v133, {OOB}')
    a(f'v_cndmask_b32 {v(vWA+j)}, v133, {v(vWA+j)}, vcc')
a(f's_mul_i32 {sW1O}, {sW}, {16*2752}')
a(f's_lshl_b32 s60, {sP0}, 6')
a(f's_add_u32 {sW1O}, {sW1O}, s60')

chunk_last = {}
def g1_dma_ops(c):
    slot = (c % 4) * SLOT
    ops = []
    def xop(n):
        def f():
            if n == 0: a(f's_add_u32 {sA}, {sXO}, {c*128}')
            chunk_last[c] = dma(vXA+n, Q, sA, f's_add_u32 m0, {sW4K}, {slot + n*1024}')
        return f
    def wop(j):
        def f():
            if j == 0: a(f's_add_u32 {sB}, {sW1O}, {c*64*2752}')
            chunk_last[c] = dma(vWA+j, W1, sB, f's_add_u32 m0, {sW3K}, {slot + 16384 + j*1024}')
        return f
    return [wop(0), wop(1), wop(2), xop(0), xop(1), xop(2), xop(3)]
for c in (0, 1):
    for f in g1_dma_ops(c): f()
stamp()
a(f'v_lshlrev_b32 {v(vL16)}, 4, v1')
a(f's_mov_b32 {sSELLO}, 0x05040100'); a(f's_mov_b32 {sSELHI}, 0x07060302')
a(f's_mov_b32 {sONES}, 0x3f803f80'); a(f's_mov_b32 {sMASK}, 0xffff0000')
a(f's_and_b32 {sTH}, {sW}, 1'); a(f's_lshr_b32 {sKH}, {sW}, 1')
a('v_and_b32 v133, 31, v1')
a('v_lshrrev_b32 v134, 5, v1')
a('v_bfe_u32 v135, v1, 1, 3')
a('v_xor_b32 v135, v135, v134')
a('v_lshlrev_b32 v135, 4, v135')
a('v_lshl_add_u32 v135, v133, 7, v135')
a('v_mov_b32 v250, v135')
a(f'v_add_u32 v135, {sW4K}, v135')
a('v_bfe_u32 v133, v1, 2, 2')
a('v_lshl_add_u32 v133, v134, 3, v133')
a('v_mul_u32_u24 v133, 192, v133')
a('v_bfe_u32 v168, v1, 4, 1')
a('v_lshl_add_u32 v133, v168, 5, v133')
a('v_and_b32 v168, 3, v1')
a('v_lshl_add_u32 v133, v168, 3, v133')
for i in range(4):
    a(f's_add_u32 s60, {sW}, {i}')
    a('s_and_b32 s60, s60, 3')
    a('s_lshl_b32 s61, s60, 5')
    a(f'v_xor_b32 {v(vXR+i)}, s61, v135')
    a(f'v_add_u32 {v(vXR+4+i)}, {2*SLOT}, {v(vXR+i)}')
    a('s_mul_i32 s61, s60, 3072')
    a(f'v_add_u32 {v(vWR+i)}, s61, v133')
    a(f'v_add_u32 {v(vWR+4+i)}, {2*SLOT}, {v(vWR+i)}')
a(f's_lshl_b32 s60, {sCP}, 7'); a(f's_lshl_b32 s61, {sW}, 3'); a('s_add_u32 s60, s60, s61'); a(f's_add_u32 s60, s60, {WS_FLAG}')
a(f'v_mov_b32 {v(vFL)}, s60')
a(f's_lshl_b32 s60, {sDS}, 12'); a(f's_lshr_b32 s61, {st}, 3'); a('s_lshl_b32 s61, s61, 3'); a('s_add_u32 s60, s60, s61'); a(f's_add_u32 s60, s60, {WS_FLAG}')
a('v_and_b32 v133, 31, v1')
a('v_lshlrev_b32 v133, 7, v133')
a(f'v_add_u32 {v(vP13)}, s60, v133')
a('v_and_b32 v133, 7, v1')
a('v_lshlrev_b32 v133, 12, v133')
a('v_bfe_u32 v134, v1, 3, 1')
a('v_lshl_add_u32 v134, v134, 7, v133')
a(f's_lshl_b32 s60, {sT}, 8'); a(f's_add_u32 s60, s60, {WS_FLAG}')
a(f's_and_b32 s61, {st}, 1'); a('s_lshl_b32 s61, s61, 1'); a(f's_add_u32 s61, s61, {sTH}'); a('s_lshl_b32 s61, s61, 3')
a('s_add_u32 s61, s61, s60')
a(f'v_add_u32 {v(vP2)}, s61, v134')
a(f's_lshl_b32 s61, {sKH}, 7'); a('s_add_u32 s61, s61, s60')
a(f'v_add_u32 {v(vPX)}, s61, v133')
a('s_waitcnt lgkmcnt(0)')
a(f's_add_u32 {sTAG}, {sE}, 1')
a(f's_not_b32 {sBASE}, {sTAG}')
a(f's_lshl_b32 {sBASE}, {sBASE}, 5')
a(f's_add_u32 {sFLG}, {sBASE}, {sXCC}')
flag_store(0)

WP, KU, VU, TP, OP = 168, 184, 212, 228, 236
def unpack(dlo, dhi, src):
    a(f'v_lshlrev_b32 {v(dlo)}, 16, {v(src)}'); a(f'v_and_b32 {v(dhi)}, {sMASK}, {v(src)}')
for r in range(7):
    for p in range(2): unpack(KU+4*r+2*p, KU+4*r+2*p+1, KR+2*r+p)
for c in range(4):
    p, e = c >> 1, c & 1
    for jj in range(2):
        unpack(WP+8*p+4*jj+e, WP+8*p+4*jj+2+e, SR+2*c+jj)
for r in range(4):
    for p in range(2): unpack(VU+4*r+2*p, VU+4*r+2*p+1, VR+2*r+p)
for p in range(2):
    for i in range(4): a(f'v_pk_mul_f32 {v(TP+2*i,2)}, {v(KU+4*i+2*p,2)}, {v(WP+8*p+6,2)}')
    for j in (2, 1, 0):
        for i in range(4): a(f'v_pk_fma_f32 {v(TP+2*i,2)}, {v(KU+4*(i+3-j)+2*p,2)}, {v(WP+8*p+2*j,2)}, {v(TP+2*i,2)}')
    for i in range(4): a(f'v_pk_mul_f32 {v(TP+2*i,2)}, {v(TP+2*i,2)}, {v(VU+4*i+2*p,2)}')
    for i in range(4): a(f'v_cvt_pk_bf16_f32 {v(OP+4*p+i)}, {v(TP+2*i)}, {v(TP+2*i+1)}')
a(f's_lshl_b32 s60, {sW}, 2')
a('v_add_u32 v133, s60, v132')
a('v_and_b32 v134, 7, v131')
a('v_xor_b32 v133, v133, v134')
a('v_lshlrev_b32 v133, 4, v133')
a('v_lshl_add_u32 v133, v131, 9, v133')
a(f'v_add_u32 v133, {XST}, v133')
a(f'ds_write_b128 v133, {v(OP,4)}')
a(f'ds_write_b128 v133, {v(OP+4,4)} offset:256')
a(f's_lshl_b32 s60, {sW}, 3')
a('v_add_u32 v134, s60, v132')
a('v_bfe_u32 v135, v134, 1, 3')
a('v_xor_b32 v135, v135, v131')
a('v_lshlrev_b32 v135, 4, v135')
a('v_lshl_add_u32 v135, v134, 8, v135')
a(f'v_add_u32 v135, {XST}, v135')
a('v_xor_b32 v133, 32, v135')
a('v_lshlrev_b32 v134, 13, v134')
a('v_lshl_add_u32 v134, v131, 4, v134')
a('v_add_u32 v130, 32768, v134')
a(f's_lshl_b32 s60, {sDS}, 18'); a(f's_lshl_b32 s61, {st}, 8'); a('s_add_u32 s60, s60, s61'); a(f's_add_u32 s60, s60, {WS_U}')
a.wait_all_lg()
a('s_barrier')
a(f'ds_read_b128 {v(OP,4)}, v135')
a(f'ds_read_b128 {v(OP+4,4)}, v133 offset:1024')
a(f'buffer_store_dwordx4 {v(OP,4)}, v134, {srd(WS)}, s60 offen sc1')
u_st = a(f'buffer_store_dwordx4 {v(OP+4,4)}, v130, {srd(WS)}, s60 offen sc1')
stamp()
for f in g1_dma_ops(2): f()

a(f's_mul_i32 s60, {sKH}, {CVCH}')
a(f's_add_u32 s60, s60, {CV}')
a(f's_mul_i32 s61, {sTH}, {U1OFF}')
a('s_add_u32 s61, s61, s60')
a('v_min_u32 v133, 27, v1')
a('v_lshlrev_b32 v133, 4, v133')
a('v_add_u32 v133, s61, v133')
for i in range(4): a(f'v_mov_b32 v{140+i}, 0')
a('ds_write_b128 v133, v[140:143]')
a(f's_mul_i32 s61, {sTH}, {HBD}')
a('s_add_u32 s61, s61, s60')
a(f's_add_u32 s61, s61, {HAOFF}')
a('v_lshlrev_b32 v133, 2, v131')
a('v_add_u32 v133, s61, v133')
a('ds_write_b32 v133, v140')
sHM0, sHSO = 's76', 's77'
a(f's_add_u32 {sHM0}, s61, 64')
a(f's_lshl_b32 {sHSO}, {sCP}, 13'); a(f's_lshl_b32 s61, {sKH}, 12'); a(f's_add_u32 {sHSO}, {sHSO}, s61')
def h_dma_ops():
    def f(n):
        def g():
            a(f's_mov_b32 m0, {sHM0}')
            chunk_last['h'] = a(f'buffer_load_dwordx4 {v(vL16)}, {srd(HK)}, {sHSO} offen offset:{n*1024}{NT} lds')
        return g
    return [f(n) for n in range(4)]
def stash_ops():
    def f(n):
        def g():
            a(f's_lshl_b32 s60, {sW}, 11')
            chunk_last['st'] = dma(vXA+n, Q, 's101', f's_add_u32 m0, s60, {XST + n*1024}')
        return g
    return [f(0), f(1)]

ACC, XF, WF, SU, SQ, CS = 32, 80, 96, 120, 122, 124
for r in range(SU, CS+3): a(f'v_mov_b32 {v(r)}, 0')
UR = 240
for c in range(8):
    a.wait_vm(chunk_last[c])
    if c == 2: flag_store(1)
    a('s_barrier')
    st_ = 4 * ((c % 4) >> 1); off = (c & 1) * SLOT
    def rdx(i): return f'ds_read_b128 {v(XF+4*i,4)}, {v(vXR+st_+i)} offset:{off}'
    def rdw(i):
        return [f'ds_read_b64_tr_b16 {v(WF+12*(i&1)+4*ft+2*rd,2)}, {v(vWR+st_+i)} offset:{off+16384+rd*768+ft*64}' for ft in range(3) for rd in range(2)]
    a(rdx(0))
    for x in rdw(0): a(x)
    for i in (1, 2, 3): a(rdx(i))
    extra = []
    if c + 3 < 8: extra = g1_dma_ops(c + 3)
    elif c == 5: extra = h_dma_ops() + stash_ops()
    elif c == 6: extra = [lambda: poll_issue(vPX, 246)]
    elif c == 7: extra = [lambda: poll_issue(vP13, 244)]
    if c == 7:
        a(f'v_subrev_u32 v128, {sFLG}, v246')
        a('v_and_b32 v128, 0xffffffe7, v128')
        a('v_cmp_eq_u32 vcc, 0, v128')
        a(f'v_cmp_eq_u32 {sPAIR}, {sTAG}, v247')
        a(f's_and_b64 vcc, vcc, {sPAIR}')
        a('s_cmp_eq_u64 vcc, exec')
        a(f's_cselect_b32 {sFAST}, {OPT["fast"]}, 0')
    for i in range(4):
        fill = []
        if i < 3: fill += rdw(i + 1)
        if i == 0:
            fill += [f'v_dot2c_f32_bf16 {v(CS+ft)}, {sONES}, {v(WF+4*ft+d)}' for d in range(4) for ft in range(3)]
        for d in range(4):
            fill += [f'v_dot2c_f32_bf16 {v(SU+(d&1))}, {sONES}, {v(XF+4*i+d)}', f'v_dot2c_f32_bf16 {v(SQ+(d&1))}, {v(XF+4*i+d)}, {v(XF+4*i+d)}']
        if i >= 1:
            k = (len(extra) + 2) // 3
            fill += extra[(i-1)*k:i*k]
        mm = []
        for ft in range(3):
            cin = '0' if (c == 0 and i == 0) else v(ACC+16*ft, 16)
            mm.append(f'v_mfma_f32_32x32x16_bf16 {v(ACC+16*ft,16)}, {v(WF+12*(i&1)+4*ft,4)}, {v(XF+4*i,4)}, {cin}')
        interleave(a, mm, fill, per=(len(fill) + 2) // 3)
        if c == 7 and i == 0:
            a(f's_lshl_b32 s60, {sW}, 2'); a(f's_add_u32 s60, s60, {CSUM}')
            a(f'v_add_u32 v128, s60, {v(vL16)}')
            for ft in range(3):
                a(f'v_and_b32 v{130+ft}, {sMASK}, {v(CS+ft)}')
                a(f'v_sub_f32 v{133+ft}, {v(CS+ft)}, v{130+ft}')
                a(f'v_cvt_pk_bf16_f32 v{130+ft}, v{130+ft}, v{133+ft}')
                a(f'ds_write_b32 v128, v{130+ft} offset:{1024*ft}')
        if c == 7 and i == 2:
            a.wait_all_lg()
            a('s_barrier')
            a(f'v_add_u32 v128, {CSUM}, {v(vL16)}')
            for ft in range(3): a(f'ds_read_b128 {v(136+4*ft,4)}, v128 offset:{1024*ft}')
stamp()
a(f'v_add_f32 {v(SU)}, {v(SU)}, {v(SU+1)}'); a(f'v_add_f32 {v(SQ)}, {v(SQ)}, {v(SQ+1)}')
a(f'v_mov_b32 {v(SU+1)}, {v(SU)}'); a(f'v_mov_b32 {v(SQ+1)}, {v(SQ)}')
a(f'v_permlane32_swap_b32 {v(SU)}, {v(SU+1)}'); a(f'v_permlane32_swap_b32 {v(SQ)}, {v(SQ+1)}')
a(f'v_add_f32 {v(SU)}, {v(SU)}, {v(SU+1)}'); a(f'v_add_f32 {v(SQ)}, {v(SQ)}, {v(SQ+1)}')
a(f'v_mul_f32 {v(SU)}, 0x3b000000, {v(SU)}')
a(f'v_mul_f32 {v(SQ)}, 0x3b000000, {v(SQ)}')
a(f'v_fma_f32 {v(SQ)}, -{v(SU)}, {v(SU)}, {v(SQ)}')
a(f'v_max_f32 {v(SQ)}, 0, {v(SQ)}')
a(f'v_cvt_pk_bf16_f32 v128, {v(SU)}, {v(SQ)}')
a('v_xor_b32 v129, 0x8000, v128')
a(f'v_perm_b32 v148, v129, v129, {sSELLO}')
for i in range(1, 4): a(f'v_mov_b32 v{148+i}, v148')
for ft in range(3):
    a(f'v_mfma_f32_32x32x16_bf16 {v(ACC+16*ft,16)}, {v(136+4*ft,4)}, v[148:151], {v(ACC+16*ft,16)}')
vM, vRS, vS, vC3 = 152, 153, 154, 156
a(f'v_lshlrev_b32 {v(vM)}, 16, v128')
a(f'v_and_b32 v129, {sMASK}, v128')
a('v_add_f32 v129, 0x3727c5ac, v129')
a('v_cvt_pk_bf16_f32 v129, v129, v129')
a('v_lshlrev_b32 v129, 16, v129')
a('v_sqrt_f32 v129, v129')
a('v_cvt_pk_bf16_f32 v129, v129, v129')
a(f'v_lshlrev_b32 {v(vS)}, 16, v129')
a(f'v_rcp_f32 {v(vRS)}, {v(vS)}')
a(f'v_mul_f32 {v(vC3)}, 0xbfb8aa3b, {v(vRS)}')
a(f's_lshl_b32 s60, {sW}, 8'); a(f's_add_u32 s60, s60, {STATS}')
a('v_and_b32 v129, 31, v1'); a('v_lshlrev_b32 v129, 3, v129'); a('v_add_u32 v129, s60, v129')
a(f'ds_write_b64 v129, {v(vM,2)}')
poll_check(vP13, 244, 1, 129)
a('v_lshlrev_b32 v129, 5, v0')
a('v_subrev_u32 v130, 4, v129')
a(f's_lshl_b32 s60, {sCP}, 13'); a(f's_add_u32 s60, s60, {WS_U}')
a(f'buffer_load_dwordx4 {v(UR,4)}, v129, {srd(WS)}, s60 offen sc1')
a(f'buffer_load_dwordx4 {v(UR+4,4)}, v129, {srd(WS)}, s60 offen offset:16 sc1')
a(f'buffer_load_dword {v(UR+8)}, v130, {srd(WS)}, s60 offen sc1')
a(f's_lshl_b32 s60, {sT}, 2'); a(f's_add_u32 s60, s60, {sW}'); a('s_mul_i32 s60, s60, 86')
a(f's_lshl_b32 s61, {sP0}, 1'); a('s_add_u32 s60, s60, s61'); a('s_lshl_b32 s60, s60, 10')
a(f's_add_u32 {sHS}, s60, {WS_H}')
a(f's_add_u32 {sHS3}, {sHS}, 4096')
a(f's_cmp_lt_u32 {sM1}, 11'); a(f's_cselect_b32 {sHS3}, {sHS3}, {OOB}')
TS, HO = 160, 176
h_st = None
for fr in range(6):
    base = ACC + 8*fr; t = TS + 8*(fr & 1); o = HO + 4*fr
    for p in range(4): a(f'v_pk_mul_f32 {v(t+2*p,2)}, {v(base+2*p,2)}, {v(vC3,2)} op_sel_hi:[1,0]')
    for e in range(8): a(f'v_exp_f32 {v(t+e)}, {v(t+e)}')
    for p in range(4): a(f'v_pk_fma_f32 {v(t+2*p,2)}, {v(t+2*p,2)}, {v(vS,2)}, {v(vS,2)} op_sel_hi:[1,0,0]')
    for e in range(8): a(f'v_rcp_f32 {v(t+e)}, {v(t+e)}')
    for p in range(4): a(f'v_pk_mul_f32 {v(t+2*p,2)}, {v(t+2*p,2)}, {v(base+2*p,2)}')
    for p in range(4): a(f'v_cvt_pk_bf16_f32 {v(o+p)}, {v(t+2*p)}, {v(t+2*p+1)}')
    so, im = (sHS, fr*1024) if fr < 4 else (sHS3, (fr-4)*1024)
    slow, join = a.label(), a.label()
    a(f's_cmp_eq_u32 {sFAST}, 0')
    a(f's_cbranch_scc1 {slow}')
    a(f'buffer_store_dwordx4 {v(o,4)}, {v(vL16)}, {srd(WS)}, {so} offen offset:{im}', track=False)
    a(f's_branch {join}')
    a.place(slow)
    h_st = a(f'buffer_store_dwordx4 {v(o,4)}, {v(vL16)}, {srd(WS)}, {so} offen offset:{im} sc1')
    a.place(join)
stamp()

vUA, vHA, vDU, vW2A, vAR = 208, 209, 210, 211, 212
PO = 160
for c in range(2):
    sel = sSELLO if c == 0 else sSELHI
    for k in range(4):
        hi0 = UR + 5 - 2*k if k < 3 else UR + 8
        a(f'v_perm_b32 {v(PO+8*c+k)}, {v(hi0)}, {v(UR+6-2*k)}, {sel}')
        a(f'v_perm_b32 {v(PO+8*c+4+k)}, {v(UR+6-2*k)}, {v(UR+7-2*k)}, {sel}')
a('v_lshlrev_b32 v129, 4, v0')
a(f'v_add_u32 v129, {CV+448}, v129')
for c in range(2):
    a(f'ds_write_b128 v129, {v(PO+8*c,4)} offset:{c*CVCH}')
    a(f'ds_write_b128 v129, {v(PO+8*c+4,4)} offset:{c*CVCH+U1OFF}')
a(f's_mul_i32 s60, {sKH}, {CVCH}'); a(f's_add_u32 s60, s60, {CV}')
a(f's_lshl_b32 s61, {sTH}, 8')
a('v_and_b32 v130, 15, v1'); a('v_lshrrev_b32 v131, 4, v1'); a('v_and_b32 v132, 1, v1')
a(f'v_mul_u32_u24 {v(vUA)}, {U1OFF}, v132')
a('v_lshrrev_b32 v133, 1, v130')
a('v_lshl_add_u32 v133, v133, 2, v131')
a(f'v_lshl_add_u32 {v(vUA)}, v133, 4, {v(vUA)}')
a(f's_sub_u32 {sA}, s60, s61'); a(f's_add_u32 {sA}, {sA}, {448-192}')
a(f'v_add_u32 {v(vUA)}, {sA}, {v(vUA)}')
a('v_xor_b32 v132, 1, v132')
a(f'v_mul_u32_u24 {v(vHA)}, {HBD}, v132')
a(f'v_lshl_add_u32 {v(vHA)}, v130, 2, {v(vHA)}')
a('v_lshlrev_b32 v133, 4, v131')
a(f'v_sub_u32 {v(vHA)}, {v(vHA)}, v133')
a(f's_add_u32 {sA}, s60, s61'); a(f's_add_u32 {sA}, {sA}, {HAOFF+64-12}')
a(f'v_add_u32 {v(vHA)}, {sA}, {v(vHA)}')
a('v_lshrrev_b32 v133, 2, v130')
a('v_lshlrev_b32 v133, 4, v133')
a('v_lshl_add_u32 v133, v131, 7, v133')
a('v_and_b32 v132, 3, v130'); a('v_xor_b32 v132, 3, v132')
a('v_lshl_add_u32 v133, v132, 2, v133')
a(f's_add_u32 {sA}, {sM0W}, {CV+U1OFF+448}')
a(f'v_add_u32 {v(vDU)}, {sA}, v133')
a('v_lshrrev_b32 v133, 3, v1'); a('v_and_b32 v132, 7, v1'); a('v_bfe_u32 v134, v1, 4, 1')
a('v_lshlrev_b32 v134, 2, v134'); a('v_xor_b32 v132, v132, v134')
a('v_lshlrev_b32 v133, 10, v133')
a(f'v_lshl_add_u32 {v(vW2A)}, v132, 4, v133')
a(f's_mul_i32 {sW2O}, {sKH}, {43*16*1024}'); a(f's_lshl_b32 s61, {sTH}, 13'); a(f's_add_u32 {sW2O}, {sW2O}, s61')
a(f's_lshl_b32 s61, {sDS}, 7'); a(f's_add_u32 {sW2O}, {sW2O}, s61')
a(f's_lshl_b32 s60, {st}, 1'); a(f's_add_u32 s60, s60, {sTH}'); a('s_mul_i32 s60, s60, 86')
a(f's_mul_i32 s61, {sKH}, 43'); a('s_add_u32 s60, s60, s61'); a('s_lshl_b32 s60, s60, 10')
a(f's_add_u32 {sHL}, s60, {WS_H}')
w2_seq = {}
def w2op(s):
    def f():
        a(f's_add_u32 {sB}, {sW2O}, {s*16384}')
        w2_seq[s] = dma(vW2A, W2, sB, f's_add_u32 m0, {sM0W}, {w2slot(s)}')
    return f
def hop(s):
    def f():
        if s % 4 == 0: a(f's_add_u32 s78, {sHL}, {s*1024}')
        a(f'buffer_load_dwordx4 {a_(4*s,4)}, {v(vL16)}, {srd(WS)}, s78 offen offset:{(s%4)*1024} sc1')
    return f
a.wait_vm(chunk_last['h'])
a.wait_all_lg()
a('s_barrier')
CA = 32
def FA(set_, mu): return 64 + 64*set_ + 4*mu
def FB(set_, nu): return 96 + 64*set_ + 4*nu
def rdA(rp, mu): return f'ds_read_b128 {v(FA(rp&1,mu),4)}, {v(vUA)} offset:{512*mu - 64*rp + 192}'
def rdB(rp, nu): return [f'ds_read_b64 {v(FB(rp&1,nu)+2*h,2)}, {v(vHA)} offset:{512*nu + 64*rp + 8*h}' for h in range(2)]
def reads(rp):
    r = rdB(rp, 0) + [rdA(rp, mu) for mu in range(8)]
    for nu in range(1, 8): r += rdB(rp, nu)
    return r
DU, DR = 192, 216
for x in reads(0)[:12]: a(x)
NH0 = 12
for rp in range(4):
    mm = []
    for nu in range(8):
        for mu in range(8 - nu):
            j = nu + mu
            cin = '0' if (rp == 0 and nu == 0) else v(CA+4*j, 4)
            mm.append(f'v_mfma_f32_16x16x32_bf16 {v(CA+4*j,4)}, {v(FA(rp&1,mu),4)}, {v(FB(rp&1,nu),4)}, {cin}')
    rd = (reads(0)[12:] if rp == 0 else []) + (reads(rp + 1) if rp < 3 else [])
    oth = []
    if rp == 0: oth = [w2op(s) for s in range(0, 8)]
    if rp == 1:
        def sig2():
            a.wait_vm(h_st); flag_store(2)
        oth = [sig2] + [w2op(s) for s in range(8, 18)]
        rd += [f'ds_read_b32 {v(DR+4*c+2*jj+h)}, {v(vDU)} offset:{c*CVCH + 512*jj + 64*h}' for c in range(2) for jj in range(2) for h in range(2)]
    if rp == 2:
        oth = [w2op(s) for s in range(18, 22)] + [lambda: poll_issue(vP2, 244)] + [w2op(s) for s in range(22, 28)]
        a(f's_lshl_b32 s79, {sD}, 16'); a(f's_and_b32 s80, {sD}, {sMASK}')
        for c in range(2):
            for jj in range(2):
                for h in range(2):
                    src = DR+4*c+2*jj+h; d = DU+8*jj+4*c+2*h
                    oth += [f'v_and_b32 {v(d)}, {sMASK}, {v(src)}', f'v_lshlrev_b32 {v(d+1)}, 16, {v(src)}',
                            f'v_mul_f32 {v(d)}, s{79+c}, {v(d)}', f'v_mul_f32 {v(d+1)}, s{79+c}, {v(d+1)}']
    if rp == 3:
        poll_check(vP2, 244, 2, 224)
        oth = [hop(s) for s in range(NH0)]
    fill = []
    n = max(len(rd), len(oth), 1)
    ir = io = 0
    for k in range(n):
        while ir < len(rd) and ir * n <= k * len(rd): fill.append(rd[ir]); ir += 1
        while io < len(oth) and io * n <= k * len(oth): fill.append(oth[io]); io += 1
    fill += rd[ir:] + oth[io:]
    if rp == 0: fill = rd[:12] + [x for x in fill if x not in rd[:12]]
    interleave(a, mm, fill, per=max(len(fill) / 34.0, 1.5 if rp == 0 else 0))
stamp()
a.wait_all_lg()
a('s_barrier')
a(f's_lshl_b32 s60, {sW}, 13'); a(f's_add_u32 s60, s60, {CV}')
a(f'v_add_u32 v224, s60, {v(vL16)}')
for j in range(8): a(f'ds_write_b128 v224, {v(CA+4*j,4)} offset:{1024*j}')
a(f's_lshl_b32 s60, {sW}, 11'); a(f's_add_u32 s60, s60, {CV}')
a(f'v_add_u32 v225, s60, {v(vL16)}')
a('v_lshrrev_b32 v226, 4, v1'); a('v_lshlrev_b32 v226, 16, v226'); a('v_and_b32 v227, 15, v1')
a('v_lshl_add_u32 v226, v227, 4, v226')
a(f's_lshl_b32 s60, {sW}, 19'); a(f's_lshl_b32 s61, {sCP}, 8'); a('s_add_u32 s60, s60, s61'); a(f's_add_u32 s79, s60, {WS_Y}')
a('s_add_u32 s80, s79, 0x40000')
a.wait_all_lg()
a('s_barrier')
XR = 64
for jj in range(2):
    for sw in range(4): a(f'ds_read_b128 {v(XR+16*jj+4*sw,4)}, v225 offset:{8192*sw + 1024*jj}')
y_st = None
for jj in range(2):
    for c in range(2):
        for hh in range(2):
            d = DU+8*jj+4*c+2*hh
            a(f'v_pk_add_f32 {v(d,2)}, {v(d,2)}, {v(XR+16*jj+8*c+2*hh,2)}')
            a(f'v_pk_add_f32 {v(d,2)}, {v(d,2)}, {v(XR+16*jj+8*c+4+2*hh,2)}')
    for r in range(4): a(f'v_cvt_pk_bf16_f32 {v(228+4*jj+r)}, {v(DU+8*jj+r)}, {v(DU+8*jj+4+r)}')
    y_st = a(f'buffer_store_dwordx4 {v(228+4*jj,4)}, v226, {srd(WS)}, s{79+jj} offen sc1')
stamp()

a('v_bfe_u32 v130, v1, 2, 2'); a('v_lshrrev_b32 v131, 5, v1')
a('v_lshl_add_u32 v132, v131, 2, v130'); a('v_lshlrev_b32 v132, 7, v132')
a('v_bfe_u32 v133, v1, 3, 1'); a('v_lshl_add_u32 v132, v133, 6, v132')
a('v_bfe_u32 v133, v1, 4, 1'); a('v_lshl_add_u32 v132, v133, 5, v132')
a('v_and_b32 v133, 1, v1'); a('v_lshl_add_u32 v132, v133, 4, v132')
a('v_bfe_u32 v133, v1, 1, 1'); a('v_lshl_add_u32 v132, v133, 3, v132')
a(f's_lshl_b32 s60, {sKH}, 6'); a('v_xor_b32 v132, s60, v132')
a(f's_lshl_b32 s60, {sKH}, 11')
AR = 212
a(f'v_add_u32 {v(AR)}, s60, v132'); a(f'v_xor_b32 {v(AR+1)}, 64, {v(AR)}')
for k in (1, 2):
    a(f'v_add_u32 {v(AR+2*k)}, {61440*k}, {v(AR)}'); a(f'v_add_u32 {v(AR+2*k+1)}, {61440*k}, {v(AR+1)}')
a.wait_vm(w2_seq[27])
a.wait_all_lg()
a('s_barrier')
G2A, AF = 32, 96
def rdA2(s):
    ad = w2slot(s); k = ad // 61440; o = ad - 61440*k
    return [f'ds_read_b64_tr_b16 {v(AF+8*(s%3)+4*dt+2*rd,2)}, {v(AR+2*k+dt)} offset:{o + rd*1024}' for dt in range(2) for rd in range(2)]
for x in rdA2(0) + rdA2(1): a(x)
later = [hop(s) for s in range(NH0, 43)]
q = []
for k in range(8): q += [later[2*k], later[2*k+1], w2op(28+k)]
q += later[16:]
YR, XS = 128, 136
for s in range(43):
    if s == 9:
        a.wait_all_lg(); a('s_barrier')
        q = q[:2] + [w2op(k) for k in range(36, 43)] + q[2:]
    if s == 12:
        a.wait_vm(y_st); flag_store(3)
    if s == 26:
        a.wait_vm(w2_seq[42]); a('s_barrier')
    if s == 34: poll_issue(vP13, 244)
    if s == 39:
        poll_check(vP13, 244, 3, 224)
        a('v_lshrrev_b32 v146, 5, v1'); a('v_lshlrev_b32 v146, 10, v146')
        a('v_bfe_u32 v147, v1, 1, 4'); a('v_lshl_add_u32 v146, v147, 4, v146')
        a('v_and_b32 v147, 1, v1'); a('v_lshl_add_u32 v146, v147, 2, v146')
        a(f's_lshl_b32 s60, {st}, 16'); a(f's_lshl_b32 s61, {sDS}, 13'); a('s_add_u32 s60, s60, s61')
        a(f's_lshl_b32 s61, {sKH}, 12'); a('s_add_u32 s60, s60, s61'); a(f's_lshl_b32 s61, {sTH}, 3'); a('s_add_u32 s60, s60, s61')
        a(f's_add_u32 s60, s60, {WS_Y}')
        for grp in range(2):
            for e in range(4): a(f'buffer_load_dword {v(YR+4*grp+e)}, v146, {srd(WS)}, s60 offen offset:{(8*grp+e)*256} sc1')
    fill = rdA2(s + 2) if s + 2 < 43 else []
    take = 3 if s < 8 else 2
    fill += q[:take]; q = q[take:]
    mm = []
    for dt in range(2):
        cin = '0' if s == 0 else v(G2A+16*dt, 16)
        mm.append(f'v_mfma_f32_32x32x16_bf16 {v(G2A+16*dt,16)}, {v(AF+8*(s%3)+4*dt,4)}, {a_(4*s,4)}, {cin}')
    interleave(a, mm, fill, per=(len(fill) + 1) // 2)
assert not q
stamp()
EX, OT = 10*4096, 14*4096
a(f'v_add_u32 v148, {sW4K}, {v(vL16)}')
for k in range(4): a(f'ds_write_b128 v148, {v(G2A+16+4*k,4)} offset:{EX + 1024*k}')
a(f's_lshl_b32 s60, {sTH}, 12'); a(f's_add_u32 s60, s60, {XST}')
a(f's_lshl_b32 s61, {sKH}, 6')
a('v_xor_b32 v149, s61, v250'); a('v_add_u32 v149, s60, v149'); a('v_xor_b32 v150, 32, v149')
a(f's_and_b32 s60, {st}, 1'); a('s_lshl_b32 s60, s60, 1'); a(f's_add_u32 s60, s60, {sTH}'); a('s_lshl_b32 s60, s60, 8'); a(f's_add_u32 s60, s60, {STATS}')
a('v_and_b32 v151, 31, v1'); a('v_lshlrev_b32 v152, 3, v151'); a('v_add_u32 v152, s60, v152')
a(f'ds_read_b128 {v(XS,4)}, v149'); a(f'ds_read_b128 {v(XS+4,4)}, v150'); a('ds_read_b64 v[144:145], v152')
a('v_xor_b32 v148, 8192, v148')
a.wait_all_lg()
a('s_barrier')
for k in range(4): a(f'ds_read_b128 {v(64+4*k,4)}, v148 offset:{EX + 1024*k}')
XU, YU = 160, 176
for k in range(8):
    unpack(XU+2*k, XU+2*k+1, XS+k); unpack(YU+2*k, YU+2*k+1, YR+k)
a('v_mov_b32 v146, v145')
for k in range(8):
    a(f'v_pk_mul_f32 {v(YU+2*k,2)}, {v(YU+2*k,2)}, v[146:147] op_sel_hi:[1,0]')
    a(f'v_pk_add_f32 {v(192+2*k,2)}, {v(XU+2*k,2)}, v[144:145] op_sel_hi:[1,0] neg_lo:[0,1] neg_hi:[0,1]')
for k in range(8):
    a(f'v_pk_fma_f32 {v(XU+2*k,2)}, {v(192+2*k,2)}, {v(YU+2*k,2)}, {v(XU+2*k,2)}')
    a(f'v_pk_add_f32 {v(G2A+2*k,2)}, {v(G2A+2*k,2)}, {v(64+2*k,2)}')
for k in range(8): a(f'v_pk_add_f32 {v(XU+2*k,2)}, {v(XU+2*k,2)}, {v(G2A+2*k,2)}')
for k in range(8): a(f'v_cvt_pk_bf16_f32 {v(208+k)}, {v(XU+2*k)}, {v(XU+2*k+1)}')
a(f's_lshl_b32 s60, {sW}, 11'); a(f's_add_u32 s60, s60, {OT}')
a('v_lshrrev_b32 v153, 5, v1'); a('v_bfe_u32 v154, v1, 1, 2'); a('v_xor_b32 v153, v153, v154')
a('v_lshlrev_b32 v153, 4, v153'); a('v_lshl_add_u32 v153, v151, 6, v153'); a('v_add_u32 v153, s60, v153')
a('v_xor_b32 v154, 32, v153')
a('ds_write_b128 v153, v[208:211]'); a('ds_write_b128 v154, v[212:215]')
a('v_lshrrev_b32 v155, 2, v1'); a('v_and_b32 v156, 3, v1'); a('v_bfe_u32 v157, v1, 3, 2'); a('v_xor_b32 v157, v157, v156')
a('v_lshlrev_b32 v157, 4, v157'); a('v_lshl_add_u32 v157, v155, 6, v157'); a('v_add_u32 v157, s60, v157')
a('v_lshlrev_b32 v155, 10, v155'); a('v_lshl_add_u32 v155, v156, 4, v155')
a(f's_lshl_b32 s60, {st}, 16'); a(f's_lshl_b32 s61, {sTH}, 15'); a('s_add_u32 s60, s60, s61')
a(f's_lshl_b32 s61, {sDS}, 7'); a('s_add_u32 s60, s60, s61'); a(f's_lshl_b32 s61, {sKH}, 6'); a('s_add_u32 s60, s60, s61')
a('s_add_u32 s61, s60, 16384')
a.wait_all_lg()
a('ds_read_b128 v[216:219], v157'); a('ds_read_b128 v[220:223], v157 offset:1024')
a(f'buffer_store_dwordx4 v[216:219], v155, {srd(OUT)}, s60 offen sc1')
a(f'buffer_store_dwordx4 v[220:223], v155, {srd(OUT)}, s61 offen sc1')
stamp()
a(f's_or_b32 s60, {sCP}, {sW}')
a('s_cmp_lg_u32 s60, 0')
a('s_cbranch_scc1 L_noep')
for k in range(4):
    a('v_lshlrev_b32 v128, 7, v1')
    a(f'v_add_u32 v128, {WS_FLAG + 8192*k}, v128')
    poll_issue(128, 244)
    poll_check(128, 244, 1, 224)
a(f'v_mov_b32 v128, {WS_E}'); a(f'v_mov_b32 v129, {sTAG}')
a('s_mov_b64 exec, 1')
a(f'buffer_store_dword v129, v128, {srd(WS)}, 0 offen sc1')
a('s_mov_b64 exec, -1')
a.place('L_noep')
if OPT['stamps']:
    a('s_waitcnt vmcnt(0)')
    stamp()
    a(f's_lshl_b32 s60, s2, 2'); a(f's_add_u32 s60, s60, {sW}'); a('s_lshl_b32 s60, s60, 6'); a(f's_add_u32 s60, s60, {WS_STAMP}')
    a('v_mov_b32 v128, s60')
    a('s_mov_b64 exec, 1')
    for k in range(4): a(f'buffer_store_dwordx4 {a_(240+4*k,4)}, v128, {srd(WS)}, 0 offen offset:{16*k}')
    if OPT['stamps'] == 2:
        a('s_load_dwordx2 s[84:85], s[0:1], 80'); a('s_mov_b32 s86, 256'); a('s_mov_b32 s87, 0x20000'); a('s_waitcnt lgkmcnt(0)')
        a('s_and_b32 s60, s2, 0x1f'); a(f's_or_b32 s60, s60, {sW}'); a('s_cmp_lg_u32 s60, 0'); a('s_cbranch_scc1 L_end')
        a('v_mov_b32 v128, 0')
        for k in range(nstamp[0]):
            a(f'v_accvgpr_read_b32 v129, a{240+k}')
            a(f'buffer_atomic_umax v129, v128, s[84:87], 0 offen offset:{4*k}')
a.place('L_end')
a('s_endpgm')

hdr = open('parallel_sum__ssm_conv_h3__dense_activation_silu__prompt.s.ref').read().split('\n')
hdr = [l for l in hdr if l.startswith(';') and '@launch' not in l]
out = '\n'.join(hdr) + f'\n; @launch grid=(256,1,1) block=(256,1,1) lds={LDS_SIZE}\n'
out += f'''.amdgcn_target "amdgcn-amd-amdhsa--gfx950"
.text
.globl {NAME}
.p2align 8
.type {NAME},@function
{NAME}:
''' + a.text() + f'''.section .rodata,"a"
.p2align 6
.amdhsa_kernel {NAME}
  .amdhsa_next_free_vgpr 512
  .amdhsa_next_free_sgpr 102
  .amdhsa_accum_offset 256
  .amdhsa_group_segment_fixed_size 0
  .amdhsa_kernarg_size 96
  .amdhsa_user_sgpr_count 2
  .amdhsa_user_sgpr_kernarg_segment_ptr 1
  .amdhsa_system_sgpr_workgroup_id_x 1
.end_amdhsa_kernel
'''
open(sys.argv[1], 'w').write(out)
print('lines', len(a.lines), 'nop states', a.nops, file=sys.stderr)
```

```python
import re

def regs_of(tok):
    tok = tok.strip()
    tok = re.sub(r'^-|^\||\|$', '', tok)
    m = re.match(r'^abs\((.*)\)$', tok)
    if m: tok = m.group(1)
    m = re.match(r'^([vas])(\d+)$', tok)
    if m: return {(m.group(1), int(m.group(2)))}
    m = re.match(r'^([vas])\[(\d+):(\d+)\]$', tok)
    if m: return {(m.group(1), i) for i in range(int(m.group(2)), int(m.group(3)) + 1)}
    if tok == 'vcc': return {('s', 'vcc')}
    if tok == 'exec': return {('s', 'exec')}
    if tok == 'm0': return {('s', 'm0')}
    return set()

TRANS = ('v_exp_f32', 'v_rcp_f32', 'v_sqrt_f32', 'v_rsq_f32', 'v_log_f32')

class Ins:
    def __init__(self, text):
        self.text = text
        parts = text.split(None, 1)
        self.mn = parts[0]
        rest = parts[1] if len(parts) > 1 else ''
        ops, depth, cur = [], 0, ''
        for ch in rest:
            if ch in '[(': depth += 1
            if ch in '])': depth -= 1
            if ch == ',' and depth == 0: ops.append(cur.strip()); cur = ''
            else: cur += ch
        if cur.strip(): ops.append(cur.strip())
        self.mods = ''
        if ops:
            sp = ops[-1].split(None, 1)
            ops[-1] = sp[0]
            if len(sp) > 1: self.mods = sp[1]
        self.ops = ops
        mn = self.mn
        self.kind = ('mfma' if mn.startswith('v_mfma') else 'valu' if mn.startswith('v_') else
                     'ds' if mn.startswith('ds_') else 'vmem' if mn.startswith(('buffer_', 'global_')) else 'salu')
        R = [regs_of(o) for o in ops]
        self.w, self.r = set(), set()
        self.states = 1
        self.lds_dma = False
        self.wide_store = False
        if self.kind == 'mfma':
            self.w = R[0]; self.A, self.B, self.C = R[1], R[2], R[3]; self.r = R[1] | R[2] | R[3]
            self.passes = 8 if '32x32x16' in mn else 4
        elif self.kind == 'valu':
            if mn == 'v_nop': pass
            else:
                self.w = set(R[0]); self.r = set().union(*R[1:]) if len(R) > 1 else set()
                if mn.startswith(('v_fmac', 'v_dot2c', 'v_permlane')): self.r |= R[0]
                if mn.startswith('v_permlane'): self.w |= R[1]
                if mn.startswith(('v_add_co', 'v_sub_co', 'v_addc_co')): self.w |= R[1];
                if mn.startswith('v_cndmask') and len(ops) == 3: self.r |= {('s', 'vcc')}
        elif self.kind == 'ds':
            if mn.startswith('ds_read'): self.w = R[0]; self.r = set().union(*R[1:])
            else: self.r = set().union(*R)
        elif self.kind == 'vmem':
            if mn == 'buffer_wbl2' or mn == 'buffer_inv': pass
            elif 'lds' in self.mods.split():
                self.lds_dma = True; self.r = set().union(*R) | {('s', 'm0')}
            elif '_load_' in mn:
                self.w = R[0]; self.r = set().union(*R[1:])
                if 'd16' in mn: self.r |= R[0]
            else:
                self.r = set().union(*R)
                self.data = R[1] if mn.startswith('global_') else R[0]
                self.wide_store = mn.endswith(('x3', 'x4'))
        else:
            if mn == 's_nop': self.states = int(ops[0]) + 1
            elif mn.startswith(('s_cmp', 's_cbranch', 's_branch', 's_waitcnt', 's_barrier', 's_sleep', 's_setprio', 's_endpgm')):
                self.r = set().union(*R) if R else set()
            else:
                self.w = set(R[0]) if R else set(); self.r = set().union(*R[1:]) if len(R) > 1 else set()
                if 'saveexec' in mn: self.w |= {('s', 'exec')}

def vec(x): return {r for r in x if r[0] in 'va'}
def sca(x): return {r for r in x if r[0] == 's'}

def need(p, c):
    n = 0
    if p.kind == 'valu':
        wv, ws = vec(p.w), sca(p.w)
        isdot = p.mn.startswith('v_dot')
        if c.kind == 'mfma' and wv & c.r: n = max(n, 3 if isdot else 2)
        if c.kind == 'valu':
            if wv & c.r:
                if c.mn.startswith(('v_readfirstlane', 'v_readlane')): n = max(n, 1)
                if c.mn.startswith('v_permlane') or 'dpp' in c.mn or 'row_' in c.mods or 'quad_perm' in c.mods: n = max(n, 2)
                if p.mn in TRANS and c.mn not in TRANS: n = max(n, 1)
            if ws & c.r: n = max(n, 2)
        if isdot and (wv & (c.r | c.w)):
            same_acc = c.mn == p.mn and c.w == p.w and not (wv & set().union(*[regs_of(o) for o in c.ops[1:3]]))
            if not same_acc: n = max(n, 3)
        if c.kind == 'vmem' and ws & c.r: n = max(n, 5)
    elif p.kind == 'mfma':
        P = p.passes
        if c.kind == 'mfma':
            if p.w & (c.A | c.B): n = max(n, P + 4)
            if p.w & c.C and not (c.C == p.w and c.mn == p.mn): n = max(n, P + 2)
            if p.w & c.w and not (c.w == p.w and c.mn == p.mn): n = max(n, P + 2)
        elif c.kind in ('valu', 'ds', 'vmem'):
            if p.w & (c.r | c.w): n = max(n, P + 4)
            if c.kind == 'valu' and p.C & c.w: n = max(n, P - 1)
    elif p.kind == 'vmem' and p.wide_store:
        if p.data & c.w: n = max(n, 2 if c.kind in ('valu', 'mfma') else 1)
    elif p.kind == 'salu':
        if ('s', 'm0') in p.w and c.lds_dma: n = max(n, 1)
    return n

class Asm:
    def __init__(self):
        self.lines = []
        self.hist = []
        self.vm_n = 0; self.vm_done = 0
        self.lg_n = 0; self.lg_done = 0
        self.pend = {}
        self.nlabel = 0
        self.nops = 0
        self.t = 0.0; self.mf_free = 0.0
        self.vq = []; self.fq = []
        self.gap = 68; self.next_vm = 0.0; self.slack = 0.0
        self.busy = 0
    def raw(self, s): self.lines.append(s)
    def comment(self, s): self.lines.append('    ; ' + s)
    def _push(self, ins):
        if ins.kind == 'mfma':
            st = max(self.t, self.mf_free); self.t = st + 8; self.mf_free = st + 4 * ins.passes
        elif ins.mn.startswith(('v_pk_', 'v_dot')): self.t = max(self.t, self.mf_free + 12) + 4.5
        elif ins.mn in TRANS: self.t += 8.5
        elif ins.mn == 's_nop': self.t += 4 * ins.states
        elif ins.mn == 'ds_write_b128': self.t += 16
        elif ins.mn == 's_barrier': self.t += 30
        else: self.t += 4.5
        if ins.kind == 'vmem': self.next_vm = self.t + self.gap
        self.lines.append('    ' + ins.text)
        self.hist.append(ins)
        if len(self.hist) > 24: self.hist.pop(0)
    def wait_vm(self, seq):
        if seq <= self.vm_done: return
        n = min(self.vm_n - seq, 63)
        self._push(Ins(f's_waitcnt vmcnt({n})'))
        self.vm_done = self.vm_n - n
    def wait_lg(self, seq):
        if seq <= self.lg_done: return
        n = min(self.lg_n - seq, 15)
        self._push(Ins(f's_waitcnt lgkmcnt({n})'))
        self.lg_done = self.lg_n - n
    def wait_all_lg(self): self.wait_lg(self.lg_n)
    def wait_all_vm(self): self.wait_vm(self.vm_n)
    def do(self, x):
        self.busy += 1
        if callable(x): x()
        elif isinstance(x, list):
            for y in x: self(y)
        else: self(x)
        self.busy -= 1
    def lock(self): self.busy += 1
    def unlock(self): self.busy -= 1
    def service(self, before_mfma):
        if self.busy: return
        while True:
            if self.vq and self.t >= self.next_vm: self.do(self.vq.pop(0))
            elif before_mfma and self.fq and self.mf_free + self.slack - self.t >= 4.5: self.do(self.fq.pop(0))
            else: break
    def drain_v(self, upto=None):
        while self.vq:
            x = self.vq.pop(0); self.do(x)
            if x is upto: break
    def drain_f(self, n=10**9):
        while self.fq and n > 0:
            self.service(False); self.do(self.fq.pop(0)); n -= 1
    def __call__(self, text, track=True):
        ins = Ins(text)
        self.service(ins.kind == 'mfma')
        vm = lg = 0
        for r in (ins.r | ins.w):
            if r in self.pend:
                cls, seq = self.pend[r]
                if cls == 'vm': vm = max(vm, seq)
                else: lg = max(lg, seq)
        if not track: assert vm <= self.vm_done and lg <= self.lg_done, 'untracked op needs a wait: ' + text
        if vm: self.wait_vm(vm)
        if lg: self.wait_lg(lg)
        for r in (ins.r | ins.w): self.pend.pop(r, None)
        dist = 0; pad = 0
        for p in reversed(self.hist):
            pad = max(pad, need(p, ins) - dist)
            dist += p.states
        while pad > 0:
            k = min(pad, 16)
            self._push(Ins(f's_nop {k-1}')); pad -= k; self.nops += k
        self._push(ins)
        if not track: return None
        if ins.kind == 'vmem':
            self.vm_n += 1
            assert self.vm_n - self.vm_done <= 63, "too many vm ops in flight: " + text
            for r in ins.w: self.pend[r] = ('vm', self.vm_n)
            return self.vm_n
        if ins.kind == 'ds':
            self.lg_n += 1
            for r in ins.w: self.pend[r] = ('lg', self.lg_n)
            return self.lg_n
        return None
    def label(self, name=None):
        if name is None:
            self.nlabel += 1; name = f'L{self.nlabel}'
        return name
    def place(self, name): self.lines.append(name + ':')
    def text(self): return '\n'.join(self.lines) + '\n'

def interleave(a, main, fill, first=0, per=1):
    def do(x):
        if callable(x): x()
        else: a(x)
    fi = 0; acc = 0.0
    for i, m in enumerate(main):
        do(m)
        if i >= first:
            acc += per
            while acc >= 1 and fi < len(fill):
                do(fill[fi]); fi += 1; acc -= 1
    while fi < len(fill):
        do(fill[fi]); fi += 1
```

```python
import sys, copy
from emit import Asm

NAME = "parallel_sum__ssm_conv_h3__dense_activation_silu__prompt_kernel"
OPT = dict(stamps=0, fast=1, nt=0, wb=14, rot=1, s2poll=50, s2chk=70, ycheck=38, yload=31, sg=0, gap=68, p1slack=24, sig2=16)
for x in sys.argv[2:]:
    k, v = x.split('='); OPT[k] = int(v)

WS_E, WS_FLAG, WS_STAMP, WS_U, WS_Y, WS_H, WS_SIZE = 0, 0x10000, 0x40000, 0x100000, 0x300000, 0x500000, 0x1000000
OOB = 0x7f000000
SLOT = 28672
CV = 114688; CVCH = 17664; U1OFF = 4640; HAOFF = 9184; HBD = 4228
KB, VB, SB = CV, CV + 8192, CV + 9216 + 8192
XST = 150016; STATS = 158208; CSUM = 159232
LDS_SIZE = 163840
EX, OT = 16*4096, 20*4096
def w2slot(s): return s * 4096 if s < 28 else (s - 28) * 4096
Q, K, V, SH, HK, W1, W2, OUT, WS = 4, 8, 12, 16, 20, 24, 28, 32, 36
def srd(r): return f's[{r}:{r+3}]'
sD, sE, sT, sM1, st, sDS, sCP, sW, sXCC, sTAG, sBASE, sP0 = [f's{i}' for i in range(42, 54)]
sXO, sW1O, sHS, sHS3, sW2O, sHL = [f's{i}' for i in range(54, 60)]
sM0W, sW4K, sW3K, sSELLO, sSELHI, sONES = [f's{i}' for i in range(62, 68)]
sPAIR = 's[68:69]'
sSPIN, sTH, sKH, sMASK, sFLG, sI = [f's{i}' for i in range(70, 76)]
sHM0, sHSO, sHLC, sD0, sD1, sA, sB, sF, sG, sUS0, sUS1, sW2K = [f's{i}' for i in range(76, 88)]
sUL, sYS0, sYS1, sYL, sO0, sO1, sROT, sC = [f's{i}' for i in range(88, 96)]
sFAST, sSTASH, sPOI = 's100', 's101', 's98'
def v(n, c=1): return f'v{n}' if c == 1 else f'v[{n}:{n+c-1}]'
def a_(n, c=1): return f'a{n}' if c == 1 else f'a[{n}:{n+c-1}]'
vL16, vCSR, vSTW = 2, 3, 11
vXA, vWA, vXR, vWR = 4, 8, 12, 20
vFL, vP13, vP2, vPX = 28, 29, 30, 31
vKA, vKB, vSHR, vUS, vKD = 210, 211, 212, 213, 214
(vUA, vHA, vDU, vW2A, vUW, vXW, vXRd, vYS, vYL, vE2W, vE2R, vSTa, vSTb, vSTS, vOTa, vOTb, vOTR, vOUT) = range(216, 234)
AR, UR = 234, 240
vUL, vULp, vCSW, vW2W = 249, 250, 251, 254
NT = ' nt' if OPT['nt'] else ''

a = Asm(); a.gap = OPT['gap']
nstamp = [0]
def stamp(g=0):
    if not OPT['stamps'] or g != OPT['sg']: return
    k = nstamp[0]; nstamp[0] += 1
    a.lock()
    a.wait_all_lg()
    a(f's_memtime s[96:97]'); a('s_waitcnt lgkmcnt(0)')
    a(f's_sub_u32 s96, s96, s3')
    a(f'v_mov_b32 v255, s96')
    a(f'v_accvgpr_write_b32 a{240+k}, v255')
    a.unlock()

def dma(vaddr, rs, soff, m0expr, extra='', track=True):
    a(m0expr)
    return a(f'buffer_load_dwordx4 {v(vaddr)}, {srd(rs)}, {soff} offen{extra} lds', track=track)

def flag_store(phase, fastable=False):
    a.lock()
    a(f's_add_u32 {sF}, {sFLG}, {8*phase}')
    a(f'v_mov_b32 v252, {sF}')
    a('s_mov_b64 exec, 1')
    if fastable:
        slow, join = a.label(), a.label()
        a(f's_cmp_eq_u32 {sFAST}, 0')
        a(f's_cbranch_scc1 {slow}')
        a(f'buffer_store_dwordx2 v[252:253], {v(vFL)}, {srd(WS)}, 0 offen', track=False)
        a(f's_branch {join}')
        a.place(slow)
    a(f'buffer_store_dwordx2 v[252:253], {v(vFL)}, {srd(WS)}, 0 offen sc1')
    if fastable: a.place(join)
    a('s_mov_b64 exec, -1')
    a.unlock()

def poll_issue(vaddr, dst):
    return a(f'buffer_load_dwordx2 {v(dst,2)}, {v(vaddr)}, {srd(WS)}, 0 offen sc1')

def poll_check(vaddr, dst, phase, tmp):
    a.lock()
    top, done = a.label(), a.label()
    a(f's_add_u32 {sF}, {sBASE}, {8*phase}')
    a(f's_mov_b32 {sSPIN}, 0')
    a.wait_vm(a.pend[('v', dst)][1])
    a.place(top)
    a(f'v_subrev_u32 {v(tmp)}, {sF}, {v(dst)}')
    a(f'v_cmp_gt_u32 vcc, {32-8*phase}, {v(tmp)}')
    a(f'v_cmp_eq_u32 {sPAIR}, {sTAG}, {v(dst+1)}')
    a(f's_and_b64 vcc, vcc, {sPAIR}')
    a('s_cmp_eq_u64 vcc, exec')
    a(f's_cbranch_scc1 {done}')
    t0 = a.t
    a(f's_add_u32 {sSPIN}, {sSPIN}, 1')
    a(f's_cmp_gt_u32 {sSPIN}, 0x20000')
    a(f's_cbranch_scc1 {done}')
    a('s_sleep 1')
    a(f'buffer_load_dwordx2 {v(dst,2)}, {v(vaddr)}, {srd(WS)}, 0 offen sc1', track=False)
    a('s_waitcnt vmcnt(0)')
    a(f's_branch {top}')
    a.place(done)
    a.t = t0
    a.unlock()

def lo(d, s): return f'v_lshlrev_b32 {v(d)}, 16, {v(s)}'
def hi(d, s): return f'v_and_b32 {v(d)}, {sMASK}, {v(s)}'

a('s_cmp_ge_u32 s2, 256')
a('s_cbranch_scc1 L_end')
if OPT['stamps']:
    a('s_memtime s[68:69]'); a('s_waitcnt lgkmcnt(0)'); a('s_mov_b32 s3, s68')
a('s_load_dwordx16 s[76:91], s[0:1], 0')
a('s_load_dwordx8 s[92:99], s[0:1], 64')
a('v_and_b32 v1, 63, v0')
a('v_lshrrev_b32 v3, 6, v0')
a('s_lshr_b32 %s, s2, 3' % sI)
a(f'v_readfirstlane_b32 {sW}, v3')
a('s_getpc_b64 s[60:61]')
a.place('L_pc')
a(f's_and_b32 s62, {sI}, 3')
a('s_lshl_b32 s62, s62, 13')
a(f's_lshl_b32 s63, {sW}, 11')
a('s_add_u32 s62, s62, s63')
a('v_lshlrev_b32 v3, 7, v1')
a('v_add_u32 v3, s62, v3')
a('v_min_u32 v3, L_end-L_pc, v3')
a('s_mov_b64 exec, 0xffff')
a('global_load_dword v255, v3, s[60:61]')
a('s_mov_b64 exec, -1')
a('s_and_b32 s60, s2, 7')
a(f's_and_b32 s61, {sI}, 1')
a(f's_lshl_b32 {sT}, s60, 1')
a(f's_add_u32 {sT}, {sT}, s61')
a(f's_lshr_b32 {sM1}, {sI}, 1')
for r, n in ((Q, 2097152), (W1, 1409024), (K, 2097152), (V, 2097152), (SH, 4096)):
    a(f's_mov_b32 s{r+2}, {n}'); a(f's_mov_b32 s{r+3}, 0x20000')
a('v_lshrrev_b32 v32, 4, v1')
a('v_lshrrev_b32 v33, 3, v1')
a('v_and_b32 v34, 7, v1')
a('v_xor_b32 v35, v34, v32')
a('v_lshlrev_b32 v33, 10, v33')
a(f'v_lshl_add_u32 {v(vXA)}, v35, 4, v33')
a(f'v_xor_b32 {v(vXA+1)}, 64, {v(vXA)}')
a(f'v_add_u32 {v(vXA+1)}, 8192, {v(vXA+1)}')
a(f'v_add_u32 {v(vXA+2)}, 16384, {v(vXA)}')
a(f'v_add_u32 {v(vXA+3)}, 16384, {v(vXA+1)}')
a(f's_lshl_b32 {sXO}, {sT}, 17')
a(f's_lshl_b32 s60, {sW}, 15')
a(f's_add_u32 {sXO}, {sXO}, s60')
a(f's_lshl_b32 {sW4K}, {sW}, 12')
a(f's_lshl_b32 {sM0W}, {sW}, 10')
a(f's_mul_i32 {sW3K}, {sW}, 3072')
a(f's_mul_i32 {sP0}, {sM1}, 3')
a(f's_lshl_b32 s60, {sM1}, 1')
a('s_add_u32 s60, s60, 11')
a(f's_min_u32 {sP0}, {sP0}, s60')
a(f's_cmp_lt_u32 {sM1}, 11')
a('s_cselect_b32 s61, 12, 8')
a(f'v_mov_b32 v3, {OOB}')
for j in range(3):
    if j: a(f'v_add_u32 v36, {64*j}, v1')
    src = 'v36' if j else 'v1'
    a(f'v_mul_u32_u24 v37, 5462, {src}')
    a('v_lshrrev_b32 v37, 16, v37')
    a('v_mul_u32_u24 v35, 12, v37')
    a(f'v_sub_u32 v35, {src}, v35')
    a('v_cmp_gt_u32 vcc, s61, v35')
    a('v_mul_u32_u24 v37, 2752, v37')
    a(f'v_lshl_add_u32 {v(vWA+j)}, v35, 4, v37')
    a(f'v_cndmask_b32 {v(vWA+j)}, v3, {v(vWA+j)}, vcc')
a(f's_mul_i32 {sW1O}, {sW}, {16*2752}')
a(f's_lshl_b32 s60, {sP0}, 6')
a(f's_add_u32 {sW1O}, {sW1O}, s60')
a(f's_and_b32 s61, {sM1}, 1')
a(f's_lshl_b32 {st}, {sT}, 1')
a(f's_add_u32 {st}, {st}, s61')
a(f's_lshr_b32 {sDS}, {sI}, 2')
a(f's_lshl_b32 {sCP}, {sDS}, 5')
a(f's_add_u32 {sCP}, {sCP}, {st}')
a(f's_lshl_b32 s60, {st}, 16')
a(f's_lshl_b32 s61, {sW}, 14')
a('s_add_u32 s60, s60, s61')
a(f's_lshl_b32 s61, {sDS}, 7')
a(f's_add_u32 {sSTASH}, s60, s61')
a('v_lshrrev_b32 v35, 5, v1')
a('v_xor_b32 v35, v35, v34')
a('v_lshl_add_u32 v38, v35, 4, v33')
a(f's_lshl_b32 s60, {sW}, 6'); a('s_and_b32 s60, s60, 64'); a('s_xor_b32 s61, s60, 32')
a(f'v_xor_b32 {v(vKD)}, s61, v38')
a('s_xor_b32 s61, s60, 64')
a(f'v_xor_b32 {v(vKD+1)}, s61, v38')
a(f'v_add_u32 {v(vKD+1)}, 8192, {v(vKD+1)}')
a(f'v_add_u32 v38, {sSTASH}, v38')
a('v_subrev_u32 v38, 8192, v38')
a(f'v_lshlrev_b32 {v(vL16)}, 4, v1')
a('s_waitcnt lgkmcnt(0)')
a(f's_mov_b64 s[{W1}:{W1+1}], s[90:91]')
a(f's_mov_b64 s[{Q}:{Q+1}], s[76:77]')
a(f's_mov_b64 s[{K}:{K+1}], s[78:79]')
a(f's_mov_b64 s[{V}:{V+1}], s[80:81]')
a(f's_mov_b64 s[{SH}:{SH+1}], s[82:83]')
a(f's_mov_b64 s[{HK}:{HK+1}], s[84:85]')
a(f's_mov_b64 s[40:41], s[86:87]')
a(f's_mov_b64 s[{W2}:{W2+1}], s[92:93]')
a(f's_mov_b64 s[{OUT}:{OUT+1}], s[94:95]')
a(f's_mov_b64 s[{WS}:{WS+1}], s[98:99]')
if OPT['rot']: a(f's_and_b32 {sROT}, {sM1}, 7')
else: a(f's_mov_b32 {sROT}, 0')
a(f's_lshl_b32 {sW2K}, {sW}, 11')

last = {}
def g1_dma_ops(c):
    slot = (c % 4) * SLOT
    def xop(n):
        def f(): last[c] = dma(vXA+n, Q, sA, f's_add_u32 m0, {sW4K}, {slot + n*1024}')
        return f
    def wop(j):
        def f():
            if j == 0:
                a(f's_add_u32 {sC}, {sROT}, {c}'); a(f's_and_b32 {sC}, {sC}, 7')
                a(f's_mul_i32 {sB}, {sC}, {64*2752}'); a(f's_add_u32 {sB}, {sB}, {sW1O}')
                a(f's_lshl_b32 {sA}, {sC}, 7'); a(f's_add_u32 {sA}, {sA}, {sXO}')
            dma(vWA+j, W1, sB, f's_add_u32 m0, {sW3K}, {slot + 16384 + j*1024}')
        return f
    ops = [wop(0), wop(1), wop(2), xop(0), xop(1), xop(2), xop(3)]
    lastop[c] = ops[-1]
    return ops
lastop = {}
def kv_ops():
    def f(rs, base, n):
        return lambda: dma(vKD+n, rs, sSTASH, f's_add_u32 m0, {sW2K}, {base + 1024 + n*1024}', NT)
    def extra():
        l1, l2 = a.label(), a.label()
        a(f's_cmp_lg_u32 {sW}, 0'); a(f's_cbranch_scc1 {l1}')
        dma(38, K, '0', f's_mov_b32 m0, {KB}', NT, track=False)
        a.place(l1)
        a(f's_cmp_lg_u32 {sW}, 1'); a(f's_cbranch_scc1 {l2}')
        a(f's_lshl_b32 {sG}, {sDS}, 9')
        dma(vL16, SH, sG, f's_mov_b32 m0, {SB}', track=False)
        a.place(l2)
    return [f(K, KB, 0), f(K, KB, 1), extra, f(V, VB, 0), f(V, VB, 1)]
def poison_ops():
    return [lambda n=n: a(f'buffer_store_dwordx4 v[244:247], {v(vL16)}, {srd(WS)}, {sPOI} offen offset:{1024*n} sc1') for n in range(2)]
ops0 = g1_dma_ops(0)
for f in ops0[:4]: a.do(f)
a(f's_load_dword {sE}, s[{WS}:{WS+1}], {WS_E}')
a(f's_lshl_b32 s60, {sCP}, 2')
a(f's_load_dword {sD}, s[40:41], s60')
a.vq = ops0[4:] + kv_ops() + g1_dma_ops(1)
a.gap = 40
stamp()
for r, n in ((HK, 2097152), (W2, 1409024), (OUT, 2097152), (WS, WS_SIZE)):
    a(f's_mov_b32 s{r+2}, {n}'); a(f's_mov_b32 s{r+3}, 0x20000')
a(f's_getreg_b32 {sXCC}, hwreg(HW_REG_XCC_ID, 0, 3)')
a(f's_mov_b32 {sONES}, 0x3f803f80'); a(f's_mov_b32 {sMASK}, 0xffff0000')
a(f's_and_b32 {sTH}, {sW}, 1'); a(f's_lshr_b32 {sKH}, {sW}, 1')
a(f's_mov_b32 {sSELLO}, 0x05040100'); a(f's_mov_b32 {sSELHI}, 0x07060302')
a('v_and_b32 v40, 31, v1'); a('v_lshrrev_b32 v41, 5, v1'); a('v_and_b32 v42, 15, v1')
a('v_and_b32 v43, 1, v1'); a('v_and_b32 v44, 3, v1'); a('v_bfe_u32 v45, v1, 2, 2')
a('v_bfe_u32 v35, v1, 1, 3'); a('v_xor_b32 v35, v35, v41'); a('v_lshlrev_b32 v35, 4, v35')
a('v_lshl_add_u32 v46, v40, 7, v35')
a(f'v_add_u32 v35, {sW4K}, v46')
a('v_lshl_add_u32 v36, v41, 3, v45'); a('v_mul_u32_u24 v36, 192, v36')
a('v_and_b32 v47, 1, v32')
a('v_lshl_add_u32 v36, v47, 5, v36'); a('v_lshl_add_u32 v36, v44, 3, v36')
for i in range(4):
    a(f's_add_u32 s60, {sW}, {i}'); a('s_and_b32 s60, s60, 3'); a('s_lshl_b32 s61, s60, 5')
    a(f'v_xor_b32 {v(vXR+i)}, s61, v35')
    a('s_mul_i32 s61, s60, 3072')
    a(f'v_add_u32 {v(vWR+i)}, s61, v36')
    a(f'v_add_u32 {v(vXR+4+i)}, {2*SLOT}, {v(vXR+i)}'); a(f'v_add_u32 {v(vWR+4+i)}, {2*SLOT}, {v(vWR+i)}')
a(f's_lshl_b32 s60, {st}, 16'); a(f's_lshl_b32 s61, {sDS}, 13'); a('s_add_u32 s60, s60, s61'); a(f's_add_u32 {sYL}, s60, {WS_Y}')
a(f's_add_u32 {sPOI}, {sYL}, {sW2K}')
for i in range(4): a(f'v_mov_b32 v{244+i}, -1')
pops = poison_ops()
a.vq += pops + g1_dma_ops(2) + g1_dma_ops(3)
a.gap = OPT['gap']
a(f's_lshl_b32 s60, {sW}, 1'); a('v_add_u32 v35, s60, v41')
a('v_add_u32 v36, 1, v42'); a('v_and_b32 v36, 7, v36'); a('v_xor_b32 v36, v36, v35')
a('v_lshlrev_b32 v37, 9, v42'); a('v_lshl_add_u32 v37, v47, 3, v37'); a(f'v_add_u32 v37, {KB + 5*128}, v37')
a(f'v_lshl_add_u32 {v(vKA)}, v36, 4, v37')
a('v_add_u32 v36, 2, v42'); a('v_and_b32 v36, 7, v36'); a('v_xor_b32 v36, v36, v35')
a(f'v_lshl_add_u32 {v(vKB)}, v36, 4, v37')
a(f's_lshl_b32 s60, {sW}, 7'); a(f's_add_u32 s60, s60, {SB}')
a(f'v_lshlrev_b32 {v(vSHR)}, 5, v32'); a(f'v_add_u32 {v(vSHR)}, s60, {v(vSHR)}')
a(f'v_lshlrev_b32 {v(vUS)}, 14, v32'); a(f'v_lshl_add_u32 {v(vUS)}, v42, 4, {v(vUS)}')
a(f's_lshl_b32 s60, {sDS}, 18'); a(f's_lshl_b32 s61, {st}, 8'); a('s_add_u32 s60, s60, s61')
a(f's_lshl_b32 s61, {sW}, 16'); a('s_add_u32 s60, s60, s61'); a(f's_add_u32 {sUS0}, s60, {WS_U}'); a(f's_add_u32 {sUS1}, {sUS0}, 8192')
a(f's_lshl_b32 s60, {sCP}, 7'); a(f's_lshl_b32 s61, {sW}, 3'); a('s_add_u32 s60, s60, s61'); a(f's_add_u32 s60, s60, {WS_FLAG}')
a(f'v_mov_b32 {v(vFL)}, s60')
a(f's_lshl_b32 s60, {sDS}, 12'); a(f's_and_b32 s61, {st}, 24'); a('s_add_u32 s60, s60, s61'); a(f's_add_u32 s60, s60, {WS_FLAG}')
a('v_lshlrev_b32 v35, 7, v40'); a(f'v_add_u32 {v(vP13)}, s60, v35')
a('v_lshlrev_b32 v35, 12, v34'); a('v_bfe_u32 v36, v1, 3, 1'); a('v_lshl_add_u32 v37, v36, 7, v35')
a(f's_lshl_b32 s60, {sT}, 8'); a(f's_add_u32 s60, s60, {WS_FLAG}')
a(f's_lshl_b32 s61, {sKH}, 7'); a('s_add_u32 s61, s61, s60')
a(f'v_add_u32 {v(vPX)}, s61, v35')
a(f's_and_b32 s61, {st}, 1'); a('s_lshl_b32 s61, s61, 1'); a(f's_add_u32 s61, s61, {sTH}')
a(f's_lshl_b32 {sO0}, s61, 8')
a('s_lshl_b32 s61, s61, 3'); a('s_add_u32 s61, s61, s60')
a(f'v_add_u32 {v(vP2)}, s61, v37')
a(f's_add_u32 {sO0}, {sO0}, {STATS}')
a('v_lshlrev_b32 v35, 3, v40')
a(f'v_add_u32 {v(vSTS)}, {sO0}, v35')
a(f's_lshl_b32 s60, {sW}, 8'); a(f's_add_u32 s60, s60, {STATS}')
a(f'v_add_u32 {v(vSTW)}, s60, v35')
a(f's_mul_i32 s60, {sKH}, {CVCH}'); a(f's_add_u32 s60, s60, {CV}')
a(f's_mul_i32 s61, {sTH}, {HBD}'); a('s_add_u32 s61, s61, s60'); a(f's_add_u32 {sHM0}, s61, {HAOFF+64}')
a(f's_lshl_b32 {sHSO}, {sCP}, 13'); a(f's_add_u32 {sUL}, {sHSO}, {WS_U}'); a(f's_lshl_b32 s61, {sKH}, 12'); a(f's_add_u32 {sHSO}, {sHSO}, s61')
a(f's_add_u32 {sYL}, {sYL}, s61')
a(f's_lshl_b32 s61, {sTH}, 8')
a(f'v_mul_u32_u24 {v(vUA)}, {U1OFF}, v43')
a('v_lshrrev_b32 v35, 1, v42'); a('v_lshl_add_u32 v35, v35, 2, v32')
a(f'v_lshl_add_u32 {v(vUA)}, v35, 4, {v(vUA)}')
a(f's_sub_u32 {sO1}, s60, s61'); a(f's_add_u32 {sO1}, {sO1}, {448-192}')
a(f'v_add_u32 {v(vUA)}, {sO1}, {v(vUA)}')
a('v_xor_b32 v35, 1, v43')
a(f'v_mul_u32_u24 {v(vHA)}, {HBD}, v35'); a(f'v_lshl_add_u32 {v(vHA)}, v42, 2, {v(vHA)}')
a('v_lshlrev_b32 v35, 4, v32'); a(f'v_sub_u32 {v(vHA)}, {v(vHA)}, v35')
a('s_add_u32 s61, s60, s61'); a(f's_add_u32 s61, s61, {HAOFF+64-12}')
a(f'v_add_u32 {v(vHA)}, s61, {v(vHA)}')
a(f'v_lshlrev_b32 {v(vUL)}, 5, v0'); a(f'v_subrev_u32 {v(vULp)}, 4, {v(vUL)}')
a(f'v_lshlrev_b32 {v(vW2W)}, 4, v0'); a(f'v_add_u32 {v(vUW)}, {CV+448}, {v(vW2W)}')
a('v_lshlrev_b32 v35, 2, v47'); a('v_xor_b32 v35, v35, v34')
a(f'v_lshl_add_u32 {v(vW2A)}, v35, 4, v33')
a(f's_mul_i32 {sW2O}, {sKH}, {43*16*1024}'); a(f's_lshl_b32 s61, {sTH}, 13'); a(f's_add_u32 {sW2O}, {sW2O}, s61')
a(f's_lshl_b32 s61, {sDS}, 7'); a(f's_add_u32 {sW2O}, {sW2O}, s61')
a(f's_lshl_b32 {sO0}, {st}, 16'); a(f's_add_u32 {sO0}, {sO0}, s61')
a(f'v_add_u32 {v(vCSR)}, {CSUM}, {v(vL16)}'); a(f's_lshl_b32 s60, {sW}, 2'); a(f'v_add_u32 {v(vCSW)}, s60, {v(vCSR)}')
a(f's_lshl_b32 s60, {sT}, 2'); a(f's_add_u32 s60, s60, {sW}'); a('s_mul_i32 s60, s60, 86')
a(f's_lshl_b32 s61, {sP0}, 1'); a('s_add_u32 s60, s60, s61'); a('s_lshl_b32 s60, s60, 10')
a(f's_add_u32 {sHS}, s60, {WS_H}'); a(f's_add_u32 {sHS3}, {sHS}, 4096')
a.do([f's_cmp_lt_u32 {sM1}, 11', f's_cselect_b32 {sHS3}, {sHS3}, {OOB}'])
a(f's_lshl_b32 s60, {st}, 1'); a(f's_add_u32 s60, s60, {sTH}'); a('s_mul_i32 s60, s60, 86')
a(f's_mul_i32 s61, {sKH}, 43'); a('s_add_u32 s60, s60, s61'); a('s_lshl_b32 s60, s60, 10')
a(f's_add_u32 {sHL}, s60, {WS_H}')
a('v_lshlrev_b32 v35, 4, v45'); a('v_lshl_add_u32 v35, v32, 7, v35')
a('v_xor_b32 v36, 3, v44'); a('v_lshl_add_u32 v35, v36, 2, v35')
a(f's_add_u32 s60, {sM0W}, {CV+U1OFF+448}'); a(f'v_add_u32 {v(vDU)}, s60, v35')
a(f's_lshl_b32 s60, {sW}, 13'); a(f's_add_u32 s60, s60, {CV}'); a(f'v_add_u32 {v(vXW)}, s60, {v(vL16)}')
a(f's_add_u32 s60, {sW2K}, {CV}'); a(f'v_add_u32 {v(vXRd)}, s60, {v(vL16)}')
a(f'v_lshlrev_b32 {v(vYS)}, 16, v32'); a(f'v_lshl_add_u32 {v(vYS)}, v42, 4, {v(vYS)}')
a(f's_lshl_b32 s60, {sW}, 19'); a(f's_lshl_b32 s61, {sCP}, 8'); a('s_add_u32 s60, s60, s61'); a(f's_add_u32 {sYS0}, s60, {WS_Y}')
a(f's_add_u32 {sYS1}, {sYS0}, 0x40000')
a('v_lshl_add_u32 v35, v41, 2, v45'); a('v_lshlrev_b32 v35, 7, v35')
a('v_bfe_u32 v36, v1, 3, 1'); a('v_lshl_add_u32 v35, v36, 6, v35')
a('v_lshl_add_u32 v35, v47, 5, v35'); a('v_lshl_add_u32 v35, v43, 4, v35')
a('v_bfe_u32 v36, v1, 1, 1'); a('v_lshl_add_u32 v35, v36, 3, v35')
a(f's_lshl_b32 s60, {sKH}, 6'); a('v_xor_b32 v35, s60, v35')
a(f's_lshl_b32 s61, {sKH}, 11')
a(f'v_add_u32 {v(AR)}, s61, v35'); a(f'v_xor_b32 {v(AR+1)}, 64, {v(AR)}')
a(f'v_add_u32 {v(AR+2)}, 61440, {v(AR)}'); a(f'v_add_u32 {v(AR+3)}, 61440, {v(AR+1)}')
a(f'v_lshlrev_b32 {v(vYL)}, 10, v41'); a('v_bfe_u32 v36, v1, 1, 4'); a(f'v_lshl_add_u32 {v(vYL)}, v36, 4, {v(vYL)}')
a(f'v_lshl_add_u32 {v(vYL)}, v43, 2, {v(vYL)}')
a(f's_lshl_b32 s61, {sTH}, 3'); a(f's_add_u32 {sYL}, {sYL}, s61')
a('v_xor_b32 v35, s60, v46')
a(f's_lshl_b32 s61, {sTH}, 12'); a(f's_add_u32 s61, s61, {XST}')
a(f'v_add_u32 {v(vSTa)}, s61, v35'); a(f'v_xor_b32 {v(vSTb)}, 32, {v(vSTa)}')
a(f's_add_u32 s61, {sW4K}, {EX}'); a(f'v_add_u32 {v(vE2W)}, s61, {v(vL16)}'); a(f'v_xor_b32 {v(vE2R)}, 8192, {v(vE2W)}')
a(f's_add_u32 s61, {sW2K}, {OT}')
a('v_bfe_u32 v35, v1, 1, 2'); a('v_xor_b32 v35, v35, v41'); a('v_lshlrev_b32 v35, 4, v35')
a('v_lshl_add_u32 v35, v40, 6, v35'); a(f'v_add_u32 {v(vOTa)}, s61, v35'); a(f'v_xor_b32 {v(vOTb)}, 32, {v(vOTa)}')
a('v_lshrrev_b32 v36, 2, v1'); a('v_bfe_u32 v35, v1, 3, 2'); a('v_xor_b32 v35, v35, v44')
a('v_lshlrev_b32 v35, 4, v35'); a('v_lshl_add_u32 v35, v36, 6, v35'); a(f'v_add_u32 {v(vOTR)}, s61, v35')
a('v_lshlrev_b32 v36, 10, v36'); a(f'v_lshl_add_u32 {v(vOUT)}, v44, 4, v36')
a(f's_lshl_b32 s61, {sTH}, 15'); a(f's_add_u32 {sO0}, {sO0}, s61'); a(f's_add_u32 {sO0}, {sO0}, s60')
a(f's_add_u32 {sO1}, {sO0}, 16384')
a(f's_mul_i32 s60, {sKH}, {CVCH}'); a(f's_mul_i32 s61, {sTH}, {U1OFF}'); a('s_add_u32 s60, s60, s61'); a(f's_add_u32 s60, s60, {CV}')
a('v_min_u32 v35, 27, v1'); a('v_lshlrev_b32 v35, 4, v35'); a(f'v_add_u32 {v(AR+4)}, s60, v35')
a(f's_sub_u32 s60, {sHM0}, 64'); a('v_lshlrev_b32 v35, 2, v42'); a(f'v_add_u32 {v(AR+5)}, s60, v35')
ACC, XF, WF, SU, SQ, CS = 32, 80, 112, 160, 162, 164
for r in range(SU, CS+3): a(f'v_mov_b32 {v(r)}, 0')
a('s_waitcnt lgkmcnt(0)')
a(f's_add_u32 {sTAG}, {sE}, 1')
a(f's_not_b32 {sBASE}, {sTAG}')
a(f's_lshl_b32 {sBASE}, {sBASE}, 5')
a(f's_add_u32 {sFLG}, {sBASE}, {sXCC}')
a(f'v_mov_b32 v253, {sTAG}')
a(f's_lshl_b32 {sD0}, {sD}, 16'); a(f's_and_b32 {sD1}, {sD}, {sMASK}')
flag_store(0)
stamp()

def h_dma_ops():
    def f(n):
        def g():
            a(f's_mov_b32 m0, {sHM0}')
            a(f'buffer_load_dwordx4 {v(vL16)}, {srd(HK)}, {sHSO} offen offset:{n*1024}{NT} lds')
        return g
    return [f(n) for n in range(4)]
def stash_ops():
    def f(n):
        def g(): last['st'] = dma(vXA+n, Q, sSTASH, f's_add_u32 m0, {sW2K}, {XST + n*1024}')
        return g
    return [f(0), f(1)]
w2_seq = {}
def w2op(s):
    def f():
        a(f's_add_u32 {sB}, {sW2O}, {s*16384}')
        if s < 28: w2_seq[s] = dma(vW2A, W2, sB, f's_add_u32 m0, {sM0W}, {w2slot(s)}')
        else: a(f'buffer_load_dwordx4 {a_(172+4*(s-28),4)}, {v(vW2A)}, {srd(W2)}, {sB} offen')
    return f
hops = {}
def hop(s):
    def f():
        if s % 4 == 0: a(f's_add_u32 {sHLC}, {sHL}, {s*1024}')
        a(f'buffer_load_dwordx4 {a_(4*s,4)}, {v(vL16)}, {srd(WS)}, {sHLC} offen offset:{(s%4)*1024} sc1')
    hops[s] = f
    return f

KR, VR, SR, KL, VL, WL, PA = 168, 182, 190, 198, 205, 209, 240
p1_reads = [f'ds_read_b64 {v(KR+2*r,2)}, {v(vKA if r < 3 else vKB)} offset:{128*r}' for r in range(7)]
p1_reads += [f'ds_read_b128 {v(SR+4*p,4)}, {v(vSHR)} offset:{16*p}' for p in range(2)]
p1_reads += [f'ds_read_b64 {v(VR+2*r,2)}, {v(vKB)} offset:{VB-KB+128*(r+3)}' for r in range(4)]
p1 = []
ust = {}
for p in range(2):
    for j in range(4): p1 += [lo(WL+j, SR+4*p+j), hi(SR+4*p+j, SR+4*p+j)]
    for r in range(7): p1 += [lo(KL+r, KR+2*r+p), hi(KR+2*r+p, KR+2*r+p)]
    for r in range(4): p1 += [lo(VL+r, VR+2*r+p), hi(VR+2*r+p, VR+2*r+p)]
    for e in range(2):
        kk = (lambda r: KL+r) if e == 0 else (lambda r: KR+2*r+p)
        vv = (lambda r: VL+r) if e == 0 else (lambda r: VR+2*r+p)
        w = [WL+2*e, SR+4*p+2*e, WL+2*e+1, SR+4*p+2*e+1]
        for i in range(4): p1.append(f'v_mul_f32 {v(PA+4*e+i)}, {v(kk(i))}, {v(w[3])}')
        for j in (2, 1, 0):
            for i in range(4): p1.append(f'v_fmac_f32 {v(PA+4*e+i)}, {v(kk(i+3-j))}, {v(w[j])}')
        for i in range(4): p1.append(f'v_mul_f32 {v(PA+4*e+i)}, {v(PA+4*e+i)}, {v(vv(i))}')
    for i in range(4): p1.append(f'v_cvt_pk_bf16_f32 {v(PA+i)}, {v(PA+i)}, {v(PA+4+i)}')
    def ustore(p=p):
        ust[p] = a(f'buffer_store_dwordx4 {v(PA,4)}, {v(vUS)}, {srd(WS)}, {(sUS0, sUS1)[p]} offen sc1'); ust['t'] = a.t
    p1.append(ustore)

AX, BX, vM, vRS, vS, vC3 = 168, 180, 184, 185, 186, 188
stats = [
    f'v_add_f32 {v(SU)}, {v(SU)}, {v(SU+1)}', f'v_add_f32 {v(SQ)}, {v(SQ)}, {v(SQ+1)}',
    f'v_mov_b32 {v(SU+1)}, {v(SU)}', f'v_mov_b32 {v(SQ+1)}, {v(SQ)}',
    f'v_permlane32_swap_b32 {v(SU)}, {v(SU+1)}', f'v_permlane32_swap_b32 {v(SQ)}, {v(SQ+1)}',
    f'v_add_f32 {v(SU)}, {v(SU)}, {v(SU+1)}', f'v_add_f32 {v(SQ)}, {v(SQ)}, {v(SQ+1)}',
    f'v_mul_f32 {v(SU)}, 0x3b000000, {v(SU)}', f'v_mul_f32 {v(SQ)}, 0x3b000000, {v(SQ)}',
    f'v_fma_f32 {v(SQ)}, -{v(SU)}, {v(SU)}, {v(SQ)}', f'v_max_f32 {v(SQ)}, 0, {v(SQ)}',
    f'v_cvt_pk_bf16_f32 v190, {v(SU)}, {v(SQ)}', 'v_xor_b32 v191, 0x8000, v190',
    f'v_perm_b32 {v(BX)}, v191, v191, {sSELLO}', f'v_mov_b32 {v(BX+1)}, {v(BX)}', f'v_mov_b32 {v(BX+2)}, {v(BX)}', f'v_mov_b32 {v(BX+3)}, {v(BX)}',
    lo(vM, 190), hi(191, 190), 'v_add_f32 v191, 0x3727c5ac, v191',
    'v_cvt_pk_bf16_f32 v191, v191, v191', lo(191, 191), 'v_sqrt_f32 v191, v191',
    'v_cvt_pk_bf16_f32 v191, v191, v191', lo(vS, 191), f'v_rcp_f32 {v(vRS)}, {v(vS)}',
    f'v_mul_f32 {v(vC3)}, 0xbfb8aa3b, {v(vRS)}', f'ds_write_b64 {v(vSTW)}, {v(vM,2)}']
def rdx(c):
    st_ = 4 * ((c % 4) >> 1); off = (c & 1) * SLOT
    return [f'ds_read_b128 {v(XF+16*(c&1)+4*i,4)}, {v(vXR+st_+i)} offset:{off}' for i in range(4)]
def rdw(c, i):
    st_ = 4 * ((c % 4) >> 1); off = (c & 1) * SLOT
    return [f'ds_read_b64_tr_b16 {v(WF+12*i+4*ft+2*rd,2)}, {v(vWR+st_+i)} offset:{off+16384+rd*768+ft*64}' for ft in range(3) for rd in range(2)]
def need_chunk(c):
    if lastop[c] in a.vq: a.drain_v(lastop[c])
    a.wait_vm(last[c])
if pops[1] in a.vq: a.drain_v(pops[1])
need_chunk(0)
a('s_barrier')
stamp(1)
for x in rdx(0) + rdw(0, 0) + rdw(0, 1): a(x)
flag1 = False
for c in range(8):
    X = XF + 16*(c & 1)
    for x in rdw(c, 2) + rdw(c, 3): a(x)
    if c == 1:
        for x in p1_reads: a(x)
        a.fq = list(p1); a.slack = OPT['p1slack']
    for i in range(4):
        for d in range(4):
            a(f'v_dot2c_f32_bf16 {v(SU+(d&1))}, {sONES}, {v(X+4*i+d)}'); a(f'v_dot2c_f32_bf16 {v(SQ+(d&1))}, {v(X+4*i+d)}, {v(X+4*i+d)}')
    for d in range(4):
        for ft in range(3): a(f'v_dot2c_f32_bf16 {v(CS+ft)}, {sONES}, {v(WF+4*ft+d)}')
    if 1 in ust and not flag1 and a.t - ust['t'] > 1100:
        a.wait_vm(ust[1]); flag_store(1); flag1 = True
        print('flag1 in chunk', c, file=sys.stderr)
    if c == 6:
        assert ('v', 246) in a.pend
        a.lock()
        a(f'v_subrev_u32 v255, {sFLG}, v246')
        a('v_and_b32 v255, 0xffffffe7, v255')
        a('v_cmp_eq_u32 vcc, 0, v255')
        a(f'v_cmp_eq_u32 {sPAIR}, {sTAG}, v247')
        a(f's_and_b64 vcc, vcc, {sPAIR}')
        a('s_cmp_eq_u64 vcc, exec')
        a(f's_cselect_b32 {sFAST}, {OPT["fast"]}, 0')
        a.unlock()
    if c == 7:
        assert not a.fq and flag1
        for ft in range(3): a.fq += [hi(192+ft, CS+ft), f'v_sub_f32 v{195+ft}, {v(CS+ft)}, v{192+ft}']
        for ft in range(3): a.fq += [f'v_cvt_pk_bf16_f32 v{192+ft}, v{192+ft}, v{195+ft}', f'ds_write_b32 {v(vCSW)}, v{192+ft} offset:{1024*ft}']
        a.fq += stats
        a.slack = 0
    def mm(i, ft):
        cin = '0' if (c == 0 and i == 0) else v(ACC+16*ft, 16)
        return f'v_mfma_f32_32x32x16_bf16 {v(ACC+16*ft,16)}, {v(WF+12*i+4*ft,4)}, {v(X+4*i,4)}, {cin}'
    for i in range(3):
        for ft in range(3): a(mm(i, ft))
    if c == 7: assert len(a.fq) <= len(stats), len(a.fq)
    a.lock()
    a.wait_all_lg()
    if c < 7: need_chunk(c + 1)
    a('s_barrier')
    a.unlock()
    stamp(1)
    if c < 4: a.vq += g1_dma_ops(c + 4)
    if c == 3: a.vq += h_dma_ops() + stash_ops()
    if c == 4:
        assert not a.fq
        a.slack = 0
        a.fq = [f'v_mov_b32 v{192+i}, 0' for i in range(4)] + [f'ds_write_b128 {v(AR+4)}, v[192:195]', f'ds_write_b32 {v(AR+5)}, v192']
        a.vq += [lambda: poll_issue(vPX, 246)]
    if c == 6: a.vq = [lambda: poll_issue(vP13, 244)] + a.vq
    if c >= 4: a.vq += [w2op(s) for s in range(7*(c-4), 7*(c-3))]
    nxt = rdx(c+1) + rdw(c+1, 0) + rdw(c+1, 1) if c < 7 else [f'ds_read_b128 {v(AX+4*ft,4)}, {v(vCSR)} offset:{1024*ft}' for ft in range(3)]
    for ft in range(3):
        a(mm(3, ft))
        for x in nxt[:6]: a(x)
        nxt = nxt[6:]
a.drain_f()
for ft in range(3):
    a(f'v_mfma_f32_32x32x16_bf16 {v(ACC+16*ft,16)}, {v(AX+4*ft,4)}, {v(BX,4)}, {v(ACC+16*ft,16)}')
stamp(); stamp(1)
poll_check(vP13, 244, 1, 255)
a.lock()
a(f'buffer_load_dwordx4 {v(UR,4)}, {v(vUL)}, {srd(WS)}, {sUL} offen sc1')
a(f'buffer_load_dwordx4 {v(UR+4,4)}, {v(vUL)}, {srd(WS)}, {sUL} offen offset:16 sc1')
a(f'buffer_load_dword {v(UR+8)}, {v(vULp)}, {srd(WS)}, {sUL} offen sc1')
a.unlock()
stamp()
a.vq += [w2op(s) for s in range(28, 43)]

CA, DU, DR = 160, 192, 208
def FA(set_, mu): return (80 if set_ == 0 else 32) + 4*mu
def FB(set_, nu): return 112 + 4*nu if set_ == 0 else (64 + 4*nu if nu < 4 else 144 + 4*(nu-4))
def rdA(rp, mu): return f'ds_read_b128 {v(FA(rp&1,mu),4)}, {v(vUA)} offset:{512*mu - 64*rp + 192}'
def rdB(rp, nu): return [f'ds_read_b64 {v(FB(rp&1,nu)+2*h,2)}, {v(vHA)} offset:{512*nu + 64*rp + 8*h}' for h in range(2)]
def reads(rp):
    r = rdB(rp, 0) + [rdA(rp, mu) for mu in range(8)]
    for nu in range(1, 8): r += rdB(rp, nu)
    return r
TS, HO, PO = 144, 168, 192
hst = {}
def silu(flag):
    for fr in range(6):
        base = ACC + 8*fr; t = TS + 8*(fr & 1); o = HO + 4*(fr & 1)
        if fr == 4:
            for c in range(2):
                sel = sSELLO if c == 0 else sSELHI
                for k in range(4):
                    hi0 = UR + 5 - 2*k if k < 3 else UR + 8
                    a(f'v_perm_b32 {v(PO+8*c+k)}, {v(hi0)}, {v(UR+6-2*k)}, {sel}')
                    a(f'v_perm_b32 {v(PO+8*c+4+k)}, {v(UR+6-2*k)}, {v(UR+7-2*k)}, {sel}')
        wr = [f'ds_write_b128 {v(vUW)}, {v(PO+8*c+4*k,4)} offset:{c*CVCH+k*U1OFF}' for c in range(2) for k in range(2)] if fr == 4 else []
        if fr == 5:
            a.lock(); a.wait_vm(last['st']); a.wait_all_lg(); a('s_barrier'); a.unlock()
            wr = reads(0)
        def side(n):
            for x in wr[:n]: a(x)
            del wr[:n]
        for p in range(4): a(f'v_pk_mul_f32 {v(t+2*p,2)}, {v(base+2*p,2)}, {v(vC3,2)} op_sel_hi:[1,0]')
        side(1 if fr == 4 else 6)
        for e in range(8): a(f'v_exp_f32 {v(t+e)}, {v(t+e)}')
        side(1 if fr == 4 else 6)
        for p in range(4): a(f'v_pk_fma_f32 {v(t+2*p,2)}, {v(t+2*p,2)}, {v(vS,2)}, {v(vS,2)} op_sel_hi:[1,0,0]')
        for e in range(8): a(f'v_rcp_f32 {v(t+e)}, {v(t+e)}')
        side(1 if fr == 4 else 6)
        for p in range(4): a(f'v_pk_mul_f32 {v(t+2*p,2)}, {v(t+2*p,2)}, {v(base+2*p,2)}')
        for p in range(4): a(f'v_cvt_pk_bf16_f32 {v(o+p)}, {v(t+2*p)}, {v(t+2*p+1)}')
        so, im = (sHS, fr*1024) if fr < 4 else (sHS3, (fr-4)*1024)
        hst[0] = a(f'buffer_store_dwordx4 {v(o,4)}, {v(vL16)}, {srd(WS)}, {so} offen offset:{im}{flag}')
        side(6)
a.do([f's_cmp_eq_u32 {sFAST}, 0', 's_cbranch_scc1 L_silu_slow'])
snap = {k: copy.copy(getattr(a, k)) for k in ('hist', 'vm_n', 'vm_done', 'lg_n', 'lg_done', 'pend', 't', 'mf_free', 'vq', 'fq', 'next_vm')}
main_lines = a.lines; a.lines = []
silu(' sc1'); slow_lines = a.lines
for k, x in snap.items(): setattr(a, k, x)
a.lines = main_lines
silu('')
a.place('L_silu_join')
stamp()

AF, G2A, XR, XS, YR, XU, DM, YU = 80, 104, 32, 64, 136, 144, 160, 176
def rdA2(s):
    ad = w2slot(s); k = ad // 61440; o = ad - 61440*k
    return [f'ds_read_b64_tr_b16 {v(AF+8*(s%3)+4*dt+2*rd,2)}, {v(AR+2*k+dt)} offset:{o + rd*1024}' for dt in range(2) for rd in range(2)]
cnt = 0
for rp in range(4):
    rd = reads(rp + 1) if rp < 3 else []
    if rp == 0:
        rd += [f'ds_read_b32 {v(DR+4*c+2*jj+h)}, {v(vDU)} offset:{c*CVCH + 512*jj + 64*h}' for c in range(2) for jj in range(2) for h in range(2)]
    if rp == 1:
        for c in range(2):
            for jj in range(2):
                for h in range(2):
                    src = DR+4*c+2*jj+h; d = DU+8*jj+4*c+2*h
                    a.fq += [hi(d, src), lo(d+1, src), f'v_mul_f32 {v(d)}, {(sD0, sD1)[c]}, {v(d)}', f'v_mul_f32 {v(d+1)}, {(sD0, sD1)[c]}, {v(d+1)}']
    if rp == 3:
        a.lock(); a.wait_vm(w2_seq[27]); a.wait_all_lg(); a('s_barrier'); a.unlock()
        rd = rdA2(0) + rdA2(1)
    for nu in range(8):
        for mu in range(8 - nu):
            j = nu + mu
            if cnt == OPT['sig2']: a.wait_vm(hst[0]); flag_store(2, True)
            if cnt == OPT['s2poll']: a.vq = [lambda: poll_issue(vP2, 244)] + a.vq
            if cnt == OPT['s2chk']:
                stamp(); poll_check(vP2, 244, 2, 255); stamp()
                a.vq += [hop(s) for s in range(43)]
            cin = '0' if (rp == 0 and nu == 0) else v(CA+4*j, 4)
            a(f'v_mfma_f32_16x16x32_bf16 {v(CA+4*j,4)}, {v(FA(rp&1,mu),4)}, {v(FB(rp&1,nu),4)}, {cin}')
            cnt += 1
            if rd: a(rd.pop(0))
            if rp == 3 and mu == 0 and nu >= 2: a(f'ds_write_b128 {v(vXW)}, {v(CA+4*(nu-2),4)} offset:{1024*(nu-2)}')
    assert not rd
a.drain_f()
stamp()

def wb():
    skip, j = a.label(), a.label()
    a(f's_or_b32 {sF}, {sM1}, {sW}'); a(f's_cmp_lg_u32 {sF}, 0'); a(f's_cbranch_scc1 {skip}')
    a('buffer_wbl2 sc1', track=False)
    a(f's_branch {j}'); a.place(skip)
    a(f'buffer_load_dword {v(vP2)}, {v(vFL)}, {srd(WS)}, 0 offen'); a.place(j)
def yloads(track=True):
    for grp in range(2):
        for e in range(4): a(f'buffer_load_dword {v(YR+4*grp+e)}, {v(vYL)}, {srd(WS)}, {sYL} offen offset:{(8*grp+e)*256} sc1', track=track)
ysum = []
for jj in range(2):
    for hf in range(2):
        for c in range(2):
            for r in range(4): ysum.append(f'v_add_f32 {v(DU+8*jj+4*c+r)}, {v(DU+8*jj+4*c+r)}, {v(XR+16*jj+8*c+4*hf+r)}')
    for r in range(4): ysum.append(f'v_cvt_pk_bf16_f32 {v(DR+4*jj+r)}, {v(DU+8*jj+r)}, {v(DU+8*jj+4+r)}')
    for r in range(4): ysum.append(f'v_min_u32 {v(DR+4*jj+r)}, -2, {v(DR+4*jj+r)}')
    ysum.append(f'buffer_store_dwordx4 {v(DR+4*jj,4)}, {v(vYS)}, {srd(WS)}, {(sYS0, sYS1)[jj]} offen sc1')
pre = []
for k in range(8): pre += [lo(XU+2*k, XS+k), hi(XU+2*k+1, XS+k)]
for k in range(16): pre.append(f'v_sub_f32 {v(DM+k)}, {v(XU+k)}, v72')
for k in range(16): pre.append(f'v_mul_f32 {v(DM+k)}, {v(DM+k)}, v73')
post = []
for k in range(8): post += [lo(YU+2*k, YR+k), hi(YU+2*k+1, YR+k)]
for k in range(16): post.append(f'v_fmac_f32 {v(XU+k)}, {v(DM+k)}, {v(YU+k)}')
def bar():
    a.lock(); a.wait_all_lg(); a('s_barrier'); a.unlock()
tailw = []
for s in range(43):
    side = rdA2(s + 2) if s + 2 < 43 else []
    if s == 0: side += [f'ds_write_b128 {v(vXW)}, {v(CA+4*j,4)} offset:{1024*j}' for j in (6, 7)]
    if s == 2:
        bar()
        side += [f'ds_read_b128 {v(XR+16*jj+4*sw,4)}, {v(vXRd)} offset:{8192*sw + 1024*jj}' for jj in range(2) for sw in range(4)]
    if s == 4: a.fq += ysum
    if s == 9: bar(); tailw = list(range(28, 36))
    if s == 18: bar(); tailw = list(range(36, 43))
    if s == 30: bar()
    if tailw:
        k = tailw.pop(0); side.append(f'ds_write_b128 {v(vW2W)}, {a_(172+4*(k-28),4)} offset:{w2slot(k)}')
    if s == 19: side += [f'ds_read_b128 {v(XS,4)}, {v(vSTa)}', f'ds_read_b128 {v(XS+4,4)}, {v(vSTb)}', f'ds_read_b64 v[72:73], {v(vSTS)}']
    if s == 21: a.fq += pre
    if OPT['wb'] and s == 1: a.vq.append(wb)
    if s in (5, 13, 27, 40): stamp()
    if s == OPT['yload']:
        a.drain_v(); a.do(yloads)
    if s == OPT['ycheck']:
        a.drain_f()
        a.lock()
        top, done = a.label(), a.label()
        a(f's_mov_b32 {sSPIN}, 0')
        a.wait_vm(a.vm_n)
        a.place(top)
        a(f'v_max3_u32 v74, {v(YR)}, {v(YR+1)}, {v(YR+2)}'); a(f'v_max3_u32 v75, {v(YR+3)}, {v(YR+4)}, {v(YR+5)}')
        a(f'v_max3_u32 v74, v74, {v(YR+6)}, {v(YR+7)}'); a('v_max_u32 v74, v74, v75')
        a('v_cmp_eq_u32 vcc, -1, v74')
        a(f's_cbranch_vccz {done}')
        t0 = a.t
        a(f's_add_u32 {sSPIN}, {sSPIN}, 1'); a(f's_cmp_gt_u32 {sSPIN}, 0x20000'); a(f's_cbranch_scc1 {done}')
        a('s_sleep 1')
        yloads(False)
        a('s_waitcnt vmcnt(0)')
        a(f's_branch {top}')
        a.place(done)
        a.t = t0
        a.unlock()
        a.fq += post
    if hops[s] in a.vq: a.drain_v(hops[s])
    h = (len(side) + 1) // 2
    for dt in (1, 0):
        cin = '0' if s == 0 else v(G2A+16*dt, 16)
        a(f'v_mfma_f32_32x32x16_bf16 {v(G2A+16*dt,16)}, {v(AF+8*(s%3)+4*dt,4)}, {a_(4*s,4)}, {cin}')
        for x in side[:h]: a(x)
        side = side[h:]
a.drain_f()
stamp()
for k in range(4): a(f'ds_write_b128 {v(vE2W)}, {v(G2A+16+4*k,4)} offset:{1024*k}')
for k in range(8): a(f'v_pk_add_f32 {v(XU+2*k,2)}, {v(XU+2*k,2)}, {v(G2A+2*k,2)}')
bar()
for k in range(4): a(f'ds_read_b128 {v(32+4*k,4)}, {v(vE2R)} offset:{1024*k}')
for h in range(2):
    for k in range(4*h, 4*h+4): a(f'v_pk_add_f32 {v(XU+2*k,2)}, {v(XU+2*k,2)}, {v(32+2*k,2)}')
    for k in range(4*h, 4*h+4): a(f'v_cvt_pk_bf16_f32 {v(48+k)}, {v(XU+2*k)}, {v(XU+2*k+1)}')
    a(f'ds_write_b128 {v((vOTa, vOTb)[h])}, {v(48+4*h,4)}')
a.wait_all_lg()
a(f'ds_read_b128 v[56:59], {v(vOTR)}'); a(f'ds_read_b128 v[60:63], {v(vOTR)} offset:1024')
a(f'buffer_store_dwordx4 v[56:59], {v(vOUT)}, {srd(OUT)}, {sO0} offen sc1')
a(f'buffer_store_dwordx4 v[60:63], {v(vOUT)}, {srd(OUT)}, {sO1} offen sc1')
stamp()
print('estimated cycles', int(a.t), file=sys.stderr)
a.lock()
a(f's_or_b32 s60, {sCP}, {sW}')
a('s_cmp_lg_u32 s60, 0')
a('s_cbranch_scc1 L_noep')
a('v_lshlrev_b32 v128, 7, v1')
for k in range(4):
    a(f'v_add_u32 v{129+k}, {WS_FLAG + 8192*k}, v128')
    poll_issue(129+k, 136+2*k)
for k in range(4): poll_check(129+k, 136+2*k, 1, 128)
a(f'v_mov_b32 v128, {WS_E}')
a('s_mov_b64 exec, 1')
a(f'buffer_store_dword v253, v128, {srd(WS)}, 0 offen sc1')
a('s_mov_b64 exec, -1')
a.place('L_noep')
if OPT['stamps']:
    a('s_waitcnt vmcnt(0)')
    stamp()
    a(f's_lshl_b32 s60, s2, 2'); a(f's_add_u32 s60, s60, {sW}'); a('s_lshl_b32 s60, s60, 6'); a(f's_add_u32 s60, s60, {WS_STAMP}')
    a('v_mov_b32 v128, s60')
    a('s_mov_b64 exec, 1')
    for k in range(4): a(f'buffer_store_dwordx4 {a_(240+4*k,4)}, v128, {srd(WS)}, 0 offen offset:{16*k}')
    if OPT['stamps'] == 2:
        a('s_load_dwordx2 s[84:85], s[0:1], 80'); a('s_mov_b32 s86, 256'); a('s_mov_b32 s87, 0x20000'); a('s_waitcnt lgkmcnt(0)')
        a('s_and_b32 s60, s2, 0x1f'); a(f's_or_b32 s60, s60, {sW}'); a('s_cmp_lg_u32 s60, 0'); a('s_cbranch_scc1 L_end')
        a('v_mov_b32 v128, 0')
        for k in range(nstamp[0]):
            a(f'v_accvgpr_read_b32 v129, a{240+k}')
            a(f'buffer_atomic_umax v129, v128, s[84:87], 0 offen offset:{4*k}')
a('s_endpgm')
a.place('L_silu_slow')
a.lines += slow_lines
a('s_branch L_silu_join')
a.place('L_end')
a('s_endpgm')

hdr = open('parallel_sum__ssm_conv_h3__dense_activation_silu__prompt.s.ref').read().split('\n')
hdr = [l for l in hdr if l.startswith(';') and '@launch' not in l]
out = '\n'.join(hdr) + f'\n; @launch grid=(256,1,1) block=(256,1,1) lds={LDS_SIZE}\n'
out += f'''.amdgcn_target "amdgcn-amd-amdhsa--gfx950"
.text
.globl {NAME}
.p2align 8
.type {NAME},@function
{NAME}:
''' + a.text() + f'''.section .rodata,"a"
.p2align 6
.amdhsa_kernel {NAME}
  .amdhsa_next_free_vgpr 512
  .amdhsa_next_free_sgpr 102
  .amdhsa_accum_offset 256
  .amdhsa_group_segment_fixed_size 0
  .amdhsa_kernarg_size 96
  .amdhsa_user_sgpr_count 2
  .amdhsa_user_sgpr_kernarg_segment_ptr 1
  .amdhsa_system_sgpr_workgroup_id_x 1
.end_amdhsa_kernel
'''
open(sys.argv[1], 'w').write(out)
print('lines', len(a.lines), 'nop states', a.nops, 'stamps', nstamp[0], file=sys.stderr)
```

```python
import sys, copy
from emit import Asm

NAME = "parallel_sum__ssm_conv_h3__dense_activation_silu__prompt_kernel"
OPT = dict(stamps=0, fast=1, nt=0, wb=14, rot=1, s2poll=50, s2chk=70, ycheck=38, yload=31, sg=0, gap=68, p1slack=24, sig2=16, probe=-2, base=60000)
for x in sys.argv[2:]:
    k, v = x.split('='); OPT[k] = int(v)

WS_E, WS_FLAG, WS_STAMP, WS_U, WS_Y, WS_H, WS_SIZE = 0, 0x10000, 0x40000, 0x100000, 0x300000, 0x500000, 0x1000000
OOB = 0x7f000000
SLOT = 28672
CV = 114688; CVCH = 17664; U1OFF = 4640; HAOFF = 9184; HBD = 4228
KB, VB, SB = CV, CV + 8192, CV + 9216 + 8192
XST = 150016; STATS = 158208; CSUM = 159232
LDS_SIZE = 163840
EX, OT = 16*4096, 20*4096
def w2slot(s): return s * 4096 if s < 28 else (s - 28) * 4096
Q, K, V, SH, HK, W1, W2, OUT, WS = 4, 8, 12, 16, 20, 24, 28, 32, 36
def srd(r): return f's[{r}:{r+3}]'
sD, sE, sT, sM1, st, sDS, sCP, sW, sXCC, sTAG, sBASE, sP0 = [f's{i}' for i in range(42, 54)]
sXO, sW1O, sHS, sHS3, sW2O, sHL = [f's{i}' for i in range(54, 60)]
sM0W, sW4K, sW3K, sSELLO, sSELHI, sONES = [f's{i}' for i in range(62, 68)]
sPAIR = 's[68:69]'
sSPIN, sTH, sKH, sMASK, sFLG, sI = [f's{i}' for i in range(70, 76)]
sHM0, sHSO, sHLC, sD0, sD1, sA, sB, sF, sG, sUS0, sUS1, sW2K = [f's{i}' for i in range(76, 88)]
sUL, sYS0, sYS1, sYL, sO0, sO1, sROT, sC = [f's{i}' for i in range(88, 96)]
sFAST, sSTASH, sPOI = 's100', 's101', 's98'
def v(n, c=1): return f'v{n}' if c == 1 else f'v[{n}:{n+c-1}]'
def a_(n, c=1): return f'a{n}' if c == 1 else f'a[{n}:{n+c-1}]'
vL16, vCSR, vSTW = 2, 3, 11
vXA, vWA, vXR, vWR = 4, 8, 12, 20
vFL, vP13, vP2, vPX = 28, 29, 30, 31
vKA, vKB, vSHR, vUS, vKD = 210, 211, 212, 213, 214
(vUA, vHA, vDU, vW2A, vUW, vXW, vXRd, vYS, vYL, vE2W, vE2R, vSTa, vSTb, vSTS, vOTa, vOTb, vOTR, vOUT) = range(216, 234)
AR, UR = 234, 240
vUL, vULp, vCSW, vW2W = 249, 250, 251, 254
NT = ' nt' if OPT['nt'] else ''

a = Asm(); a.gap = OPT['gap']
nstamp = [0]
def stamp(g=0):
    if not OPT['stamps'] or g != OPT['sg']: return
    k = nstamp[0]; nstamp[0] += 1
    a.lock()
    a.wait_all_lg()
    a(f's_memtime s[96:97]'); a('s_waitcnt lgkmcnt(0)')
    a(f's_sub_u32 s96, s96, s3')
    a(f'v_mov_b32 v255, s96')
    a(f'v_accvgpr_write_b32 a{240+k}, v255')
    a.unlock()

def dma(vaddr, rs, soff, m0expr, extra='', track=True):
    a(m0expr)
    return a(f'buffer_load_dwordx4 {v(vaddr)}, {srd(rs)}, {soff} offen{extra} lds', track=track)

def flag_store(phase, fastable=False):
    a.lock()
    a(f's_add_u32 {sF}, {sFLG}, {8*phase}')
    a(f'v_mov_b32 v252, {sF}')
    a('s_mov_b64 exec, 1')
    if fastable:
        slow, join = a.label(), a.label()
        a(f's_cmp_eq_u32 {sFAST}, 0')
        a(f's_cbranch_scc1 {slow}')
        a(f'buffer_store_dwordx2 v[252:253], {v(vFL)}, {srd(WS)}, 0 offen', track=False)
        a(f's_branch {join}')
        a.place(slow)
    a(f'buffer_store_dwordx2 v[252:253], {v(vFL)}, {srd(WS)}, 0 offen sc1')
    if fastable: a.place(join)
    a('s_mov_b64 exec, -1')
    a.unlock()

def poll_issue(vaddr, dst):
    return a(f'buffer_load_dwordx2 {v(dst,2)}, {v(vaddr)}, {srd(WS)}, 0 offen sc1')

def poll_check(vaddr, dst, phase, tmp):
    a.lock()
    top, done = a.label(), a.label()
    a(f's_add_u32 {sF}, {sBASE}, {8*phase}')
    a(f's_mov_b32 {sSPIN}, 0')
    a.wait_vm(a.pend[('v', dst)][1])
    a.place(top)
    a(f'v_subrev_u32 {v(tmp)}, {sF}, {v(dst)}')
    a(f'v_cmp_gt_u32 vcc, {32-8*phase}, {v(tmp)}')
    a(f'v_cmp_eq_u32 {sPAIR}, {sTAG}, {v(dst+1)}')
    a(f's_and_b64 vcc, vcc, {sPAIR}')
    a('s_cmp_eq_u64 vcc, exec')
    a(f's_cbranch_scc1 {done}')
    t0 = a.t
    a(f's_add_u32 {sSPIN}, {sSPIN}, 1')
    a(f's_cmp_gt_u32 {sSPIN}, 0x20000')
    a(f's_cbranch_scc1 {done}')
    a('s_sleep 1')
    a(f'buffer_load_dwordx2 {v(dst,2)}, {v(vaddr)}, {srd(WS)}, 0 offen sc1', track=False)
    a('s_waitcnt vmcnt(0)')
    a(f's_branch {top}')
    a.place(done)
    a.t = t0
    a.unlock()

def lo(d, s): return f'v_lshlrev_b32 {v(d)}, 16, {v(s)}'
def hi(d, s): return f'v_and_b32 {v(d)}, {sMASK}, {v(s)}'

a('s_cmp_ge_u32 s2, 256')
a('s_cbranch_scc1 L_end')
if OPT['stamps']:
    a('s_memtime s[68:69]'); a('s_waitcnt lgkmcnt(0)'); a('s_mov_b32 s3, s68')
a('s_load_dwordx16 s[76:91], s[0:1], 0')
a('s_load_dwordx8 s[92:99], s[0:1], 64')
a('v_and_b32 v1, 63, v0')
a('v_lshrrev_b32 v3, 6, v0')
a('s_lshr_b32 %s, s2, 3' % sI)
a(f'v_readfirstlane_b32 {sW}, v3')
a('s_getpc_b64 s[60:61]')
a.place('L_pc')
a(f's_and_b32 s62, {sI}, 3')
a('s_lshl_b32 s62, s62, 13')
a(f's_lshl_b32 s63, {sW}, 11')
a('s_add_u32 s62, s62, s63')
a('v_lshlrev_b32 v3, 7, v1')
a('v_add_u32 v3, s62, v3')
a('v_min_u32 v3, L_end-L_pc, v3')
a('s_mov_b64 exec, 0xffff')
a('global_load_dword v255, v3, s[60:61]')
a('s_mov_b64 exec, -1')
a('s_and_b32 s60, s2, 7')
a(f's_and_b32 s61, {sI}, 1')
a(f's_lshl_b32 {sT}, s60, 1')
a(f's_add_u32 {sT}, {sT}, s61')
a(f's_lshr_b32 {sM1}, {sI}, 1')
for r, n in ((Q, 2097152), (W1, 1409024), (K, 2097152), (V, 2097152), (SH, 4096)):
    a(f's_mov_b32 s{r+2}, {n}'); a(f's_mov_b32 s{r+3}, 0x20000')
a('v_lshrrev_b32 v32, 4, v1')
a('v_lshrrev_b32 v33, 3, v1')
a('v_and_b32 v34, 7, v1')
a('v_xor_b32 v35, v34, v32')
a('v_lshlrev_b32 v33, 10, v33')
a(f'v_lshl_add_u32 {v(vXA)}, v35, 4, v33')
a(f'v_xor_b32 {v(vXA+1)}, 64, {v(vXA)}')
a(f'v_add_u32 {v(vXA+1)}, 8192, {v(vXA+1)}')
a(f'v_add_u32 {v(vXA+2)}, 16384, {v(vXA)}')
a(f'v_add_u32 {v(vXA+3)}, 16384, {v(vXA+1)}')
a(f's_lshl_b32 {sXO}, {sT}, 17')
a(f's_lshl_b32 s60, {sW}, 15')
a(f's_add_u32 {sXO}, {sXO}, s60')
a(f's_lshl_b32 {sW4K}, {sW}, 12')
a(f's_lshl_b32 {sM0W}, {sW}, 10')
a(f's_mul_i32 {sW3K}, {sW}, 3072')
a(f's_mul_i32 {sP0}, {sM1}, 3')
a(f's_lshl_b32 s60, {sM1}, 1')
a('s_add_u32 s60, s60, 11')
a(f's_min_u32 {sP0}, {sP0}, s60')
a(f's_cmp_lt_u32 {sM1}, 11')
a('s_cselect_b32 s61, 12, 8')
a(f'v_mov_b32 v3, {OOB}')
for j in range(3):
    if j: a(f'v_add_u32 v36, {64*j}, v1')
    src = 'v36' if j else 'v1'
    a(f'v_mul_u32_u24 v37, 5462, {src}')
    a('v_lshrrev_b32 v37, 16, v37')
    a('v_mul_u32_u24 v35, 12, v37')
    a(f'v_sub_u32 v35, {src}, v35')
    a('v_cmp_gt_u32 vcc, s61, v35')
    a('v_mul_u32_u24 v37, 2752, v37')
    a(f'v_lshl_add_u32 {v(vWA+j)}, v35, 4, v37')
    a(f'v_cndmask_b32 {v(vWA+j)}, v3, {v(vWA+j)}, vcc')
a(f's_mul_i32 {sW1O}, {sW}, {16*2752}')
a(f's_lshl_b32 s60, {sP0}, 6')
a(f's_add_u32 {sW1O}, {sW1O}, s60')
a(f's_and_b32 s61, {sM1}, 1')
a(f's_lshl_b32 {st}, {sT}, 1')
a(f's_add_u32 {st}, {st}, s61')
a(f's_lshr_b32 {sDS}, {sI}, 2')
a(f's_lshl_b32 {sCP}, {sDS}, 5')
a(f's_add_u32 {sCP}, {sCP}, {st}')
a(f's_lshl_b32 s60, {st}, 16')
a(f's_lshl_b32 s61, {sW}, 14')
a('s_add_u32 s60, s60, s61')
a(f's_lshl_b32 s61, {sDS}, 7')
a(f's_add_u32 {sSTASH}, s60, s61')
a('v_lshrrev_b32 v35, 5, v1')
a('v_xor_b32 v35, v35, v34')
a('v_lshl_add_u32 v38, v35, 4, v33')
a(f's_lshl_b32 s60, {sW}, 6'); a('s_and_b32 s60, s60, 64'); a('s_xor_b32 s61, s60, 32')
a(f'v_xor_b32 {v(vKD)}, s61, v38')
a('s_xor_b32 s61, s60, 64')
a(f'v_xor_b32 {v(vKD+1)}, s61, v38')
a(f'v_add_u32 {v(vKD+1)}, 8192, {v(vKD+1)}')
a(f'v_add_u32 v38, {sSTASH}, v38')
a('v_subrev_u32 v38, 8192, v38')
a(f'v_lshlrev_b32 {v(vL16)}, 4, v1')
a('s_waitcnt lgkmcnt(0)')
a(f's_mov_b64 s[{W1}:{W1+1}], s[90:91]')
a(f's_mov_b64 s[{Q}:{Q+1}], s[76:77]')
a(f's_mov_b64 s[{K}:{K+1}], s[78:79]')
a(f's_mov_b64 s[{V}:{V+1}], s[80:81]')
a(f's_mov_b64 s[{SH}:{SH+1}], s[82:83]')
a(f's_mov_b64 s[{HK}:{HK+1}], s[84:85]')
a(f's_mov_b64 s[40:41], s[86:87]')
a(f's_mov_b64 s[{W2}:{W2+1}], s[92:93]')
a(f's_mov_b64 s[{OUT}:{OUT+1}], s[94:95]')
a(f's_mov_b64 s[{WS}:{WS+1}], s[98:99]')
if OPT['rot']: a(f's_and_b32 {sROT}, {sM1}, 7')
else: a(f's_mov_b32 {sROT}, 0')
a(f's_lshl_b32 {sW2K}, {sW}, 11')

last = {}
def g1_dma_ops(c):
    slot = (c % 4) * SLOT
    def xop(n):
        def f(): last[c] = dma(vXA+n, Q, sA, f's_add_u32 m0, {sW4K}, {slot + n*1024}')
        return f
    def wop(j):
        def f():
            if j == 0:
                a(f's_add_u32 {sC}, {sROT}, {c}'); a(f's_and_b32 {sC}, {sC}, 7')
                a(f's_mul_i32 {sB}, {sC}, {64*2752}'); a(f's_add_u32 {sB}, {sB}, {sW1O}')
                a(f's_lshl_b32 {sA}, {sC}, 7'); a(f's_add_u32 {sA}, {sA}, {sXO}')
            dma(vWA+j, W1, sB, f's_add_u32 m0, {sW3K}, {slot + 16384 + j*1024}')
        return f
    ops = [wop(0), wop(1), wop(2), xop(0), xop(1), xop(2), xop(3)]
    lastop[c] = ops[-1]
    return ops
lastop = {}
def kv_ops():
    def f(rs, base, n):
        return lambda: dma(vKD+n, rs, sSTASH, f's_add_u32 m0, {sW2K}, {base + 1024 + n*1024}', NT)
    def extra():
        l1, l2 = a.label(), a.label()
        a(f's_cmp_lg_u32 {sW}, 0'); a(f's_cbranch_scc1 {l1}')
        dma(38, K, '0', f's_mov_b32 m0, {KB}', NT, track=False)
        a.place(l1)
        a(f's_cmp_lg_u32 {sW}, 1'); a(f's_cbranch_scc1 {l2}')
        a(f's_lshl_b32 {sG}, {sDS}, 9')
        dma(vL16, SH, sG, f's_mov_b32 m0, {SB}', track=False)
        a.place(l2)
    return [f(K, KB, 0), f(K, KB, 1), extra, f(V, VB, 0), f(V, VB, 1)]
def poison_ops():
    return [lambda n=n: a(f'buffer_store_dwordx4 v[244:247], {v(vL16)}, {srd(WS)}, {sPOI} offen offset:{1024*n} sc1') for n in range(2)]
ops0 = g1_dma_ops(0)
for f in ops0[:4]: a.do(f)
a(f's_load_dword {sE}, s[{WS}:{WS+1}], {WS_E}')
a(f's_lshl_b32 s60, {sCP}, 2')
a(f's_load_dword {sD}, s[40:41], s60')
a.vq = ops0[4:] + kv_ops() + g1_dma_ops(1)
a.gap = 40
stamp()
for r, n in ((HK, 2097152), (W2, 1409024), (OUT, 2097152), (WS, WS_SIZE)):
    a(f's_mov_b32 s{r+2}, {n}'); a(f's_mov_b32 s{r+3}, 0x20000')
a(f's_getreg_b32 {sXCC}, hwreg(HW_REG_XCC_ID, 0, 3)')
a(f's_mov_b32 {sONES}, 0x3f803f80'); a(f's_mov_b32 {sMASK}, 0xffff0000')
a(f's_and_b32 {sTH}, {sW}, 1'); a(f's_lshr_b32 {sKH}, {sW}, 1')
a(f's_mov_b32 {sSELLO}, 0x05040100'); a(f's_mov_b32 {sSELHI}, 0x07060302')
a('v_and_b32 v40, 31, v1'); a('v_lshrrev_b32 v41, 5, v1'); a('v_and_b32 v42, 15, v1')
a('v_and_b32 v43, 1, v1'); a('v_and_b32 v44, 3, v1'); a('v_bfe_u32 v45, v1, 2, 2')
a('v_bfe_u32 v35, v1, 1, 3'); a('v_xor_b32 v35, v35, v41'); a('v_lshlrev_b32 v35, 4, v35')
a('v_lshl_add_u32 v46, v40, 7, v35')
a(f'v_add_u32 v35, {sW4K}, v46')
a('v_lshl_add_u32 v36, v41, 3, v45'); a('v_mul_u32_u24 v36, 192, v36')
a('v_and_b32 v47, 1, v32')
a('v_lshl_add_u32 v36, v47, 5, v36'); a('v_lshl_add_u32 v36, v44, 3, v36')
for i in range(4):
    a(f's_add_u32 s60, {sW}, {i}'); a('s_and_b32 s60, s60, 3'); a('s_lshl_b32 s61, s60, 5')
    a(f'v_xor_b32 {v(vXR+i)}, s61, v35')
    a('s_mul_i32 s61, s60, 3072')
    a(f'v_add_u32 {v(vWR+i)}, s61, v36')
    a(f'v_add_u32 {v(vXR+4+i)}, {2*SLOT}, {v(vXR+i)}'); a(f'v_add_u32 {v(vWR+4+i)}, {2*SLOT}, {v(vWR+i)}')
a(f's_lshl_b32 s60, {st}, 16'); a(f's_lshl_b32 s61, {sDS}, 13'); a('s_add_u32 s60, s60, s61'); a(f's_add_u32 {sYL}, s60, {WS_Y}')
a(f's_add_u32 {sPOI}, {sYL}, {sW2K}')
for i in range(4): a(f'v_mov_b32 v{244+i}, -1')
pops = poison_ops()
a.vq += pops + g1_dma_ops(2) + g1_dma_ops(3)
a.gap = OPT['gap']
a(f's_lshl_b32 s60, {sW}, 1'); a('v_add_u32 v35, s60, v41')
a('v_add_u32 v36, 1, v42'); a('v_and_b32 v36, 7, v36'); a('v_xor_b32 v36, v36, v35')
a('v_lshlrev_b32 v37, 9, v42'); a('v_lshl_add_u32 v37, v47, 3, v37'); a(f'v_add_u32 v37, {KB + 5*128}, v37')
a(f'v_lshl_add_u32 {v(vKA)}, v36, 4, v37')
a('v_add_u32 v36, 2, v42'); a('v_and_b32 v36, 7, v36'); a('v_xor_b32 v36, v36, v35')
a(f'v_lshl_add_u32 {v(vKB)}, v36, 4, v37')
a(f's_lshl_b32 s60, {sW}, 7'); a(f's_add_u32 s60, s60, {SB}')
a(f'v_lshlrev_b32 {v(vSHR)}, 5, v32'); a(f'v_add_u32 {v(vSHR)}, s60, {v(vSHR)}')
a(f'v_lshlrev_b32 {v(vUS)}, 14, v32'); a(f'v_lshl_add_u32 {v(vUS)}, v42, 4, {v(vUS)}')
a(f's_lshl_b32 s60, {sDS}, 18'); a(f's_lshl_b32 s61, {st}, 8'); a('s_add_u32 s60, s60, s61')
a(f's_lshl_b32 s61, {sW}, 16'); a('s_add_u32 s60, s60, s61'); a(f's_add_u32 {sUS0}, s60, {WS_U}'); a(f's_add_u32 {sUS1}, {sUS0}, 8192')
a(f's_lshl_b32 s60, {sCP}, 7'); a(f's_lshl_b32 s61, {sW}, 3'); a('s_add_u32 s60, s60, s61'); a(f's_add_u32 s60, s60, {WS_FLAG}')
a(f'v_mov_b32 {v(vFL)}, s60')
a(f's_lshl_b32 s60, {sDS}, 12'); a(f's_and_b32 s61, {st}, 24'); a('s_add_u32 s60, s60, s61'); a(f's_add_u32 s60, s60, {WS_FLAG}')
a('v_lshlrev_b32 v35, 7, v40'); a(f'v_add_u32 {v(vP13)}, s60, v35')
a('v_lshlrev_b32 v35, 12, v34'); a('v_bfe_u32 v36, v1, 3, 1'); a('v_lshl_add_u32 v37, v36, 7, v35')
a(f's_lshl_b32 s60, {sT}, 8'); a(f's_add_u32 s60, s60, {WS_FLAG}')
a(f's_lshl_b32 s61, {sKH}, 7'); a('s_add_u32 s61, s61, s60')
a(f'v_add_u32 {v(vPX)}, s61, v35')
a(f's_and_b32 s61, {st}, 1'); a('s_lshl_b32 s61, s61, 1'); a(f's_add_u32 s61, s61, {sTH}')
a(f's_lshl_b32 {sO0}, s61, 8')
a('s_lshl_b32 s61, s61, 3'); a('s_add_u32 s61, s61, s60')
a(f'v_add_u32 {v(vP2)}, s61, v37')
a(f's_add_u32 {sO0}, {sO0}, {STATS}')
a('v_lshlrev_b32 v35, 3, v40')
a(f'v_add_u32 {v(vSTS)}, {sO0}, v35')
a(f's_lshl_b32 s60, {sW}, 8'); a(f's_add_u32 s60, s60, {STATS}')
a(f'v_add_u32 {v(vSTW)}, s60, v35')
a(f's_mul_i32 s60, {sKH}, {CVCH}'); a(f's_add_u32 s60, s60, {CV}')
a(f's_mul_i32 s61, {sTH}, {HBD}'); a('s_add_u32 s61, s61, s60'); a(f's_add_u32 {sHM0}, s61, {HAOFF+64}')
a(f's_lshl_b32 {sHSO}, {sCP}, 13'); a(f's_add_u32 {sUL}, {sHSO}, {WS_U}'); a(f's_lshl_b32 s61, {sKH}, 12'); a(f's_add_u32 {sHSO}, {sHSO}, s61')
a(f's_add_u32 {sYL}, {sYL}, s61')
a(f's_lshl_b32 s61, {sTH}, 8')
a(f'v_mul_u32_u24 {v(vUA)}, {U1OFF}, v43')
a('v_lshrrev_b32 v35, 1, v42'); a('v_lshl_add_u32 v35, v35, 2, v32')
a(f'v_lshl_add_u32 {v(vUA)}, v35, 4, {v(vUA)}')
a(f's_sub_u32 {sO1}, s60, s61'); a(f's_add_u32 {sO1}, {sO1}, {448-192}')
a(f'v_add_u32 {v(vUA)}, {sO1}, {v(vUA)}')
a('v_xor_b32 v35, 1, v43')
a(f'v_mul_u32_u24 {v(vHA)}, {HBD}, v35'); a(f'v_lshl_add_u32 {v(vHA)}, v42, 2, {v(vHA)}')
a('v_lshlrev_b32 v35, 4, v32'); a(f'v_sub_u32 {v(vHA)}, {v(vHA)}, v35')
a('s_add_u32 s61, s60, s61'); a(f's_add_u32 s61, s61, {HAOFF+64-12}')
a(f'v_add_u32 {v(vHA)}, s61, {v(vHA)}')
a(f'v_lshlrev_b32 {v(vUL)}, 5, v0'); a(f'v_subrev_u32 {v(vULp)}, 4, {v(vUL)}')
a(f'v_lshlrev_b32 {v(vW2W)}, 4, v0'); a(f'v_add_u32 {v(vUW)}, {CV+448}, {v(vW2W)}')
a('v_lshlrev_b32 v35, 2, v47'); a('v_xor_b32 v35, v35, v34')
a(f'v_lshl_add_u32 {v(vW2A)}, v35, 4, v33')
a(f's_mul_i32 {sW2O}, {sKH}, {43*16*1024}'); a(f's_lshl_b32 s61, {sTH}, 13'); a(f's_add_u32 {sW2O}, {sW2O}, s61')
a(f's_lshl_b32 s61, {sDS}, 7'); a(f's_add_u32 {sW2O}, {sW2O}, s61')
a(f's_lshl_b32 {sO0}, {st}, 16'); a(f's_add_u32 {sO0}, {sO0}, s61')
a(f'v_add_u32 {v(vCSR)}, {CSUM}, {v(vL16)}'); a(f's_lshl_b32 s60, {sW}, 2'); a(f'v_add_u32 {v(vCSW)}, s60, {v(vCSR)}')
a(f's_lshl_b32 s60, {sT}, 2'); a(f's_add_u32 s60, s60, {sW}'); a('s_mul_i32 s60, s60, 86')
a(f's_lshl_b32 s61, {sP0}, 1'); a('s_add_u32 s60, s60, s61'); a('s_lshl_b32 s60, s60, 10')
a(f's_add_u32 {sHS}, s60, {WS_H}'); a(f's_add_u32 {sHS3}, {sHS}, 4096')
a.do([f's_cmp_lt_u32 {sM1}, 11', f's_cselect_b32 {sHS3}, {sHS3}, {OOB}'])
a(f's_lshl_b32 s60, {st}, 1'); a(f's_add_u32 s60, s60, {sTH}'); a('s_mul_i32 s60, s60, 86')
a(f's_mul_i32 s61, {sKH}, 43'); a('s_add_u32 s60, s60, s61'); a('s_lshl_b32 s60, s60, 10')
a(f's_add_u32 {sHL}, s60, {WS_H}')
a('v_lshlrev_b32 v35, 4, v45'); a('v_lshl_add_u32 v35, v32, 7, v35')
a('v_xor_b32 v36, 3, v44'); a('v_lshl_add_u32 v35, v36, 2, v35')
a(f's_add_u32 s60, {sM0W}, {CV+U1OFF+448}'); a(f'v_add_u32 {v(vDU)}, s60, v35')
a(f's_lshl_b32 s60, {sW}, 13'); a(f's_add_u32 s60, s60, {CV}'); a(f'v_add_u32 {v(vXW)}, s60, {v(vL16)}')
a(f's_add_u32 s60, {sW2K}, {CV}'); a(f'v_add_u32 {v(vXRd)}, s60, {v(vL16)}')
a(f'v_lshlrev_b32 {v(vYS)}, 16, v32'); a(f'v_lshl_add_u32 {v(vYS)}, v42, 4, {v(vYS)}')
a(f's_lshl_b32 s60, {sW}, 19'); a(f's_lshl_b32 s61, {sCP}, 8'); a('s_add_u32 s60, s60, s61'); a(f's_add_u32 {sYS0}, s60, {WS_Y}')
a(f's_add_u32 {sYS1}, {sYS0}, 0x40000')
a('v_lshl_add_u32 v35, v41, 2, v45'); a('v_lshlrev_b32 v35, 7, v35')
a('v_bfe_u32 v36, v1, 3, 1'); a('v_lshl_add_u32 v35, v36, 6, v35')
a('v_lshl_add_u32 v35, v47, 5, v35'); a('v_lshl_add_u32 v35, v43, 4, v35')
a('v_bfe_u32 v36, v1, 1, 1'); a('v_lshl_add_u32 v35, v36, 3, v35')
a(f's_lshl_b32 s60, {sKH}, 6'); a('v_xor_b32 v35, s60, v35')
a(f's_lshl_b32 s61, {sKH}, 11')
a(f'v_add_u32 {v(AR)}, s61, v35'); a(f'v_xor_b32 {v(AR+1)}, 64, {v(AR)}')
a(f'v_add_u32 {v(AR+2)}, 61440, {v(AR)}'); a(f'v_add_u32 {v(AR+3)}, 61440, {v(AR+1)}')
a(f'v_lshlrev_b32 {v(vYL)}, 10, v41'); a('v_bfe_u32 v36, v1, 1, 4'); a(f'v_lshl_add_u32 {v(vYL)}, v36, 4, {v(vYL)}')
a(f'v_lshl_add_u32 {v(vYL)}, v43, 2, {v(vYL)}')
a(f's_lshl_b32 s61, {sTH}, 3'); a(f's_add_u32 {sYL}, {sYL}, s61')
a('v_xor_b32 v35, s60, v46')
a(f's_lshl_b32 s61, {sTH}, 12'); a(f's_add_u32 s61, s61, {XST}')
a(f'v_add_u32 {v(vSTa)}, s61, v35'); a(f'v_xor_b32 {v(vSTb)}, 32, {v(vSTa)}')
a(f's_add_u32 s61, {sW4K}, {EX}'); a(f'v_add_u32 {v(vE2W)}, s61, {v(vL16)}'); a(f'v_xor_b32 {v(vE2R)}, 8192, {v(vE2W)}')
a(f's_add_u32 s61, {sW2K}, {OT}')
a('v_bfe_u32 v35, v1, 1, 2'); a('v_xor_b32 v35, v35, v41'); a('v_lshlrev_b32 v35, 4, v35')
a('v_lshl_add_u32 v35, v40, 6, v35'); a(f'v_add_u32 {v(vOTa)}, s61, v35'); a(f'v_xor_b32 {v(vOTb)}, 32, {v(vOTa)}')
a('v_lshrrev_b32 v36, 2, v1'); a('v_bfe_u32 v35, v1, 3, 2'); a('v_xor_b32 v35, v35, v44')
a('v_lshlrev_b32 v35, 4, v35'); a('v_lshl_add_u32 v35, v36, 6, v35'); a(f'v_add_u32 {v(vOTR)}, s61, v35')
a('v_lshlrev_b32 v36, 10, v36'); a(f'v_lshl_add_u32 {v(vOUT)}, v44, 4, v36')
a(f's_lshl_b32 s61, {sTH}, 15'); a(f's_add_u32 {sO0}, {sO0}, s61'); a(f's_add_u32 {sO0}, {sO0}, s60')
a(f's_add_u32 {sO1}, {sO0}, 16384')
a(f's_mul_i32 s60, {sKH}, {CVCH}'); a(f's_mul_i32 s61, {sTH}, {U1OFF}'); a('s_add_u32 s60, s60, s61'); a(f's_add_u32 s60, s60, {CV}')
a('v_min_u32 v35, 27, v1'); a('v_lshlrev_b32 v35, 4, v35'); a(f'v_add_u32 {v(AR+4)}, s60, v35')
a(f's_sub_u32 s60, {sHM0}, 64'); a('v_lshlrev_b32 v35, 2, v42'); a(f'v_add_u32 {v(AR+5)}, s60, v35')
ACC, XF, WF, SU, SQ, CS = 32, 80, 112, 160, 162, 164
for r in range(SU, CS+3): a(f'v_mov_b32 {v(r)}, 0')
a('s_waitcnt lgkmcnt(0)')
a(f's_add_u32 {sTAG}, {sE}, 1')
a(f's_not_b32 {sBASE}, {sTAG}')
a(f's_lshl_b32 {sBASE}, {sBASE}, 5')
a(f's_add_u32 {sFLG}, {sBASE}, {sXCC}')
a(f'v_mov_b32 v253, {sTAG}')
a(f's_lshl_b32 {sD0}, {sD}, 16'); a(f's_and_b32 {sD1}, {sD}, {sMASK}')
flag_store(0)
stamp()

def h_dma_ops():
    def f(n):
        def g():
            a(f's_mov_b32 m0, {sHM0}')
            a(f'buffer_load_dwordx4 {v(vL16)}, {srd(HK)}, {sHSO} offen offset:{n*1024}{NT} lds')
        return g
    return [f(n) for n in range(4)]
def stash_ops():
    def f(n):
        def g(): last['st'] = dma(vXA+n, Q, sSTASH, f's_add_u32 m0, {sW2K}, {XST + n*1024}')
        return g
    return [f(0), f(1)]
w2_seq = {}
def w2op(s):
    def f():
        a(f's_add_u32 {sB}, {sW2O}, {s*16384}')
        if s < 28: w2_seq[s] = dma(vW2A, W2, sB, f's_add_u32 m0, {sM0W}, {w2slot(s)}')
        else: a(f'buffer_load_dwordx4 {a_(172+4*(s-28),4)}, {v(vW2A)}, {srd(W2)}, {sB} offen')
    return f
hops = {}
def hop(s):
    def f():
        if s % 4 == 0: a(f's_add_u32 {sHLC}, {sHL}, {s*1024}')
        a(f'buffer_load_dwordx4 {a_(4*s,4)}, {v(vL16)}, {srd(WS)}, {sHLC} offen offset:{(s%4)*1024} sc1')
    hops[s] = f
    return f

KR, VR, SR, KL, VL, WL, PA = 168, 182, 190, 198, 205, 209, 240
p1_reads = [f'ds_read_b64 {v(KR+2*r,2)}, {v(vKA if r < 3 else vKB)} offset:{128*r}' for r in range(7)]
p1_reads += [f'ds_read_b128 {v(SR+4*p,4)}, {v(vSHR)} offset:{16*p}' for p in range(2)]
p1_reads += [f'ds_read_b64 {v(VR+2*r,2)}, {v(vKB)} offset:{VB-KB+128*(r+3)}' for r in range(4)]
p1 = []
ust = {}
for p in range(2):
    for j in range(4): p1 += [lo(WL+j, SR+4*p+j), hi(SR+4*p+j, SR+4*p+j)]
    for r in range(7): p1 += [lo(KL+r, KR+2*r+p), hi(KR+2*r+p, KR+2*r+p)]
    for r in range(4): p1 += [lo(VL+r, VR+2*r+p), hi(VR+2*r+p, VR+2*r+p)]
    for e in range(2):
        kk = (lambda r: KL+r) if e == 0 else (lambda r: KR+2*r+p)
        vv = (lambda r: VL+r) if e == 0 else (lambda r: VR+2*r+p)
        w = [WL+2*e, SR+4*p+2*e, WL+2*e+1, SR+4*p+2*e+1]
        for i in range(4): p1.append(f'v_mul_f32 {v(PA+4*e+i)}, {v(kk(i))}, {v(w[3])}')
        for j in (2, 1, 0):
            for i in range(4): p1.append(f'v_fmac_f32 {v(PA+4*e+i)}, {v(kk(i+3-j))}, {v(w[j])}')
        for i in range(4): p1.append(f'v_mul_f32 {v(PA+4*e+i)}, {v(PA+4*e+i)}, {v(vv(i))}')
    for i in range(4): p1.append(f'v_cvt_pk_bf16_f32 {v(PA+i)}, {v(PA+i)}, {v(PA+4+i)}')
    def ustore(p=p):
        ust[p] = a(f'buffer_store_dwordx4 {v(PA,4)}, {v(vUS)}, {srd(WS)}, {(sUS0, sUS1)[p]} offen sc1'); ust['t'] = a.t
    p1.append(ustore)

AX, BX, vM, vRS, vS, vC3 = 168, 180, 184, 185, 186, 188
stats = [
    f'v_add_f32 {v(SU)}, {v(SU)}, {v(SU+1)}', f'v_add_f32 {v(SQ)}, {v(SQ)}, {v(SQ+1)}',
    f'v_mov_b32 {v(SU+1)}, {v(SU)}', f'v_mov_b32 {v(SQ+1)}, {v(SQ)}',
    f'v_permlane32_swap_b32 {v(SU)}, {v(SU+1)}', f'v_permlane32_swap_b32 {v(SQ)}, {v(SQ+1)}',
    f'v_add_f32 {v(SU)}, {v(SU)}, {v(SU+1)}', f'v_add_f32 {v(SQ)}, {v(SQ)}, {v(SQ+1)}',
    f'v_mul_f32 {v(SU)}, 0x3b000000, {v(SU)}', f'v_mul_f32 {v(SQ)}, 0x3b000000, {v(SQ)}',
    f'v_fma_f32 {v(SQ)}, -{v(SU)}, {v(SU)}, {v(SQ)}', f'v_max_f32 {v(SQ)}, 0, {v(SQ)}',
    f'v_cvt_pk_bf16_f32 v190, {v(SU)}, {v(SQ)}', 'v_xor_b32 v191, 0x8000, v190',
    f'v_perm_b32 {v(BX)}, v191, v191, {sSELLO}', f'v_mov_b32 {v(BX+1)}, {v(BX)}', f'v_mov_b32 {v(BX+2)}, {v(BX)}', f'v_mov_b32 {v(BX+3)}, {v(BX)}',
    lo(vM, 190), hi(191, 190), 'v_add_f32 v191, 0x3727c5ac, v191',
    'v_cvt_pk_bf16_f32 v191, v191, v191', lo(191, 191), 'v_sqrt_f32 v191, v191',
    'v_cvt_pk_bf16_f32 v191, v191, v191', lo(vS, 191), f'v_rcp_f32 {v(vRS)}, {v(vS)}',
    f'v_mul_f32 {v(vC3)}, 0xbfb8aa3b, {v(vRS)}', f'ds_write_b64 {v(vSTW)}, {v(vM,2)}']
def rdx(c):
    st_ = 4 * ((c % 4) >> 1); off = (c & 1) * SLOT
    return [f'ds_read_b128 {v(XF+16*(c&1)+4*i,4)}, {v(vXR+st_+i)} offset:{off}' for i in range(4)]
def rdw(c, i):
    st_ = 4 * ((c % 4) >> 1); off = (c & 1) * SLOT
    return [f'ds_read_b64_tr_b16 {v(WF+12*i+4*ft+2*rd,2)}, {v(vWR+st_+i)} offset:{off+16384+rd*768+ft*64}' for ft in range(3) for rd in range(2)]
def need_chunk(c):
    if lastop[c] in a.vq: a.drain_v(lastop[c])
    a.wait_vm(last[c])
if pops[1] in a.vq: a.drain_v(pops[1])
need_chunk(0)
a('s_barrier')
stamp(1)
for x in rdx(0) + rdw(0, 0) + rdw(0, 1): a(x)
flag1 = False
for c in range(8):
    X = XF + 16*(c & 1)
    for x in rdw(c, 2) + rdw(c, 3): a(x)
    if c == 1:
        for x in p1_reads: a(x)
        a.fq = list(p1); a.slack = OPT['p1slack']
    for i in range(4):
        for d in range(4):
            a(f'v_dot2c_f32_bf16 {v(SU+(d&1))}, {sONES}, {v(X+4*i+d)}'); a(f'v_dot2c_f32_bf16 {v(SQ+(d&1))}, {v(X+4*i+d)}, {v(X+4*i+d)}')
    for d in range(4):
        for ft in range(3): a(f'v_dot2c_f32_bf16 {v(CS+ft)}, {sONES}, {v(WF+4*ft+d)}')
    if 1 in ust and not flag1 and a.t - ust['t'] > 1100:
        a.wait_vm(ust[1]); flag_store(1); flag1 = True
        print('flag1 in chunk', c, file=sys.stderr)
    if c == 6:
        assert ('v', 246) in a.pend
        a.lock()
        a(f'v_subrev_u32 v255, {sFLG}, v246')
        a('v_and_b32 v255, 0xffffffe7, v255')
        a('v_cmp_eq_u32 vcc, 0, v255')
        a(f'v_cmp_eq_u32 {sPAIR}, {sTAG}, v247')
        a(f's_and_b64 vcc, vcc, {sPAIR}')
        a('s_cmp_eq_u64 vcc, exec')
        a(f's_cselect_b32 {sFAST}, {OPT["fast"]}, 0')
        a.unlock()
    if c == 7:
        assert not a.fq and flag1
        for ft in range(3): a.fq += [hi(192+ft, CS+ft), f'v_sub_f32 v{195+ft}, {v(CS+ft)}, v{192+ft}']
        for ft in range(3): a.fq += [f'v_cvt_pk_bf16_f32 v{192+ft}, v{192+ft}, v{195+ft}', f'ds_write_b32 {v(vCSW)}, v{192+ft} offset:{1024*ft}']
        a.fq += stats
        a.slack = 0
    def mm(i, ft):
        cin = '0' if (c == 0 and i == 0) else v(ACC+16*ft, 16)
        return f'v_mfma_f32_32x32x16_bf16 {v(ACC+16*ft,16)}, {v(WF+12*i+4*ft,4)}, {v(X+4*i,4)}, {cin}'
    for i in range(3):
        for ft in range(3): a(mm(i, ft))
    if c == 7: assert len(a.fq) <= len(stats), len(a.fq)
    a.lock()
    a.wait_all_lg()
    if c < 7: need_chunk(c + 1)
    a('s_barrier')
    a.unlock()
    stamp(1)
    if c < 4: a.vq += g1_dma_ops(c + 4)
    if c == 3: a.vq += h_dma_ops() + stash_ops()
    if c == 4:
        assert not a.fq
        a.slack = 0
        a.fq = [f'v_mov_b32 v{192+i}, 0' for i in range(4)] + [f'ds_write_b128 {v(AR+4)}, v[192:195]', f'ds_write_b32 {v(AR+5)}, v192']
        a.vq += [lambda: poll_issue(vPX, 246)]
    if c == 6: a.vq = [lambda: poll_issue(vP13, 244)] + a.vq
    if c >= 4: a.vq += [w2op(s) for s in range(7*(c-4), 7*(c-3))]
    nxt = rdx(c+1) + rdw(c+1, 0) + rdw(c+1, 1) if c < 7 else [f'ds_read_b128 {v(AX+4*ft,4)}, {v(vCSR)} offset:{1024*ft}' for ft in range(3)]
    for ft in range(3):
        a(mm(3, ft))
        for x in nxt[:6]: a(x)
        nxt = nxt[6:]
a.drain_f()
for ft in range(3):
    a(f'v_mfma_f32_32x32x16_bf16 {v(ACC+16*ft,16)}, {v(AX+4*ft,4)}, {v(BX,4)}, {v(ACC+16*ft,16)}')
stamp(); stamp(1)
poll_check(vP13, 244, 1, 255)
a.lock()
a(f'buffer_load_dwordx4 {v(UR,4)}, {v(vUL)}, {srd(WS)}, {sUL} offen sc1')
a(f'buffer_load_dwordx4 {v(UR+4,4)}, {v(vUL)}, {srd(WS)}, {sUL} offen offset:16 sc1')
a(f'buffer_load_dword {v(UR+8)}, {v(vULp)}, {srd(WS)}, {sUL} offen sc1')
a.unlock()
stamp()
a.vq += [w2op(s) for s in range(28, 43)]

CA, DU, DR = 160, 192, 208
def FA(set_, mu): return (80 if set_ == 0 else 32) + 4*mu
def FB(set_, nu): return 112 + 4*nu if set_ == 0 else (64 + 4*nu if nu < 4 else 144 + 4*(nu-4))
def rdA(rp, mu): return f'ds_read_b128 {v(FA(rp&1,mu),4)}, {v(vUA)} offset:{512*mu - 64*rp + 192}'
def rdB(rp, nu): return [f'ds_read_b64 {v(FB(rp&1,nu)+2*h,2)}, {v(vHA)} offset:{512*nu + 64*rp + 8*h}' for h in range(2)]
def reads(rp):
    r = rdB(rp, 0) + [rdA(rp, mu) for mu in range(8)]
    for nu in range(1, 8): r += rdB(rp, nu)
    return r
TS, HO, PO = 144, 168, 192
hst = {}
def silu(flag):
    for fr in range(6):
        base = ACC + 8*fr; t = TS + 8*(fr & 1); o = HO + 4*(fr & 1)
        if fr == 4:
            for c in range(2):
                sel = sSELLO if c == 0 else sSELHI
                for k in range(4):
                    hi0 = UR + 5 - 2*k if k < 3 else UR + 8
                    a(f'v_perm_b32 {v(PO+8*c+k)}, {v(hi0)}, {v(UR+6-2*k)}, {sel}')
                    a(f'v_perm_b32 {v(PO+8*c+4+k)}, {v(UR+6-2*k)}, {v(UR+7-2*k)}, {sel}')
        wr = [f'ds_write_b128 {v(vUW)}, {v(PO+8*c+4*k,4)} offset:{c*CVCH+k*U1OFF}' for c in range(2) for k in range(2)] if fr == 4 else []
        if fr == 5:
            a.lock(); a.wait_vm(last['st']); a.wait_all_lg(); a('s_barrier'); a.unlock()
            wr = reads(0)
        def side(n):
            for x in wr[:n]: a(x)
            del wr[:n]
        for p in range(4): a(f'v_pk_mul_f32 {v(t+2*p,2)}, {v(base+2*p,2)}, {v(vC3,2)} op_sel_hi:[1,0]')
        side(1 if fr == 4 else 6)
        for e in range(8): a(f'v_exp_f32 {v(t+e)}, {v(t+e)}')
        side(1 if fr == 4 else 6)
        for p in range(4): a(f'v_pk_fma_f32 {v(t+2*p,2)}, {v(t+2*p,2)}, {v(vS,2)}, {v(vS,2)} op_sel_hi:[1,0,0]')
        for e in range(8): a(f'v_rcp_f32 {v(t+e)}, {v(t+e)}')
        side(1 if fr == 4 else 6)
        for p in range(4): a(f'v_pk_mul_f32 {v(t+2*p,2)}, {v(t+2*p,2)}, {v(base+2*p,2)}')
        for p in range(4): a(f'v_cvt_pk_bf16_f32 {v(o+p)}, {v(t+2*p)}, {v(t+2*p+1)}')
        so, im = (sHS, fr*1024) if fr < 4 else (sHS3, (fr-4)*1024)
        hst[0] = a(f'buffer_store_dwordx4 {v(o,4)}, {v(vL16)}, {srd(WS)}, {so} offen offset:{im}{flag}')
        side(6)
a.do([f's_cmp_eq_u32 {sFAST}, 0', 's_cbranch_scc1 L_silu_slow'])
snap = {k: copy.copy(getattr(a, k)) for k in ('hist', 'vm_n', 'vm_done', 'lg_n', 'lg_done', 'pend', 't', 'mf_free', 'vq', 'fq', 'next_vm')}
main_lines = a.lines; a.lines = []
silu(' sc1'); slow_lines = a.lines
for k, x in snap.items(): setattr(a, k, x)
a.lines = main_lines
silu('')
a.place('L_silu_join')
stamp()

AF, G2A, XR, XS, YR, XU, DM, YU = 80, 104, 32, 64, 136, 144, 160, 176
def rdA2(s):
    ad = w2slot(s); k = ad // 61440; o = ad - 61440*k
    return [f'ds_read_b64_tr_b16 {v(AF+8*(s%3)+4*dt+2*rd,2)}, {v(AR+2*k+dt)} offset:{o + rd*1024}' for dt in range(2) for rd in range(2)]
cnt = 0
for rp in range(4):
    rd = reads(rp + 1) if rp < 3 else []
    if rp == 0:
        rd += [f'ds_read_b32 {v(DR+4*c+2*jj+h)}, {v(vDU)} offset:{c*CVCH + 512*jj + 64*h}' for c in range(2) for jj in range(2) for h in range(2)]
    if rp == 1:
        for c in range(2):
            for jj in range(2):
                for h in range(2):
                    src = DR+4*c+2*jj+h; d = DU+8*jj+4*c+2*h
                    a.fq += [hi(d, src), lo(d+1, src), f'v_mul_f32 {v(d)}, {(sD0, sD1)[c]}, {v(d)}', f'v_mul_f32 {v(d+1)}, {(sD0, sD1)[c]}, {v(d+1)}']
    if rp == 3:
        a.lock(); a.wait_vm(w2_seq[27]); a.wait_all_lg(); a('s_barrier'); a.unlock()
        rd = rdA2(0) + rdA2(1)
    for nu in range(8):
        for mu in range(8 - nu):
            j = nu + mu
            if cnt == OPT['sig2']: a.wait_vm(hst[0]); flag_store(2, True)
            if cnt == OPT['s2poll']: a.vq = [lambda: poll_issue(vP2, 244)] + a.vq
            if cnt == OPT['s2chk']:
                stamp(); poll_check(vP2, 244, 2, 255); stamp()
                a.vq += [hop(s) for s in range(43)]
            cin = '0' if (rp == 0 and nu == 0) else v(CA+4*j, 4)
            a(f'v_mfma_f32_16x16x32_bf16 {v(CA+4*j,4)}, {v(FA(rp&1,mu),4)}, {v(FB(rp&1,nu),4)}, {cin}')
            cnt += 1
            if rd: a(rd.pop(0))
            if rp == 3 and mu == 0 and nu >= 2: a(f'ds_write_b128 {v(vXW)}, {v(CA+4*(nu-2),4)} offset:{1024*(nu-2)}')
    assert not rd
a.drain_f()
stamp()

def wb():
    skip, j = a.label(), a.label()
    a(f's_or_b32 {sF}, {sM1}, {sW}'); a(f's_cmp_lg_u32 {sF}, 0'); a(f's_cbranch_scc1 {skip}')
    a('buffer_wbl2 sc1', track=False)
    a(f's_branch {j}'); a.place(skip)
    a(f'buffer_load_dword {v(vP2)}, {v(vFL)}, {srd(WS)}, 0 offen'); a.place(j)
def yloads(track=True):
    for grp in range(2):
        for e in range(4): a(f'buffer_load_dword {v(YR+4*grp+e)}, {v(vYL)}, {srd(WS)}, {sYL} offen offset:{(8*grp+e)*256} sc1', track=track)
ysum = []
for jj in range(2):
    for hf in range(2):
        for c in range(2):
            for r in range(4): ysum.append(f'v_add_f32 {v(DU+8*jj+4*c+r)}, {v(DU+8*jj+4*c+r)}, {v(XR+16*jj+8*c+4*hf+r)}')
    for r in range(4): ysum.append(f'v_cvt_pk_bf16_f32 {v(DR+4*jj+r)}, {v(DU+8*jj+r)}, {v(DU+8*jj+4+r)}')
    for r in range(4): ysum.append(f'v_min_u32 {v(DR+4*jj+r)}, -2, {v(DR+4*jj+r)}')
    ysum.append(f'buffer_store_dwordx4 {v(DR+4*jj,4)}, {v(vYS)}, {srd(WS)}, {(sYS0, sYS1)[jj]} offen sc1')
pre = []
for k in range(8): pre += [lo(XU+2*k, XS+k), hi(XU+2*k+1, XS+k)]
for k in range(16): pre.append(f'v_sub_f32 {v(DM+k)}, {v(XU+k)}, v72')
for k in range(16): pre.append(f'v_mul_f32 {v(DM+k)}, {v(DM+k)}, v73')
post = []
for k in range(8): post += [lo(YU+2*k, YR+k), hi(YU+2*k+1, YR+k)]
for k in range(16): post.append(f'v_fmac_f32 {v(XU+k)}, {v(DM+k)}, {v(YU+k)}')
def bar():
    a.lock(); a.wait_all_lg(); a('s_barrier'); a.unlock()
tailw = []
for s in range(43):
    side = rdA2(s + 2) if s + 2 < 43 else []
    if s == 0: side += [f'ds_write_b128 {v(vXW)}, {v(CA+4*j,4)} offset:{1024*j}' for j in (6, 7)]
    if s == 2:
        bar()
        side += [f'ds_read_b128 {v(XR+16*jj+4*sw,4)}, {v(vXRd)} offset:{8192*sw + 1024*jj}' for jj in range(2) for sw in range(4)]
    if s == 4: a.fq += ysum
    if s == 9: bar(); tailw = list(range(28, 36))
    if s == 18: bar(); tailw = list(range(36, 43))
    if s == 30: bar()
    if tailw:
        k = tailw.pop(0); side.append(f'ds_write_b128 {v(vW2W)}, {a_(172+4*(k-28),4)} offset:{w2slot(k)}')
    if s == 19: side += [f'ds_read_b128 {v(XS,4)}, {v(vSTa)}', f'ds_read_b128 {v(XS+4,4)}, {v(vSTb)}', f'ds_read_b64 v[72:73], {v(vSTS)}']
    if s == 21: a.fq += pre
    if OPT['wb'] and s == 1: a.vq.append(wb)
    if s in (5, 13, 27, 40): stamp()
    if s == OPT['yload']:
        a.drain_v(); a.do(yloads)
    if s == OPT['ycheck']:
        a.drain_f()
        a.lock()
        top, done = a.label(), a.label()
        a(f's_mov_b32 {sSPIN}, 0')
        a.wait_vm(a.vm_n)
        a.place(top)
        a(f'v_max3_u32 v74, {v(YR)}, {v(YR+1)}, {v(YR+2)}'); a(f'v_max3_u32 v75, {v(YR+3)}, {v(YR+4)}, {v(YR+5)}')
        a(f'v_max3_u32 v74, v74, {v(YR+6)}, {v(YR+7)}'); a('v_max_u32 v74, v74, v75')
        a('v_cmp_eq_u32 vcc, -1, v74')
        a(f's_cbranch_vccz {done}')
        t0 = a.t
        a(f's_add_u32 {sSPIN}, {sSPIN}, 1'); a(f's_cmp_gt_u32 {sSPIN}, 0x20000'); a(f's_cbranch_scc1 {done}')
        a('s_sleep 1')
        yloads(False)
        a('s_waitcnt vmcnt(0)')
        a(f's_branch {top}')
        a.place(done)
        a.t = t0
        a.unlock()
        a.fq += post
    if hops[s] in a.vq: a.drain_v(hops[s])
    h = (len(side) + 1) // 2
    for dt in (1, 0):
        cin = '0' if s == 0 else v(G2A+16*dt, 16)
        a(f'v_mfma_f32_32x32x16_bf16 {v(G2A+16*dt,16)}, {v(AF+8*(s%3)+4*dt,4)}, {a_(4*s,4)}, {cin}')
        for x in side[:h]: a(x)
        side = side[h:]
a.drain_f()
stamp()
for k in range(4): a(f'ds_write_b128 {v(vE2W)}, {v(G2A+16+4*k,4)} offset:{1024*k}')
for k in range(8): a(f'v_pk_add_f32 {v(XU+2*k,2)}, {v(XU+2*k,2)}, {v(G2A+2*k,2)}')
bar()
for k in range(4): a(f'ds_read_b128 {v(32+4*k,4)}, {v(vE2R)} offset:{1024*k}')
for h in range(2):
    for k in range(4*h, 4*h+4): a(f'v_pk_add_f32 {v(XU+2*k,2)}, {v(XU+2*k,2)}, {v(32+2*k,2)}')
    for k in range(4*h, 4*h+4): a(f'v_cvt_pk_bf16_f32 {v(48+k)}, {v(XU+2*k)}, {v(XU+2*k+1)}')
    a(f'ds_write_b128 {v((vOTa, vOTb)[h])}, {v(48+4*h,4)}')
a.wait_all_lg()
a(f'ds_read_b128 v[56:59], {v(vOTR)}'); a(f'ds_read_b128 v[60:63], {v(vOTR)} offset:1024')
a(f'buffer_store_dwordx4 v[56:59], {v(vOUT)}, {srd(OUT)}, {sO0} offen sc1')
a(f'buffer_store_dwordx4 v[60:63], {v(vOUT)}, {srd(OUT)}, {sO1} offen sc1')
stamp()
print('estimated cycles', int(a.t), file=sys.stderr)
a.lock()
a(f's_or_b32 s60, {sCP}, {sW}')
a('s_cmp_lg_u32 s60, 0')
a('s_cbranch_scc1 L_noep')
a('v_lshlrev_b32 v128, 7, v1')
for k in range(4):
    a(f'v_add_u32 v{129+k}, {WS_FLAG + 8192*k}, v128')
    poll_issue(129+k, 136+2*k)
for k in range(4): poll_check(129+k, 136+2*k, 1, 128)
a(f'v_mov_b32 v128, {WS_E}')
a('s_mov_b64 exec, 1')
a(f'buffer_store_dword v253, v128, {srd(WS)}, 0 offen sc1')
a('s_mov_b64 exec, -1')
a.place('L_noep')
if OPT['stamps']:
    a('s_waitcnt vmcnt(0)')
    stamp()
    if OPT['probe'] > -2:
        a(f's_mov_b32 s60, {OPT["base"]}')
        if OPT['probe'] >= 0:
            a(f'v_accvgpr_read_b32 v129, a{240+OPT["probe"]}'); a('s_nop 1'); a('v_readfirstlane_b32 s61, v129'); a('s_add_u32 s60, s60, s61')
        a.place('L_probe')
        a('s_memtime s[96:97]'); a('s_waitcnt lgkmcnt(0)'); a('s_sub_u32 s96, s96, s3'); a('s_cmp_lt_u32 s96, s60'); a('s_cbranch_scc1 L_probe')
    a(f's_lshl_b32 s60, s2, 2'); a(f's_add_u32 s60, s60, {sW}'); a('s_lshl_b32 s60, s60, 6'); a(f's_add_u32 s60, s60, {WS_STAMP}')
    a('v_mov_b32 v128, s60')
    a('s_mov_b64 exec, 1')
    for k in range(4): a(f'buffer_store_dwordx4 {a_(240+4*k,4)}, v128, {srd(WS)}, 0 offen offset:{16*k}')
    if OPT['stamps'] == 2:
        a('s_load_dwordx2 s[84:85], s[0:1], 80'); a('s_mov_b32 s86, 256'); a('s_mov_b32 s87, 0x20000'); a('s_waitcnt lgkmcnt(0)')
        a('s_and_b32 s60, s2, 0x1f'); a(f's_or_b32 s60, s60, {sW}'); a('s_cmp_lg_u32 s60, 0'); a('s_cbranch_scc1 L_end')
        a('v_mov_b32 v128, 0')
        for k in range(nstamp[0]):
            a(f'v_accvgpr_read_b32 v129, a{240+k}')
            a(f'buffer_atomic_umax v129, v128, s[84:87], 0 offen offset:{4*k}')
a('s_endpgm')
a.place('L_silu_slow')
a.lines += slow_lines
a('s_branch L_silu_join')
a.place('L_end')
a('s_endpgm')

hdr = open('parallel_sum__ssm_conv_h3__dense_activation_silu__prompt.s.ref').read().split('\n')
hdr = [l for l in hdr if l.startswith(';') and '@launch' not in l]
out = '\n'.join(hdr) + f'\n; @launch grid=(256,1,1) block=(256,1,1) lds={LDS_SIZE}\n'
out += f'''.amdgcn_target "amdgcn-amd-amdhsa--gfx950"
.text
.globl {NAME}
.p2align 8
.type {NAME},@function
{NAME}:
''' + a.text() + f'''.section .rodata,"a"
.p2align 6
.amdhsa_kernel {NAME}
  .amdhsa_next_free_vgpr 512
  .amdhsa_next_free_sgpr 102
  .amdhsa_accum_offset 256
  .amdhsa_group_segment_fixed_size 0
  .amdhsa_kernarg_size 96
  .amdhsa_user_sgpr_count 2
  .amdhsa_user_sgpr_kernarg_segment_ptr 1
  .amdhsa_system_sgpr_workgroup_id_x 1
.end_amdhsa_kernel
'''
open(sys.argv[1], 'w').write(out)
print('lines', len(a.lines), 'nop states', a.nops, 'stamps', nstamp[0], file=sys.stderr)
```

```python
import sys, copy
from emit import Asm

NAME = "parallel_sum__ssm_conv_h3__dense_activation_silu__prompt_kernel"
OPT = dict(stamps=0, fast=1, nt=1, wb=14, rot=1, s2poll=50, s2chk=70, ycheck=38, yload=31, sg=0, gap=68, p1slack=24, sig2=16, probe=-2, base=60000, touch=1, ntx=1, osc=0, hat=4, gap0=60, kvat=4, p1c=2, hnt=0, ont=0, s1chk=1, f1d=900, skel=0, hl=1, wsoff=0)
for x in sys.argv[2:]:
    k, v = x.split('='); OPT[k] = int(v)

WS_E, WS_FLAG, WS_STAMP, WS_U, WS_Y, WS_H, WS_SIZE = 0, 0x10000, 0x40000, 0x100000, 0x300000, 0x500000, 0x1000000
OOB = 0x7f000000
SLOT = 28672
CV = 114688; CVCH = 9216; U1OFF = 4640; HBASE = CV + 18432; HCH = 8448; HBD = 4228
KB, VB, SB = CV, CV + 8192, CV + 9216 + 8192
XST = 150016; STATS = 158208; CSUM = 159232
LDS_SIZE = 163840
EX, OT = 16*4096, 20*4096
def w2slot(s): return s * 4096 if s < 28 else (s - 28) * 4096
Q, K, V, SH, HK, W1, W2, OUT, WS = 4, 8, 12, 16, 20, 24, 28, 32, 36
def srd(r): return f's[{r}:{r+3}]'
sD, sE, sT, sM1, st, sDS, sCP, sW, sXCC, sTAG, sBASE, sP0 = [f's{i}' for i in range(42, 54)]
sXO, sW1O, sHS, sHS3, sW2O, sHL = [f's{i}' for i in range(54, 60)]
sM0W, sW4K, sW3K, sSELLO, sSELHI, sONES = [f's{i}' for i in range(62, 68)]
sPAIR = 's[68:69]'
sSPIN, sTH, sKH, sMASK, sFLG, sI = [f's{i}' for i in range(70, 76)]
sHM0, sHSO, sHLC, sD0, sD1, sA, sB, sF, sG, sUS0, sUS1, sW2K = [f's{i}' for i in range(76, 88)]
sUL, sYS0, sYS1, sYL, sO0, sO1, sROT, sC = [f's{i}' for i in range(88, 96)]
sFAST, sSTASH, sPOI = 's100', 's101', 's98'
def v(n, c=1): return f'v{n}' if c == 1 else f'v[{n}:{n+c-1}]'
def a_(n, c=1): return f'a{n}' if c == 1 else f'a[{n}:{n+c-1}]'
vL16, vCSR, vSTW = 2, 3, 11
vXA, vWA, vXR, vWR = 4, 8, 12, 20
vFL, vP13, vP2, vPX = 28, 29, 30, 31
vKA, vKB, vSHR, vUS, vKD = 210, 211, 212, 213, 214
(vUA, vHA, vDU, vW2A, vUW, vXW, vXRd, vYS, vYL, vE2W, vE2R, vSTa, vSTb, vSTS, vOTa, vOTb, vOTR, vOUT) = range(216, 234)
AR, UR = 234, 240
vUL, vULp, vCSW, vW2W = 249, 250, 251, 254
vHALO, vT43 = 167, 248
NT = ' nt' if OPT['nt'] else ''
HLF = ['', ' sc1', ' nt', ' sc0'][OPT['hl']]
NTX = ' nt' if OPT['ntx'] else ''
OSC = ' sc1' if OPT['osc'] else (' nt' if OPT['ont'] else '')

a = Asm(); a.gap = OPT['gap']
nstamp = [0]
def stamp(g=0):
    if not OPT['stamps'] or g != OPT['sg']: return
    k = nstamp[0]; nstamp[0] += 1
    a.lock()
    a.wait_all_lg()
    a(f's_memtime s[96:97]'); a('s_waitcnt lgkmcnt(0)')
    a(f's_sub_u32 s96, s96, s3')
    a(f'v_mov_b32 v255, s96')
    a(f'v_accvgpr_write_b32 a{240+k}, v255')
    a.unlock()

def dma(vaddr, rs, soff, m0expr, extra='', track=True):
    a(m0expr)
    return a(f'buffer_load_dwordx4 {v(vaddr)}, {srd(rs)}, {soff} offen{extra} lds', track=track)

def flag_store(phase, fastable=False):
    a.lock()
    a(f's_add_u32 {sF}, {sFLG}, {8*phase}')
    a(f'v_mov_b32 v252, {sF}')
    a('s_mov_b64 exec, 1')
    if fastable:
        slow, join = a.label(), a.label()
        a(f's_cmp_eq_u32 {sFAST}, 0')
        a(f's_cbranch_scc1 {slow}')
        a(f'buffer_store_dwordx2 v[252:253], {v(vFL)}, {srd(WS)}, 0 offen', track=False)
        a(f's_branch {join}')
        a.place(slow)
    a(f'buffer_store_dwordx2 v[252:253], {v(vFL)}, {srd(WS)}, 0 offen sc1')
    if fastable: a.place(join)
    a('s_mov_b64 exec, -1')
    a.unlock()

def poll_issue(vaddr, dst):
    return a(f'buffer_load_dwordx2 {v(dst,2)}, {v(vaddr)}, {srd(WS)}, 0 offen sc1')

def poll_check(vaddr, dst, phase, tmp):
    a.lock()
    top, done = a.label(), a.label()
    a(f's_add_u32 {sF}, {sBASE}, {8*phase}')
    a(f's_mov_b32 {sSPIN}, 0')
    a.wait_vm(a.pend[('v', dst)][1])
    a.place(top)
    a(f'v_subrev_u32 {v(tmp)}, {sF}, {v(dst)}')
    a(f'v_cmp_gt_u32 vcc, {32-8*phase}, {v(tmp)}')
    a(f'v_cmp_eq_u32 {sPAIR}, {sTAG}, {v(dst+1)}')
    a(f's_and_b64 vcc, vcc, {sPAIR}')
    a('s_cmp_eq_u64 vcc, exec')
    a(f's_cbranch_scc1 {done}')
    t0 = a.t
    a(f's_add_u32 {sSPIN}, {sSPIN}, 1')
    a(f's_cmp_gt_u32 {sSPIN}, 0x20000')
    a(f's_cbranch_scc1 {done}')
    a('s_sleep 1')
    a(f'buffer_load_dwordx2 {v(dst,2)}, {v(vaddr)}, {srd(WS)}, 0 offen sc1', track=False)
    a('s_waitcnt vmcnt(0)')
    a(f's_branch {top}')
    a.place(done)
    a.t = t0
    a.unlock()

def lo(d, s): return f'v_lshlrev_b32 {v(d)}, 16, {v(s)}'
def hi(d, s): return f'v_and_b32 {v(d)}, {sMASK}, {v(s)}'

a('s_cmp_ge_u32 s2, 256')
a('s_cbranch_scc1 L_end')
if OPT['stamps']:
    a('s_memtime s[68:69]'); a('s_waitcnt lgkmcnt(0)'); a('s_mov_b32 s3, s68')
a('s_load_dwordx16 s[76:91], s[0:1], 0')
a('s_load_dwordx8 s[92:99], s[0:1], 64')
a('v_and_b32 v1, 63, v0')
a('v_lshrrev_b32 v3, 6, v0')
a('s_lshr_b32 %s, s2, 3' % sI)
a(f'v_readfirstlane_b32 {sW}, v3')
a('s_getpc_b64 s[60:61]')
a.place('L_pc')
a(f's_and_b32 s62, {sI}, 3')
a('s_lshl_b32 s62, s62, 13')
a(f's_lshl_b32 s63, {sW}, 11')
a('s_add_u32 s62, s62, s63')
a('v_lshlrev_b32 v3, 7, v1')
a('v_add_u32 v3, s62, v3')
a('v_min_u32 v3, L_end-L_pc, v3')
a('s_mov_b64 exec, 0xffff')
a('global_load_dword v255, v3, s[60:61]')
a('s_mov_b64 exec, -1')
a('s_and_b32 s60, s2, 7')
a(f's_and_b32 s61, {sI}, 1')
a(f's_lshl_b32 {sT}, s60, 1')
a(f's_add_u32 {sT}, {sT}, s61')
a(f's_lshr_b32 {sM1}, {sI}, 1')
for r, n in ((Q, 2097152), (W1, 1409024), (K, 2097152), (V, 2097152), (SH, 4096), (HK, 2097152), (W2, 1409024), (OUT, 2097152), (WS, WS_SIZE)):
    a(f's_mov_b32 s{r+2}, {n}'); a(f's_mov_b32 s{r+3}, 0x20000')
a('v_lshrrev_b32 v32, 4, v1')
a('v_lshrrev_b32 v33, 3, v1')
a('v_and_b32 v34, 7, v1')
a('v_xor_b32 v35, v34, v32')
a('v_lshlrev_b32 v33, 10, v33')
a(f'v_lshl_add_u32 {v(vXA)}, v35, 4, v33')
a(f'v_xor_b32 {v(vXA+1)}, 64, {v(vXA)}')
a(f'v_add_u32 {v(vXA+1)}, 8192, {v(vXA+1)}')
a(f'v_add_u32 {v(vXA+2)}, 16384, {v(vXA)}')
a(f'v_add_u32 {v(vXA+3)}, 16384, {v(vXA+1)}')
a(f's_lshl_b32 {sXO}, {sT}, 17')
a(f's_lshl_b32 s60, {sW}, 15')
a(f's_add_u32 {sXO}, {sXO}, s60')
a(f's_lshl_b32 {sW4K}, {sW}, 12')
a(f's_lshl_b32 {sM0W}, {sW}, 10')
a(f's_mul_i32 {sW3K}, {sW}, 3072')
a(f's_mul_i32 {sP0}, {sM1}, 3')
a(f's_lshl_b32 s60, {sM1}, 1')
a('s_add_u32 s60, s60, 11')
a(f's_min_u32 {sP0}, {sP0}, s60')
a(f's_cmp_lt_u32 {sM1}, 11')
a('s_cselect_b32 s61, 12, 8')
a(f'v_mov_b32 v3, {OOB}')
for j in range(3):
    if j: a(f'v_add_u32 v36, {64*j}, v1')
    src = 'v36' if j else 'v1'
    a(f'v_mul_u32_u24 v37, 5462, {src}')
    a('v_lshrrev_b32 v37, 16, v37')
    a('v_mul_u32_u24 v35, 12, v37')
    a(f'v_sub_u32 v35, {src}, v35')
    a('v_cmp_gt_u32 vcc, s61, v35')
    a('v_mul_u32_u24 v37, 2752, v37')
    a(f'v_lshl_add_u32 {v(vWA+j)}, v35, 4, v37')
    a(f'v_cndmask_b32 {v(vWA+j)}, v3, {v(vWA+j)}, vcc')
a(f's_mul_i32 {sW1O}, {sW}, {16*2752}')
a(f's_lshl_b32 s60, {sP0}, 6')
a(f's_add_u32 {sW1O}, {sW1O}, s60')
a(f's_and_b32 s61, {sM1}, 1')
a(f's_lshl_b32 {st}, {sT}, 1')
a(f's_add_u32 {st}, {st}, s61')
a(f's_lshr_b32 {sDS}, {sI}, 2')
a(f's_lshl_b32 {sCP}, {sDS}, 5')
a(f's_add_u32 {sCP}, {sCP}, {st}')
a(f's_lshl_b32 s60, {st}, 16')
a(f's_lshl_b32 s61, {sW}, 14')
a('s_add_u32 s60, s60, s61')
a(f's_lshl_b32 s61, {sDS}, 7')
a(f's_add_u32 {sSTASH}, s60, s61')
a('v_lshrrev_b32 v35, 5, v1')
a('v_xor_b32 v35, v35, v34')
a('v_lshl_add_u32 v38, v35, 4, v33')
a(f's_lshl_b32 s60, {sW}, 6'); a('s_and_b32 s60, s60, 64'); a('s_xor_b32 s61, s60, 32')
a(f'v_xor_b32 {v(vKD)}, s61, v38')
a('s_xor_b32 s61, s60, 64')
a(f'v_xor_b32 {v(vKD+1)}, s61, v38')
a(f'v_add_u32 {v(vKD+1)}, 8192, {v(vKD+1)}')
a(f'v_add_u32 v38, {sSTASH}, v38')
a(f'v_subrev_u32 {v(vHALO)}, 8192, v38')
a(f'v_lshlrev_b32 {v(vL16)}, 4, v1')
a(f's_and_b32 {sTH}, {sW}, 1'); a(f's_lshr_b32 {sKH}, {sW}, 1')
a('v_lshlrev_b32 v39, 7, v1'); a(f'v_min_u32 {v(vT43)}, {42*128}, v39')
for i in range(4): a(f'v_mov_b32 v{244+i}, -1')
a('v_and_b32 v42, 15, v1')
a(f'v_lshlrev_b32 {v(vYS)}, 16, v32'); a(f'v_lshl_add_u32 {v(vYS)}, v42, 4, {v(vYS)}')
a('s_waitcnt lgkmcnt(0)')
a(f's_mov_b64 s[{W1}:{W1+1}], s[90:91]')
a(f's_mov_b64 s[{Q}:{Q+1}], s[76:77]')
a(f's_mov_b64 s[{K}:{K+1}], s[78:79]')
a(f's_mov_b64 s[{V}:{V+1}], s[80:81]')
a(f's_mov_b64 s[{SH}:{SH+1}], s[82:83]')
a(f's_mov_b64 s[{HK}:{HK+1}], s[84:85]')
a(f's_mov_b64 s[40:41], s[86:87]')
a(f's_mov_b64 s[{W2}:{W2+1}], s[92:93]')
a(f's_mov_b64 s[{OUT}:{OUT+1}], s[94:95]')
a(f's_add_u32 s{WS}, s98, {OPT["wsoff"] << 20}'); a(f's_addc_u32 s{WS+1}, s99, 0')
if OPT['rot'] == 1: a(f's_and_b32 {sROT}, {sM1}, 7')
elif OPT['rot'] == 2:
    a(f's_lshl_b32 {sROT}, {sT}, 2'); a(f's_add_u32 {sROT}, {sROT}, {sM1}')
else: a(f's_mov_b32 {sROT}, 0')
a(f's_lshl_b32 {sW2K}, {sW}, 11')

last = {}
def g1_dma_ops(c):
    slot = (c % 4) * SLOT
    def xop(n):
        def f(): last[c] = dma(vXA+n, Q, sA, f's_add_u32 m0, {sW4K}, {slot + n*1024}')
        return f
    def wop(j):
        def f():
            if j == 0:
                a(f's_add_u32 {sC}, {sROT}, {c}'); a(f's_and_b32 {sC}, {sC}, 7')
                a(f's_mul_i32 {sB}, {sC}, {64*2752}'); a(f's_add_u32 {sB}, {sB}, {sW1O}')
                a(f's_lshl_b32 {sA}, {sC}, 7'); a(f's_add_u32 {sA}, {sA}, {sXO}')
            dma(vWA+j, W1, sB, f's_add_u32 m0, {sW3K}, {slot + 16384 + j*1024}')
        return f
    ops = [wop(0), wop(1), wop(2), xop(0), xop(1), xop(2), xop(3)]
    lastop[c] = ops[-1]
    return ops
lastop = {}
def kv_ops():
    def f(rs, base, n):
        def g(): last['kv'] = dma(vKD+n, rs, sSTASH, f's_add_u32 m0, {sW2K}, {base + 1024 + n*1024}', NT)
        return g
    def extra():
        l1, l2 = a.label(), a.label()
        a(f's_cmp_lg_u32 {sW}, 0'); a(f's_cbranch_scc1 {l1}')
        dma(vHALO, K, '0', f's_mov_b32 m0, {KB}', NT, track=False)
        a.place(l1)
        a(f's_cmp_lg_u32 {sW}, 1'); a(f's_cbranch_scc1 {l2}')
        a(f's_lshl_b32 {sG}, {sDS}, 9')
        dma(vL16, SH, sG, f's_mov_b32 m0, {SB}', track=False)
        a.place(l2)
    return [f(K, KB, 0), f(K, KB, 1), extra, f(V, VB, 0), f(V, VB, 1)]
def h_dma_ops():
    def f(n):
        def g():
            a(f's_mov_b32 m0, {sHM0}')
            a(f'buffer_load_dwordx4 {v(vL16)}, {srd(HK)}, {sHSO} offen offset:{n*1024}{NT} lds')
        return g
    return [f(n) for n in range(4)]
def touch():
    l = [a.label() for _ in range(2)]
    a(f's_cmp_lg_u32 {sW}, 0'); a(f's_cbranch_scc1 {l[0]}')
    a(f's_mul_i32 s60, s2, {43*128}')
    a(f'buffer_load_dword v255, {v(vT43)}, {srd(W1)}, s60 offen', track=False); a(f's_branch {l[1]}')
    a.place(l[0])
    a(f's_cmp_lg_u32 {sW}, 1'); a(f's_cbranch_scc1 {l[1]}')
    a(f's_lshl_b32 s60, {sT}, 17'); a(f's_lshl_b32 s61, {sM1}, 13'); a('s_add_u32 s60, s60, s61')
    a(f'buffer_load_dword v255, v39, {srd(Q)}, s60 offen{NTX}', track=False)
    a.place(l[1])
def touch2():
    l = a.label()
    a(f's_cmp_lg_u32 {sW}, 2'); a(f's_cbranch_scc1 {l}')
    a(f's_mul_i32 {sG}, s2, {43*128}')
    a(f'buffer_load_dword {v(vT43)}, {v(vT43)}, {srd(W2)}, {sG} offen', track=False)
    a.place(l)
if OPT['touch']: a.do(touch)
ops0 = g1_dma_ops(0)
for f in ops0[:3]: a.do(f)
a(f's_load_dword {sE}, s[{WS}:{WS+1}], {WS_E}')
a(f's_lshl_b32 s60, {sCP}, 2')
a(f's_load_dword {sD}, s[40:41], s60')
a(f's_mul_i32 s60, {sKH}, {HCH}'); a(f's_mul_i32 s61, {sTH}, {HBD}'); a('s_add_u32 s61, s61, s60'); a(f's_add_u32 {sHM0}, s61, {HBASE+64}')
a(f's_lshl_b32 {sHSO}, {sCP}, 13'); a(f's_lshl_b32 s61, {sKH}, 12'); a(f's_add_u32 {sHSO}, {sHSO}, s61')
a(f's_lshl_b32 s60, {sW}, 19'); a(f's_lshl_b32 s61, {sCP}, 8'); a('s_add_u32 s60, s60, s61'); a(f's_add_u32 {sYS0}, s60, {WS_Y}')
a(f's_add_u32 {sYS1}, {sYS0}, 0x40000')
pops = [lambda jj=jj: a(f'buffer_store_dwordx4 v[244:247], {v(vYS)}, {srd(WS)}, {(sYS0, sYS1)[jj]} offen sc1') for jj in range(2)]
kvo = kv_ops() + pops
a.vq = ops0[3:]
for c in range(1, 4):
    if c == OPT['kvat']: a.vq += kvo
    a.vq += g1_dma_ops(c)
if OPT['kvat'] == 4: a.vq += kvo
a.gap = OPT['gap0']
stamp()
a(f's_getreg_b32 {sXCC}, hwreg(HW_REG_XCC_ID, 0, 3)')
a(f's_mov_b32 {sONES}, 0x3f803f80'); a(f's_mov_b32 {sMASK}, 0xffff0000')
a(f's_mov_b32 {sSELLO}, 0x05040100'); a(f's_mov_b32 {sSELHI}, 0x07060302')
a('v_and_b32 v40, 31, v1'); a('v_lshrrev_b32 v41, 5, v1'); a('v_and_b32 v42, 15, v1')
a('v_and_b32 v43, 1, v1'); a('v_and_b32 v44, 3, v1'); a('v_bfe_u32 v45, v1, 2, 2')
a('v_bfe_u32 v35, v1, 1, 3'); a('v_xor_b32 v35, v35, v41'); a('v_lshlrev_b32 v35, 4, v35')
a('v_lshl_add_u32 v46, v40, 7, v35')
a(f'v_add_u32 v35, {sW4K}, v46')
a('v_lshl_add_u32 v36, v41, 3, v45'); a('v_mul_u32_u24 v36, 192, v36')
a('v_and_b32 v47, 1, v32')
a('v_lshl_add_u32 v36, v47, 5, v36'); a('v_lshl_add_u32 v36, v44, 3, v36')
for i in range(4):
    a(f's_add_u32 s60, {sW}, {i}'); a('s_and_b32 s60, s60, 3'); a('s_lshl_b32 s61, s60, 5')
    a(f'v_xor_b32 {v(vXR+i)}, s61, v35')
    a('s_mul_i32 s61, s60, 3072')
    a(f'v_add_u32 {v(vWR+i)}, s61, v36')
    a(f'v_add_u32 {v(vXR+4+i)}, {2*SLOT}, {v(vXR+i)}'); a(f'v_add_u32 {v(vWR+4+i)}, {2*SLOT}, {v(vWR+i)}')
a(f's_lshl_b32 s60, {st}, 16'); a(f's_lshl_b32 s61, {sDS}, 13'); a('s_add_u32 s60, s60, s61'); a(f's_add_u32 {sYL}, s60, {WS_Y}')
a(f's_lshl_b32 s60, {sW}, 1'); a('v_add_u32 v35, s60, v41')
a('v_add_u32 v36, 1, v42'); a('v_and_b32 v36, 7, v36'); a('v_xor_b32 v36, v36, v35')
a('v_lshlrev_b32 v37, 9, v42'); a('v_lshl_add_u32 v37, v47, 3, v37'); a(f'v_add_u32 v37, {KB + 5*128}, v37')
a(f'v_lshl_add_u32 {v(vKA)}, v36, 4, v37')
a('v_add_u32 v36, 2, v42'); a('v_and_b32 v36, 7, v36'); a('v_xor_b32 v36, v36, v35')
a(f'v_lshl_add_u32 {v(vKB)}, v36, 4, v37')
a(f's_lshl_b32 s60, {sW}, 7'); a(f's_add_u32 s60, s60, {SB}')
a(f'v_lshlrev_b32 {v(vSHR)}, 5, v32'); a(f'v_add_u32 {v(vSHR)}, s60, {v(vSHR)}')
a(f'v_lshlrev_b32 {v(vUS)}, 14, v32'); a(f'v_lshl_add_u32 {v(vUS)}, v42, 4, {v(vUS)}')
a(f's_lshl_b32 s60, {sDS}, 18'); a(f's_lshl_b32 s61, {st}, 8'); a('s_add_u32 s60, s60, s61')
a(f's_lshl_b32 s61, {sW}, 16'); a('s_add_u32 s60, s60, s61'); a(f's_add_u32 {sUS0}, s60, {WS_U}'); a(f's_add_u32 {sUS1}, {sUS0}, 8192')
a(f's_lshl_b32 s60, {sCP}, 7'); a(f's_lshl_b32 s61, {sW}, 3'); a('s_add_u32 s60, s60, s61'); a(f's_add_u32 s60, s60, {WS_FLAG}')
a(f'v_mov_b32 {v(vFL)}, s60')
a(f's_lshl_b32 s60, {sDS}, 12'); a(f's_and_b32 s61, {st}, 24'); a('s_add_u32 s60, s60, s61'); a(f's_add_u32 s60, s60, {WS_FLAG}')
a('v_lshlrev_b32 v35, 7, v40'); a(f'v_add_u32 {v(vP13)}, s60, v35')
a('v_lshlrev_b32 v35, 12, v34'); a('v_bfe_u32 v36, v1, 3, 1'); a('v_lshl_add_u32 v37, v36, 7, v35')
a(f's_lshl_b32 s60, {sT}, 8'); a(f's_add_u32 s60, s60, {WS_FLAG}')
a(f's_lshl_b32 s61, {sKH}, 7'); a('s_add_u32 s61, s61, s60')
a(f'v_add_u32 {v(vPX)}, s61, v35')
a(f's_and_b32 s61, {st}, 1'); a('s_lshl_b32 s61, s61, 1'); a(f's_add_u32 s61, s61, {sTH}')
a(f's_lshl_b32 {sO0}, s61, 8')
a('s_lshl_b32 s61, s61, 3'); a('s_add_u32 s61, s61, s60')
a(f'v_add_u32 {v(vP2)}, s61, v37')
a(f's_add_u32 {sO0}, {sO0}, {STATS}')
a('v_lshlrev_b32 v35, 3, v40')
a(f'v_add_u32 {v(vSTS)}, {sO0}, v35')
a(f's_lshl_b32 s60, {sW}, 8'); a(f's_add_u32 s60, s60, {STATS}')
a(f'v_add_u32 {v(vSTW)}, s60, v35')
a(f's_mul_i32 s60, {sKH}, {CVCH}'); a(f's_add_u32 s60, s60, {CV}')
a(f's_lshl_b32 {sUL}, {sCP}, 13'); a(f's_add_u32 {sUL}, {sUL}, {WS_U}'); a(f's_lshl_b32 s61, {sKH}, 12')
a(f's_add_u32 {sYL}, {sYL}, s61')
a(f's_lshl_b32 s61, {sTH}, 8')
a(f'v_mul_u32_u24 {v(vUA)}, {U1OFF}, v43')
a('v_lshrrev_b32 v35, 1, v42'); a('v_lshl_add_u32 v35, v35, 2, v32')
a(f'v_lshl_add_u32 {v(vUA)}, v35, 4, {v(vUA)}')
a(f's_sub_u32 {sO1}, s60, s61'); a(f's_add_u32 {sO1}, {sO1}, {448-192}')
a(f'v_add_u32 {v(vUA)}, {sO1}, {v(vUA)}')
a('v_xor_b32 v35, 1, v43')
a(f'v_mul_u32_u24 {v(vHA)}, {HBD}, v35'); a(f'v_lshl_add_u32 {v(vHA)}, v42, 2, {v(vHA)}')
a('v_lshlrev_b32 v35, 4, v32'); a(f'v_sub_u32 {v(vHA)}, {v(vHA)}, v35')
a(f's_mul_i32 s60, {sKH}, {HCH}')
a('s_add_u32 s61, s60, s61'); a(f's_add_u32 s61, s61, {HBASE+64-12}')
a(f'v_add_u32 {v(vHA)}, s61, {v(vHA)}')
a(f'v_lshlrev_b32 {v(vUL)}, 5, v0'); a(f'v_subrev_u32 {v(vULp)}, 4, {v(vUL)}')
a(f'v_lshlrev_b32 {v(vW2W)}, 4, v0'); a(f'v_add_u32 {v(vUW)}, {CV+448}, {v(vW2W)}')
a('v_lshlrev_b32 v35, 2, v47'); a('v_xor_b32 v35, v35, v34')
a(f'v_lshl_add_u32 {v(vW2A)}, v35, 4, v33')
a(f's_mul_i32 {sW2O}, {sKH}, {43*16*1024}'); a(f's_lshl_b32 s61, {sTH}, 13'); a(f's_add_u32 {sW2O}, {sW2O}, s61')
a(f's_lshl_b32 s61, {sDS}, 7'); a(f's_add_u32 {sW2O}, {sW2O}, s61')
a(f's_lshl_b32 {sO0}, {st}, 16'); a(f's_add_u32 {sO0}, {sO0}, s61')
a(f'v_add_u32 {v(vCSR)}, {CSUM}, {v(vL16)}'); a(f's_lshl_b32 s60, {sW}, 2'); a(f'v_add_u32 {v(vCSW)}, s60, {v(vCSR)}')
a(f's_lshl_b32 s60, {sT}, 2'); a(f's_add_u32 s60, s60, {sW}'); a('s_mul_i32 s60, s60, 86')
a(f's_lshl_b32 s61, {sP0}, 1'); a('s_add_u32 s60, s60, s61'); a('s_lshl_b32 s60, s60, 10')
a(f's_add_u32 {sHS}, s60, {WS_H}'); a(f's_add_u32 {sHS3}, {sHS}, 4096')
a.do([f's_cmp_lt_u32 {sM1}, 11', f's_cselect_b32 {sHS3}, {sHS3}, {OOB}'])
a(f's_lshl_b32 s60, {st}, 1'); a(f's_add_u32 s60, s60, {sTH}'); a('s_mul_i32 s60, s60, 86')
a(f's_mul_i32 s61, {sKH}, 43'); a('s_add_u32 s60, s60, s61'); a('s_lshl_b32 s60, s60, 10')
a(f's_add_u32 {sHL}, s60, {WS_H}')
a('v_lshlrev_b32 v35, 4, v45'); a('v_lshl_add_u32 v35, v32, 7, v35')
a('v_xor_b32 v36, 3, v44'); a('v_lshl_add_u32 v35, v36, 2, v35')
a(f's_add_u32 s60, {sM0W}, {CV+U1OFF+448}'); a(f'v_add_u32 {v(vDU)}, s60, v35')
a(f's_lshl_b32 s60, {sW}, 13'); a(f's_add_u32 s60, s60, {CV}'); a(f'v_add_u32 {v(vXW)}, s60, {v(vL16)}')
a(f's_add_u32 s60, {sW2K}, {CV}'); a(f'v_add_u32 {v(vXRd)}, s60, {v(vL16)}')
a('v_lshl_add_u32 v35, v41, 2, v45'); a('v_lshlrev_b32 v35, 7, v35')
a('v_bfe_u32 v36, v1, 3, 1'); a('v_lshl_add_u32 v35, v36, 6, v35')
a('v_lshl_add_u32 v35, v47, 5, v35'); a('v_lshl_add_u32 v35, v43, 4, v35')
a('v_bfe_u32 v36, v1, 1, 1'); a('v_lshl_add_u32 v35, v36, 3, v35')
a(f's_lshl_b32 s60, {sKH}, 6'); a('v_xor_b32 v35, s60, v35')
a(f's_lshl_b32 s61, {sKH}, 11')
a(f'v_add_u32 {v(AR)}, s61, v35'); a(f'v_xor_b32 {v(AR+1)}, 64, {v(AR)}')
a(f'v_add_u32 {v(AR+2)}, 61440, {v(AR)}'); a(f'v_add_u32 {v(AR+3)}, 61440, {v(AR+1)}')
a(f'v_lshlrev_b32 {v(vYL)}, 10, v41'); a('v_bfe_u32 v36, v1, 1, 4'); a(f'v_lshl_add_u32 {v(vYL)}, v36, 4, {v(vYL)}')
a(f'v_lshl_add_u32 {v(vYL)}, v43, 2, {v(vYL)}')
a(f's_lshl_b32 s61, {sTH}, 3'); a(f's_add_u32 {sYL}, {sYL}, s61')
a('v_xor_b32 v35, s60, v46')
a(f's_lshl_b32 s61, {sTH}, 12'); a(f's_add_u32 s61, s61, {XST}')
a(f'v_add_u32 {v(vSTa)}, s61, v35'); a(f'v_xor_b32 {v(vSTb)}, 32, {v(vSTa)}')
a(f's_add_u32 s61, {sW4K}, {EX}'); a(f'v_add_u32 {v(vE2W)}, s61, {v(vL16)}'); a(f'v_xor_b32 {v(vE2R)}, 8192, {v(vE2W)}')
a(f's_add_u32 s61, {sW2K}, {OT}')
a('v_bfe_u32 v35, v1, 1, 2'); a('v_xor_b32 v35, v35, v41'); a('v_lshlrev_b32 v35, 4, v35')
a('v_lshl_add_u32 v35, v40, 6, v35'); a(f'v_add_u32 {v(vOTa)}, s61, v35'); a(f'v_xor_b32 {v(vOTb)}, 32, {v(vOTa)}')
a('v_lshrrev_b32 v36, 2, v1'); a('v_bfe_u32 v35, v1, 3, 2'); a('v_xor_b32 v35, v35, v44')
a('v_lshlrev_b32 v35, 4, v35'); a('v_lshl_add_u32 v35, v36, 6, v35'); a(f'v_add_u32 {v(vOTR)}, s61, v35')
a('v_lshlrev_b32 v36, 10, v36'); a(f'v_lshl_add_u32 {v(vOUT)}, v44, 4, v36')
a(f's_lshl_b32 s61, {sTH}, 15'); a(f's_add_u32 {sO0}, {sO0}, s61'); a(f's_add_u32 {sO0}, {sO0}, s60')
a(f's_add_u32 {sO1}, {sO0}, 16384')
a(f's_mul_i32 s60, {sKH}, {CVCH}'); a(f's_mul_i32 s61, {sTH}, {U1OFF}'); a('s_add_u32 s60, s60, s61'); a(f's_add_u32 s60, s60, {CV}')
a('v_min_u32 v35, 27, v1'); a('v_lshlrev_b32 v35, 4, v35'); a(f'v_add_u32 {v(AR+4)}, s60, v35')
a(f's_sub_u32 s60, {sHM0}, 64'); a('v_lshlrev_b32 v35, 2, v42'); a(f'v_add_u32 {v(AR+5)}, s60, v35')
ACC, XF, WF, SU, SQ, CS = 32, 80, 112, 160, 162, 164
for r in range(SU, CS+3): a(f'v_mov_b32 {v(r)}, 0')
a('s_waitcnt lgkmcnt(0)')
a(f's_add_u32 {sTAG}, {sE}, 1')
a(f's_not_b32 {sBASE}, {sTAG}')
a(f's_lshl_b32 {sBASE}, {sBASE}, 5')
a(f's_add_u32 {sFLG}, {sBASE}, {sXCC}')
a(f'v_mov_b32 v253, {sTAG}')
a(f's_lshl_b32 {sD0}, {sD}, 16'); a(f's_and_b32 {sD1}, {sD}, {sMASK}')
flag_store(0)
stamp()

def stash_ops():
    def f(n):
        def g(): last['st'] = dma(vXA+n, Q, sSTASH, f's_add_u32 m0, {sW2K}, {XST + n*1024}')
        return g
    return [f(0), f(1)]
w2_seq = {}
def w2op(s):
    def f():
        a(f's_add_u32 {sB}, {sW2O}, {s*16384}')
        if s < 28: w2_seq[s] = dma(vW2A, W2, sB, f's_add_u32 m0, {sM0W}, {w2slot(s)}')
        else: a(f'buffer_load_dwordx4 {a_(172+4*(s-28),4)}, {v(vW2A)}, {srd(W2)}, {sB} offen')
    return f
hops = {}
def hop(s):
    def f():
        if s % 4 == 0: a(f's_add_u32 {sHLC}, {sHL}, {s*1024}')
        a(f'buffer_load_dwordx4 {a_(4*s,4)}, {v(vL16)}, {srd(WS)}, {sHLC} offen offset:{(s%4)*1024}{HLF}')
    hops[s] = f
    return f

KR, VR, SR, KL, VL, WL, PA = 168, 182, 190, 198, 205, 209, 240
p1_reads = [f'ds_read_b64 {v(KR+2*r,2)}, {v(vKA if r < 3 else vKB)} offset:{128*r}' for r in range(7)]
p1_reads += [f'ds_read_b128 {v(SR+4*p,4)}, {v(vSHR)} offset:{16*p}' for p in range(2)]
p1_reads += [f'ds_read_b64 {v(VR+2*r,2)}, {v(vKB)} offset:{VB-KB+128*(r+3)}' for r in range(4)]
p1 = []
ust = {}
for p in range(2):
    for j in range(4): p1 += [lo(WL+j, SR+4*p+j), hi(SR+4*p+j, SR+4*p+j)]
    for r in range(7): p1 += [lo(KL+r, KR+2*r+p), hi(KR+2*r+p, KR+2*r+p)]
    for r in range(4): p1 += [lo(VL+r, VR+2*r+p), hi(VR+2*r+p, VR+2*r+p)]
    for e in range(2):
        kk = (lambda r: KL+r) if e == 0 else (lambda r: KR+2*r+p)
        vv = (lambda r: VL+r) if e == 0 else (lambda r: VR+2*r+p)
        w = [WL+2*e, SR+4*p+2*e, WL+2*e+1, SR+4*p+2*e+1]
        for i in range(4): p1.append(f'v_mul_f32 {v(PA+4*e+i)}, {v(kk(i))}, {v(w[3])}')
        for j in (2, 1, 0):
            for i in range(4): p1.append(f'v_fmac_f32 {v(PA+4*e+i)}, {v(kk(i+3-j))}, {v(w[j])}')
        for i in range(4): p1.append(f'v_mul_f32 {v(PA+4*e+i)}, {v(PA+4*e+i)}, {v(vv(i))}')
    for i in range(4): p1.append(f'v_cvt_pk_bf16_f32 {v(PA+i)}, {v(PA+i)}, {v(PA+4+i)}')
    def ustore(p=p):
        ust[p] = a(f'buffer_store_dwordx4 {v(PA,4)}, {v(vUS)}, {srd(WS)}, {(sUS0, sUS1)[p]} offen sc1'); ust['t'] = a.t
    p1.append(ustore)

AX, BX, vM, vRS, vS, vC3 = 168, 180, 184, 185, 186, 188
stats = [
    f'v_add_f32 {v(SU)}, {v(SU)}, {v(SU+1)}', f'v_add_f32 {v(SQ)}, {v(SQ)}, {v(SQ+1)}',
    f'v_mov_b32 {v(SU+1)}, {v(SU)}', f'v_mov_b32 {v(SQ+1)}, {v(SQ)}',
    f'v_permlane32_swap_b32 {v(SU)}, {v(SU+1)}', f'v_permlane32_swap_b32 {v(SQ)}, {v(SQ+1)}',
    f'v_add_f32 {v(SU)}, {v(SU)}, {v(SU+1)}', f'v_add_f32 {v(SQ)}, {v(SQ)}, {v(SQ+1)}',
    f'v_mul_f32 {v(SU)}, 0x3b000000, {v(SU)}', f'v_mul_f32 {v(SQ)}, 0x3b000000, {v(SQ)}',
    f'v_fma_f32 {v(SQ)}, -{v(SU)}, {v(SU)}, {v(SQ)}', f'v_max_f32 {v(SQ)}, 0, {v(SQ)}',
    f'v_cvt_pk_bf16_f32 v190, {v(SU)}, {v(SQ)}', 'v_xor_b32 v191, 0x8000, v190',
    f'v_perm_b32 {v(BX)}, v191, v191, {sSELLO}', f'v_mov_b32 {v(BX+1)}, {v(BX)}', f'v_mov_b32 {v(BX+2)}, {v(BX)}', f'v_mov_b32 {v(BX+3)}, {v(BX)}',
    lo(vM, 190), hi(191, 190), 'v_add_f32 v191, 0x3727c5ac, v191',
    'v_cvt_pk_bf16_f32 v191, v191, v191', lo(191, 191), 'v_sqrt_f32 v191, v191',
    'v_cvt_pk_bf16_f32 v191, v191, v191', lo(vS, 191), f'v_rcp_f32 {v(vRS)}, {v(vS)}',
    f'v_mul_f32 {v(vC3)}, 0xbfb8aa3b, {v(vRS)}', f'ds_write_b64 {v(vSTW)}, {v(vM,2)}']
def rdx(c):
    st_ = 4 * ((c % 4) >> 1); off = (c & 1) * SLOT
    return [f'ds_read_b128 {v(XF+16*(c&1)+4*i,4)}, {v(vXR+st_+i)} offset:{off}' for i in range(4)]
def rdw(c, i):
    st_ = 4 * ((c % 4) >> 1); off = (c & 1) * SLOT
    return [f'ds_read_b64_tr_b16 {v(WF+12*i+4*ft+2*rd,2)}, {v(vWR+st_+i)} offset:{off+16384+rd*768+ft*64}' for ft in range(3) for rd in range(2)]
def need_chunk(c):
    if lastop[c] in a.vq: a.drain_v(lastop[c])
    a.wait_vm(last[c])
a.gap = OPT['gap']
need_chunk(0)
a('s_barrier')
stamp(1)
for x in rdx(0) + rdw(0, 0) + rdw(0, 1): a(x)
flag1 = False
for c in range(8):
    X = XF + 16*(c & 1)
    late = rdw(c, 2) + rdw(c, 3)
    if c == OPT['p1c']:
        for x in p1_reads: a(x)
        a.fq = list(p1); a.slack = OPT['p1slack']
    for i in range(4):
        for d in range(4):
            a(f'v_dot2c_f32_bf16 {v(SU+(d&1))}, {sONES}, {v(X+4*i+d)}'); a(f'v_dot2c_f32_bf16 {v(SQ+(d&1))}, {v(X+4*i+d)}, {v(X+4*i+d)}')
    for d in range(4):
        for ft in range(3): a(f'v_dot2c_f32_bf16 {v(CS+ft)}, {sONES}, {v(WF+4*ft+d)}')
    if 1 in ust and not flag1 and a.t - ust['t'] > OPT['f1d']:
        a.wait_vm(ust[1]); flag_store(1); flag1 = True
        print('flag1 in chunk', c, file=sys.stderr)
    if c == 7:
        assert ('v', 246) in a.pend
        a.lock()
        a(f'v_subrev_u32 v255, {sFLG}, v246')
        a('v_and_b32 v255, 0xffffffe7, v255')
        a('v_cmp_eq_u32 vcc, 0, v255')
        a(f'v_cmp_eq_u32 {sPAIR}, {sTAG}, v247')
        a(f's_and_b64 vcc, vcc, {sPAIR}')
        a('s_cmp_eq_u64 vcc, exec')
        a(f's_cselect_b32 {sFAST}, {OPT["fast"]}, 0')
        a.unlock()
    if c == 7:
        assert not a.fq and flag1
        for ft in range(3): a.fq += [hi(192+ft, CS+ft), f'v_sub_f32 v{195+ft}, {v(CS+ft)}, v{192+ft}']
        for ft in range(3): a.fq += [f'v_cvt_pk_bf16_f32 v{192+ft}, v{192+ft}, v{195+ft}', f'ds_write_b32 {v(vCSW)}, v{192+ft} offset:{1024*ft}']
        a.fq += stats
        a.slack = 0
    def mm(i, ft):
        cin = '0' if (c == 0 and i == 0) else v(ACC+16*ft, 16)
        return f'v_mfma_f32_32x32x16_bf16 {v(ACC+16*ft,16)}, {v(WF+12*i+4*ft,4)}, {v(X+4*i,4)}, {cin}'
    for i in range(3):
        for ft in range(3):
            a(mm(i, ft))
            for x in late[:3]: a(x)
            late = late[3:]
    if c == 7: assert len(a.fq) <= len(stats), len(a.fq)
    a.lock()
    a.wait_all_lg()
    if c < 7: need_chunk(c + 1)
    if c + 1 == OPT['p1c']:
        if pops[1] in a.vq: a.drain_v(pops[1])
        a.wait_vm(last['kv'])
    a('s_barrier')
    a.unlock()
    stamp(1)
    if c < 4: a.vq += g1_dma_ops(c + 4)
    if c + 4 == OPT['hat']: a.vq += [touch2] + h_dma_ops()
    if c == 3: a.vq += stash_ops()
    if c == 5:
        a.drain_f()
        a.slack = 0
        a.fq = [f'v_mov_b32 v{192+i}, 0' for i in range(4)] + [f'ds_write_b128 {v(AR+4)}, v[192:195]', f'ds_write_b32 {v(AR+5)}, v192']
        a.vq = [lambda: poll_issue(vPX, 246)] + a.vq
    if c == 7: a.vq = [lambda: poll_issue(vP13, 244)] + a.vq
    if c >= 4: a.vq += [w2op(s) for s in range(7*(c-4), 7*(c-3))]
    nxt = rdx(c+1) + rdw(c+1, 0) + rdw(c+1, 1) if c < 7 else [f'ds_read_b128 {v(AX+4*ft,4)}, {v(vCSR)} offset:{1024*ft}' for ft in range(3)]
    for ft in range(3):
        a(mm(3, ft))
        for x in nxt[:6]: a(x)
        nxt = nxt[6:]
a.drain_f()
for ft in range(3):
    a(f'v_mfma_f32_32x32x16_bf16 {v(ACC+16*ft,16)}, {v(AX+4*ft,4)}, {v(BX,4)}, {v(ACC+16*ft,16)}')
stamp(); stamp(1)
a.vq += [w2op(s) for s in range(28, 43)]

CA, DU, DR = 160, 192, 208
def FA(set_, mu): return (80 if set_ == 0 else 32) + 4*mu
def FB(set_, nu): return 112 + 4*nu if set_ == 0 else (64 + 4*nu if nu < 4 else 144 + 4*(nu-4))
def rdA(rp, mu): return f'ds_read_b128 {v(FA(rp&1,mu),4)}, {v(vUA)} offset:{512*mu - 64*rp + 192}'
def rdB(rp, nu): return [f'ds_read_b64 {v(FB(rp&1,nu)+2*h,2)}, {v(vHA)} offset:{512*nu + 64*rp + 8*h}' for h in range(2)]
def reads(rp):
    r = rdB(rp, 0) + [rdA(rp, mu) for mu in range(8)]
    for nu in range(1, 8): r += rdB(rp, nu)
    return r
TS, HO, PO = 144, 168, 192
hst = {}
def silu(flag):
    for fr in range(6):
        base = ACC + 8*fr; t = TS + 8*(fr & 1); o = HO + 4*(fr & 1)
        if fr == OPT['s1chk']:
            poll_check(vP13, 244, 1, 255)
            a.lock()
            a(f'buffer_load_dwordx4 {v(UR,4)}, {v(vUL)}, {srd(WS)}, {sUL} offen sc1')
            a(f'buffer_load_dwordx4 {v(UR+4,4)}, {v(vUL)}, {srd(WS)}, {sUL} offen offset:16 sc1')
            a(f'buffer_load_dword {v(UR+8)}, {v(vULp)}, {srd(WS)}, {sUL} offen sc1')
            a.unlock()
        if fr == 4:
            for c in range(2):
                sel = sSELLO if c == 0 else sSELHI
                for k in range(4):
                    hi0 = UR + 5 - 2*k if k < 3 else UR + 8
                    a(f'v_perm_b32 {v(PO+8*c+k)}, {v(hi0)}, {v(UR+6-2*k)}, {sel}')
                    a(f'v_perm_b32 {v(PO+8*c+4+k)}, {v(UR+6-2*k)}, {v(UR+7-2*k)}, {sel}')
        wr = [f'ds_write_b128 {v(vUW)}, {v(PO+8*c+4*k,4)} offset:{c*CVCH+k*U1OFF}' for c in range(2) for k in range(2)] if fr == 4 else []
        if fr == 5:
            a.lock(); a.wait_vm(last['st']); a.wait_all_lg(); a('s_barrier'); a.unlock()
            wr = reads(0)
        def side(n):
            for x in wr[:n]: a(x)
            del wr[:n]
        for p in range(4): a(f'v_pk_mul_f32 {v(t+2*p,2)}, {v(base+2*p,2)}, {v(vC3,2)} op_sel_hi:[1,0]')
        side(1 if fr == 4 else 6)
        for e in range(8): a(f'v_exp_f32 {v(t+e)}, {v(t+e)}')
        side(1 if fr == 4 else 6)
        for p in range(4): a(f'v_pk_fma_f32 {v(t+2*p,2)}, {v(t+2*p,2)}, {v(vS,2)}, {v(vS,2)} op_sel_hi:[1,0,0]')
        for e in range(8): a(f'v_rcp_f32 {v(t+e)}, {v(t+e)}')
        side(1 if fr == 4 else 6)
        for p in range(4): a(f'v_pk_mul_f32 {v(t+2*p,2)}, {v(t+2*p,2)}, {v(base+2*p,2)}')
        for p in range(4): a(f'v_cvt_pk_bf16_f32 {v(o+p)}, {v(t+2*p)}, {v(t+2*p+1)}')
        so, im = (sHS, fr*1024) if fr < 4 else (sHS3, (fr-4)*1024)
        hst[0] = a(f'buffer_store_dwordx4 {v(o,4)}, {v(vL16)}, {srd(WS)}, {so} offen offset:{im}{flag}')
        side(6)
a.do([f's_cmp_eq_u32 {sFAST}, 0', 's_cbranch_scc1 L_silu_slow'])
snap = {k: copy.copy(getattr(a, k)) for k in ('hist', 'vm_n', 'vm_done', 'lg_n', 'lg_done', 'pend', 't', 'mf_free', 'vq', 'fq', 'next_vm')}
main_lines = a.lines; a.lines = []
silu(' sc1'); slow_lines = a.lines
for k, x in snap.items(): setattr(a, k, x)
a.lines = main_lines
silu(' nt' if OPT['hnt'] else '')
a.place('L_silu_join')
stamp()

AF, G2A, XR, XS, YR, XU, DM, YU = 80, 104, 32, 64, 136, 144, 160, 176
def rdA2(s):
    ad = w2slot(s); k = ad // 61440; o = ad - 61440*k
    return [f'ds_read_b64_tr_b16 {v(AF+8*(s%3)+4*dt+2*rd,2)}, {v(AR+2*k+dt)} offset:{o + rd*1024}' for dt in range(2) for rd in range(2)]
cnt = 0
for rp in range(4):
    rd = reads(rp + 1) if rp < 3 else []
    if rp == 0:
        rd += [f'ds_read_b32 {v(DR+4*c+2*jj+h)}, {v(vDU)} offset:{c*CVCH + 512*jj + 64*h}' for c in range(2) for jj in range(2) for h in range(2)]
    if rp == 1:
        for c in range(2):
            for jj in range(2):
                for h in range(2):
                    src = DR+4*c+2*jj+h; d = DU+8*jj+4*c+2*h
                    a.fq += [hi(d, src), lo(d+1, src), f'v_mul_f32 {v(d)}, {(sD0, sD1)[c]}, {v(d)}', f'v_mul_f32 {v(d+1)}, {(sD0, sD1)[c]}, {v(d+1)}']
    if rp == 3:
        a.lock(); a.wait_vm(w2_seq[27]); a.wait_all_lg(); a('s_barrier'); a.unlock()
        rd = rdA2(0) + rdA2(1)
    for nu in range(8):
        for mu in range(8 - nu):
            j = nu + mu
            if cnt == OPT['sig2']: a.wait_vm(hst[0]); flag_store(2, True)
            if cnt == OPT['s2poll']: a.vq = [lambda: poll_issue(vP2, 244)] + a.vq
            if cnt == OPT['s2chk']:
                stamp(); poll_check(vP2, 244, 2, 255); stamp()
                a.vq += [hop(s) for s in range(43)]
            cin = '0' if (rp == 0 and nu == 0) else v(CA+4*j, 4)
            a(f'v_mfma_f32_16x16x32_bf16 {v(CA+4*j,4)}, {v(FA(rp&1,mu),4)}, {v(FB(rp&1,nu),4)}, {cin}')
            cnt += 1
            if rd: a(rd.pop(0))
            if rp == 3 and mu == 0 and nu >= 2: a(f'ds_write_b128 {v(vXW)}, {v(CA+4*(nu-2),4)} offset:{1024*(nu-2)}')
    assert not rd
a.drain_f()
stamp()

def wb():
    skip, j = a.label(), a.label()
    a(f's_or_b32 {sF}, {sM1}, {sW}'); a(f's_cmp_lg_u32 {sF}, 0'); a(f's_cbranch_scc1 {skip}')
    a('buffer_wbl2 sc1', track=False)
    a(f's_branch {j}'); a.place(skip)
    a(f'buffer_load_dword {v(vP2)}, {v(vFL)}, {srd(WS)}, 0 offen'); a.place(j)
def yloads(track=True):
    for grp in range(2):
        for e in range(4): a(f'buffer_load_dword {v(YR+4*grp+e)}, {v(vYL)}, {srd(WS)}, {sYL} offen offset:{(8*grp+e)*256} sc1', track=track)
ysum = []
for jj in range(2):
    for hf in range(2):
        for c in range(2):
            for r in range(4): ysum.append(f'v_add_f32 {v(DU+8*jj+4*c+r)}, {v(DU+8*jj+4*c+r)}, {v(XR+16*jj+8*c+4*hf+r)}')
    for r in range(4): ysum.append(f'v_cvt_pk_bf16_f32 {v(DR+4*jj+r)}, {v(DU+8*jj+r)}, {v(DU+8*jj+4+r)}')
    for r in range(4): ysum.append(f'v_min_u32 {v(DR+4*jj+r)}, -2, {v(DR+4*jj+r)}')
    ysum.append(f'buffer_store_dwordx4 {v(DR+4*jj,4)}, {v(vYS)}, {srd(WS)}, {(sYS0, sYS1)[jj]} offen sc1')
pre = []
for k in range(8): pre += [lo(XU+2*k, XS+k), hi(XU+2*k+1, XS+k)]
for k in range(16): pre.append(f'v_sub_f32 {v(DM+k)}, {v(XU+k)}, v72')
for k in range(16): pre.append(f'v_mul_f32 {v(DM+k)}, {v(DM+k)}, v73')
post = []
for k in range(8): post += [lo(YU+2*k, YR+k), hi(YU+2*k+1, YR+k)]
for k in range(16): post.append(f'v_fmac_f32 {v(XU+k)}, {v(DM+k)}, {v(YU+k)}')
def bar():
    a.lock(); a.wait_all_lg(); a('s_barrier'); a.unlock()
tailw = []
for s in range(43):
    side = rdA2(s + 2) if s + 2 < 43 else []
    if s == 0: side += [f'ds_write_b128 {v(vXW)}, {v(CA+4*j,4)} offset:{1024*j}' for j in (6, 7)]
    if s == 2:
        bar()
        side += [f'ds_read_b128 {v(XR+16*jj+4*sw,4)}, {v(vXRd)} offset:{8192*sw + 1024*jj}' for jj in range(2) for sw in range(4)]
    if s == 4: a.fq += ysum
    if s == 9: bar(); tailw = list(range(28, 36))
    if s == 18: bar(); tailw = list(range(36, 43))
    if s == 30: bar()
    if tailw:
        k = tailw.pop(0); side.append(f'ds_write_b128 {v(vW2W)}, {a_(172+4*(k-28),4)} offset:{w2slot(k)}')
    if s == 19: side += [f'ds_read_b128 {v(XS,4)}, {v(vSTa)}', f'ds_read_b128 {v(XS+4,4)}, {v(vSTb)}', f'ds_read_b64 v[72:73], {v(vSTS)}']
    if s == 21: a.fq += pre
    if OPT['wb'] and s == 1: a.vq.append(wb)
    if s in (5, 13, 27, 40): stamp()
    if s == OPT['yload']:
        a.drain_v(); a.do(yloads)
    if s == OPT['ycheck']:
        a.drain_f()
        a.lock()
        top, done = a.label(), a.label()
        a(f's_mov_b32 {sSPIN}, 0')
        a.wait_vm(a.vm_n)
        a.place(top)
        a(f'v_max3_u32 v74, {v(YR)}, {v(YR+1)}, {v(YR+2)}'); a(f'v_max3_u32 v75, {v(YR+3)}, {v(YR+4)}, {v(YR+5)}')
        a(f'v_max3_u32 v74, v74, {v(YR+6)}, {v(YR+7)}'); a('v_max_u32 v74, v74, v75')
        a('v_cmp_eq_u32 vcc, -1, v74')
        a(f's_cbranch_vccz {done}')
        t0 = a.t
        a(f's_add_u32 {sSPIN}, {sSPIN}, 1'); a(f's_cmp_gt_u32 {sSPIN}, 0x20000'); a(f's_cbranch_scc1 {done}')
        a('s_sleep 1')
        yloads(False)
        a('s_waitcnt vmcnt(0)')
        a(f's_branch {top}')
        a.place(done)
        a.t = t0
        a.unlock()
        a.fq += post
    if hops[s] in a.vq: a.drain_v(hops[s])
    h = (len(side) + 1) // 2
    for dt in (1, 0):
        cin = '0' if s == 0 else v(G2A+16*dt, 16)
        a(f'v_mfma_f32_32x32x16_bf16 {v(G2A+16*dt,16)}, {v(AF+8*(s%3)+4*dt,4)}, {a_(4*s,4)}, {cin}')
        for x in side[:h]: a(x)
        side = side[h:]
a.drain_f()
stamp()
for k in range(4): a(f'ds_write_b128 {v(vE2W)}, {v(G2A+16+4*k,4)} offset:{1024*k}')
for k in range(8): a(f'v_pk_add_f32 {v(XU+2*k,2)}, {v(XU+2*k,2)}, {v(G2A+2*k,2)}')
bar()
for k in range(4): a(f'ds_read_b128 {v(32+4*k,4)}, {v(vE2R)} offset:{1024*k}')
for h in range(2):
    for k in range(4*h, 4*h+4): a(f'v_pk_add_f32 {v(XU+2*k,2)}, {v(XU+2*k,2)}, {v(32+2*k,2)}')
    for k in range(4*h, 4*h+4): a(f'v_cvt_pk_bf16_f32 {v(48+k)}, {v(XU+2*k)}, {v(XU+2*k+1)}')
    a(f'ds_write_b128 {v((vOTa, vOTb)[h])}, {v(48+4*h,4)}')
a.wait_all_lg()
a(f'ds_read_b128 v[56:59], {v(vOTR)}'); a(f'ds_read_b128 v[60:63], {v(vOTR)} offset:1024')
a(f'buffer_store_dwordx4 v[56:59], {v(vOUT)}, {srd(OUT)}, {sO0} offen{OSC}')
a(f'buffer_store_dwordx4 v[60:63], {v(vOUT)}, {srd(OUT)}, {sO1} offen{OSC}')
stamp()
print('estimated cycles', int(a.t), file=sys.stderr)
a.lock()
a(f's_or_b32 s60, {sCP}, {sW}')
a('s_cmp_lg_u32 s60, 0')
a('s_cbranch_scc1 L_noep')
a('v_lshlrev_b32 v128, 7, v1')
for k in range(4):
    a(f'v_add_u32 v{129+k}, {WS_FLAG + 8192*k}, v128')
    poll_issue(129+k, 136+2*k)
for k in range(4): poll_check(129+k, 136+2*k, 1, 128)
a(f'v_mov_b32 v128, {WS_E}')
a('s_mov_b64 exec, 1')
a(f'buffer_store_dword v253, v128, {srd(WS)}, 0 offen sc1')
a('s_mov_b64 exec, -1')
a.place('L_noep')
if OPT['stamps']:
    a('s_waitcnt vmcnt(0)')
    stamp()
    if OPT['probe'] > -2:
        a(f's_mov_b32 s60, {OPT["base"]}')
        if OPT['probe'] >= 0:
            a(f'v_accvgpr_read_b32 v129, a{240+OPT["probe"]}'); a('s_nop 1'); a('v_readfirstlane_b32 s61, v129'); a('s_add_u32 s60, s60, s61')
        a.place('L_probe')
        a('s_memtime s[96:97]'); a('s_waitcnt lgkmcnt(0)'); a('s_sub_u32 s96, s96, s3'); a('s_cmp_lt_u32 s96, s60'); a('s_cbranch_scc1 L_probe')
    a(f's_lshl_b32 s60, s2, 2'); a(f's_add_u32 s60, s60, {sW}'); a('s_lshl_b32 s60, s60, 6'); a(f's_add_u32 s60, s60, {WS_STAMP}')
    a('v_mov_b32 v128, s60')
    a('s_mov_b64 exec, 1')
    for k in range(4): a(f'buffer_store_dwordx4 {a_(240+4*k,4)}, v128, {srd(WS)}, 0 offen offset:{16*k}')
    if OPT['stamps'] == 2:
        a('s_load_dwordx2 s[84:85], s[0:1], 80'); a('s_mov_b32 s86, 256'); a('s_mov_b32 s87, 0x20000'); a('s_waitcnt lgkmcnt(0)')
        a('s_and_b32 s60, s2, 0x1f'); a(f's_or_b32 s60, s60, {sW}'); a('s_cmp_lg_u32 s60, 0'); a('s_cbranch_scc1 L_end')
        a('v_mov_b32 v128, 0')
        for k in range(nstamp[0]):
            a(f'v_accvgpr_read_b32 v129, a{240+k}')
            a(f'buffer_atomic_umax v129, v128, s[84:87], 0 offen offset:{4*k}')
a('s_endpgm')
a.place('L_silu_slow')
a.lines += slow_lines
a('s_branch L_silu_join')
a.place('L_end')
a('s_endpgm')

if OPT['skel']:
    drop = ('v_mfma', 'v_dot', 'v_pk_', 'v_exp', 'v_rcp', 'ds_read', 'v_fmac', 'v_mul_f32', 'v_cvt_pk', 'ds_write', 'v_perm_b32', 'v_add_f32', 'v_sub_f32')
    a.lines = [l if not l.strip().startswith(drop) else ('    s_nop 0' if OPT['skel'] == 2 else '') for l in a.lines]
hdr = open('parallel_sum__ssm_conv_h3__dense_activation_silu__prompt.s.ref').read().split('\n')
hdr = [l for l in hdr if l.startswith(';') and '@launch' not in l]
out = '\n'.join(hdr) + f'\n; @launch grid=(256,1,1) block=(256,1,1) lds={LDS_SIZE}\n'
out += f'''.amdgcn_target "amdgcn-amd-amdhsa--gfx950"
.text
.globl {NAME}
.p2align 8
.type {NAME},@function
{NAME}:
''' + a.text() + f'''.section .rodata,"a"
.p2align 6
.amdhsa_kernel {NAME}
  .amdhsa_next_free_vgpr 512
  .amdhsa_next_free_sgpr 102
  .amdhsa_accum_offset 256
  .amdhsa_group_segment_fixed_size 0
  .amdhsa_kernarg_size 96
  .amdhsa_user_sgpr_count 2
  .amdhsa_user_sgpr_kernarg_segment_ptr 1
  .amdhsa_system_sgpr_workgroup_id_x 1
.end_amdhsa_kernel
'''
open(sys.argv[1], 'w').write(out)
print('lines', len(a.lines), 'nop states', a.nops, 'stamps', nstamp[0], file=sys.stderr)
```

```python
import sys
from emit import Asm

NAME = "parallel_sum__ssm_conv_h3__dense_activation_silu__prompt_kernel"
OPT = dict(stamps=0, nt=0, rot=0, sg=0, p1slack=40, sig2=40, probe=-2, base=60000, touch=1, kvat=1, p1c=1, hat=1,
           s1chk=1, f1d=700, skel=0, osc=0, n6=3, n7=7, n8=4, nu=8, sig3=6, prio=3, who=1, pdelay=0, n4=4, psleep=4, hplain=0, look=10, s3k=3, pre=1, hhot=0, nowr=0, word=0, ulat=12, n9=4, wsleep=0, ubar=5, hgap=64, hburst=6, ybar=39, cap=7, t1at=-1, t2at=-1, upat=8, n5=2, ht=0, map=1, look0=3)
for x in sys.argv[2:]:
    k, v = x.split('='); OPT[k] = int(v)

WS_E, WS_FLAG, WS_STAMP, WS_U, WS_Y, WS_H, WS_SIZE = 0, 0x80000, 0x40000, 0x100000, 0x300000, 0x500000, 0x1000000
FPH = 0x20000
OOB = 0x7f000000
SLOT = 28672
CV = 114688; CVCH = 9216; U1OFF = 4640; HBASE = CV + 18432; HCH = 8448; HBD = 4228
KB, VB, SB = CV, CV + 8192, CV + 9216 + 8192
XST = 150016; STATS = 158208; CSUM = 159232
LDS_SIZE = 163840
NW2, NH = 24, 4
def w2slot(s): return (s if s < NW2 else s + 4 if s < 32 else s - 32) * 4096
def hslot(s): return (NW2 + s) * 4096
YT, EX, OT = 24*4096, 12*4096, 26*4096
Q, K, V, SH, HK, W1, W2, OUT, WS = 4, 8, 12, 16, 20, 24, 28, 32, 36
def srd(r): return f's[{r}:{r+3}]'
sD, sE, sT, sM1, st, sDS, sCP, sW, sWV, sTAG, sNTAG, sP0 = [f's{i}' for i in range(42, 54)]
sXO, sW1O, sHS, sHS3, sW2O, sHL = [f's{i}' for i in range(54, 60)]
sM0W, sW4K, sW3K, sSELLO, sSELHI, sONES = [f's{i}' for i in range(62, 68)]
sPAIR = 's[68:69]'
sSPIN, sTH, sKH, sMASK, sW2K, sI = [f's{i}' for i in range(70, 76)]
sHM0, sHSO, sD0, sD1, sA, sB, sG, sUS0, sUS1 = [f's{i}' for i in range(76, 85)]
sUL, sYS0, sYS1, sYL, sO0, sO1, sROT, sC = [f's{i}' for i in range(88, 96)]
sSTASH = 's101'
def v(n, c=1): return f'v{n}' if c == 1 else f'v[{n}:{n+c-1}]'
NT = ' nt' if OPT['nt'] else ''
OSC = ' sc1' if OPT['osc'] else ''
vL16, vSTAMP, vFL = 2, 31, 28

class Prog(Asm):
    def __init__(self, name):
        super().__init__(); self.name = name; self.bars = []; self.nstamp = 0
    def label(self):
        self.nlabel += 1; return f'{self.name}{self.nlabel}'
    def bar(self, tag, lg=True):
        self.lock()
        if lg: self.wait_all_lg()
        self('s_barrier'); self.bars.append(tag)
        self.unlock()
    def cbar(self, n):
        self.lock(); self.wait_all_lg()
        top = self.label()
        self('s_mov_b64 exec, 1')
        self('ds_add_u32 v4, v5', track=False)
        self.place(top)
        self('ds_read_b32 v9, v4', track=False)
        self('s_waitcnt lgkmcnt(0)')
        self(f'v_cmp_gt_u32 vcc, {4*n}, v9')
        self(f's_cbranch_vccnz {top}')
        self('s_mov_b64 exec, -1')
        self.t += 150
        self.unlock()
    def stamp(self, g=0):
        if not OPT['stamps'] or g != OPT['sg']: return
        k = self.nstamp; self.nstamp += 1
        self.lock(); self.wait_all_lg()
        self('s_memtime s[96:97]'); self('s_waitcnt lgkmcnt(0)')
        self('s_sub_u32 s96, s96, s3')
        self(f'v_writelane_b32 {v(vSTAMP)}, s96, {k}')
        self.unlock()
    def dma(self, vaddr, rs, soff, m0expr, extra='', track=True):
        self(m0expr)
        return self(f'buffer_load_dwordx4 {v(vaddr)}, {srd(rs)}, {soff} offen{extra} lds', track=track)
    def flag_store(self, phase):
        self.lock()
        self(f's_mov_b32 {sG}, {(phase-1)*FPH}')
        self('s_mov_b64 exec, 0xffff')
        self(f'buffer_store_dwordx2 v[252:253], {v(vFL)}, {srd(WS)}, {sG} offen sc1')
        self('s_mov_b64 exec, -1')
        self.unlock()
    def poll_issue(self, vaddr, dst):
        return self(f'buffer_load_dwordx2 {v(dst,2)}, {v(vaddr)}, {srd(WS)}, 0 offen sc1')
    def poll_check(self, vaddr, dst, sleep=2):
        self.lock()
        top, done = self.label(), self.label()
        self(f's_mov_b32 {sSPIN}, 0')
        self.wait_vm(self.pend[('v', dst)][1])
        self.place(top)
        self(f'v_cmp_eq_u32 vcc, {sTAG}, {v(dst)}')
        self(f'v_cmp_eq_u32 {sPAIR}, {sNTAG}, {v(dst+1)}')
        self(f's_and_b64 vcc, vcc, {sPAIR}')
        self('s_cmp_eq_u64 vcc, exec')
        self(f's_cbranch_scc1 {done}')
        t0 = self.t
        self(f's_add_u32 {sSPIN}, {sSPIN}, 1')
        self(f's_cmp_gt_u32 {sSPIN}, 0x20000')
        self(f's_cbranch_scc1 {done}')
        self(f's_sleep {sleep}')
        self(f'buffer_load_dwordx2 {v(dst,2)}, {v(vaddr)}, {srd(WS)}, 0 offen sc1', track=False)
        self('s_waitcnt vmcnt(0)')
        self(f's_branch {top}')
        self.place(done)
        self.t = t0
        self.unlock()
    def finish(self):
        a = self
        if OPT['stamps']:
            a('s_waitcnt vmcnt(0)')
            a.stamp(OPT['sg'])
            if OPT['probe'] > -2 and (a.name == 'C') == (OPT['who'] == 1):
                a(f's_mov_b32 s60, {OPT["base"]}')
                if OPT['probe'] >= 0 and (a.name == 'C') == (OPT['who'] == 1):
                    a(f'v_readlane_b32 s61, {v(vSTAMP)}, {OPT["probe"]}'); a('s_add_u32 s60, s60, s61')
                l = a.label(); a.place(l)
                a('s_memtime s[96:97]'); a('s_waitcnt lgkmcnt(0)'); a('s_sub_u32 s96, s96, s3'); a('s_cmp_lt_u32 s96, s60'); a(f's_cbranch_scc1 {l}')
            a('s_lshl_b32 s60, s2, 3'); a(f's_add_u32 s60, s60, {sWV}'); a('s_lshl_b32 s60, s60, 7'); a(f's_add_u32 s60, s60, {WS_STAMP}')
            a('v_lshlrev_b32 v128, 2, v1')
            a('s_mov_b64 exec, 0xffffffff')
            a(f'buffer_store_dword {v(vSTAMP)}, v128, {srd(WS)}, s60 offen')
        a('s_endpgm')

def lo(d, s): return f'v_lshlrev_b32 {v(d)}, 16, {v(s)}'
def hi(d, s): return f'v_and_b32 {v(d)}, {sMASK}, {v(s)}'

P = a = Prog('P')
a('s_cmp_ge_u32 s2, 256')
a('s_cbranch_scc1 L_end')
if OPT['stamps']:
    a('s_memtime s[68:69]'); a('s_waitcnt lgkmcnt(0)'); a('s_mov_b32 s3, s68'); a(f'v_mov_b32 {v(vSTAMP)}, 0')
a('s_load_dwordx16 s[76:91], s[0:1], 0')
a('s_load_dwordx8 s[92:99], s[0:1], 64')
a('v_and_b32 v1, 63, v0')
a('v_lshrrev_b32 v3, 6, v0')
a('s_lshr_b32 %s, s2, 3' % sI)
a(f'v_readfirstlane_b32 {sWV}, v3')
a('s_getpc_b64 s[60:61]')
a.place('L_pc')
a(f's_and_b32 s62, {sI}, 3')
a('s_lshl_b32 s62, s62, 13')
a(f's_lshl_b32 s63, {sWV}, 10')
a('s_add_u32 s62, s62, s63')
a('v_lshlrev_b32 v39, 7, v1')
a('v_add_u32 v3, s62, v39')
a('v_min_u32 v3, L_end-L_pc, v3')
a('s_mov_b64 exec, 0xff')
a('global_load_dword v255, v3, s[60:61]', track=False)
a('s_mov_b64 exec, -1')
a(f's_and_b32 {sW}, {sWV}, 3')
a('s_and_b32 s60, s2, 7')
lg = OPT['map']
a(f's_lshr_b32 {sT}, s60, {lg}'); a(f's_lshl_b32 {sT}, {sT}, {1+lg}')
a(f's_and_b32 s61, {sI}, {(2<<lg)-1}'); a(f's_add_u32 {sT}, {sT}, s61')
a(f's_and_b32 {sM1}, s60, {(1<<lg)-1}'); a(f's_lshl_b32 {sM1}, {sM1}, {4-lg}')
a(f's_lshr_b32 s61, {sI}, {1+lg}'); a(f's_add_u32 {sM1}, {sM1}, s61')
a(f's_and_b32 s61, {sM1}, 1')
a(f's_lshl_b32 {st}, {sT}, 1')
a(f's_add_u32 {st}, {st}, s61')
a(f's_lshr_b32 {sDS}, {sM1}, 1')
a(f's_lshl_b32 {sCP}, {sDS}, 5')
a(f's_add_u32 {sCP}, {sCP}, {st}')
a(f's_lshl_b32 {sW4K}, {sW}, 12'); a(f's_lshl_b32 {sM0W}, {sW}, 10'); a(f's_lshl_b32 {sW2K}, {sW}, 11')
a(f's_and_b32 {sTH}, {sW}, 1'); a(f's_lshr_b32 {sKH}, {sW}, 1')
a(f's_mul_i32 {sP0}, {sM1}, 3')
a(f's_lshl_b32 s60, {sM1}, 1')
a('s_add_u32 s60, s60, 11')
a(f's_min_u32 {sP0}, {sP0}, s60')
a(f'v_lshlrev_b32 {v(vL16)}, 4, v1')
a(f's_mov_b32 s{WS+2}, {WS_SIZE}'); a(f's_mov_b32 s{WS+3}, 0x20000')
a(f's_cmp_ge_u32 {sWV}, 4')
a('s_cbranch_scc1 L_compute')

L = a = Prog('L')
vXA, vWA, vKD, vHALO, vT43, vW2A, vW2W, vP2, vP3 = 4, 8, 12, 14, 15, 16, 17, 18, 19
vP1, vUL, vULp, vUW, vZU, vZH, vW2W2, UR, PO = 22, 23, 24, 25, 26, 27, 29, 192, 204
WT = 64
for r, n in ((W1, 1409024), (Q, 2097152), (K, 2097152), (V, 2097152), (SH, 4096), (HK, 2097152), (W2, 1409024)):
    a(f's_mov_b32 s{r+2}, {n}'); a(f's_mov_b32 s{r+3}, 0x20000')
a(f'v_min_u32 {v(vT43)}, {42*128}, v39')
a('v_lshrrev_b32 v32, 4, v1')
a('v_lshrrev_b32 v33, 3, v1')
a('v_and_b32 v34, 7, v1')
a('v_xor_b32 v35, v34, v32')
a('v_lshlrev_b32 v33, 10, v33')
a(f'v_lshl_add_u32 {v(vXA)}, v35, 4, v33')
a(f'v_xor_b32 {v(vXA+1)}, 64, {v(vXA)}')
a(f'v_add_u32 {v(vXA+1)}, 8192, {v(vXA+1)}')
a(f'v_add_u32 {v(vXA+2)}, 16384, {v(vXA)}')
a(f'v_add_u32 {v(vXA+3)}, 16384, {v(vXA+1)}')
a(f's_lshl_b32 {sXO}, {sT}, 17')
a(f's_lshl_b32 s60, {sW}, 15')
a(f's_add_u32 {sXO}, {sXO}, s60')
a(f's_mul_i32 {sW3K}, {sW}, 3072')
a(f's_cmp_lt_u32 {sM1}, 11')
a('s_cselect_b32 s61, 12, 8')
a(f'v_mov_b32 v3, {OOB}')
for j in range(3):
    if j: a(f'v_add_u32 v36, {64*j}, v1')
    src = 'v36' if j else 'v1'
    a(f'v_mul_u32_u24 v37, 5462, {src}')
    a('v_lshrrev_b32 v37, 16, v37')
    a('v_mul_u32_u24 v35, 12, v37')
    a(f'v_sub_u32 v35, {src}, v35')
    a('v_cmp_gt_u32 vcc, s61, v35')
    a('v_mul_u32_u24 v37, 2752, v37')
    a(f'v_lshl_add_u32 {v(vWA+j)}, v35, 4, v37')
    a(f'v_cndmask_b32 {v(vWA+j)}, v3, {v(vWA+j)}, vcc')
a(f's_mul_i32 {sW1O}, {sW}, {16*2752}')
a(f's_lshl_b32 s60, {sP0}, 6')
a(f's_add_u32 {sW1O}, {sW1O}, s60')
a('s_waitcnt lgkmcnt(0)')
a(f's_mov_b64 s[{W1}:{W1+1}], s[90:91]')
a(f's_mov_b64 s[{Q}:{Q+1}], s[76:77]')
a(f's_mov_b64 s[{K}:{K+1}], s[78:79]')
a(f's_mov_b64 s[{V}:{V+1}], s[80:81]')
a(f's_mov_b64 s[{SH}:{SH+1}], s[82:83]')
a(f's_mov_b64 s[{HK}:{HK+1}], s[84:85]')
a(f's_mov_b64 s[{W2}:{W2+1}], s[92:93]')
a(f's_mov_b64 s[{WS}:{WS+1}], s[98:99]')
a(f's_load_dword {sE}, s[{WS}:{WS+1}], {WS_E}')
if OPT['rot'] == 1: a(f's_and_b32 {sROT}, {sM1}, 7')
elif OPT['rot'] == 2:
    a(f's_lshl_b32 {sROT}, {sT}, 2'); a(f's_add_u32 {sROT}, {sROT}, {sM1}')
else: a(f's_mov_b32 {sROT}, 0')
seq = {}
ops = []
def op(name, gate, fn): ops.append((name, gate, fn))
def touch(which):
    if which == 0:
        l = [a.label() for _ in range(2)]
        a(f's_cmp_lg_u32 {sW}, 0'); a(f's_cbranch_scc1 {l[0]}')
        a(f's_mul_i32 s60, s2, {43*128}')
        a(f'buffer_load_dword v255, {v(vT43)}, {srd(W1)}, s60 offen', track=False); a(f's_branch {l[1]}')
        a.place(l[0])
        a(f's_cmp_lg_u32 {sW}, 1'); a(f's_cbranch_scc1 {l[1]}')
        a(f's_lshl_b32 s60, {sT}, 17'); a(f's_lshl_b32 s61, {sM1}, 13'); a('s_add_u32 s60, s60, s61')
        a(f'buffer_load_dword v255, v39, {srd(Q)}, s60 offen', track=False)
        a.place(l[1])
    else:
        l = a.label()
        a(f's_cmp_lg_u32 {sW}, 2'); a(f's_cbranch_scc1 {l}')
        a(f's_mul_i32 {sG}, s2, {43*128}')
        a(f'buffer_load_dword v255, {v(vT43)}, {srd(W2)}, {sG} offen', track=False)
        a.place(l)
def add_chunk(c):
    slot = (c % 4) * SLOT
    gate = f'c{c-3}' if c >= 4 else None
    def w(j):
        def f():
            if j == 0 and c == OPT['t1at']: touch(0)
            if j == 0 and c == OPT['t2at']: touch(1)
            if j == 0:
                a(f's_add_u32 {sC}, {sROT}, {c}'); a(f's_and_b32 {sC}, {sC}, 7')
                a(f's_mul_i32 {sB}, {sC}, {64*2752}'); a(f's_add_u32 {sB}, {sB}, {sW1O}')
                a(f's_lshl_b32 {sA}, {sC}, 7'); a(f's_add_u32 {sA}, {sA}, {sXO}')
            return a.dma(vWA+j, W1, sB, f's_add_u32 m0, {sW3K}, {slot + 16384 + j*1024}')
        return f
    for j in range(3): op(f'w{c}_{j}', gate, w(j))
    for n in range(4): op(f'x{c}_{n}', gate, lambda n=n: a.dma(vXA+n, Q, sA, f's_add_u32 m0, {sW4K}, {slot + n*1024}'))
def add_kv():
    def first():
        l1, l2 = a.label(), a.label()
        a(f's_cmp_lg_u32 {sW}, 0'); a(f's_cbranch_scc1 {l1}')
        a.dma(vHALO, K, '0', f's_mov_b32 m0, {KB}', NT, track=False)
        a.place(l1)
        a(f's_cmp_lg_u32 {sW}, 1'); a(f's_cbranch_scc1 {l2}')
        a(f's_lshl_b32 {sG}, {sDS}, 9')
        a.dma(vL16, SH, sG, f's_mov_b32 m0, {SB}', track=False)
        a.place(l2)
    for q, (rs, base) in enumerate(((K, KB), (V, VB))):
        for n in range(2):
            def f(q=q, rs=rs, base=base, n=n):
                if q == 0 and n == 0:
                    if OPT['t1at'] == -1: touch(0); touch(1)
                    first()
                return a.dma(vKD+n, rs, sSTASH, f's_add_u32 m0, {sW2K}, {base + 1024 + n*1024}', NT)
            op(f'kv{2*q+n}', None, f)
def add_h():
    for n in range(4):
        def f(n=n):
            a(f's_mov_b32 m0, {sHM0}')
            return a(f'buffer_load_dwordx4 {v(vL16)}, {srd(HK)}, {sHSO} offen offset:{n*1024}{NT} lds')
        op(f'h{n}', None, f)
def w2op(s):
    a(f's_add_u32 {sO0}, {sW2O}, {s*16384}')
    if s < NW2: return a.dma(vW2A, W2, sO0, f's_add_u32 m0, {sM0W}, {w2slot(s)}')
    return a(f'buffer_load_dwordx4 {v(WT+4*(s-NW2),4)}, {v(vW2A)}, {srd(W2)}, {sO0} offen')
def hop(s):
    a(f's_add_u32 {sO0}, {sHL}, {0 if OPT["hhot"] else s*1024}')
    seq[f'H{s}'] = a.dma(vL16, WS, sO0, f's_add_u32 m0, {sM0W}, {hslot(s)}', ' sc1')
for c in range(8):
    if c == OPT['kvat']: add_kv()
    if c == OPT['hat']: add_h()
    add_chunk(c)
if OPT['hat'] == 8: add_h()
for n in range(2): op(f'st{n}', None, lambda n=n: a.dma(vXA+n, Q, sSTASH, f's_add_u32 m0, {sW2K}, {XST + n*1024}'))
def upoll():
    a('s_mov_b64 exec, 0x1ff'); r = a.poll_issue(vP1, 20); a('s_mov_b64 exec, -1'); return r
def uload():
    a('s_mov_b64 exec, 0x1ff'); a.poll_check(vP1, 20, OPT['psleep']); a('s_mov_b64 exec, -1')
    a(f'buffer_load_dwordx4 {v(UR,4)}, {v(vUL)}, {srd(WS)}, {sUL} offen sc1')
    a(f'buffer_load_dwordx4 {v(UR+4,4)}, {v(vUL)}, {srd(WS)}, {sUL} offen offset:16 sc1')
    return a(f'buffer_load_dword {v(UR+8)}, {v(vULp)}, {srd(WS)}, {sUL} offen sc1')
worder = list(range(NW2, 43)) + list(range(NW2))
for n_, s_ in enumerate(worder):
    if n_ == OPT['upat']: op('up', None, upoll)
    if n_ == OPT['ulat']: op('ul', None, uload)
    op(f'W{s_}', ('c5' if s_ < 7 else 'c6' if s_ < 14 else 'c7' if s_ < 21 else 'c8') if s_ < NW2 else None, lambda s_=s_: w2op(s_))
def TAILW(lo_, hi_):
    for s_ in range(lo_, hi_):
        o = w2slot(s_)
        a(f'ds_write_b128 {v(vW2W if o < 61440 else vW2W2)}, {v(WT+4*(s_-NW2),4)} offset:{o if o < 61440 else o - CV}')
names = [o[0] for o in ops]
nxt = [0]
def issue_upto(idx):
    while nxt[0] <= min(idx, len(ops) - 1):
        name, gate, fn = ops[nxt[0]]
        if gate is not None and gate not in a.bars: return
        if name[0] == 'W' and OPT['cap'] and a.vm_n - OPT['cap'] + 1 > 0: a.wait_vm(a.vm_n - OPT['cap'] + 1)
        seq[name] = fn(); nxt[0] += 1
def kv_setup():
    a(f's_lshl_b32 s60, {st}, 16'); a(f's_lshl_b32 s61, {sW}, 14'); a('s_add_u32 s60, s60, s61')
    a(f's_lshl_b32 s61, {sDS}, 7'); a(f's_add_u32 {sSTASH}, s60, s61')
    a('v_lshrrev_b32 v35, 5, v1'); a('v_xor_b32 v35, v35, v34'); a('v_lshl_add_u32 v38, v35, 4, v33')
    a(f's_lshl_b32 s60, {sW}, 6'); a('s_and_b32 s60, s60, 64'); a('s_xor_b32 s61, s60, 32')
    a(f'v_xor_b32 {v(vKD)}, s61, v38')
    a('s_xor_b32 s61, s60, 64')
    a(f'v_xor_b32 {v(vKD+1)}, s61, v38'); a(f'v_add_u32 {v(vKD+1)}, 8192, {v(vKD+1)}')
    a(f'v_add_u32 v38, {sSTASH}, v38'); a(f'v_subrev_u32 {v(vHALO)}, 8192, v38')
    a(f's_mul_i32 s60, {sKH}, {HCH}'); a(f's_mul_i32 s61, {sTH}, {HBD}'); a('s_add_u32 s61, s61, s60'); a(f's_add_u32 {sHM0}, s61, {HBASE+64}')
    a(f's_lshl_b32 {sHSO}, {sCP}, 13'); a(f's_lshl_b32 s61, {sKH}, 12'); a(f's_add_u32 {sHSO}, {sHSO}, s61')
if OPT['kvat'] == 0 or OPT['hat'] == 0: kv_setup()
issue_upto(6)
if not (OPT['kvat'] == 0 or OPT['hat'] == 0): kv_setup()
a('v_and_b32 v35, 1, v32'); a('v_lshlrev_b32 v35, 2, v35'); a('v_xor_b32 v35, v35, v34')
a(f'v_lshl_add_u32 {v(vW2A)}, v35, 4, v33')
a(f's_mul_i32 {sW2O}, {sKH}, {43*16*1024}'); a(f's_lshl_b32 s61, {sTH}, 13'); a(f's_add_u32 {sW2O}, {sW2O}, s61')
a(f's_lshl_b32 s61, {sDS}, 7'); a(f's_add_u32 {sW2O}, {sW2O}, s61')
a(f'v_add_u32 {v(vW2W)}, {sM0W}, {v(vL16)}')
a(f's_lshl_b32 s60, {st}, 1'); a(f's_add_u32 s60, s60, {sTH}'); a('s_mul_i32 s60, s60, 86')
a(f's_mul_i32 s61, {sKH}, 43'); a('s_add_u32 s60, s60, s61'); a('s_lshl_b32 s60, s60, 10')
a(f's_add_u32 {sHL}, s60, {WS_H}')
a(f's_mul_i32 s60, {sKH}, 7'); a('v_min_u32 v35, 8, v1'); a('v_add_u32 v35, s60, v35')
a('v_lshrrev_b32 v36, 1, v35'); a('v_lshlrev_b32 v36, 12, v36'); a('v_and_b32 v35, 1, v35'); a('v_lshl_add_u32 v37, v35, 7, v36')
a(f's_lshl_b32 s60, {sT}, 8'); a(f's_add_u32 s60, s60, {WS_FLAG + FPH}')
a(f's_and_b32 s61, {st}, 1'); a('s_lshl_b32 s61, s61, 1'); a(f's_add_u32 s61, s61, {sTH}')
a('s_lshl_b32 s61, s61, 15'); a('s_add_u32 s61, s61, s60')
a(f'v_add_u32 {v(vP2)}, s61, v37')
a(f's_lshl_b32 s60, {sDS}, 12'); a(f's_and_b32 s61, {st}, 24'); a('s_lshl_b32 s61, s61, 12'); a('s_add_u32 s60, s60, s61'); a(f's_add_u32 s60, s60, {sM0W}')
a(f's_add_u32 s60, s60, {WS_FLAG + 2*FPH}')
a('v_lshlrev_b32 v35, 7, v34'); a(f'v_add_u32 {v(vP3)}, s60, v35')
a(f's_lshl_b32 s60, {st}, 16'); a(f's_lshl_b32 s61, {sDS}, 13'); a('s_add_u32 s60, s60, s61'); a(f's_add_u32 s60, s60, {sW2K}')
a(f's_add_u32 {sYL}, s60, {WS_Y}')
a(f's_lshl_b32 s60, {sW}, 3'); a('v_min_u32 v35, 8, v1'); a('v_add_u32 v35, s60, v35'); a('v_max_u32 v35, 1, v35'); a('v_subrev_u32 v35, 1, v35')
a(f's_lshl_b32 s60, {sDS}, 12'); a(f's_and_b32 s61, {st}, 24'); a('s_lshl_b32 s61, s61, 12'); a('s_add_u32 s60, s60, s61'); a(f's_add_u32 s60, s60, {WS_FLAG}')
a('v_lshlrev_b32 v35, 7, v35'); a(f'v_add_u32 {v(vP1)}, s60, v35')
a(f's_lshl_b32 {sUL}, {sCP}, 13'); a(f's_add_u32 {sUL}, {sUL}, {WS_U}')
a(f'v_lshlrev_b32 {v(vUL)}, 5, v0'); a(f'v_subrev_u32 {v(vULp)}, 4, {v(vUL)}')
a(f'v_add_u32 {v(vUW)}, {CV+448}, {v(vW2W)}'); a(f'v_add_u32 {v(vW2W2)}, {CV}, {v(vW2W)}')
a(f's_mul_i32 s60, {sKH}, {CVCH}'); a(f's_mul_i32 s61, {sTH}, {U1OFF}'); a('s_add_u32 s61, s61, s60'); a(f's_add_u32 s61, s61, {CV}')
a('v_min_u32 v35, 27, v1'); a('v_lshlrev_b32 v35, 4, v35'); a(f'v_add_u32 {v(vZU)}, s61, v35')
a(f's_sub_u32 s61, {sHM0}, 64'); a('v_and_b32 v35, 15, v1'); a('v_lshlrev_b32 v35, 2, v35'); a(f'v_add_u32 {v(vZH)}, s61, v35')
a(f's_mov_b32 {sSELLO}, 0x05040100'); a(f's_mov_b32 {sSELHI}, 0x07060302')
a('s_waitcnt lgkmcnt(0)')
a(f's_add_u32 {sTAG}, {sE}, 1'); a(f's_not_b32 {sNTAG}, {sTAG}')
D = OPT['look']
for c in range(9):
    need = [f'x{c}_3'] if c < 8 else []
    if c == OPT['p1c']: need.append('kv3')
    if c <= 5: issue_upto(max(names.index(n) for n in need + ['x7_3'] * (c == 5)) + (OPT['look0'] if c == 0 else D if c < 5 else OPT['n5']))
    else: issue_upto(nxt[0] - 1 + OPT['n7'])
    if need: a.wait_vm(max(seq[n] for n in need))
    a.bar(f'c{c}', False)
    a.stamp()
issue_upto(max(names.index('ul') + OPT['n8'], nxt[0] - 1))
for i in range(4): a(f'v_mov_b32 v{40+i}, 0')
a(f'ds_write_b128 {v(vZU)}, v[40:43]'); a(f'ds_write_b32 {v(vZH)}, v40')
for c in range(2):
    sel = sSELLO if c == 0 else sSELHI
    for k in range(4):
        hi0 = UR + 5 - 2*k if k < 3 else UR + 8
        a(f'v_perm_b32 {v(PO+8*c+k)}, {v(hi0)}, {v(UR+6-2*k)}, {sel}')
    a(f'ds_write_b128 {v(vUW)}, {v(PO+8*c,4)} offset:{c*CVCH}')
    for k in range(4): a(f'v_perm_b32 {v(PO+8*c+4+k)}, {v(UR+6-2*k)}, {v(UR+7-2*k)}, {sel}')
    a(f'ds_write_b128 {v(vUW)}, {v(PO+8*c+4,4)} offset:{c*CVCH+U1OFF}')
a.stamp()
issue_upto(nxt[0] - 1 + OPT['n9'])
a.wait_vm(max(seq['st1'], seq['h3']))
a.bar('u')
a.stamp()
issue_upto(999)
for _ in range(OPT['pdelay']): a('s_sleep 8')
a.stamp()
a('s_mov_b64 exec, 0x1ff')
a.poll_issue(vP2, 20)
a.poll_check(vP2, 20, OPT['psleep'])
a('s_mov_b64 exec, -1')
a.stamp()
if OPT['ht']:
    a(f's_mul_i32 {sG}, {sDS}, {43*128}'); a(f's_add_u32 {sG}, {sG}, {sHL}')
for s_ in range(NH):
    if s_ == OPT['ht'] - 1: a(f'buffer_load_dword v255, {v(vT43)}, {srd(WS)}, {sG} offen sc1')
    hop(s_)
a.wait_vm(seq['H3']); a.bar('a', False)
a.stamp()
TAILW(24, 32)
a(f's_or_b32 s60, {sCP}, {sW}')
a('s_cmp_lg_u32 s60, 0')
a('s_cbranch_scc1 L_noep')
for q in range(4): a(f'v_add_u32 v{40+q}, {WS_FLAG + 8192*q}, v39')
a(f's_mov_b32 {sSPIN}, 0')
a.place('L_ep')
for q in range(4): a(f'buffer_load_dwordx2 v[{44+2*q}:{45+2*q}], v{40+q}, {srd(WS)}, 0 offen sc1', track=False)
a('s_waitcnt vmcnt(0)')
a('s_mov_b64 s[60:61], exec')
for q in range(4):
    a(f'v_cmp_eq_u32 vcc, {sTAG}, v{44+2*q}'); a('s_and_b64 s[60:61], s[60:61], vcc')
    a(f'v_cmp_eq_u32 vcc, {sNTAG}, v{45+2*q}'); a('s_and_b64 s[60:61], s[60:61], vcc')
a('s_cmp_eq_u64 s[60:61], exec')
a('s_cbranch_scc1 L_epok')
a(f's_add_u32 {sSPIN}, {sSPIN}, 1'); a(f's_cmp_lt_u32 {sSPIN}, 0x20000'); a('s_cbranch_scc1 L_ep')
a.place('L_epok')
a(f'v_mov_b32 v40, {WS_E}'); a(f'v_mov_b32 v41, {sTAG}')
a('s_mov_b64 exec, 1')
a(f'buffer_store_dword v41, v40, {srd(WS)}, 0 offen sc1', track=False)
a('s_mov_b64 exec, -1')
a.place('L_noep')
a.bar('g1', False)
a.stamp()
w1done = a.lg_n
TAILW(32, 37)
a.wait_lg(w1done); a.bar('g2', False)
a.stamp()
TAILW(37, 43)
a('s_mov_b64 exec, 0xff')
a.poll_issue(vP3, 20)
a.bar('g3')
a.poll_check(vP3, 20, OPT['psleep'])
a('s_mov_b64 exec, -1')
a.stamp()
a(f's_add_u32 m0, {sW2K}, {YT}')
for n in range(2): seq['y'] = a(f'buffer_load_dwordx4 {v(vL16)}, {srd(WS)}, {sYL} offen offset:{1024*n} sc1 lds')
a.wait_vm(seq['y']); a.bar('y', False)
a.finish()

C = a = Prog('C')
a.gap = 0
vCSR, vSTW, vXR, vWR = 3, 11, 12, 20
vHR, vYR, vCSW = 6, 7, 8
vKA, vKB, vSHR, vUS = 210, 211, 212, 213
(vUA, vHA, vDU, vUW, vXW, vXRd, vYS, vE2W, vE2R, vSTa, vSTb, vSTS, vOTa, vOTb, vOTR, vOUT) = range(216, 232)
AR = 234
if OPT['prio']: a(f's_setprio {OPT["prio"]}')
a(f's_mov_b32 s{OUT+2}, 2097152'); a(f's_mov_b32 s{OUT+3}, 0x20000')
a(f's_mov_b32 {sONES}, 0x3f803f80'); a(f's_mov_b32 {sMASK}, 0xffff0000')
a(f's_mov_b32 {sSELLO}, 0x05040100'); a(f's_mov_b32 {sSELHI}, 0x07060302')
a('v_and_b32 v0, 255, v0')
a('v_lshrrev_b32 v32, 4, v1'); a('v_and_b32 v34, 7, v1')
a('v_and_b32 v40, 31, v1'); a('v_lshrrev_b32 v41, 5, v1'); a('v_and_b32 v42, 15, v1')
a('v_and_b32 v43, 1, v1'); a('v_and_b32 v44, 3, v1'); a('v_bfe_u32 v45, v1, 2, 2')
a('v_bfe_u32 v35, v1, 1, 3'); a('v_xor_b32 v35, v35, v41'); a('v_lshlrev_b32 v35, 4, v35')
a('v_lshl_add_u32 v46, v40, 7, v35')
a(f'v_add_u32 v35, {sW4K}, v46')
a('v_lshl_add_u32 v36, v41, 3, v45'); a('v_mul_u32_u24 v36, 192, v36')
a('v_and_b32 v47, 1, v32')
a('v_lshl_add_u32 v36, v47, 5, v36'); a('v_lshl_add_u32 v36, v44, 3, v36')
for i in range(4):
    a(f's_add_u32 s60, {sW}, {i}'); a('s_and_b32 s60, s60, 3'); a('s_lshl_b32 s61, s60, 5')
    a(f'v_xor_b32 {v(vXR+i)}, s61, v35')
    a('s_mul_i32 s61, s60, 3072')
    a(f'v_add_u32 {v(vWR+i)}, s61, v36')
    a(f'v_add_u32 {v(vXR+4+i)}, {2*SLOT}, {v(vXR+i)}'); a(f'v_add_u32 {v(vWR+4+i)}, {2*SLOT}, {v(vWR+i)}')
a('s_waitcnt lgkmcnt(0)')
a(f's_mov_b64 s[40:41], s[86:87]')
a(f's_mov_b64 s[{OUT}:{OUT+1}], s[94:95]')
a(f's_mov_b64 s[{WS}:{WS+1}], s[98:99]')
a(f's_load_dword {sE}, s[{WS}:{WS+1}], {WS_E}')
a(f's_lshl_b32 s60, {sCP}, 2')
a(f's_load_dword {sD}, s[40:41], s60')
a(f's_lshl_b32 s60, {sW}, 1'); a('v_add_u32 v35, s60, v41')
a('v_add_u32 v36, 1, v42'); a('v_and_b32 v36, 7, v36'); a('v_xor_b32 v36, v36, v35')
a('v_lshlrev_b32 v37, 9, v42'); a('v_lshl_add_u32 v37, v47, 3, v37'); a(f'v_add_u32 v37, {KB + 5*128}, v37')
a(f'v_lshl_add_u32 {v(vKA)}, v36, 4, v37')
a('v_add_u32 v36, 2, v42'); a('v_and_b32 v36, 7, v36'); a('v_xor_b32 v36, v36, v35')
a(f'v_lshl_add_u32 {v(vKB)}, v36, 4, v37')
a(f's_lshl_b32 s60, {sW}, 7'); a(f's_add_u32 s60, s60, {SB}')
a(f'v_lshlrev_b32 {v(vSHR)}, 5, v32'); a(f'v_add_u32 {v(vSHR)}, s60, {v(vSHR)}')
a(f'v_lshlrev_b32 {v(vUS)}, 14, v32'); a(f'v_lshl_add_u32 {v(vUS)}, v42, 4, {v(vUS)}')
a(f's_lshl_b32 s60, {sDS}, 18'); a(f's_lshl_b32 s61, {st}, 8'); a('s_add_u32 s60, s60, s61')
a(f's_lshl_b32 s61, {sW}, 16'); a('s_add_u32 s60, s60, s61'); a(f's_add_u32 {sUS0}, s60, {WS_U}'); a(f's_add_u32 {sUS1}, {sUS0}, 8192')
a(f's_lshl_b32 s60, {sCP}, 7'); a(f's_lshl_b32 s61, {sW}, 15'); a('s_add_u32 s60, s60, s61'); a(f's_add_u32 s60, s60, {WS_FLAG}')
a(f'v_lshlrev_b32 {v(vFL)}, 3, v42'); a(f'v_add_u32 {v(vFL)}, s60, {v(vFL)}')
a(f's_and_b32 s61, {st}, 1'); a('s_lshl_b32 s61, s61, 1'); a(f's_add_u32 s61, s61, {sTH}')
a('s_lshl_b32 s61, s61, 8'); a(f's_add_u32 s61, s61, {STATS}')
a('v_lshlrev_b32 v35, 3, v40')
a(f'v_add_u32 {v(vSTS)}, s61, v35')
a(f's_lshl_b32 s60, {sW}, 8'); a(f's_add_u32 s60, s60, {STATS}')
a(f'v_add_u32 {v(vSTW)}, s60, v35')
a(f's_mul_i32 s60, {sKH}, {CVCH}'); a(f's_add_u32 s60, s60, {CV}')
a(f's_lshl_b32 s61, {sTH}, 8')
a(f'v_mul_u32_u24 {v(vUA)}, {U1OFF}, v43')
a('v_lshrrev_b32 v35, 1, v42'); a('v_lshl_add_u32 v35, v35, 2, v32')
a(f'v_lshl_add_u32 {v(vUA)}, v35, 4, {v(vUA)}')
a(f's_sub_u32 {sO1}, s60, s61'); a(f's_add_u32 {sO1}, {sO1}, {448-192}')
a(f'v_add_u32 {v(vUA)}, {sO1}, {v(vUA)}')
a('v_xor_b32 v35, 1, v43')
a(f'v_mul_u32_u24 {v(vHA)}, {HBD}, v35'); a(f'v_lshl_add_u32 {v(vHA)}, v42, 2, {v(vHA)}')
a('v_lshlrev_b32 v35, 4, v32'); a(f'v_sub_u32 {v(vHA)}, {v(vHA)}, v35')
a(f's_mul_i32 s60, {sKH}, {HCH}')
a('s_add_u32 s61, s60, s61'); a(f's_add_u32 s61, s61, {HBASE+64-12}')
a(f'v_add_u32 {v(vHA)}, s61, {v(vHA)}')
a(f'v_lshlrev_b32 {v(vHR)}, 4, v0'); a(f'v_add_u32 {v(vHR)}, {NW2*4096}, {v(vHR)}')
a(f's_lshl_b32 s60, {st}, 1'); a(f's_add_u32 s60, s60, {sTH}'); a('s_mul_i32 s60, s60, 86')
a(f's_mul_i32 s61, {sKH}, 43'); a('s_add_u32 s60, s60, s61'); a('s_lshl_b32 s60, s60, 10')
a(f's_add_u32 {sHL}, s60, {WS_H}')
a(f'v_add_u32 {v(vCSR)}, {CSUM}, {v(vL16)}'); a(f's_lshl_b32 s60, {sW}, 2'); a(f'v_add_u32 {v(vCSW)}, s60, {v(vCSR)}')
a(f's_lshl_b32 s60, {sT}, 2'); a(f's_add_u32 s60, s60, {sW}'); a('s_mul_i32 s60, s60, 86')
a(f's_lshl_b32 s61, {sP0}, 1'); a('s_add_u32 s60, s60, s61'); a('s_lshl_b32 s60, s60, 10')
a(f's_add_u32 {sHS}, s60, {WS_H}'); a(f's_add_u32 {sHS3}, {sHS}, 4096')
a(f's_cmp_lt_u32 {sM1}, 11'); a(f's_cselect_b32 {sHS3}, {sHS3}, {OOB}')
a('v_lshlrev_b32 v35, 4, v45'); a('v_lshl_add_u32 v35, v32, 7, v35')
a('v_xor_b32 v36, 3, v44'); a('v_lshl_add_u32 v35, v36, 2, v35')
a(f's_add_u32 s60, {sM0W}, {CV+U1OFF+448}'); a(f'v_add_u32 {v(vDU)}, s60, v35')
a(f's_lshl_b32 s60, {sW}, 13'); a(f's_add_u32 s60, s60, {CV}'); a(f'v_add_u32 {v(vXW)}, s60, {v(vL16)}')
a(f's_add_u32 s60, {sW2K}, {CV}'); a(f'v_add_u32 {v(vXRd)}, s60, {v(vL16)}')
a(f'v_lshlrev_b32 {v(vYS)}, 16, v32'); a(f'v_lshl_add_u32 {v(vYS)}, v42, 4, {v(vYS)}')
a(f's_lshl_b32 s60, {sW}, 19'); a(f's_lshl_b32 s61, {sCP}, 8'); a('s_add_u32 s60, s60, s61'); a(f's_add_u32 {sYS0}, s60, {WS_Y}')
a(f's_add_u32 {sYS1}, {sYS0}, 0x40000')
a('v_lshl_add_u32 v35, v41, 2, v45'); a('v_lshlrev_b32 v35, 7, v35')
a('v_bfe_u32 v36, v1, 3, 1'); a('v_lshl_add_u32 v35, v36, 6, v35')
a('v_lshl_add_u32 v35, v47, 5, v35'); a('v_lshl_add_u32 v35, v43, 4, v35')
a('v_bfe_u32 v36, v1, 1, 1'); a('v_lshl_add_u32 v35, v36, 3, v35')
a(f's_lshl_b32 s60, {sKH}, 6'); a('v_xor_b32 v35, s60, v35')
a(f's_lshl_b32 s61, {sKH}, 11')
a(f'v_add_u32 {v(AR)}, s61, v35'); a(f'v_xor_b32 {v(AR+1)}, 64, {v(AR)}')
a(f'v_add_u32 {v(AR+2)}, 61440, {v(AR)}'); a(f'v_add_u32 {v(AR+3)}, 61440, {v(AR+1)}')
a(f'v_add_u32 {v(AR+4)}, 122880, {v(AR)}'); a(f'v_add_u32 {v(AR+5)}, 122880, {v(AR+1)}')
a(f'v_lshlrev_b32 {v(vYR)}, 10, v41'); a('v_bfe_u32 v36, v1, 1, 4'); a(f'v_lshl_add_u32 {v(vYR)}, v36, 4, {v(vYR)}')
a(f'v_lshl_add_u32 {v(vYR)}, v43, 2, {v(vYR)}')
a(f's_lshl_b32 s61, {sKH}, 12'); a(f's_lshl_b32 {sO0}, {sTH}, 3'); a(f's_add_u32 s61, s61, {sO0}'); a(f's_add_u32 s61, s61, {YT}')
a(f'v_add_u32 {v(vYR)}, s61, {v(vYR)}')
a('v_xor_b32 v35, s60, v46')
a(f's_lshl_b32 s61, {sTH}, 12'); a(f's_add_u32 s61, s61, {XST}')
a(f'v_add_u32 {v(vSTa)}, s61, v35'); a(f'v_xor_b32 {v(vSTb)}, 32, {v(vSTa)}')
a(f's_add_u32 s61, {sW4K}, {EX}'); a(f'v_add_u32 {v(vE2W)}, s61, {v(vL16)}')
a(f's_xor_b32 s61, {sW4K}, 8192'); a(f's_add_u32 s61, s61, {EX}'); a(f'v_add_u32 {v(vE2R)}, s61, {v(vL16)}')
a(f's_add_u32 s61, {sW2K}, {OT}')
a('v_bfe_u32 v35, v1, 1, 2'); a('v_xor_b32 v35, v35, v41'); a('v_lshlrev_b32 v35, 4, v35')
a('v_lshl_add_u32 v35, v40, 6, v35'); a(f'v_add_u32 {v(vOTa)}, s61, v35'); a(f'v_xor_b32 {v(vOTb)}, 32, {v(vOTa)}')
a('v_lshrrev_b32 v36, 2, v1'); a('v_bfe_u32 v35, v1, 3, 2'); a('v_xor_b32 v35, v35, v44')
a('v_lshlrev_b32 v35, 4, v35'); a('v_lshl_add_u32 v35, v36, 6, v35'); a(f'v_add_u32 {v(vOTR)}, s61, v35')
a('v_lshlrev_b32 v36, 10, v36'); a(f'v_lshl_add_u32 {v(vOUT)}, v44, 4, v36')
a(f's_lshl_b32 {sO0}, {st}, 16'); a(f's_lshl_b32 s61, {sDS}, 7'); a(f's_add_u32 {sO0}, {sO0}, s61')
a(f's_lshl_b32 s61, {sTH}, 15'); a(f's_add_u32 {sO0}, {sO0}, s61'); a(f's_add_u32 {sO0}, {sO0}, s60')
a(f's_add_u32 {sO1}, {sO0}, 16384')
ACC, XF, WF, SU, SQ, CS = 32, 80, 112, 160, 162, 164
for r in range(SU, CS+3): a(f'v_mov_b32 {v(r)}, 0')
a(f'v_mov_b32 v4, {CSUM+3072}'); a('v_mov_b32 v5, 1')
a('s_waitcnt lgkmcnt(0)')
a(f'ds_write_b32 v4, {v(SU)}')
a(f's_add_u32 {sTAG}, {sE}, 1'); a(f's_not_b32 {sNTAG}, {sTAG}')
a(f'v_mov_b32 v252, {sTAG}'); a(f'v_mov_b32 v253, {sNTAG}')
a(f's_lshl_b32 {sD0}, {sD}, 16'); a(f's_and_b32 {sD1}, {sD}, {sMASK}')
a.stamp()

KR, VR, SR, KL, VL, WL, PA = 168, 182, 190, 198, 205, 209, 240
p1_reads = [f'ds_read_b64 {v(KR+2*r,2)}, {v(vKA if r < 3 else vKB)} offset:{128*r}' for r in range(7)]
p1_reads += [f'ds_read_b128 {v(SR+4*p,4)}, {v(vSHR)} offset:{16*p}' for p in range(2)]
p1_reads += [f'ds_read_b64 {v(VR+2*r,2)}, {v(vKB)} offset:{VB-KB+128*(r+3)}' for r in range(4)]
p1 = []
ust = {}
for p in range(2):
    for j in range(4): p1 += [lo(WL+j, SR+4*p+j), hi(SR+4*p+j, SR+4*p+j)]
    for r in range(7): p1 += [lo(KL+r, KR+2*r+p), hi(KR+2*r+p, KR+2*r+p)]
    for r in range(4): p1 += [lo(VL+r, VR+2*r+p), hi(VR+2*r+p, VR+2*r+p)]
    for e in range(2):
        kk = (lambda r: KL+r) if e == 0 else (lambda r: KR+2*r+p)
        vv = (lambda r: VL+r) if e == 0 else (lambda r: VR+2*r+p)
        w = [WL+2*e, SR+4*p+2*e, WL+2*e+1, SR+4*p+2*e+1]
        for i in range(4): p1.append(f'v_mul_f32 {v(PA+4*e+i)}, {v(kk(i))}, {v(w[3])}')
        for j in (2, 1, 0):
            for i in range(4): p1.append(f'v_fmac_f32 {v(PA+4*e+i)}, {v(kk(i+3-j))}, {v(w[j])}')
        for i in range(4): p1.append(f'v_mul_f32 {v(PA+4*e+i)}, {v(PA+4*e+i)}, {v(vv(i))}')
    for i in range(4): p1.append(f'v_cvt_pk_bf16_f32 {v(PA+i)}, {v(PA+i)}, {v(PA+4+i)}')
    def ustore(p=p):
        ust[p] = a(f'buffer_store_dwordx4 {v(PA,4)}, {v(vUS)}, {srd(WS)}, {(sUS0, sUS1)[p]} offen sc1'); ust['t'] = a.t
    p1.append(ustore)

AX, BX, vM, vRS, vS, vC3 = 168, 180, 184, 185, 186, 188
stats = [
    f'v_add_f32 {v(SU)}, {v(SU)}, {v(SU+1)}', f'v_add_f32 {v(SQ)}, {v(SQ)}, {v(SQ+1)}',
    f'v_mov_b32 {v(SU+1)}, {v(SU)}', f'v_mov_b32 {v(SQ+1)}, {v(SQ)}',
    f'v_permlane32_swap_b32 {v(SU)}, {v(SU+1)}', f'v_permlane32_swap_b32 {v(SQ)}, {v(SQ+1)}',
    f'v_add_f32 {v(SU)}, {v(SU)}, {v(SU+1)}', f'v_add_f32 {v(SQ)}, {v(SQ)}, {v(SQ+1)}',
    f'v_mul_f32 {v(SU)}, 0x3b000000, {v(SU)}', f'v_mul_f32 {v(SQ)}, 0x3b000000, {v(SQ)}',
    f'v_fma_f32 {v(SQ)}, -{v(SU)}, {v(SU)}, {v(SQ)}', f'v_max_f32 {v(SQ)}, 0, {v(SQ)}',
    f'v_cvt_pk_bf16_f32 v190, {v(SU)}, {v(SQ)}', 'v_xor_b32 v191, 0x8000, v190',
    f'v_perm_b32 {v(BX)}, v191, v191, {sSELLO}', f'v_mov_b32 {v(BX+1)}, {v(BX)}', f'v_mov_b32 {v(BX+2)}, {v(BX)}', f'v_mov_b32 {v(BX+3)}, {v(BX)}',
    lo(vM, 190), hi(191, 190), 'v_add_f32 v191, 0x3727c5ac, v191',
    'v_cvt_pk_bf16_f32 v191, v191, v191', lo(191, 191), 'v_sqrt_f32 v191, v191',
    'v_cvt_pk_bf16_f32 v191, v191, v191', lo(vS, 191), f'v_rcp_f32 {v(vRS)}, {v(vS)}',
    f'v_mul_f32 {v(vC3)}, 0xbfb8aa3b, {v(vRS)}', f'ds_write_b64 {v(vSTW)}, {v(vM,2)}']
def rdx(c):
    st_ = 4 * ((c % 4) >> 1); off = (c & 1) * SLOT
    return [f'ds_read_b128 {v(XF+16*(c&1)+4*i,4)}, {v(vXR+st_+i)} offset:{off}' for i in range(4)]
def rdw(c, i):
    st_ = 4 * ((c % 4) >> 1); off = (c & 1) * SLOT
    return [f'ds_read_b64_tr_b16 {v(WF+12*i+4*ft+2*rd,2)}, {v(vWR+st_+i)} offset:{off+16384+rd*768+ft*64}' for ft in range(3) for rd in range(2)]
a.bar('c0')
a.stamp()
for x in rdx(0) + rdw(0, 0) + rdw(0, 1): a(x)
flag1 = False
for c in range(8):
    X = XF + 16*(c & 1)
    late = rdw(c, 2) + rdw(c, 3)
    if c == OPT['p1c']:
        for x in p1_reads: a(x)
        a.fq = list(p1); a.slack = OPT['p1slack']
    for i in range(4):
        for d in range(4):
            a(f'v_dot2c_f32_bf16 {v(SU+(d&1))}, {sONES}, {v(X+4*i+d)}'); a(f'v_dot2c_f32_bf16 {v(SQ+(d&1))}, {v(X+4*i+d)}, {v(X+4*i+d)}')
    for d in range(4):
        for ft in range(3): a(f'v_dot2c_f32_bf16 {v(CS+ft)}, {sONES}, {v(WF+4*ft+d)}')
    if c == 7:
        assert not a.fq and flag1
        for ft in range(3): a.fq += [hi(192+ft, CS+ft), f'v_sub_f32 v{195+ft}, {v(CS+ft)}, v{192+ft}']
        for ft in range(3): a.fq += [f'v_cvt_pk_bf16_f32 v{192+ft}, v{192+ft}, v{195+ft}', f'ds_write_b32 {v(vCSW)}, v{192+ft} offset:{1024*ft}']
        a.fq += stats
    def mm(i, ft):
        cin = '0' if (c == 0 and i == 0) else v(ACC+16*ft, 16)
        return f'v_mfma_f32_32x32x16_bf16 {v(ACC+16*ft,16)}, {v(WF+12*i+4*ft,4)}, {v(X+4*i,4)}, {cin}'
    for i in range(3):
        for ft in range(3):
            a(mm(i, ft))
            for x in late[:3]: a(x)
            late = late[3:]
    if c == 7: assert len(a.fq) <= len(stats), len(a.fq)
    if 1 in ust and not flag1 and a.t - ust['t'] > OPT['f1d']:
        a.wait_vm(ust[1]); a.flag_store(1); flag1 = True
        print('flag1 in chunk', c, file=sys.stderr)
    a.bar(f'c{c+1}')
    a.stamp(1)
    if c == 5:
        a.drain_f()
        a.slack = 0
    nxt = rdx(c+1) + rdw(c+1, 0) + rdw(c+1, 1) if c < 7 else [f'ds_read_b128 {v(AX+4*ft,4)}, {v(vCSR)} offset:{1024*ft}' for ft in range(3)]
    for ft in range(3):
        a(mm(3, ft))
        for x in nxt[:6]: a(x)
        nxt = nxt[6:]
a.drain_f()
for ft in range(3):
    a(f'v_mfma_f32_32x32x16_bf16 {v(ACC+16*ft,16)}, {v(AX+4*ft,4)}, {v(BX,4)}, {v(ACC+16*ft,16)}')
a.stamp()

CA, DU, DR = 160, 192, 208
def FA(set_, mu): return (80 if set_ == 0 else 32) + 4*mu
def FB(set_, nu): return 112 + 4*nu if set_ == 0 else (64 + 4*nu if nu < 4 else 144 + 4*(nu-4))
def rdA(rp, mu): return f'ds_read_b128 {v(FA(rp&1,mu),4)}, {v(vUA)} offset:{512*mu - 64*rp + 192}'
def rdB(rp, nu): return [f'ds_read_b64 {v(FB(rp&1,nu)+2*h,2)}, {v(vHA)} offset:{512*nu + 64*rp + 8*h}' for h in range(2)]
def reads(rp):
    r = rdB(rp, 0) + [rdA(rp, mu) for mu in range(8)]
    for nu in range(1, 8): r += rdB(rp, nu)
    return r
TS, HO = 144, 168
first = reads(0)
for fr in range(6):
    base = ACC + 8*fr; t = TS + 8*(fr & 1); o = HO + 4*(fr & 1)
    if fr == OPT['ubar']: a.bar('u')
    def side(n):
        if fr >= OPT['ubar']:
            for x in first[:n]: a(x)
            del first[:n]
    for p in range(4): a(f'v_pk_mul_f32 {v(t+2*p,2)}, {v(base+2*p,2)}, {v(vC3,2)} op_sel_hi:[1,0]')
    side(6)
    for e in range(8): a(f'v_exp_f32 {v(t+e)}, {v(t+e)}')
    side(6)
    for p in range(4): a(f'v_pk_fma_f32 {v(t+2*p,2)}, {v(t+2*p,2)}, {v(vS,2)}, {v(vS,2)} op_sel_hi:[1,0,0]')
    for e in range(8): a(f'v_rcp_f32 {v(t+e)}, {v(t+e)}')
    for p in range(4): a(f'v_pk_mul_f32 {v(t+2*p,2)}, {v(t+2*p,2)}, {v(base+2*p,2)}')
    for p in range(4): a(f'v_cvt_pk_bf16_f32 {v(o+p)}, {v(t+2*p)}, {v(t+2*p+1)}')
    so, im = (sHS, fr*1024) if fr < 4 else (sHS3, (fr-4)*1024)
    hst = a(f'buffer_store_dwordx4 {v(o,4)}, {v(vL16)}, {srd(WS)}, {so} offen offset:{im} sc1')
a.stamp()
if OPT['ubar'] == 6:
    a.bar('u')
    for x in first[:12]: a(x)
    del first[:12]

AF, HF, G2A, XR, XS, YR, XU, DM, YU = 80, 240, 104, 32, 152, 208, 32, 48, 192
RING = [12, 16, 20, 24, 64, 68, 72, 76, 136, 140, 144, 148] + list(range(160, 192, 4))
def hreg(s): return HF + 4*(s % 3) if s < NH else RING[(s - NH) % len(RING)]
def rd2(s):
    o = w2slot(s); k = 2 * (o // 61440); o -= 30720 * k
    r = [f'ds_read_b64_tr_b16 {v(AF+8*(s%3)+4*dt+2*rd,2)}, {v(AR+k+dt)} offset:{o + rd*1024}' for dt in (1, 0) for rd in range(2)]
    return ([f'ds_read_b128 {v(hreg(s),4)}, {v(vHR)} offset:{hslot(s) - NW2*4096}'] if s < NH else []) + r
hops = {}
def hld(s):
    def f():
        if s % 4 == 0: a(f's_add_u32 {sA}, {sHL}, {s*1024}')
        a(f'buffer_load_dwordx4 {v(hreg(s),4)}, {v(vL16)}, {srd(WS)}, {sA} offen offset:{(s%4)*1024} sc1')
    hops[s] = f
    return f
cnt = 0
for rp in range(4):
    rd = (first if rp == 0 else []) + (reads(rp + 1) if rp < 3 else [])
    if rp == 1:
        rd += [f'ds_read_b32 {v(DR+4*c+2*jj+h)}, {v(vDU)} offset:{c*CVCH + 512*jj + 64*h}' for c in range(2) for jj in range(2) for h in range(2)]
    if rp == 2:
        for c in range(2):
            for jj in range(2):
                for h in range(2):
                    src = DR+4*c+2*jj+h; d = DU+8*jj+4*c+2*h
                    a.fq += [hi(d, src), lo(d+1, src), f'v_mul_f32 {v(d)}, {(sD0, sD1)[c]}, {v(d)}', f'v_mul_f32 {v(d+1)}, {(sD0, sD1)[c]}, {v(d+1)}']
    for nu in range(8):
        if rp == 3 and nu == 1: a.cbar(1)
        for mu in range(8 - nu):
            j = nu + mu
            if cnt == OPT['sig2']:
                a.stamp(); a.wait_vm(hst); a.stamp(); a.flag_store(2)
            cin = '0' if (rp == 0 and nu == 0) else v(CA+4*j, 4)
            a(f'v_mfma_f32_16x16x32_bf16 {v(CA+4*j,4)}, {v(FA(rp&1,mu),4)}, {v(FB(rp&1,nu),4)}, {cin}')
            cnt += 1
            for _ in range(2 if (rp == 0 and cnt <= 8) else 1):
                if rd: a(rd.pop(0))
            if rp == 3 and mu == 0 and nu >= 2: a(f'ds_write_b128 {v(vXW)}, {v(CA+4*(nu-2),4)} offset:{1024*(nu-2)}')
    assert not rd
a.drain_f()
a.stamp()
for j in (6, 7): a(f'ds_write_b128 {v(vXW)}, {v(CA+4*j,4)} offset:{1024*j}')
a.cbar(2)
for jj in range(2):
    for sw in range(4): a(f'ds_read_b128 {v(XR+16*jj+4*sw,4)}, {v(vXRd)} offset:{8192*sw + 1024*jj}')
yst = {}
for jj in range(2):
    for hf in range(2):
        for c in range(2):
            for r in range(2): a(f'v_pk_add_f32 {v(DU+8*jj+4*c+2*r,2)}, {v(DU+8*jj+4*c+2*r,2)}, {v(XR+16*jj+8*c+4*hf+2*r,2)}')
    for r in range(4): a(f'v_cvt_pk_bf16_f32 {v(DR+4*jj+r)}, {v(DU+8*jj+r)}, {v(DU+8*jj+4+r)}')
    yst[jj] = a(f'buffer_store_dwordx4 {v(DR+4*jj,4)}, {v(vYS)}, {srd(WS)}, {(sYS0, sYS1)[jj]} offen sc1')
a.stamp()
a.bar('a')
a.stamp()
for x in rd2(0) + rd2(1): a(x)
for s in range(NH, NH + OPT['hburst']): a.do(hld(s))
a.gap = OPT['hgap']
a.vq = [hld(s) for s in range(NH + OPT['hburst'], NH + 20)]

pre = []
for k in range(8): pre += [lo(XU+2*k, XS+k), hi(XU+2*k+1, XS+k)]
for k in range(16): pre.append(f'v_sub_f32 {v(DM+k)}, {v(XU+k)}, v232')
for k in range(16): pre.append(f'v_mul_f32 {v(DM+k)}, {v(DM+k)}, v233')
post = []
for k in range(8): post += [lo(YU+2*k, YR+k), hi(YU+2*k+1, YR+k)]
for k in range(16): post.append(f'v_fmac_f32 {v(XU+k)}, {v(DM+k)}, {v(YU+k)}')
for s in range(43):
    side = []
    if s > NH and s + 19 < 43: a.vq.append(hld(s + 19))
    if s in (10, 22, 30):
        a.bar(f'g{(10, 22, 30).index(s) + 1}')
        a.stamp()
    if s == OPT['sig3']:
        a.wait_vm(yst[1]); a.flag_store(3); a.slack = 0
    side = (rd2(s + 2) if s + 2 < 43 else []) + side
    if s == 19:
        assert not a.fq
        side += [f'ds_read_b128 {v(XS,4)}, {v(vSTa)}', f'ds_read_b128 {v(XS+4,4)}, {v(vSTb)}', f'ds_read_b64 v[232:233], {v(vSTS)}']
    if s == 21: a.fq += pre
    if s == OPT['ybar']:
        a.bar('y'); a.stamp()
        side += [f'ds_read_b32 {v(YR+4*grp+e)}, {v(vYR)} offset:{(8*grp+e)*256}' for grp in range(2) for e in range(4)]
    if s == OPT['ybar'] + 2: a.fq += post
    if s in hops and hops[s] in a.vq: a.drain_v(hops[s])
    h = (len(side) + 1) // 2
    for dt in (1, 0):
        cin = '0' if s == 0 else v(G2A+16*dt, 16)
        a(f'v_mfma_f32_32x32x16_bf16 {v(G2A+16*dt,16)}, {v(AF+8*(s%3)+4*dt,4)}, {v(hreg(s),4)}, {cin}')
        for x in side[:h]: a(x)
        side = side[h:]
a.drain_f()
a.stamp()
for k in range(4): a(f'ds_write_b128 {v(vE2W)}, {v(G2A+16+4*k,4)} offset:{1024*k}')
for k in range(8): a(f'v_pk_add_f32 {v(XU+2*k,2)}, {v(XU+2*k,2)}, {v(G2A+2*k,2)}')
a.wait_all_lg(); a('s_barrier')
for k in range(4): a(f'ds_read_b128 {v(160+4*k,4)}, {v(vE2R)} offset:{1024*k}')
for h in range(2):
    for k in range(4*h, 4*h+4): a(f'v_pk_add_f32 {v(XU+2*k,2)}, {v(XU+2*k,2)}, {v(160+2*k,2)}')
    for k in range(4*h, 4*h+4): a(f'v_cvt_pk_bf16_f32 {v(176+k)}, {v(XU+2*k)}, {v(XU+2*k+1)}')
    a(f'ds_write_b128 {v((vOTa, vOTb)[h])}, {v(176+4*h,4)}')
a.wait_all_lg()
a(f'ds_read_b128 v[184:187], {v(vOTR)}'); a(f'ds_read_b128 v[188:191], {v(vOTR)} offset:1024')
a(f'buffer_store_dwordx4 v[184:187], {v(vOUT)}, {srd(OUT)}, {sO0} offen{OSC}')
a(f'buffer_store_dwordx4 v[188:191], {v(vOUT)}, {srd(OUT)}, {sO1} offen{OSC}')
print('estimated compute cycles', int(a.t), file=sys.stderr)
a.finish()
assert L.bars == C.bars, (L.bars, C.bars)

lines = P.lines + L.lines + ['L_compute:'] + C.lines + ['L_end:', '    s_endpgm']
if OPT['skel']:
    drop = ('v_mfma', 'v_dot', 'v_pk_', 'v_exp', 'v_rcp', 'ds_read', 'v_fmac', 'v_mul_f32', 'v_cvt_pk', 'ds_write', 'v_perm_b32', 'v_add_f32', 'v_sub_f32')
    lines = [l for l in lines if not l.strip().startswith(drop)]
hdr = open('parallel_sum__ssm_conv_h3__dense_activation_silu__prompt.s.ref').read().split('\n')
hdr = [l for l in hdr if l.startswith(';') and '@launch' not in l]
out = '\n'.join(hdr) + f'\n; @launch grid=(256,1,1) block=(512,1,1) lds={LDS_SIZE}\n'
out += f'''.amdgcn_target "amdgcn-amd-amdhsa--gfx950"
.text
.globl {NAME}
.p2align 8
.type {NAME},@function
{NAME}:
''' + '\n'.join(lines) + f'''
.section .rodata,"a"
.p2align 6
.amdhsa_kernel {NAME}
  .amdhsa_next_free_vgpr 256
  .amdhsa_next_free_sgpr 102
  .amdhsa_accum_offset 256
  .amdhsa_group_segment_fixed_size 0
  .amdhsa_kernarg_size 96
  .amdhsa_user_sgpr_count 2
  .amdhsa_user_sgpr_kernarg_segment_ptr 1
  .amdhsa_system_sgpr_workgroup_id_x 1
.end_amdhsa_kernel
'''
open(sys.argv[1], 'w').write(out)
print('lines', len(lines), 'stamps L/C', L.nstamp, C.nstamp, file=sys.stderr)
```

```python
import sys
from emit import Asm

NAME = "parallel_sum__ssm_conv_h3__dense_activation_silu__prompt_kernel"
OPT = dict(stamps=0, sg=0, probe=-2, base=60000, who=1, skel=0,
           map=0, rot=0, prio=1, look=10, lookkv=7, cap=8, hat=8, t2at=-2, t3at=-2, upat=0, ulat=9, ubat=21,
           pwat=14, s2at=42, psleep=4, pdelay=0, f1d=1000, ubar=5, sig2=40, sig3=12, hburst=6, hgap=64,
           g2at=24, ybar=40, osc=1, ht=0, ydelay=0, lprio=0, t2mode=0, spf=0, sw2=0, hp=1, dsx=4)
for x in sys.argv[2:]:
    k, v = x.split('='); assert k in OPT, k; OPT[k] = int(v)

WS_E, WS_FLAG, WS_STAMP, WS_U, WS_Y, WS_H, WS_SIZE = 0, 0x80000, 0x40000, 0x100000, 0x300000, 0x500000, 0x1000000
FPH = 0x20000
OOB = 0x7f000000
SLOT = 28672
CV = 114688; CVCH = 9216; U1OFF = 4640; HBASE = CV + 18432; HCH = 8448; HBD = 4228
KB, VB, SB = CV, CV + 8192, CV + 9216 + 8192
XST = 150016; STATS = 158208; CSUM = 159232; PW = CSUM + 3072
LDS_SIZE = 163840
def w2slot(s): return (s if s < 36 else s - 36) * 4096
YT, EX, OT = 8*4096, 12*4096, 10*4096
Q, K, V, SH, HK, W1, W2, OUT, WS = 4, 8, 12, 16, 20, 24, 28, 32, 36
def srd(r): return f's[{r}:{r+3}]'
sD, sE, sT, sM1, st, sDS, sCP, sW, sWV, sTAG, sNTAG, sP0 = [f's{i}' for i in range(42, 54)]
sXO, sW1O, sHS, sHS3, sW2O, sHL = [f's{i}' for i in range(54, 60)]
sM0W, sW4K, sW3K, sSELLO, sSELHI, sONES = [f's{i}' for i in range(62, 68)]
sPAIR = 's[68:69]'
sSPIN, sTH, sKH, sMASK, sW2K, sI = [f's{i}' for i in range(70, 76)]
sHM0, sHSO, sD0, sD1, sA, sB, sG, sUS0 = [f's{i}' for i in range(76, 84)]
sUS1 = 's86'
sUL, sYS0, sYS1, sYL, sO0, sO1, sROT, sC = [f's{i}' for i in range(88, 96)]
sSTASH = 's101'
def v(n, c=1): return f'v{n}' if c == 1 else f'v[{n}:{n+c-1}]'
OSC = ' sc1' if OPT['osc'] else ''
vL16, vSTAMP, vFL, vPWB, vPWM, vPWT = 2, 31, 28, 29, 30, 255

class Prog(Asm):
    def __init__(self, name, pwr):
        super().__init__(); self.name = name; self.bars = []; self.nstamp = 0; self.pwr = pwr
    def label(self):
        self.nlabel += 1; return f'{self.name}{self.nlabel}'
    def bar(self, tag, lg=True):
        self.lock()
        if lg: self.wait_all_lg()
        self('s_barrier'); self.bars.append(tag)
        self.unlock()
    def post(self, n, lg=True):
        self.lock()
        self(f'v_mov_b32 {v(vPWT)}, {n}')
        if lg: self.wait_all_lg()
        self('s_mov_b64 exec, 1')
        self(f'ds_write_b32 {v(vPWM)}, {v(vPWT)}')
        self('s_mov_b64 exec, -1')
        self.unlock()
    def peek(self, grp):
        self(f'ds_read_b128 {v(self.pwr,4)}, {v(vPWB)} offset:{16*grp}')
    def expect(self, grp, n, peeked=False, sleep=0):
        r = self.pwr
        self.lock()
        if not peeked: self.peek(grp)
        top, done = self.label(), self.label()
        self.wait_lg(self.pend[('v', r)][1])
        self.place(top)
        self(f'v_min3_u32 {v(r)}, {v(r)}, {v(r+1)}, {v(r+2)}')
        self(f'v_min_u32 {v(r)}, {v(r)}, {v(r+3)}')
        self(f'v_cmp_gt_u32 vcc, {n}, {v(r)}')
        self(f's_cbranch_vccz {done}')
        t0 = self.t
        if sleep: self(f's_sleep {sleep}')
        self(f'ds_read_b128 {v(r,4)}, {v(vPWB)} offset:{16*grp}', track=False)
        self('s_waitcnt lgkmcnt(0)')
        self(f's_branch {top}')
        self.place(done)
        self.t = t0 + (0 if peeked else 100)
        self.unlock()
    def stamp(self, g=0):
        if not OPT['stamps'] or g != OPT['sg']: return
        k = self.nstamp; self.nstamp += 1
        self.lock(); self.wait_all_lg()
        self('s_memtime s[96:97]'); self('s_waitcnt lgkmcnt(0)')
        self('s_sub_u32 s96, s96, s3')
        self(f'v_writelane_b32 {v(vSTAMP)}, s96, {k}')
        self.unlock()
    def dma(self, vaddr, rs, soff, m0expr, extra='', track=True):
        self(m0expr)
        return self(f'buffer_load_dwordx4 {v(vaddr)}, {srd(rs)}, {soff} offen{extra} lds', track=track)
    def flag_store(self, phase):
        self.lock()
        self(f's_mov_b32 {sG}, {(phase-1)*FPH}')
        self('s_mov_b64 exec, 0xffff')
        self(f'buffer_store_dwordx2 v[252:253], {v(vFL)}, {srd(WS)}, {sG} offen sc1')
        self('s_mov_b64 exec, -1')
        self.unlock()
    def poll_issue(self, vaddr, dst, mask):
        self(f's_mov_b64 exec, {mask}')
        r = self(f'buffer_load_dwordx2 {v(dst,2)}, {v(vaddr)}, {srd(WS)}, 0 offen sc1')
        self('s_mov_b64 exec, -1')
        return r
    def poll_check(self, vaddr, dst, mask):
        self.lock()
        top, done = self.label(), self.label()
        self(f's_mov_b32 {sSPIN}, 0')
        self(f's_mov_b64 exec, {mask}')
        self.wait_vm(self.pend[('v', dst)][1])
        self.place(top)
        self(f'v_cmp_eq_u32 vcc, {sTAG}, {v(dst)}')
        self(f'v_cmp_eq_u32 {sPAIR}, {sNTAG}, {v(dst+1)}')
        self(f's_and_b64 vcc, vcc, {sPAIR}')
        self('s_cmp_eq_u64 vcc, exec')
        self(f's_cbranch_scc1 {done}')
        self(f's_add_u32 {sSPIN}, {sSPIN}, 1')
        self(f's_cmp_gt_u32 {sSPIN}, 0x20000')
        self(f's_cbranch_scc1 {done}')
        self(f's_sleep {OPT["psleep"]}')
        self(f'buffer_load_dwordx2 {v(dst,2)}, {v(vaddr)}, {srd(WS)}, 0 offen sc1', track=False)
        self('s_waitcnt vmcnt(0)')
        self(f's_branch {top}')
        self.place(done)
        self('s_mov_b64 exec, -1')
        self.unlock()
    def finish(self):
        a = self
        if OPT['stamps']:
            a('s_waitcnt vmcnt(0)')
            a.stamp(OPT['sg'])
            if OPT['probe'] > -2 and (a.name == 'C') == (OPT['who'] == 1):
                a(f's_mov_b32 s60, {OPT["base"]}')
                if OPT['probe'] >= 0:
                    a(f'v_readlane_b32 s61, {v(vSTAMP)}, {OPT["probe"]}'); a('s_add_u32 s60, s60, s61')
                l = a.label(); a.place(l)
                a('s_memtime s[96:97]'); a('s_waitcnt lgkmcnt(0)'); a('s_sub_u32 s96, s96, s3'); a('s_cmp_lt_u32 s96, s60'); a(f's_cbranch_scc1 {l}')
            a('s_lshl_b32 s60, s2, 3'); a(f's_add_u32 s60, s60, {sWV}'); a('s_lshl_b32 s60, s60, 7'); a(f's_add_u32 s60, s60, {WS_STAMP}')
            a('v_lshlrev_b32 v128, 2, v1')
            a('s_mov_b64 exec, 0xffffffff')
            a(f'buffer_store_dword {v(vSTAMP)}, v128, {srd(WS)}, s60 offen')
        a('s_endpgm')

def lo(d, s): return f'v_lshlrev_b32 {v(d)}, 16, {v(s)}'
def hi(d, s): return f'v_and_b32 {v(d)}, {sMASK}, {v(s)}'

P = a = Prog('P', 0)
a('s_cmp_ge_u32 s2, 256')
a('s_cbranch_scc1 L_end')
if OPT['stamps']:
    a('s_memtime s[68:69]'); a('s_memrealtime s[70:71]'); a('s_waitcnt lgkmcnt(0)'); a('s_mov_b32 s3, s68')
    a(f'v_mov_b32 {v(vSTAMP)}, 0'); a(f'v_writelane_b32 {v(vSTAMP)}, s70, 31')
a('s_load_dwordx16 s[76:91], s[0:1], 0')
a('s_load_dwordx8 s[92:99], s[0:1], 64')
a('v_lshrrev_b32 v3, 6, v0')
a('v_and_b32 v1, 63, v0')
a('s_getpc_b64 s[60:61]')
a.place('L_pc')
a(f'v_readfirstlane_b32 {sWV}, v3')
a(f's_lshr_b32 {sI}, s2, 3')
a('v_lshlrev_b32 v39, 7, v1')
a(f's_and_b32 s62, {sI}, 7'); a('s_lshl_b32 s62, s62, 12')
a(f's_cmp_ge_u32 {sWV}, 4'); a('s_cselect_b32 s62, s62, 0')
a(f's_lshl_b32 s63, {sWV}, 10'); a('s_add_u32 s62, s62, s63')
a('v_add_u32 v3, s62, v39')
a('v_min_u32 v3, L_end-L_pc, v3')
a('s_mov_b64 exec, 0xff')
a('global_load_dword v254, v3, s[60:61]', track=False)
a('s_mov_b64 exec, -1')
a(f's_and_b32 {sW}, {sWV}, 3')
a('s_and_b32 s60, s2, 7')
lg = OPT['map']
a(f's_lshr_b32 {sT}, s60, {lg}'); a(f's_lshl_b32 {sT}, {sT}, {1+lg}')
a(f's_and_b32 s61, {sI}, {(2<<lg)-1}'); a(f's_add_u32 {sT}, {sT}, s61')
a(f's_and_b32 {sM1}, s60, {(1<<lg)-1}'); a(f's_lshl_b32 {sM1}, {sM1}, {4-lg}')
a(f's_lshr_b32 s61, {sI}, {1+lg}'); a(f's_add_u32 {sM1}, {sM1}, s61')
a(f's_and_b32 s61, {sM1}, 1')
a(f's_lshl_b32 {st}, {sT}, 1')
a(f's_add_u32 {st}, {st}, s61')
a(f's_lshr_b32 {sDS}, {sM1}, 1')
if OPT['dsx']: a(f's_xor_b32 {sDS}, {sDS}, {OPT["dsx"]}')
a(f's_lshl_b32 {sW2K}, {sW}, 11')
a(f'v_lshlrev_b32 {v(vL16)}, 4, v1')
a(f's_cmp_ge_u32 {sWV}, 4')
a('s_cbranch_scc1 L_compute')
def common2(a):
    a(f's_lshl_b32 {sCP}, {sDS}, 5'); a(f's_add_u32 {sCP}, {sCP}, {st}')
    a(f's_lshl_b32 {sW4K}, {sW}, 12'); a(f's_lshl_b32 {sM0W}, {sW}, 10')
    a(f's_and_b32 {sTH}, {sW}, 1'); a(f's_lshr_b32 {sKH}, {sW}, 1')
    a(f's_mul_i32 {sP0}, {sM1}, 3'); a(f's_lshl_b32 s60, {sM1}, 1'); a('s_add_u32 s60, s60, 11'); a(f's_min_u32 {sP0}, {sP0}, s60')
    a(f's_mov_b32 s{WS+2}, {WS_SIZE}'); a(f's_mov_b32 s{WS+3}, 0x20000')
    a(f'v_mov_b32 {v(vPWB)}, {PW}'); a(f's_lshl_b32 s60, {sWV}, 2'); a(f'v_add_u32 {v(vPWM)}, s60, {v(vPWB)}')

L = a = Prog('L', 56)
vXA, vWA, vKD, vHALO, vT43, vW2A, vW2W, vP2, vP3 = 4, 8, 12, 14, 15, 16, 17, 18, 19
vP1, vUL, vULp, vUW, vZU, vZH, vW2W2, vW2W3, UR, PO, WT = 22, 23, 24, 25, 26, 27, 11, 3, 236, 40, 64
if OPT['lprio']: a(f's_setprio {OPT["lprio"]}')
for r, n in ((W1, 1409024), (Q, 2097152), (K, 2097152), (V, 2097152), (SH, 4096)):
    a(f's_mov_b32 s{r+2}, {n}'); a(f's_mov_b32 s{r+3}, 0x20000')
a(f'v_min_u32 {v(vT43)}, {42*128}, v39')
a('v_lshrrev_b32 v33, 3, v1'); a('v_and_b32 v34, 7, v1'); a('v_lshlrev_b32 v33, 10, v33')
a(f's_lshl_b32 s60, {st}, 16'); a(f's_lshl_b32 s61, {sW}, 14'); a('s_add_u32 s60, s60, s61')
a(f's_lshl_b32 s61, {sDS}, 7'); a(f's_add_u32 {sSTASH}, s60, s61')
a('v_lshrrev_b32 v35, 5, v1'); a('v_xor_b32 v35, v35, v34'); a('v_lshl_add_u32 v38, v35, 4, v33')
a(f's_lshl_b32 s60, {sW}, 6'); a('s_and_b32 s60, s60, 64'); a('s_xor_b32 s61, s60, 32')
a(f'v_xor_b32 {v(vKD)}, s61, v38')
a('s_xor_b32 s61, s60, 64')
a(f'v_xor_b32 {v(vKD+1)}, s61, v38'); a(f'v_add_u32 {v(vKD+1)}, 8192, {v(vKD+1)}')
a(f'v_add_u32 v38, {sSTASH}, v38'); a(f'v_subrev_u32 {v(vHALO)}, 8192, v38')
a(f's_lshl_b32 {sXO}, {sT}, 17')
a('s_waitcnt lgkmcnt(0)')
a(f's_mov_b64 s[{W1}:{W1+1}], s[90:91]')
a(f's_mov_b64 s[{Q}:{Q+1}], s[76:77]')
a(f's_mov_b64 s[{K}:{K+1}], s[78:79]')
a(f's_mov_b64 s[{V}:{V+1}], s[80:81]')
a(f's_mov_b64 s[{SH}:{SH+1}], s[82:83]')
seq = {}
l = [a.label() for _ in range(4)]
a(f's_cmp_lg_u32 {sW}, 2'); a(f's_cbranch_scc1 {l[0]}')
a(f's_mul_i32 s60, s2, {43*128}')
a(f'buffer_load_dword v254, {v(vT43)}, {srd(W1)}, s60 offen', track=False); a(f's_branch {l[3]}')
a.place(l[0])
a(f's_cmp_lg_u32 {sW}, 3'); a(f's_cbranch_scc1 {l[1]}')
a(f's_lshl_b32 s61, {sM1}, 13'); a(f's_add_u32 s60, {sXO}, s61')
a(f'buffer_load_dword v254, v39, {srd(Q)}, s60 offen', track=False); a(f's_branch {l[3]}')
a.place(l[1])
a(f's_cmp_lg_u32 {sW}, 0'); a(f's_cbranch_scc1 {l[2]}')
a.dma(vHALO, K, '0', f's_mov_b32 m0, {KB}', track=False); a(f's_branch {l[3]}')
a.place(l[2])
a(f's_lshl_b32 s60, {sDS}, 9')
a.dma(vL16, SH, 's60', f's_mov_b32 m0, {SB}', track=False)
a.place(l[3])
for rs, base in ((K, KB), (V, VB)):
    for n in range(2): seq['kv'] = a.dma(vKD+n, rs, sSTASH, f's_add_u32 m0, {sW2K}, {base + 1024 + n*1024}')
a(f's_mov_b64 s[{HK}:{HK+1}], s[84:85]')
a(f's_mov_b64 s[{W2}:{W2+1}], s[92:93]')
a(f's_mov_b64 s[{WS}:{WS+1}], s[98:99]')
a(f's_load_dword {sE}, s[{WS}:{WS+1}], {WS_E}')
common2(a)
a('v_lshrrev_b32 v32, 4, v1')
a('v_xor_b32 v35, v34, v32')
a(f'v_lshl_add_u32 {v(vXA)}, v35, 4, v33')
a(f'v_xor_b32 {v(vXA+1)}, 64, {v(vXA)}')
a(f'v_add_u32 {v(vXA+1)}, 8192, {v(vXA+1)}')
a(f'v_add_u32 {v(vXA+2)}, 16384, {v(vXA)}')
a(f'v_add_u32 {v(vXA+3)}, 16384, {v(vXA+1)}')
a(f's_lshl_b32 s60, {sW}, 15'); a(f's_add_u32 {sXO}, {sXO}, s60')
a(f's_mul_i32 {sW3K}, {sW}, 3072')
a(f's_cmp_lt_u32 {sM1}, 11')
a('s_cselect_b32 s61, 12, 8')
a(f'v_mov_b32 v3, {OOB}')
for j in range(3):
    if j: a(f'v_add_u32 v36, {64*j}, v1')
    src = 'v36' if j else 'v1'
    a(f'v_mul_u32_u24 v37, 5462, {src}')
    a('v_lshrrev_b32 v37, 16, v37')
    a('v_mul_u32_u24 v35, 12, v37')
    a(f'v_sub_u32 v35, {src}, v35')
    a('v_cmp_gt_u32 vcc, s61, v35')
    a('v_mul_u32_u24 v37, 2752, v37')
    a(f'v_lshl_add_u32 {v(vWA+j)}, v35, 4, v37')
    a(f'v_cndmask_b32 {v(vWA+j)}, v3, {v(vWA+j)}, vcc')
a(f's_mul_i32 {sW1O}, {sW}, {16*2752}'); a(f's_lshl_b32 s60, {sP0}, 6'); a(f's_add_u32 {sW1O}, {sW1O}, s60')
if OPT['rot'] == 1: a(f's_and_b32 {sROT}, {sM1}, 7')
elif OPT['rot'] == 2:
    a(f's_lshl_b32 {sROT}, {sT}, 2'); a(f's_add_u32 {sROT}, {sROT}, {sM1}')
for r, n in ((HK, 2097152), (W2, 1409024)):
    a(f's_mov_b32 s{r+2}, {n}'); a(f's_mov_b32 s{r+3}, 0x20000')

ops = []
def op(name, gate, fn): ops.append((name, gate, fn))
def touch2():
    if OPT['t2mode']:
        a(f's_lshl_b32 {sG}, {sI}, 2'); a(f's_add_u32 {sG}, {sG}, {sW}')
        if OPT['map'] == 1:
            a(f's_mul_i32 {sG}, {sG}, 43'); a('v_min_u32 v253, 42, v1'); a(f'v_add_u32 v253, {sG}, v253')
            a('v_and_b32 v252, 3, v253'); a('v_lshrrev_b32 v253, 2, v253'); a('v_lshlrev_b32 v253, 10, v253'); a('v_lshl_add_u32 v253, v252, 7, v253')
            a(f's_and_b32 {sG}, {sDS}, 4'); a(f's_lshl_b32 {sG}, {sG}, 7')
            a(f'buffer_load_dword v254, v253, {srd(W2)}, {sG} offen')
        else:
            a(f's_mul_i32 {sG}, {sG}, {86*128}')
            a(f'buffer_load_dword v254, {v(vT43)}, {srd(W2)}, {sG} offen')
            a(f's_add_u32 {sG}, {sG}, {43*128}')
            a(f'buffer_load_dword v253, {v(vT43)}, {srd(W2)}, {sG} offen')
        return
    l = a.label()
    a(f's_cmp_lg_u32 {sW}, 2'); a(f's_cbranch_scc1 {l}')
    a(f's_mul_i32 {sG}, s2, {43*128}')
    a(f'buffer_load_dword v254, {v(vT43)}, {srd(W2)}, {sG} offen', track=False)
    a.place(l)
def touch3():
    l = a.label()
    a(f's_cmp_lg_u32 {sW}, 3'); a(f's_cbranch_scc1 {l}')
    a(f's_mul_i32 {sG}, {sI}, {43*1024}'); a(f'v_lshlrev_b32 v253, 3, {v(vT43)}')
    a(f'buffer_load_dword v254, v253, {srd(W2)}, {sG} offen offset:384', track=False)
    a.place(l)
def add_chunk(c):
    slot = (c % 4) * SLOT
    gate = f'c{c-3}' if c >= 4 else None
    def w(j):
        def f():
            if j == 0:
                if c == OPT['t2at']: touch2()
                if c == OPT['t3at']: touch3()
                if OPT['rot']:
                    a(f's_add_u32 {sC}, {sROT}, {c}'); a(f's_and_b32 {sC}, {sC}, 7')
                    a(f's_mul_i32 {sB}, {sC}, {64*2752}'); a(f's_add_u32 {sB}, {sB}, {sW1O}')
                    a(f's_lshl_b32 {sA}, {sC}, 7'); a(f's_add_u32 {sA}, {sA}, {sXO}')
                else:
                    a(f's_add_u32 {sB}, {sW1O}, {c*64*2752}'); a(f's_add_u32 {sA}, {sXO}, {c*128}')
            return a.dma(vWA+j, W1, sB, f's_add_u32 m0, {sW3K}, {slot + 16384 + j*1024}')
        return f
    for j in range(3): op(f'w{c}_{j}', gate, w(j))
    for n in range(4): op(f'x{c}_{n}', gate, lambda n=n: a.dma(vXA+n, Q, sA, f's_add_u32 m0, {sW4K}, {slot + n*1024}'))
def add_h():
    for n in range(4):
        def f(n=n):
            if n == 0 and OPT['t2at'] == -2: touch2()
            if n == 0 and OPT['t3at'] == -2: touch3()
            a(f's_mov_b32 m0, {sHM0}')
            return a(f'buffer_load_dwordx4 {v(vL16)}, {srd(HK)}, {sHSO} offen offset:{n*1024} lds')
        op(f'h{n}', None, f)
def w2op(s):
    a(f's_add_u32 {sO0}, {sW2O}, {s*16384}')
    return a(f'buffer_load_dwordx4 {v(WT+4*s,4)}, {v(vW2A)}, {srd(W2)}, {sO0} offen')
def uload():
    a.poll_check(vP1, 20, '0x1ff')
    a(f'buffer_load_dwordx4 {v(UR,4)}, {v(vUL)}, {srd(WS)}, {sUL} offen sc1')
    a(f'buffer_load_dwordx4 {v(UR+4,4)}, {v(vUL)}, {srd(WS)}, {sUL} offen offset:16 sc1')
    return a(f'buffer_load_dword {v(UR+8)}, {v(vULp)}, {srd(WS)}, {sUL} offen sc1')
def ubuild():
    if OPT['hp']: a('s_setprio 2')
    for i in range(4): a(f'v_mov_b32 v{60+i}, 0')
    a(f'ds_write_b128 {v(vZU)}, v[60:63]'); a(f'ds_write_b32 {v(vZH)}, v60')
    for c in range(2):
        sel = sSELLO if c == 0 else sSELHI
        for k in range(4):
            hi0 = UR + 5 - 2*k if k < 3 else UR + 8
            a(f'v_perm_b32 {v(PO+8*c+k)}, {v(hi0)}, {v(UR+6-2*k)}, {sel}')
        a(f'ds_write_b128 {v(vUW)}, {v(PO+8*c,4)} offset:{c*CVCH}')
        for k in range(4): a(f'v_perm_b32 {v(PO+8*c+4+k)}, {v(UR+6-2*k)}, {v(UR+7-2*k)}, {sel}')
        a(f'ds_write_b128 {v(vUW)}, {v(PO+8*c+4,4)} offset:{c*CVCH+U1OFF}')
    flush_posts(True)
    a.wait_vm(max(seq['st1'], seq['h3']))
    a.post(4); a.stamp()
    if OPT['hp']: a('s_setprio 0')
    return a.vm_n
for c in range(8):
    if c == OPT['hat']: add_h()
    add_chunk(c)
for n in range(2): op(f'st{n}', None, lambda n=n: a.dma(vXA+n, Q, sSTASH, f's_add_u32 m0, {sW2K}, {XST + n*1024}'))
if OPT['hat'] == 8: add_h()
for s_ in range(43): op(f'W{s_}', None, lambda s_=s_: w2op(s_))
b0 = [o[0] for o in ops].index('w7_0')
for nm, pos, fn in (('ub', OPT['ubat'], ubuild), ('ul', OPT['ulat'], uload), ('up', OPT['upat'], lambda: a.poll_issue(vP1, 20, '0x1ff'))):
    ops.insert(b0 + pos, (nm, 'c4', fn))
names = [o[0] for o in ops]
nxt = [0]
posts = [('x5_3', 1), ('x6_3', 2), ('x7_3', 3)]
capped = [False]
dbg = []
def flush_posts(force=False):
    while posts and posts[0][0] in seq and (force or a.vm_done >= seq[posts[0][0]]):
        a.wait_vm(seq[posts[0][0]]); a.post(posts[0][1], False); a.stamp(); posts.pop(0)
def issue_upto(idx):
    while nxt[0] <= min(idx, len(ops) - 1):
        name, gate, fn = ops[nxt[0]]
        if gate is not None and gate not in a.bars: return
        if capped[0]:
            a.wait_vm(a.vm_n - OPT['cap'] + 1); flush_posts()
        nxt[0] += 1
        seq[name] = fn()
        if capped[0] and (name in ('x7_3', 'st1', 'h3', 'up', 'ul', 'ub') or (name[0] == 'W' and int(name[1:]) % 3 == 0)):
            a.stamp(2); dbg.append(name)
issue_upto(OPT['lookkv'] - 1)
a('s_branch L_loader2')
L1lines = a.lines; a.lines = ['L_loader2:']
a(f's_mul_i32 s60, {sKH}, {HCH}'); a(f's_mul_i32 s61, {sTH}, {HBD}'); a('s_add_u32 s61, s61, s60'); a(f's_add_u32 {sHM0}, s61, {HBASE+64}')
a(f's_lshl_b32 {sHSO}, {sCP}, 13'); a(f's_add_u32 {sUL}, {sHSO}, {WS_U}'); a(f's_lshl_b32 s61, {sKH}, 12'); a(f's_add_u32 {sHSO}, {sHSO}, s61')
a('s_waitcnt lgkmcnt(0)')
a(f's_add_u32 {sTAG}, {sE}, 1'); a(f's_not_b32 {sNTAG}, {sTAG}')
a.post(0)
a.wait_vm(seq['kv']); a.bar('kv'); a.stamp()
D = OPT['look']
for c in range(5):
    issue_upto(names.index(f'x{c}_3') + D)
    if c == 1:
        a('v_and_b32 v35, 1, v32'); a('v_lshlrev_b32 v35, 2, v35'); a('v_xor_b32 v35, v35, v34')
        a(f'v_lshl_add_u32 {v(vW2A)}, v35, 4, v33')
        a(f's_mul_i32 {sW2O}, {sKH}, {43*16*1024}'); a(f's_lshl_b32 s61, {sTH}, 13'); a(f's_add_u32 {sW2O}, {sW2O}, s61')
        a(f's_lshl_b32 s61, {sDS}, 7'); a(f's_add_u32 {sW2O}, {sW2O}, s61')
        a(f'v_add_u32 {v(vW2W)}, {sM0W}, {v(vL16)}')
        a(f'v_add_u32 {v(vW2W2)}, 61440, {v(vW2W)}'); a(f'v_add_u32 {v(vW2W3)}, 122880, {v(vW2W)}')
        a(f's_lshl_b32 s60, {st}, 1'); a(f's_add_u32 s60, s60, {sTH}'); a('s_mul_i32 s60, s60, 86')
        a(f's_mul_i32 s61, {sKH}, 43'); a('s_add_u32 s60, s60, s61'); a('s_lshl_b32 s60, s60, 10')
        a(f's_add_u32 {sHL}, s60, {WS_H}')
        a(f's_mul_i32 s60, {sKH}, 7'); a('v_min_u32 v38, 8, v1'); a('v_add_u32 v35, s60, v38')
        a('v_lshrrev_b32 v36, 1, v35'); a(f'v_xor_b32 v36, {OPT["dsx"]}, v36'); a('v_lshlrev_b32 v36, 12, v36'); a('v_and_b32 v35, 1, v35'); a('v_lshl_add_u32 v37, v35, 7, v36')
        a(f's_lshl_b32 s60, {sT}, 8'); a(f's_add_u32 s60, s60, {WS_FLAG + FPH}')
        a(f's_and_b32 s61, {st}, 1'); a('s_lshl_b32 s61, s61, 1'); a(f's_add_u32 s61, s61, {sTH}')
        a('s_lshl_b32 s61, s61, 15'); a('s_add_u32 s61, s61, s60')
        a(f'v_add_u32 {v(vP2)}, s61, v37')
    if c == 2:
        a(f's_lshl_b32 s60, {sDS}, 12'); a(f's_and_b32 s61, {st}, 24'); a('s_lshl_b32 s61, s61, 12'); a('s_add_u32 s60, s60, s61'); a(f's_add_u32 s60, s60, {WS_FLAG}')
        a(f's_lshl_b32 s61, {sW}, 3'); a('v_add_u32 v35, s61, v38'); a('v_max_u32 v35, 1, v35'); a('v_subrev_u32 v35, 1, v35')
        a('v_lshlrev_b32 v35, 7, v35'); a(f'v_add_u32 {v(vP1)}, s60, v35')
        a(f's_add_u32 s60, s60, {sM0W}'); a(f's_add_u32 s60, s60, {2*FPH}')
        a('v_lshlrev_b32 v35, 7, v34'); a(f'v_add_u32 {v(vP3)}, s60, v35')
        a(f's_lshl_b32 s60, {st}, 16'); a(f's_lshl_b32 s61, {sDS}, 13'); a('s_add_u32 s60, s60, s61'); a(f's_add_u32 s60, s60, {sW2K}')
        a(f's_add_u32 {sYL}, s60, {WS_Y}')
        a(f'v_lshlrev_b32 {v(vUL)}, 5, v0'); a(f'v_subrev_u32 {v(vULp)}, 4, {v(vUL)}')
        a(f'v_add_u32 {v(vUW)}, {CV+448}, {v(vW2W)}')
        a(f's_mul_i32 s60, {sKH}, {CVCH}'); a(f's_mul_i32 s61, {sTH}, {U1OFF}'); a('s_add_u32 s61, s61, s60'); a(f's_add_u32 s61, s61, {CV}')
        a('v_min_u32 v35, 27, v1'); a('v_lshlrev_b32 v35, 4, v35'); a(f'v_add_u32 {v(vZU)}, s61, v35')
        a(f's_sub_u32 s61, {sHM0}, 64'); a('v_and_b32 v35, 15, v1'); a('v_lshlrev_b32 v35, 2, v35'); a(f'v_add_u32 {v(vZH)}, s61, v35')
        a(f's_mov_b32 {sSELLO}, 0x05040100'); a(f's_mov_b32 {sSELHI}, 0x07060302')
    if OPT['sw2']:
        if c == 0:
            a(f's_lshl_b32 s60, {sI}, 2'); a(f's_add_u32 s60, s60, {sW}'); a('s_mul_i32 s60, s60, 11'); a('s_min_u32 s60, s60, 1365'); a('s_lshl_b32 s60, s60, 10')
            a(f's_and_b32 s61, {sDS}, 4'); a('s_lshl_b32 s61, s61, 7'); a('s_add_u32 s60, s60, s61')
            a(f's_add_u32 s40, s{W2}, s60'); a(f's_addc_u32 s41, s{W2+1}, 0')
            sw2 = [r*1024 + q*64 for r in range(11) for q in range(8)]
        for o in sw2[:OPT['sw2']]: a(f's_load_dword s100, s[40:41], {o}')
        sw2 = sw2[OPT['sw2']:]
    a.wait_vm(seq[f'x{c}_3'])
    a.bar(f'c{c}', False)
    a.stamp()
capped[0] = True
def wr(s_):
    o = w2slot(s_); k = o // 61440
    a(f'ds_write_b128 {v((vW2W, vW2W2, vW2W3)[k])}, {v(WT+4*s_,4)} offset:{o - 61440*k}')
def s2():
    for _ in range(OPT['pdelay']): a('s_sleep 8')
    a.stamp()
    a.poll_issue(vP2, 20, '0x1ff'); a.poll_check(vP2, 20, '0x1ff')
    a.post(5, False)
    if OPT['ht']:
        a(f's_mul_i32 {sG}, {sDS}, {43*128}'); a(f's_add_u32 {sG}, {sG}, {sHL}')
        a(f'buffer_load_dword v254, {v(vT43)}, {srd(WS)}, {sG} offen sc1')
    a.stamp()
issue_upto(names.index(f'W{OPT["pwat"]}'))
assert not posts
a.expect(1, 1, sleep=1)
a.stamp()
nw = 0
for s_ in range(OPT['pwat'] + 1, 43):
    issue_upto(names.index(f'W{s_}'))
    for _ in range(2):
        if nw < 28 and seq[f'W{nw}'] <= a.vm_done: wr(nw); nw += 1
    if s_ == OPT['s2at']: s2()
if OPT['hp']: a('s_setprio 2')
while nw < 28: wr(nw); nw += 1
if OPT['hp']: a('s_setprio 0')
if OPT['s2at'] > 42: s2()
a.post(6)
a.stamp()
a(f's_or_b32 s60, {sCP}, {sW}')
a('s_cmp_lg_u32 s60, 0')
a('s_cbranch_scc1 L_noep')
for q in range(4): a(f'v_add_u32 v{40+q}, {WS_FLAG + 8192*q}, v39')
a(f's_mov_b32 {sSPIN}, 0')
a.place('L_ep')
for q in range(4): a(f'buffer_load_dwordx2 v[{44+2*q}:{45+2*q}], v{40+q}, {srd(WS)}, 0 offen sc1', track=False)
a('s_waitcnt vmcnt(0)')
a('s_mov_b64 s[60:61], exec')
for q in range(4):
    a(f'v_cmp_eq_u32 vcc, {sTAG}, v{44+2*q}'); a('s_and_b64 s[60:61], s[60:61], vcc')
    a(f'v_cmp_eq_u32 vcc, {sNTAG}, v{45+2*q}'); a('s_and_b64 s[60:61], s[60:61], vcc')
a('s_cmp_eq_u64 s[60:61], exec')
a('s_cbranch_scc1 L_epok')
a(f's_add_u32 {sSPIN}, {sSPIN}, 1'); a(f's_cmp_lt_u32 {sSPIN}, 0x20000'); a('s_cbranch_scc1 L_ep')
a.place('L_epok')
a(f'v_mov_b32 v40, {WS_E}'); a(f'v_mov_b32 v41, {sTAG}')
a('s_mov_b64 exec, 1')
a(f'buffer_store_dword v41, v40, {srd(WS)}, 0 offen sc1', track=False)
a('s_mov_b64 exec, -1')
a.place('L_noep')
a.expect(1, 4, sleep=2)
a.stamp()
if OPT['hp']: a('s_setprio 2')
for s_ in range(28, 43): wr(s_)
a.post(7)
if OPT['hp']: a('s_setprio 0')
a.stamp()
for _ in range(OPT['ydelay']): a('s_sleep 4')
a.poll_issue(vP3, 20, '0xff'); a.poll_check(vP3, 20, '0xff')
a.stamp()
a(f's_add_u32 m0, {sW2K}, {YT}')
for n in range(2): y = a(f'buffer_load_dwordx4 {v(vL16)}, {srd(WS)}, {sYL} offen offset:{1024*n} sc1 lds')
a.wait_vm(y); a.post(8, False)
a.wait_all_lg()
a.finish()

C = a = Prog('C', 4)
a.gap = 0
vCSR, vSTW, vXR, vWR, vYR, vCSW = 3, 11, 12, 20, 9, 8
vKA, vKB, vSHR, vUS = 212, 213, 214, 215
(vUA, vHA, vDU, vXW, vXRd, vYS, vE2W, vE2R, vSTa, vSTb, vSTS, vOTa, vOTb, vOTR, vOUT) = range(216, 231)
AR = 234
F = {k: 198 + i for i, k in enumerate(('l4', 'n', 'g', 'b', 'l1', 'l3', 'r', 'x', 'h', 't0', 't1', 't2'))}
def fx(s):
    for k, r in F.items(): s = s.replace('%' + k, f'v{r}')
    return s
def e(s): a(fx(s))
if OPT['prio']: a(f's_setprio {OPT["prio"]}')
a(f's_mov_b32 {sMASK}, 0xffff0000')
e('v_lshrrev_b32 %l4, 4, v1'); e('v_lshrrev_b32 %g, 5, v1'); e('v_and_b32 %b, 15, v1'); e('v_and_b32 %h, 1, %l4')
a(f's_lshl_b32 s60, {sW}, 1'); e('v_add_u32 %t0, s60, %g')
e('v_add_u32 %t1, 1, %b'); e('v_and_b32 %t1, 7, %t1'); e('v_xor_b32 %t1, %t1, %t0')
e('v_lshlrev_b32 %t2, 9, %b'); e('v_lshl_add_u32 %t2, %h, 3, %t2'); e(f'v_add_u32 %t2, {KB + 5*128}, %t2')
e(f'v_lshl_add_u32 {v(vKA)}, %t1, 4, %t2')
e('v_add_u32 %t1, 2, %b'); e('v_and_b32 %t1, 7, %t1'); e('v_xor_b32 %t1, %t1, %t0')
e(f'v_lshl_add_u32 {v(vKB)}, %t1, 4, %t2')
a(f's_lshl_b32 s60, {sW}, 7'); a(f's_add_u32 s60, s60, {SB}')
e(f'v_lshlrev_b32 {v(vSHR)}, 5, %l4'); a(f'v_add_u32 {v(vSHR)}, s60, {v(vSHR)}')
e(f'v_lshlrev_b32 {v(vUS)}, 14, %l4'); e(f'v_lshl_add_u32 {v(vUS)}, %b, 4, {v(vUS)}')
common2(a)
a('s_waitcnt lgkmcnt(0)')
a(f's_mov_b64 s[40:41], s[86:87]')
a(f's_mov_b64 s[{OUT}:{OUT+1}], s[94:95]')
a(f's_mov_b64 s[{WS}:{WS+1}], s[98:99]')
a(f's_load_dword {sE}, s[{WS}:{WS+1}], {WS_E}')
a(f's_lshl_b32 s60, {sCP}, 2')
a(f's_load_dword {sD}, s[40:41], s60')
spf = []
if OPT['spf']:
    a(f's_lshl_b32 s60, {sCP}, 13'); a(f's_add_u32 s60, s60, {sW2K}')
    a('s_add_u32 s84, s84, s60'); a('s_addc_u32 s85, s85, 0')
    a(f's_lshl_b32 s60, s2, 2'); a(f's_add_u32 s60, s60, {sW}'); a(f's_mul_i32 s60, s60, {11*128}'); a(f's_min_u32 s60, s60, {1409024 - 11*128}')
    a('s_add_u32 s92, s92, s60'); a('s_addc_u32 s93, s93, 0')
    for j in range(11): a(f's_load_dword s100, s[92:93], {128*j}')
    for j in range(32): a(f's_load_dword s100, s[84:85], {64*j}')
a(f's_lshl_b32 s60, {sDS}, 18'); a(f's_lshl_b32 s61, {st}, 8'); a('s_add_u32 s60, s60, s61')
a(f's_lshl_b32 s61, {sW}, 16'); a('s_add_u32 s60, s60, s61'); a(f's_add_u32 {sUS0}, s60, {WS_U}'); a(f's_add_u32 {sUS1}, {sUS0}, 8192')
a(f's_mov_b32 {sONES}, 0x3f803f80')
e('v_and_b32 %n, 31, v1'); e('v_and_b32 %l1, 1, v1'); e('v_and_b32 %l3, 3, v1'); e('v_bfe_u32 %r, v1, 2, 2')
e('v_bfe_u32 %t0, v1, 1, 3'); e('v_xor_b32 %t0, %t0, %g'); e('v_lshlrev_b32 %t0, 4, %t0')
e('v_lshl_add_u32 %x, %n, 7, %t0')
e(f'v_add_u32 %t0, {sW4K}, %x')
e('v_lshl_add_u32 %t1, %g, 3, %r'); e('v_mul_u32_u24 %t1, 192, %t1')
e('v_lshl_add_u32 %t1, %h, 5, %t1'); e('v_lshl_add_u32 %t1, %l3, 3, %t1')
for i in range(4):
    a(f's_add_u32 s60, {sW}, {i}'); a('s_and_b32 s60, s60, 3'); a('s_lshl_b32 s61, s60, 5')
    e(f'v_xor_b32 {v(vXR+i)}, s61, %t0')
    a('s_mul_i32 s61, s60, 3072')
    e(f'v_add_u32 {v(vWR+i)}, s61, %t1')
ACC, XF, WF, SU, SQ, CS = 32, 80, 112, 160, 162, 164
for r in range(SU, CS+3): a(f'v_mov_b32 {v(r)}, 0')
a('s_waitcnt lgkmcnt(0)')
a(f's_add_u32 {sTAG}, {sE}, 1'); a(f's_not_b32 {sNTAG}, {sTAG}')
a.post(0)
a.stamp()
S = []
def s_(*xs):
    for x in xs: S.append(fx(x))
for i in range(4): s_(f'v_add_u32 {v(vXR+4+i)}, {2*SLOT}, {v(vXR+i)}', f'v_add_u32 {v(vWR+4+i)}, {2*SLOT}, {v(vWR+i)}')
s_(f'v_mov_b32 v252, {sTAG}', f'v_mov_b32 v253, {sNTAG}')
s_(f's_lshl_b32 s60, {sCP}, 7', f's_lshl_b32 s61, {sW}, 15', 's_add_u32 s60, s60, s61', f's_add_u32 s60, s60, {WS_FLAG}')
s_(f'v_lshlrev_b32 {v(vFL)}, 3, %b', f'v_add_u32 {v(vFL)}, s60, {v(vFL)}')
NS1 = len(S)
s_(f's_mov_b32 s{OUT+2}, 2097152', f's_mov_b32 s{OUT+3}, 0x20000', f's_mov_b32 {sSELLO}, 0x05040100')
s_(f's_lshl_b32 {sD0}, {sD}, 16', f's_and_b32 {sD1}, {sD}, {sMASK}')
s_(f's_and_b32 s61, {st}, 1', 's_lshl_b32 s61, s61, 1', f's_add_u32 s61, s61, {sTH}', 's_lshl_b32 s61, s61, 8', f's_add_u32 s61, s61, {STATS}')
s_('v_lshlrev_b32 %t0, 3, %n', f'v_add_u32 {v(vSTS)}, s61, %t0')
s_(f's_lshl_b32 s60, {sW}, 8', f's_add_u32 s60, s60, {STATS}', f'v_add_u32 {v(vSTW)}, s60, %t0')
s_(f'v_add_u32 {v(vCSR)}, {CSUM}, {v(vL16)}', f's_lshl_b32 s60, {sW}, 2', f'v_add_u32 {v(vCSW)}, s60, {v(vCSR)}')
s_(f's_lshl_b32 s60, {sT}, 2', f's_add_u32 s60, s60, {sW}', 's_mul_i32 s60, s60, 86', f's_lshl_b32 s61, {sP0}, 1', 's_add_u32 s60, s60, s61', 's_lshl_b32 s60, s60, 10')
s_(f's_add_u32 {sHS}, s60, {WS_H}', f's_add_u32 {sHS3}, {sHS}, 4096')
S.append([f's_cmp_lt_u32 {sM1}, 11', f's_cselect_b32 {sHS3}, {sHS3}, {OOB}'])
s_(f's_mul_i32 s60, {sKH}, {CVCH}', f's_add_u32 s60, s60, {CV+448-192}', f's_lshl_b32 s61, {sTH}, 8', 's_sub_u32 s60, s60, s61')
s_(f'v_mul_u32_u24 {v(vUA)}, {U1OFF}, %l1', 'v_lshrrev_b32 %t0, 1, %b', 'v_lshl_add_u32 %t0, %t0, 2, %l4')
s_(f'v_lshl_add_u32 {v(vUA)}, %t0, 4, {v(vUA)}', f'v_add_u32 {v(vUA)}, s60, {v(vUA)}')
s_('v_xor_b32 %t0, 1, %l1', f'v_mul_u32_u24 {v(vHA)}, {HBD}, %t0', f'v_lshl_add_u32 {v(vHA)}, %b, 2, {v(vHA)}')
s_('v_lshlrev_b32 %t0, 4, %l4', f'v_sub_u32 {v(vHA)}, {v(vHA)}, %t0')
s_(f's_mul_i32 s60, {sKH}, {HCH}', 's_add_u32 s61, s60, s61', f's_add_u32 s61, s61, {HBASE+64-12}', f'v_add_u32 {v(vHA)}, s61, {v(vHA)}')
s_(f's_lshl_b32 s60, {st}, 1', f's_add_u32 s60, s60, {sTH}', 's_mul_i32 s60, s60, 86', f's_mul_i32 s61, {sKH}, 43', 's_add_u32 s60, s60, s61', 's_lshl_b32 s60, s60, 10')
s_(f's_add_u32 {sHL}, s60, {WS_H}')
s_('v_lshlrev_b32 %t0, 4, %r', 'v_lshl_add_u32 %t0, %l4, 7, %t0', 'v_xor_b32 %t1, 3, %l3', 'v_lshl_add_u32 %t0, %t1, 2, %t0')
s_(f's_add_u32 s60, {sM0W}, {CV+U1OFF+448}', f'v_add_u32 {v(vDU)}, s60, %t0')
s_(f's_lshl_b32 s60, {sW}, 13', f's_add_u32 s60, s60, {CV}', f'v_add_u32 {v(vXW)}, s60, {v(vL16)}')
s_(f's_add_u32 s60, {sW2K}, {CV}', f'v_add_u32 {v(vXRd)}, s60, {v(vL16)}')
s_(f'v_lshlrev_b32 {v(vYS)}, 16, %l4', f'v_lshl_add_u32 {v(vYS)}, %b, 4, {v(vYS)}')
s_(f's_lshl_b32 s60, {sW}, 19', f's_lshl_b32 s61, {sCP}, 8', 's_add_u32 s60, s60, s61', f's_add_u32 {sYS0}, s60, {WS_Y}', f's_add_u32 {sYS1}, {sYS0}, 0x40000')
s_('v_lshl_add_u32 %t0, %g, 2, %r', 'v_lshlrev_b32 %t0, 7, %t0', 'v_bfe_u32 %t1, v1, 3, 1', 'v_lshl_add_u32 %t0, %t1, 6, %t0')
s_('v_lshl_add_u32 %t0, %h, 5, %t0', 'v_lshl_add_u32 %t0, %l1, 4, %t0', 'v_bfe_u32 %t1, v1, 1, 1', 'v_lshl_add_u32 %t0, %t1, 3, %t0')
s_(f's_lshl_b32 s60, {sKH}, 6', 'v_xor_b32 %t0, s60, %t0', f's_lshl_b32 s61, {sKH}, 11')
s_(f'v_add_u32 {v(AR)}, s61, %t0', f'v_xor_b32 {v(AR+1)}, 64, {v(AR)}')
for k in (1, 2): s_(f'v_add_u32 {v(AR+2*k)}, {61440*k}, {v(AR)}', f'v_add_u32 {v(AR+2*k+1)}, {61440*k}, {v(AR+1)}')
s_(f'v_lshlrev_b32 {v(vYR)}, 10, %g', 'v_bfe_u32 %t1, v1, 1, 4', f'v_lshl_add_u32 {v(vYR)}, %t1, 4, {v(vYR)}', f'v_lshl_add_u32 {v(vYR)}, %l1, 2, {v(vYR)}')
s_(f's_lshl_b32 s61, {sKH}, 12', f's_lshl_b32 {sO0}, {sTH}, 3', f's_add_u32 s61, s61, {sO0}', f's_add_u32 s61, s61, {YT}', f'v_add_u32 {v(vYR)}, s61, {v(vYR)}')
s_('v_xor_b32 %t0, s60, %x', f's_lshl_b32 s61, {sTH}, 12', f's_add_u32 s61, s61, {XST}', f'v_add_u32 {v(vSTa)}, s61, %t0', f'v_xor_b32 {v(vSTb)}, 32, {v(vSTa)}')
s_(f's_add_u32 s61, {sW4K}, {EX}', f'v_add_u32 {v(vE2W)}, s61, {v(vL16)}')
s_(f's_xor_b32 s61, {sW4K}, 8192', f's_add_u32 s61, s61, {EX}', f'v_add_u32 {v(vE2R)}, s61, {v(vL16)}')
s_(f's_add_u32 s61, {sW2K}, {OT}', 'v_bfe_u32 %t0, v1, 1, 2', 'v_xor_b32 %t0, %t0, %g', 'v_lshlrev_b32 %t0, 4, %t0')
s_('v_lshl_add_u32 %t0, %n, 6, %t0', f'v_add_u32 {v(vOTa)}, s61, %t0', f'v_xor_b32 {v(vOTb)}, 32, {v(vOTa)}')
s_('v_lshrrev_b32 %t1, 2, v1', 'v_bfe_u32 %t0, v1, 3, 2', 'v_xor_b32 %t0, %t0, %l3', 'v_lshlrev_b32 %t0, 4, %t0', 'v_lshl_add_u32 %t0, %t1, 6, %t0')
s_(f'v_add_u32 {v(vOTR)}, s61, %t0', 'v_lshlrev_b32 %t1, 10, %t1', f'v_lshl_add_u32 {v(vOUT)}, %l3, 4, %t1')
s_(f's_lshl_b32 {sO0}, {st}, 16', f's_lshl_b32 s61, {sDS}, 7', f's_add_u32 {sO0}, {sO0}, s61', f's_lshl_b32 s61, {sTH}, 15')
s_(f's_add_u32 {sO0}, {sO0}, s61', f's_add_u32 {sO0}, {sO0}, s60', f's_add_u32 {sO1}, {sO0}, 16384')

KR, VR, SR, PA = 168, 182, 190, 240
WP, KU, VU, TP = 32, 48, 76, 92
a.bar('kv')
a.stamp()
for p in range(2): a(f'ds_read_b128 {v(SR+4*p,4)}, {v(vSHR)} offset:{16*p}')
for r in range(7): a(f'ds_read_b64 {v(KR+2*r,2)}, {v(vKA if r < 3 else vKB)} offset:{128*r}')
for r in range(4): a(f'ds_read_b64 {v(VR+2*r,2)}, {v(vKB)} offset:{VB-KB+128*(r+3)}')
for x in S[:NS1]: a(x)
S = S[NS1:]
for c in range(4):
    p, e_ = c >> 1, c & 1
    for jj in range(2): a(lo(WP+8*p+4*jj+e_, SR+2*c+jj)); a(hi(WP+8*p+4*jj+2+e_, SR+2*c+jj))
for p in range(2):
    for r in range(7): a(lo(KU+4*r+2*p, KR+2*r+p)); a(hi(KU+4*r+2*p+1, KR+2*r+p))
    for r in range(4): a(lo(VU+4*r+2*p, VR+2*r+p)); a(hi(VU+4*r+2*p+1, VR+2*r+p))
    for i in range(4): a(f'v_pk_mul_f32 {v(TP+2*i,2)}, {v(KU+4*i+2*p,2)}, {v(WP+8*p+6,2)}')
    for j in (2, 1, 0):
        for i in range(4): a(f'v_pk_fma_f32 {v(TP+2*i,2)}, {v(KU+4*(i+3-j)+2*p,2)}, {v(WP+8*p+2*j,2)}, {v(TP+2*i,2)}')
    for i in range(4): a(f'v_pk_mul_f32 {v(TP+2*i,2)}, {v(TP+2*i,2)}, {v(VU+4*i+2*p,2)}')
    for i in range(4): a(f'v_cvt_pk_bf16_f32 {v(PA+4*p+i)}, {v(TP+2*i)}, {v(TP+2*i+1)}')
    ust = a(f'buffer_store_dwordx4 {v(PA+4*p,4)}, {v(vUS)}, {srd(WS)}, {(sUS0, sUS1)[p]} offen sc1')
ust_t = a.t

AX, BX, vM, vRS, vS, vC3 = 168, 180, 184, 185, 186, 188
stats = [
    f'v_add_f32 {v(SU)}, {v(SU)}, {v(SU+1)}', f'v_add_f32 {v(SQ)}, {v(SQ)}, {v(SQ+1)}',
    f'v_mov_b32 {v(SU+1)}, {v(SU)}', f'v_mov_b32 {v(SQ+1)}, {v(SQ)}',
    f'v_permlane32_swap_b32 {v(SU)}, {v(SU+1)}', f'v_permlane32_swap_b32 {v(SQ)}, {v(SQ+1)}',
    f'v_add_f32 {v(SU)}, {v(SU)}, {v(SU+1)}', f'v_add_f32 {v(SQ)}, {v(SQ)}, {v(SQ+1)}',
    f'v_mul_f32 {v(SU)}, 0x3b000000, {v(SU)}', f'v_mul_f32 {v(SQ)}, 0x3b000000, {v(SQ)}',
    f'v_fma_f32 {v(SQ)}, -{v(SU)}, {v(SU)}, {v(SQ)}', f'v_max_f32 {v(SQ)}, 0, {v(SQ)}',
    f'v_cvt_pk_bf16_f32 v190, {v(SU)}, {v(SQ)}', 'v_xor_b32 v191, 0x8000, v190',
    f'v_perm_b32 {v(BX)}, v191, v191, {sSELLO}', f'v_mov_b32 {v(BX+1)}, {v(BX)}', f'v_mov_b32 {v(BX+2)}, {v(BX)}', f'v_mov_b32 {v(BX+3)}, {v(BX)}',
    lo(vM, 190), hi(191, 190), 'v_add_f32 v191, 0x3727c5ac, v191',
    'v_cvt_pk_bf16_f32 v191, v191, v191', lo(191, 191), 'v_sqrt_f32 v191, v191',
    'v_cvt_pk_bf16_f32 v191, v191, v191', lo(vS, 191), f'v_rcp_f32 {v(vRS)}, {v(vS)}',
    f'v_mul_f32 {v(vC3)}, 0xbfb8aa3b, {v(vRS)}', f'ds_write_b64 {v(vSTW)}, {v(vM,2)}']
def rdx(c):
    st_ = 4 * ((c % 4) >> 1); off = (c & 1) * SLOT
    return [f'ds_read_b128 {v(XF+16*(c&1)+4*i,4)}, {v(vXR+st_+i)} offset:{off}' for i in range(4)]
def rdw(c, i):
    st_ = 4 * ((c % 4) >> 1); off = (c & 1) * SLOT
    return [f'ds_read_b64_tr_b16 {v(WF+12*i+4*ft+2*rd,2)}, {v(vWR+st_+i)} offset:{off+16384+rd*768+ft*64}' for ft in range(3) for rd in range(2)]
a.stamp()
a.bar('c0')
a.stamp()
for x in rdx(0) + rdw(0, 0) + rdw(0, 1): a(x)
a.fq = S
flag1 = False
for c in range(8):
    X = XF + 16*(c & 1)
    late = rdw(c, 2) + rdw(c, 3)
    for i in range(4):
        for d in range(4):
            a(f'v_dot2c_f32_bf16 {v(SU+(d&1))}, {sONES}, {v(X+4*i+d)}'); a(f'v_dot2c_f32_bf16 {v(SQ+(d&1))}, {v(X+4*i+d)}, {v(X+4*i+d)}')
    for d in range(4):
        for ft in range(3): a(f'v_dot2c_f32_bf16 {v(CS+ft)}, {sONES}, {v(WF+4*ft+d)}')
    if c == 7:
        a.drain_f()
        for ft in range(3): a.fq += [hi(192+ft, CS+ft), f'v_sub_f32 v{195+ft}, {v(CS+ft)}, v{192+ft}']
        for ft in range(3): a.fq += [f'v_cvt_pk_bf16_f32 v{192+ft}, v{192+ft}, v{195+ft}', f'ds_write_b32 {v(vCSW)}, v{192+ft} offset:{1024*ft}']
        a.fq += stats
    def mm(i, ft):
        cin = '0' if (c == 0 and i == 0) else v(ACC+16*ft, 16)
        return f'v_mfma_f32_32x32x16_bf16 {v(ACC+16*ft,16)}, {v(WF+12*i+4*ft,4)}, {v(X+4*i,4)}, {cin}'
    for i in range(3):
        for ft in range(3):
            a(mm(i, ft))
            for x in late[:3]: a(x)
            late = late[3:]
            if 4 <= c < 7 and (i, ft) == (2, 0): a.peek(0)
            if c == 7 and (i, ft) == (2, 0):
                assert len(a.fq) <= len(stats), len(a.fq)
                a.post(1)
    if not flag1 and a.t - ust_t > OPT['f1d']:
        a.wait_vm(ust); a.flag_store(1); flag1 = True
    if c < 4: a.bar(f'c{c+1}')
    elif c < 7: a.expect(0, c - 3, True)
    a.stamp(1)
    nxt_ = rdx(c+1) + rdw(c+1, 0) + rdw(c+1, 1) if c < 7 else []
    for ft in range(3):
        a(mm(3, ft))
        if c == 7 and ft == 0: a.peek(1)
        if c == 7 and ft == 1:
            a.expect(1, 1, True)
            nxt_ = [f'ds_read_b128 {v(AX+4*q,4)}, {v(vCSR)} offset:{1024*q}' for q in range(3)]
        for x in nxt_[:6]: a(x)
        nxt_ = nxt_[6:]
a.drain_f()
for ft in range(3):
    a(f'v_mfma_f32_32x32x16_bf16 {v(ACC+16*ft,16)}, {v(AX+4*ft,4)}, {v(BX,4)}, {v(ACC+16*ft,16)}')
a.stamp()

CA, DU, DR = 160, 192, 208
def FA(set_, mu): return (80 if set_ == 0 else 32) + 4*mu
def FB(set_, nu): return 112 + 4*nu if set_ == 0 else (64 + 4*nu if nu < 4 else 144 + 4*(nu-4))
def rdA(rp, mu): return f'ds_read_b128 {v(FA(rp&1,mu),4)}, {v(vUA)} offset:{512*mu - 64*rp + 192}'
def rdB(rp, nu): return [f'ds_read_b64 {v(FB(rp&1,nu)+2*h,2)}, {v(vHA)} offset:{512*nu + 64*rp + 8*h}' for h in range(2)]
def reads(rp):
    r = rdB(rp, 0) + [rdA(rp, mu) for mu in range(8)]
    for nu in range(1, 8): r += rdB(rp, nu)
    return r
TS, HO = 144, 168
first = reads(0)
for fr in range(6):
    base = ACC + 8*fr; t = TS + 8*(fr & 1); o = HO + 4*(fr & 1)
    if fr == OPT['ubar']: a.expect(0, 4, True)
    def side(n):
        if fr >= OPT['ubar']:
            for x in first[:n]: a(x)
            del first[:n]
    for p in range(4): a(f'v_pk_mul_f32 {v(t+2*p,2)}, {v(base+2*p,2)}, {v(vC3,2)} op_sel_hi:[1,0]')
    side(6)
    for q in range(8): a(f'v_exp_f32 {v(t+q)}, {v(t+q)}')
    side(6)
    for p in range(4): a(f'v_pk_fma_f32 {v(t+2*p,2)}, {v(t+2*p,2)}, {v(vS,2)}, {v(vS,2)} op_sel_hi:[1,0,0]')
    if fr == OPT['ubar'] - 1: a.peek(0)
    for q in range(8): a(f'v_rcp_f32 {v(t+q)}, {v(t+q)}')
    for p in range(4): a(f'v_pk_mul_f32 {v(t+2*p,2)}, {v(t+2*p,2)}, {v(base+2*p,2)}')
    for p in range(4): a(f'v_cvt_pk_bf16_f32 {v(o+p)}, {v(t+2*p)}, {v(t+2*p+1)}')
    so, im = (sHS, fr*1024) if fr < 4 else (sHS3, (fr-4)*1024)
    hst = a(f'buffer_store_dwordx4 {v(o,4)}, {v(vL16)}, {srd(WS)}, {so} offen offset:{im} sc1')
a.stamp()
if OPT['ubar'] == 6:
    a.expect(0, 4, True)
    for x in first[:12]: a(x)
    del first[:12]

G2A, XR, XS, YR, XU, DM, YU = 32, 32, 152, 208, 160, 176, 192
AFB = [64, 72, 144]
RING = list(range(80, 144, 4)) + [12, 16, 20, 24, 240, 244, 248]
NR = len(RING)
def hreg(s): return RING[s % NR]
def rd2(s):
    o = w2slot(s); k = 2 * (o // 61440); o -= 30720 * k
    return [f'ds_read_b64_tr_b16 {v(AFB[s%3]+4*dt+2*rd,2)}, {v(AR+k+dt)} offset:{o + rd*1024}' for dt in (1, 0) for rd in range(2)]
hops = {}
def hld(s):
    def f():
        if s % 4 == 0: a(f's_add_u32 {sA}, {sHL}, {s*1024}')
        a(f'buffer_load_dwordx4 {v(hreg(s),4)}, {v(vL16)}, {srd(WS)}, {sA} offen offset:{(s%4)*1024} sc1')
    hops[s] = f
    return f
cnt = 0
for rp in range(4):
    rd = (first if rp == 0 else []) + (reads(rp + 1) if rp < 3 else [])
    if rp == 1:
        rd += [f'ds_read_b32 {v(DR+4*c+2*jj+h)}, {v(vDU)} offset:{c*CVCH + 512*jj + 64*h}' for c in range(2) for jj in range(2) for h in range(2)]
    if rp == 2:
        for c in range(2):
            for jj in range(2):
                for h in range(2):
                    src = DR+4*c+2*jj+h; d = DU+8*jj+4*c+2*h
                    a.fq += [hi(d, src), lo(d+1, src), f'v_mul_f32 {v(d)}, {(sD0, sD1)[c]}, {v(d)}', f'v_mul_f32 {v(d+1)}, {(sD0, sD1)[c]}, {v(d+1)}']
    for nu in range(8):
        if rp == 2 and nu == 5:
            assert not rd
            a.post(2); a.peek(0)
        if rp == 3 and nu == 0:
            a.stamp(); a.expect(0, 5, True); a.stamp()
            for s in range(OPT['hburst']): a.do(hld(s))
            a.gap = OPT['hgap']
            a.vq = [hld(s) for s in range(OPT['hburst'], NR)]
            a.peek(1)
        if rp == 3 and nu == 1: a.expect(1, 2, True)
        for mu in range(8 - nu):
            j = nu + mu
            if cnt == OPT['sig2']:
                a.stamp(); a.wait_vm(hst); a.stamp(); a.flag_store(2)
            cin = '0' if (rp == 0 and nu == 0) else v(CA+4*j, 4)
            a(f'v_mfma_f32_16x16x32_bf16 {v(CA+4*j,4)}, {v(FA(rp&1,mu),4)}, {v(FB(rp&1,nu),4)}, {cin}')
            cnt += 1
            for _ in range(2 if (rp == 0 and cnt <= 8) else 1):
                if rd: a(rd.pop(0))
            if rp == 3 and mu == 0 and nu >= 2: a(f'ds_write_b128 {v(vXW)}, {v(CA+4*(nu-2),4)} offset:{1024*(nu-2)}')
    assert not rd
a.drain_f()
a.stamp()
for j in (6, 7): a(f'ds_write_b128 {v(vXW)}, {v(CA+4*j,4)} offset:{1024*j}')
a.post(3)
a.expect(1, 3)
for jj in range(2):
    for sw in range(4): a(f'ds_read_b128 {v(XR+16*jj+4*sw,4)}, {v(vXRd)} offset:{8192*sw + 1024*jj}')
a.peek(0)
for jj in range(2):
    for hf in range(2):
        for c in range(2):
            for r in range(2): a(f'v_pk_add_f32 {v(DU+8*jj+4*c+2*r,2)}, {v(DU+8*jj+4*c+2*r,2)}, {v(XR+16*jj+8*c+4*hf+2*r,2)}')
    for r in range(4): a(f'v_cvt_pk_bf16_f32 {v(DR+4*jj+r)}, {v(DU+8*jj+r)}, {v(DU+8*jj+4+r)}')
    yst = a(f'buffer_store_dwordx4 {v(DR+4*jj,4)}, {v(vYS)}, {srd(WS)}, {(sYS0, sYS1)[jj]} offen sc1')
    if jj == 0:
        a.expect(0, 6, True)
        for x in rd2(0) + rd2(1): a(x)
a.stamp()

pre = []
for k in range(8): pre += [lo(XU+2*k, XS+k), hi(XU+2*k+1, XS+k)]
for k in range(16): pre.append(f'v_sub_f32 {v(DM+k)}, {v(XU+k)}, v232')
for k in range(16): pre.append(f'v_mul_f32 {v(DM+k)}, {v(DM+k)}, v233')
post_ = []
for k in range(8): post_ += [lo(YU+2*k, YR+k), hi(YU+2*k+1, YR+k)]
for k in range(16): post_.append(f'v_fmac_f32 {v(XU+k)}, {v(DM+k)}, {v(YU+k)}')
yreads = [f'ds_read_b32 {v(YR+4*grp+q)}, {v(vYR)} offset:{(8*grp+q)*256}' for grp in range(2) for q in range(4)]
for s in range(43):
    if s > 0 and s + NR - 1 < 43: a.vq.append(hld(s + NR - 1))
    if s == 8: a.post(4); a.stamp()
    if s == 18: a.post(5)
    if s == 26: a.expect(0, 7, True); a.stamp()
    if s == OPT['sig3']: a.wait_vm(yst); a.flag_store(3)
    side = rd2(s + 2) if s + 2 < 43 else []
    if s == 2: side += [f'ds_read_b128 {v(XS,4)}, {v(vSTa)}', f'ds_read_b128 {v(XS+4,4)}, {v(vSTb)}', f'ds_read_b64 v[232:233], {v(vSTS)}']
    if s == 4: a.fq += pre
    if s == 30: a.expect(1, 5, True)
    if s == OPT['ybar']:
        a.stamp(); a.expect(0, 8, True); a.stamp()
        side += yreads
    if s == OPT['ybar'] + 2: a.fq += post_
    if hops[s] in a.vq: a.drain_v(hops[s])
    h = (len(side) + 1) // 2
    for dt in (1, 0):
        cin = '0' if s == 0 else v(G2A+16*dt, 16)
        a(f'v_mfma_f32_32x32x16_bf16 {v(G2A+16*dt,16)}, {v(AFB[s%3]+4*dt,4)}, {v(hreg(s),4)}, {cin}')
        for x in side[:h]: a(x)
        side = side[h:]
    if s + 2 in (26, OPT['ybar']): a.peek(0)
    if s == 28: a.peek(1)
a.drain_f()
a.stamp()
for k in range(4): a(f'ds_write_b128 {v(vE2W)}, {v(G2A+16+4*k,4)} offset:{1024*k}')
a.post(6)
for k in range(8): a(f'v_pk_add_f32 {v(XU+2*k,2)}, {v(XU+2*k,2)}, {v(G2A+2*k,2)}')
a.expect(1, 6)
for k in range(4): a(f'ds_read_b128 {v(80+4*k,4)}, {v(vE2R)} offset:{1024*k}')
for h in range(2):
    for k in range(4*h, 4*h+4): a(f'v_pk_add_f32 {v(XU+2*k,2)}, {v(XU+2*k,2)}, {v(80+2*k,2)}')
    for k in range(4*h, 4*h+4): a(f'v_cvt_pk_bf16_f32 {v(96+k)}, {v(XU+2*k)}, {v(XU+2*k+1)}')
    a(f'ds_write_b128 {v((vOTa, vOTb)[h])}, {v(96+4*h,4)}')
a.wait_all_lg()
a(f'ds_read_b128 v[104:107], {v(vOTR)}'); a(f'ds_read_b128 v[108:111], {v(vOTR)} offset:1024')
a(f'buffer_store_dwordx4 v[104:107], {v(vOUT)}, {srd(OUT)}, {sO0} offen{OSC}')
a(f'buffer_store_dwordx4 v[108:111], {v(vOUT)}, {srd(OUT)}, {sO1} offen{OSC}')
a.stamp()
print('estimated compute cycles', int(a.t), file=sys.stderr)
a.finish()
assert L.bars == C.bars, (L.bars, C.bars)

lines = P.lines + L1lines + ['L_compute:'] + C.lines + L.lines + ['L_end:', '    s_endpgm']
if OPT['skel']:
    drop = ('v_mfma', 'v_dot', 'v_pk_', 'v_exp', 'v_rcp', 'ds_read_b64', 'v_fmac', 'v_mul_f32', 'v_cvt_pk', 'ds_write_b128', 'v_perm_b32', 'v_add_f32', 'v_sub_f32')
    lines = [l for l in lines if not l.strip().startswith(drop)]
hdr = open('parallel_sum__ssm_conv_h3__dense_activation_silu__prompt.s.ref').read().split('\n')
hdr = [l for l in hdr if l.startswith(';') and '@launch' not in l]
out = '\n'.join(hdr) + f'\n; @launch grid=(256,1,1) block=(512,1,1) lds={LDS_SIZE}\n'
out += f'''.amdgcn_target "amdgcn-amd-amdhsa--gfx950"
.text
.globl {NAME}
.p2align 8
.type {NAME},@function
{NAME}:
''' + '\n'.join(lines) + f'''
.section .rodata,"a"
.p2align 6
.amdhsa_kernel {NAME}
  .amdhsa_next_free_vgpr 256
  .amdhsa_next_free_sgpr 102
  .amdhsa_accum_offset 256
  .amdhsa_group_segment_fixed_size 0
  .amdhsa_kernarg_size 96
  .amdhsa_user_sgpr_count 2
  .amdhsa_user_sgpr_kernarg_segment_ptr 1
  .amdhsa_system_sgpr_workgroup_id_x 1
.end_amdhsa_kernel
'''
open(sys.argv[1], 'w').write(out)
print(dbg, file=sys.stderr)
print('lines', len(lines), 'stamps L/C', L.nstamp, C.nstamp, file=sys.stderr)
```

```python
import sys
from emit import Asm

NAME = "parallel_sum__ssm_conv_h3__dense_activation_silu__prompt_kernel"
OPT = dict(stamps=0, sg=0, probe=-2, base=60000, who=1, skel=0,
           map=0, rot=0, prio=1, look=10, lookkv=7, cap=8, hat=8, t2at=-2, t3at=-2, upat=0, ulat=9, ubat=21,
           pwat=14, s2at=42, psleep=4, pdelay=0, f1d=1000, ubar=5, sig2=40, sig3=12, hburst=6, hgap=64,
           g2at=24, ybar=40, osc=1, ht=0, ydelay=0, lprio=0, t2mode=0, spf=0, sw2=0, hp=1, dsx=4, ntkv=0, ntx=0, nth=0)
for x in sys.argv[2:]:
    k, v = x.split('='); assert k in OPT, k; OPT[k] = int(v)

WS_E, WS_FLAG, WS_STAMP, WS_U, WS_Y, WS_H, WS_SIZE = 0, 0x80000, 0x40000, 0x100000, 0x300000, 0x500000, 0x1000000
FPH = 0x20000
OOB = 0x7f000000
SLOT = 28672
CV = 114688; CVCH = 9216; U1OFF = 4640; HBASE = CV + 18432; HCH = 8448; HBD = 4228
KB, VB, SB = CV, CV + 8192, CV + 9216 + 8192
XST = 150016; STATS = 158208; CSUM = 159232; PW = CSUM + 3072
LDS_SIZE = 163840
def w2slot(s): return (s if s < 36 else s - 36) * 4096
YT, EX, OT = 8*4096, 12*4096, 10*4096
Q, K, V, SH, HK, W1, W2, OUT, WS = 4, 8, 12, 16, 20, 24, 28, 32, 36
def srd(r): return f's[{r}:{r+3}]'
sD, sE, sT, sM1, st, sDS, sCP, sW, sWV, sTAG, sNTAG, sP0 = [f's{i}' for i in range(42, 54)]
sXO, sW1O, sHS, sHS3, sW2O, sHL = [f's{i}' for i in range(54, 60)]
sM0W, sW4K, sW3K, sSELLO, sSELHI, sONES = [f's{i}' for i in range(62, 68)]
sPAIR = 's[68:69]'
sSPIN, sTH, sKH, sMASK, sW2K, sI = [f's{i}' for i in range(70, 76)]
sHM0, sHSO, sD0, sD1, sA, sB, sG, sUS0 = [f's{i}' for i in range(76, 84)]
sUS1 = 's86'
sUL, sYS0, sYS1, sYL, sO0, sO1, sROT, sC = [f's{i}' for i in range(88, 96)]
sSTASH = 's101'
def v(n, c=1): return f'v{n}' if c == 1 else f'v[{n}:{n+c-1}]'
OSC = ' sc1' if OPT['osc'] else ''
vL16, vSTAMP, vFL, vPWB, vPWM, vPWT = 2, 31, 28, 29, 30, 255

class Prog(Asm):
    def __init__(self, name, pwr):
        super().__init__(); self.name = name; self.bars = []; self.nstamp = 0; self.pwr = pwr
    def label(self):
        self.nlabel += 1; return f'{self.name}{self.nlabel}'
    def bar(self, tag, lg=True):
        self.lock()
        if lg: self.wait_all_lg()
        self('s_barrier'); self.bars.append(tag)
        self.unlock()
    def post(self, n, lg=True):
        self.lock()
        self(f'v_mov_b32 {v(vPWT)}, {n}')
        if lg: self.wait_all_lg()
        self('s_mov_b64 exec, 1')
        self(f'ds_write_b32 {v(vPWM)}, {v(vPWT)}')
        self('s_mov_b64 exec, -1')
        self.unlock()
    def peek(self, grp):
        self(f'ds_read_b128 {v(self.pwr,4)}, {v(vPWB)} offset:{16*grp}')
    def expect(self, grp, n, peeked=False, sleep=0):
        r = self.pwr
        self.lock()
        if not peeked: self.peek(grp)
        top, done = self.label(), self.label()
        self.wait_lg(self.pend[('v', r)][1])
        self.place(top)
        self(f'v_min3_u32 {v(r)}, {v(r)}, {v(r+1)}, {v(r+2)}')
        self(f'v_min_u32 {v(r)}, {v(r)}, {v(r+3)}')
        self(f'v_cmp_gt_u32 vcc, {n}, {v(r)}')
        self(f's_cbranch_vccz {done}')
        t0 = self.t
        if sleep: self(f's_sleep {sleep}')
        self(f'ds_read_b128 {v(r,4)}, {v(vPWB)} offset:{16*grp}', track=False)
        self('s_waitcnt lgkmcnt(0)')
        self(f's_branch {top}')
        self.place(done)
        self.t = t0 + (0 if peeked else 100)
        self.unlock()
    def stamp(self, g=0):
        if not OPT['stamps'] or g != OPT['sg']: return
        k = self.nstamp; self.nstamp += 1
        self.lock(); self.wait_all_lg()
        self('s_memtime s[96:97]'); self('s_waitcnt lgkmcnt(0)')
        self('s_sub_u32 s96, s96, s3')
        self(f'v_writelane_b32 {v(vSTAMP)}, s96, {k}')
        self.unlock()
    def dma(self, vaddr, rs, soff, m0expr, extra='', track=True):
        self(m0expr)
        return self(f'buffer_load_dwordx4 {v(vaddr)}, {srd(rs)}, {soff} offen{extra} lds', track=track)
    def flag_store(self, phase):
        self.lock()
        self(f's_mov_b32 {sG}, {(phase-1)*FPH}')
        self('s_mov_b64 exec, 0xffff')
        self(f'buffer_store_dwordx2 v[252:253], {v(vFL)}, {srd(WS)}, {sG} offen sc1')
        self('s_mov_b64 exec, -1')
        self.unlock()
    def poll_issue(self, vaddr, dst, mask):
        self(f's_mov_b64 exec, {mask}')
        r = self(f'buffer_load_dwordx2 {v(dst,2)}, {v(vaddr)}, {srd(WS)}, 0 offen sc1')
        self('s_mov_b64 exec, -1')
        return r
    def poll_check(self, vaddr, dst, mask):
        self.lock()
        top, done = self.label(), self.label()
        self(f's_mov_b32 {sSPIN}, 0')
        self(f's_mov_b64 exec, {mask}')
        self.wait_vm(self.pend[('v', dst)][1])
        self.place(top)
        self(f'v_cmp_eq_u32 vcc, {sTAG}, {v(dst)}')
        self(f'v_cmp_eq_u32 {sPAIR}, {sNTAG}, {v(dst+1)}')
        self(f's_and_b64 vcc, vcc, {sPAIR}')
        self('s_cmp_eq_u64 vcc, exec')
        self(f's_cbranch_scc1 {done}')
        self(f's_add_u32 {sSPIN}, {sSPIN}, 1')
        self(f's_cmp_gt_u32 {sSPIN}, 0x20000')
        self(f's_cbranch_scc1 {done}')
        self(f's_sleep {OPT["psleep"]}')
        self(f'buffer_load_dwordx2 {v(dst,2)}, {v(vaddr)}, {srd(WS)}, 0 offen sc1', track=False)
        self('s_waitcnt vmcnt(0)')
        self(f's_branch {top}')
        self.place(done)
        self('s_mov_b64 exec, -1')
        self.unlock()
    def finish(self):
        a = self
        if OPT['stamps']:
            a('s_waitcnt vmcnt(0)')
            a.stamp(OPT['sg'])
            if OPT['probe'] > -2 and (a.name == 'C') == (OPT['who'] == 1):
                a(f's_mov_b32 s60, {OPT["base"]}')
                if OPT['probe'] >= 0:
                    a(f'v_readlane_b32 s61, {v(vSTAMP)}, {OPT["probe"]}'); a('s_add_u32 s60, s60, s61')
                l = a.label(); a.place(l)
                a('s_memtime s[96:97]'); a('s_waitcnt lgkmcnt(0)'); a('s_sub_u32 s96, s96, s3'); a('s_cmp_lt_u32 s96, s60'); a(f's_cbranch_scc1 {l}')
            a('s_lshl_b32 s60, s2, 3'); a(f's_add_u32 s60, s60, {sWV}'); a('s_lshl_b32 s60, s60, 7'); a(f's_add_u32 s60, s60, {WS_STAMP}')
            a('v_lshlrev_b32 v128, 2, v1')
            a('s_mov_b64 exec, 0xffffffff')
            a(f'buffer_store_dword {v(vSTAMP)}, v128, {srd(WS)}, s60 offen')
        a('s_endpgm')

def lo(d, s): return f'v_lshlrev_b32 {v(d)}, 16, {v(s)}'
def hi(d, s): return f'v_and_b32 {v(d)}, {sMASK}, {v(s)}'

P = a = Prog('P', 0)
a('s_cmp_ge_u32 s2, 256')
a('s_cbranch_scc1 L_end')
if OPT['stamps']:
    a('s_memtime s[68:69]'); a('s_memrealtime s[70:71]'); a('s_waitcnt lgkmcnt(0)'); a('s_mov_b32 s3, s68')
    a(f'v_mov_b32 {v(vSTAMP)}, 0'); a(f'v_writelane_b32 {v(vSTAMP)}, s70, 31')
a('s_load_dwordx16 s[76:91], s[0:1], 0')
a('s_load_dwordx8 s[92:99], s[0:1], 64')
a('v_lshrrev_b32 v3, 6, v0')
a('v_and_b32 v1, 63, v0')
a('s_getpc_b64 s[60:61]')
a.place('L_pc')
a(f'v_readfirstlane_b32 {sWV}, v3')
a(f's_lshr_b32 {sI}, s2, 3')
a('v_lshlrev_b32 v39, 7, v1')
a(f's_and_b32 s62, {sI}, 7'); a('s_lshl_b32 s62, s62, 12')
a(f's_cmp_ge_u32 {sWV}, 4'); a('s_cselect_b32 s62, s62, 0')
a(f's_lshl_b32 s63, {sWV}, 10'); a('s_add_u32 s62, s62, s63')
a('v_add_u32 v3, s62, v39')
a('v_min_u32 v3, L_end-L_pc, v3')
a('s_mov_b64 exec, 0xff')
a('global_load_dword v254, v3, s[60:61]', track=False)
a('s_mov_b64 exec, -1')
a(f's_and_b32 {sW}, {sWV}, 3')
a('s_and_b32 s60, s2, 7')
lg = OPT['map']
a(f's_lshr_b32 {sT}, s60, {lg}'); a(f's_lshl_b32 {sT}, {sT}, {1+lg}')
a(f's_and_b32 s61, {sI}, {(2<<lg)-1}'); a(f's_add_u32 {sT}, {sT}, s61')
a(f's_and_b32 {sM1}, s60, {(1<<lg)-1}'); a(f's_lshl_b32 {sM1}, {sM1}, {4-lg}')
a(f's_lshr_b32 s61, {sI}, {1+lg}'); a(f's_add_u32 {sM1}, {sM1}, s61')
a(f's_and_b32 s61, {sM1}, 1')
a(f's_lshl_b32 {st}, {sT}, 1')
a(f's_add_u32 {st}, {st}, s61')
a(f's_lshr_b32 {sDS}, {sM1}, 1')
if OPT['dsx']: a(f's_xor_b32 {sDS}, {sDS}, {OPT["dsx"]}')
a(f's_lshl_b32 {sW2K}, {sW}, 11')
a(f'v_lshlrev_b32 {v(vL16)}, 4, v1')
a(f's_cmp_ge_u32 {sWV}, 4')
a('s_cbranch_scc1 L_compute')
def common2(a):
    a(f's_lshl_b32 {sCP}, {sDS}, 5'); a(f's_add_u32 {sCP}, {sCP}, {st}')
    a(f's_lshl_b32 {sW4K}, {sW}, 12'); a(f's_lshl_b32 {sM0W}, {sW}, 10')
    a(f's_and_b32 {sTH}, {sW}, 1'); a(f's_lshr_b32 {sKH}, {sW}, 1')
    a(f's_mul_i32 {sP0}, {sM1}, 3'); a(f's_lshl_b32 s60, {sM1}, 1'); a('s_add_u32 s60, s60, 11'); a(f's_min_u32 {sP0}, {sP0}, s60')
    a(f's_mov_b32 s{WS+2}, {WS_SIZE}'); a(f's_mov_b32 s{WS+3}, 0x20000')
    a(f'v_mov_b32 {v(vPWB)}, {PW}'); a(f's_lshl_b32 s60, {sWV}, 2'); a(f'v_add_u32 {v(vPWM)}, s60, {v(vPWB)}')

L = a = Prog('L', 56)
vXA, vWA, vKD, vHALO, vT43, vW2A, vW2W, vP2, vP3 = 4, 8, 12, 14, 15, 16, 17, 18, 19
vP1, vUL, vULp, vUW, vZU, vZH, vW2W2, vW2W3, UR, PO, WT = 22, 23, 24, 25, 26, 27, 11, 3, 236, 40, 64
if OPT['lprio']: a(f's_setprio {OPT["lprio"]}')
for r, n in ((W1, 1409024), (Q, 2097152), (K, 2097152), (V, 2097152), (SH, 4096)):
    a(f's_mov_b32 s{r+2}, {n}'); a(f's_mov_b32 s{r+3}, 0x20000')
a(f'v_min_u32 {v(vT43)}, {42*128}, v39')
a('v_lshrrev_b32 v33, 3, v1'); a('v_and_b32 v34, 7, v1'); a('v_lshlrev_b32 v33, 10, v33')
a(f's_lshl_b32 s60, {st}, 16'); a(f's_lshl_b32 s61, {sW}, 14'); a('s_add_u32 s60, s60, s61')
a(f's_lshl_b32 s61, {sDS}, 7'); a(f's_add_u32 {sSTASH}, s60, s61')
a('v_lshrrev_b32 v35, 5, v1'); a('v_xor_b32 v35, v35, v34'); a('v_lshl_add_u32 v38, v35, 4, v33')
a(f's_lshl_b32 s60, {sW}, 6'); a('s_and_b32 s60, s60, 64'); a('s_xor_b32 s61, s60, 32')
a(f'v_xor_b32 {v(vKD)}, s61, v38')
a('s_xor_b32 s61, s60, 64')
a(f'v_xor_b32 {v(vKD+1)}, s61, v38'); a(f'v_add_u32 {v(vKD+1)}, 8192, {v(vKD+1)}')
a(f'v_add_u32 v38, {sSTASH}, v38'); a(f'v_subrev_u32 {v(vHALO)}, 8192, v38')
a(f's_lshl_b32 {sXO}, {sT}, 17')
a('s_waitcnt lgkmcnt(0)')
a(f's_mov_b64 s[{W1}:{W1+1}], s[90:91]')
a(f's_mov_b64 s[{Q}:{Q+1}], s[76:77]')
a(f's_mov_b64 s[{K}:{K+1}], s[78:79]')
a(f's_mov_b64 s[{V}:{V+1}], s[80:81]')
a(f's_mov_b64 s[{SH}:{SH+1}], s[82:83]')
seq = {}
l = [a.label() for _ in range(4)]
a(f's_cmp_lg_u32 {sW}, 2'); a(f's_cbranch_scc1 {l[0]}')
a(f's_mul_i32 s60, s2, {43*128}')
a(f'buffer_load_dword v254, {v(vT43)}, {srd(W1)}, s60 offen', track=False); a(f's_branch {l[3]}')
a.place(l[0])
a(f's_cmp_lg_u32 {sW}, 3'); a(f's_cbranch_scc1 {l[1]}')
a(f's_lshl_b32 s61, {sM1}, 13'); a(f's_add_u32 s60, {sXO}, s61')
a(f'buffer_load_dword v254, v39, {srd(Q)}, s60 offen' + ' nt' * OPT['ntx'], track=False); a(f's_branch {l[3]}')
a.place(l[1])
a(f's_cmp_lg_u32 {sW}, 0'); a(f's_cbranch_scc1 {l[2]}')
a.dma(vHALO, K, '0', f's_mov_b32 m0, {KB}', track=False); a(f's_branch {l[3]}')
a.place(l[2])
a(f's_lshl_b32 s60, {sDS}, 9')
a.dma(vL16, SH, 's60', f's_mov_b32 m0, {SB}', track=False)
a.place(l[3])
for rs, base in ((K, KB), (V, VB)):
    for n in range(2): seq['kv'] = a.dma(vKD+n, rs, sSTASH, f's_add_u32 m0, {sW2K}, {base + 1024 + n*1024}', ' nt' * OPT['ntkv'])
a(f's_mov_b64 s[{HK}:{HK+1}], s[84:85]')
a(f's_mov_b64 s[{W2}:{W2+1}], s[92:93]')
a(f's_mov_b64 s[{WS}:{WS+1}], s[98:99]')
a(f's_load_dword {sE}, s[{WS}:{WS+1}], {WS_E}')
common2(a)
a('v_lshrrev_b32 v32, 4, v1')
a('v_xor_b32 v35, v34, v32')
a(f'v_lshl_add_u32 {v(vXA)}, v35, 4, v33')
a(f'v_xor_b32 {v(vXA+1)}, 64, {v(vXA)}')
a(f'v_add_u32 {v(vXA+1)}, 8192, {v(vXA+1)}')
a(f'v_add_u32 {v(vXA+2)}, 16384, {v(vXA)}')
a(f'v_add_u32 {v(vXA+3)}, 16384, {v(vXA+1)}')
a(f's_lshl_b32 s60, {sW}, 15'); a(f's_add_u32 {sXO}, {sXO}, s60')
a(f's_mul_i32 {sW3K}, {sW}, 3072')
a(f's_cmp_lt_u32 {sM1}, 11')
a('s_cselect_b32 s61, 12, 8')
a(f'v_mov_b32 v3, {OOB}')
for j in range(3):
    if j: a(f'v_add_u32 v36, {64*j}, v1')
    src = 'v36' if j else 'v1'
    a(f'v_mul_u32_u24 v37, 5462, {src}')
    a('v_lshrrev_b32 v37, 16, v37')
    a('v_mul_u32_u24 v35, 12, v37')
    a(f'v_sub_u32 v35, {src}, v35')
    a('v_cmp_gt_u32 vcc, s61, v35')
    a('v_mul_u32_u24 v37, 2752, v37')
    a(f'v_lshl_add_u32 {v(vWA+j)}, v35, 4, v37')
    a(f'v_cndmask_b32 {v(vWA+j)}, v3, {v(vWA+j)}, vcc')
a(f's_mul_i32 {sW1O}, {sW}, {16*2752}'); a(f's_lshl_b32 s60, {sP0}, 6'); a(f's_add_u32 {sW1O}, {sW1O}, s60')
if OPT['rot'] == 1: a(f's_and_b32 {sROT}, {sM1}, 7')
elif OPT['rot'] == 2:
    a(f's_lshl_b32 {sROT}, {sT}, 2'); a(f's_add_u32 {sROT}, {sROT}, {sM1}')
for r, n in ((HK, 2097152), (W2, 1409024)):
    a(f's_mov_b32 s{r+2}, {n}'); a(f's_mov_b32 s{r+3}, 0x20000')

ops = []
def op(name, gate, fn): ops.append((name, gate, fn))
def touch2():
    if OPT['t2mode']:
        a(f's_lshl_b32 {sG}, {sI}, 2'); a(f's_add_u32 {sG}, {sG}, {sW}')
        if OPT['map'] == 1:
            a(f's_mul_i32 {sG}, {sG}, 43'); a('v_min_u32 v253, 42, v1'); a(f'v_add_u32 v253, {sG}, v253')
            a('v_and_b32 v252, 3, v253'); a('v_lshrrev_b32 v253, 2, v253'); a('v_lshlrev_b32 v253, 10, v253'); a('v_lshl_add_u32 v253, v252, 7, v253')
            a(f's_and_b32 {sG}, {sDS}, 4'); a(f's_lshl_b32 {sG}, {sG}, 7')
            a(f'buffer_load_dword v254, v253, {srd(W2)}, {sG} offen')
        else:
            a(f's_mul_i32 {sG}, {sG}, {86*128}')
            a(f'buffer_load_dword v254, {v(vT43)}, {srd(W2)}, {sG} offen')
            a(f's_add_u32 {sG}, {sG}, {43*128}')
            a(f'buffer_load_dword v253, {v(vT43)}, {srd(W2)}, {sG} offen')
        return
    l = a.label()
    a(f's_cmp_lg_u32 {sW}, 2'); a(f's_cbranch_scc1 {l}')
    a(f's_mul_i32 {sG}, s2, {43*128}')
    a(f'buffer_load_dword v254, {v(vT43)}, {srd(W2)}, {sG} offen', track=False)
    a.place(l)
def touch3():
    l = a.label()
    a(f's_cmp_lg_u32 {sW}, 3'); a(f's_cbranch_scc1 {l}')
    a(f's_mul_i32 {sG}, {sI}, {43*1024}'); a(f'v_lshlrev_b32 v253, 3, {v(vT43)}')
    a(f'buffer_load_dword v254, v253, {srd(W2)}, {sG} offen offset:384', track=False)
    a.place(l)
def add_chunk(c):
    slot = (c % 4) * SLOT
    gate = f'c{c-3}' if c >= 4 else None
    def w(j):
        def f():
            if j == 0:
                if c == OPT['t2at']: touch2()
                if c == OPT['t3at']: touch3()
                if OPT['rot']:
                    a(f's_add_u32 {sC}, {sROT}, {c}'); a(f's_and_b32 {sC}, {sC}, 7')
                    a(f's_mul_i32 {sB}, {sC}, {64*2752}'); a(f's_add_u32 {sB}, {sB}, {sW1O}')
                    a(f's_lshl_b32 {sA}, {sC}, 7'); a(f's_add_u32 {sA}, {sA}, {sXO}')
                else:
                    a(f's_add_u32 {sB}, {sW1O}, {c*64*2752}'); a(f's_add_u32 {sA}, {sXO}, {c*128}')
            return a.dma(vWA+j, W1, sB, f's_add_u32 m0, {sW3K}, {slot + 16384 + j*1024}')
        return f
    for j in range(3): op(f'w{c}_{j}', gate, w(j))
    for n in range(4): op(f'x{c}_{n}', gate, lambda n=n: a.dma(vXA+n, Q, sA, f's_add_u32 m0, {sW4K}, {slot + n*1024}'))
def add_h():
    for n in range(4):
        def f(n=n):
            if n == 0 and OPT['t2at'] == -2: touch2()
            if n == 0 and OPT['t3at'] == -2: touch3()
            a(f's_mov_b32 m0, {sHM0}')
            return a(f'buffer_load_dwordx4 {v(vL16)}, {srd(HK)}, {sHSO} offen offset:{n*1024}{" nt" * OPT["nth"]} lds')
        op(f'h{n}', None, f)
def w2op(s):
    a(f's_add_u32 {sO0}, {sW2O}, {s*16384}')
    return a(f'buffer_load_dwordx4 {v(WT+4*s,4)}, {v(vW2A)}, {srd(W2)}, {sO0} offen')
def uload():
    a.poll_check(vP1, 20, '0x1ff')
    a(f'buffer_load_dwordx4 {v(UR,4)}, {v(vUL)}, {srd(WS)}, {sUL} offen sc1')
    a(f'buffer_load_dwordx4 {v(UR+4,4)}, {v(vUL)}, {srd(WS)}, {sUL} offen offset:16 sc1')
    return a(f'buffer_load_dword {v(UR+8)}, {v(vULp)}, {srd(WS)}, {sUL} offen sc1')
def ubuild():
    if OPT['hp']: a('s_setprio 2')
    for i in range(4): a(f'v_mov_b32 v{60+i}, 0')
    a(f'ds_write_b128 {v(vZU)}, v[60:63]'); a(f'ds_write_b32 {v(vZH)}, v60')
    for c in range(2):
        sel = sSELLO if c == 0 else sSELHI
        for k in range(4):
            hi0 = UR + 5 - 2*k if k < 3 else UR + 8
            a(f'v_perm_b32 {v(PO+8*c+k)}, {v(hi0)}, {v(UR+6-2*k)}, {sel}')
        a(f'ds_write_b128 {v(vUW)}, {v(PO+8*c,4)} offset:{c*CVCH}')
        for k in range(4): a(f'v_perm_b32 {v(PO+8*c+4+k)}, {v(UR+6-2*k)}, {v(UR+7-2*k)}, {sel}')
        a(f'ds_write_b128 {v(vUW)}, {v(PO+8*c+4,4)} offset:{c*CVCH+U1OFF}')
    flush_posts(True)
    a.wait_vm(max(seq['st1'], seq['h3']))
    a.post(4); a.stamp()
    if OPT['hp']: a('s_setprio 0')
    return a.vm_n
for c in range(8):
    if c == OPT['hat']: add_h()
    add_chunk(c)
for n in range(2): op(f'st{n}', None, lambda n=n: a.dma(vXA+n, Q, sSTASH, f's_add_u32 m0, {sW2K}, {XST + n*1024}'))
if OPT['hat'] == 8: add_h()
for s_ in range(43): op(f'W{s_}', None, lambda s_=s_: w2op(s_))
b0 = [o[0] for o in ops].index('w7_0')
for nm, pos, fn in (('ub', OPT['ubat'], ubuild), ('ul', OPT['ulat'], uload), ('up', OPT['upat'], lambda: a.poll_issue(vP1, 20, '0x1ff'))):
    ops.insert(b0 + pos, (nm, 'c4', fn))
names = [o[0] for o in ops]
nxt = [0]
posts = [('x5_3', 1), ('x6_3', 2), ('x7_3', 3)]
capped = [False]
dbg = []
def flush_posts(force=False):
    while posts and posts[0][0] in seq and (force or a.vm_done >= seq[posts[0][0]]):
        a.wait_vm(seq[posts[0][0]]); a.post(posts[0][1], False); a.stamp(); posts.pop(0)
def issue_upto(idx):
    while nxt[0] <= min(idx, len(ops) - 1):
        name, gate, fn = ops[nxt[0]]
        if gate is not None and gate not in a.bars: return
        if capped[0]:
            a.wait_vm(a.vm_n - OPT['cap'] + 1); flush_posts()
        nxt[0] += 1
        seq[name] = fn()
        if capped[0] and (name in ('x7_3', 'st1', 'h3', 'up', 'ul', 'ub') or (name[0] == 'W' and int(name[1:]) % 3 == 0)):
            a.stamp(2); dbg.append(name)
issue_upto(OPT['lookkv'] - 1)
a('s_branch L_loader2')
L1lines = a.lines; a.lines = ['L_loader2:']
a(f's_mul_i32 s60, {sKH}, {HCH}'); a(f's_mul_i32 s61, {sTH}, {HBD}'); a('s_add_u32 s61, s61, s60'); a(f's_add_u32 {sHM0}, s61, {HBASE+64}')
a(f's_lshl_b32 {sHSO}, {sCP}, 13'); a(f's_add_u32 {sUL}, {sHSO}, {WS_U}'); a(f's_lshl_b32 s61, {sKH}, 12'); a(f's_add_u32 {sHSO}, {sHSO}, s61')
a('s_waitcnt lgkmcnt(0)')
a(f's_add_u32 {sTAG}, {sE}, 1'); a(f's_not_b32 {sNTAG}, {sTAG}')
a.post(0)
a.wait_vm(seq['kv']); a.bar('kv'); a.stamp()
D = OPT['look']
for c in range(5):
    issue_upto(names.index(f'x{c}_3') + D)
    if c == 1:
        a('v_and_b32 v35, 1, v32'); a('v_lshlrev_b32 v35, 2, v35'); a('v_xor_b32 v35, v35, v34')
        a(f'v_lshl_add_u32 {v(vW2A)}, v35, 4, v33')
        a(f's_mul_i32 {sW2O}, {sKH}, {43*16*1024}'); a(f's_lshl_b32 s61, {sTH}, 13'); a(f's_add_u32 {sW2O}, {sW2O}, s61')
        a(f's_lshl_b32 s61, {sDS}, 7'); a(f's_add_u32 {sW2O}, {sW2O}, s61')
        a(f'v_add_u32 {v(vW2W)}, {sM0W}, {v(vL16)}')
        a(f'v_add_u32 {v(vW2W2)}, 61440, {v(vW2W)}'); a(f'v_add_u32 {v(vW2W3)}, 122880, {v(vW2W)}')
        a(f's_lshl_b32 s60, {st}, 1'); a(f's_add_u32 s60, s60, {sTH}'); a('s_mul_i32 s60, s60, 86')
        a(f's_mul_i32 s61, {sKH}, 43'); a('s_add_u32 s60, s60, s61'); a('s_lshl_b32 s60, s60, 10')
        a(f's_add_u32 {sHL}, s60, {WS_H}')
        a(f's_mul_i32 s60, {sKH}, 7'); a('v_min_u32 v38, 8, v1'); a('v_add_u32 v35, s60, v38')
        a('v_lshrrev_b32 v36, 1, v35'); a(f'v_xor_b32 v36, {OPT["dsx"]}, v36'); a('v_lshlrev_b32 v36, 12, v36'); a('v_and_b32 v35, 1, v35'); a('v_lshl_add_u32 v37, v35, 7, v36')
        a(f's_lshl_b32 s60, {sT}, 8'); a(f's_add_u32 s60, s60, {WS_FLAG + FPH}')
        a(f's_and_b32 s61, {st}, 1'); a('s_lshl_b32 s61, s61, 1'); a(f's_add_u32 s61, s61, {sTH}')
        a('s_lshl_b32 s61, s61, 15'); a('s_add_u32 s61, s61, s60')
        a(f'v_add_u32 {v(vP2)}, s61, v37')
    if c == 2:
        a(f's_lshl_b32 s60, {sDS}, 12'); a(f's_and_b32 s61, {st}, 24'); a('s_lshl_b32 s61, s61, 12'); a('s_add_u32 s60, s60, s61'); a(f's_add_u32 s60, s60, {WS_FLAG}')
        a(f's_lshl_b32 s61, {sW}, 3'); a('v_add_u32 v35, s61, v38'); a('v_max_u32 v35, 1, v35'); a('v_subrev_u32 v35, 1, v35')
        a('v_lshlrev_b32 v35, 7, v35'); a(f'v_add_u32 {v(vP1)}, s60, v35')
        a(f's_add_u32 s60, s60, {sM0W}'); a(f's_add_u32 s60, s60, {2*FPH}')
        a('v_lshlrev_b32 v35, 7, v34'); a(f'v_add_u32 {v(vP3)}, s60, v35')
        a(f's_lshl_b32 s60, {st}, 16'); a(f's_lshl_b32 s61, {sDS}, 13'); a('s_add_u32 s60, s60, s61'); a(f's_add_u32 s60, s60, {sW2K}')
        a(f's_add_u32 {sYL}, s60, {WS_Y}')
        a(f'v_lshlrev_b32 {v(vUL)}, 5, v0'); a(f'v_subrev_u32 {v(vULp)}, 4, {v(vUL)}')
        a(f'v_add_u32 {v(vUW)}, {CV+448}, {v(vW2W)}')
        a(f's_mul_i32 s60, {sKH}, {CVCH}'); a(f's_mul_i32 s61, {sTH}, {U1OFF}'); a('s_add_u32 s61, s61, s60'); a(f's_add_u32 s61, s61, {CV}')
        a('v_min_u32 v35, 27, v1'); a('v_lshlrev_b32 v35, 4, v35'); a(f'v_add_u32 {v(vZU)}, s61, v35')
        a(f's_sub_u32 s61, {sHM0}, 64'); a('v_and_b32 v35, 15, v1'); a('v_lshlrev_b32 v35, 2, v35'); a(f'v_add_u32 {v(vZH)}, s61, v35')
        a(f's_mov_b32 {sSELLO}, 0x05040100'); a(f's_mov_b32 {sSELHI}, 0x07060302')
    if OPT['sw2']:
        if c == 0:
            a(f's_lshl_b32 s60, {sI}, 2'); a(f's_add_u32 s60, s60, {sW}'); a('s_mul_i32 s60, s60, 11'); a('s_min_u32 s60, s60, 1365'); a('s_lshl_b32 s60, s60, 10')
            a(f's_and_b32 s61, {sDS}, 4'); a('s_lshl_b32 s61, s61, 7'); a('s_add_u32 s60, s60, s61')
            a(f's_add_u32 s40, s{W2}, s60'); a(f's_addc_u32 s41, s{W2+1}, 0')
            sw2 = [r*1024 + q*64 for r in range(11) for q in range(8)]
        for o in sw2[:OPT['sw2']]: a(f's_load_dword s100, s[40:41], {o}')
        sw2 = sw2[OPT['sw2']:]
    a.wait_vm(seq[f'x{c}_3'])
    a.bar(f'c{c}', False)
    a.stamp()
capped[0] = True
def wr(s_):
    o = w2slot(s_); k = o // 61440
    a(f'ds_write_b128 {v((vW2W, vW2W2, vW2W3)[k])}, {v(WT+4*s_,4)} offset:{o - 61440*k}')
def s2():
    for _ in range(OPT['pdelay']): a('s_sleep 8')
    a.stamp()
    a.poll_issue(vP2, 20, '0x1ff'); a.poll_check(vP2, 20, '0x1ff')
    a.post(5, False)
    if OPT['ht']:
        a(f's_mul_i32 {sG}, {sDS}, {43*128}'); a(f's_add_u32 {sG}, {sG}, {sHL}')
        a(f'buffer_load_dword v254, {v(vT43)}, {srd(WS)}, {sG} offen sc1')
    a.stamp()
issue_upto(names.index(f'W{OPT["pwat"]}'))
assert not posts
a.expect(1, 1, sleep=1)
a.stamp()
nw = 0
for s_ in range(OPT['pwat'] + 1, 43):
    issue_upto(names.index(f'W{s_}'))
    for _ in range(2):
        if nw < 28 and seq[f'W{nw}'] <= a.vm_done: wr(nw); nw += 1
    if s_ == OPT['s2at']: s2()
if OPT['hp']: a('s_setprio 2')
while nw < 28: wr(nw); nw += 1
if OPT['hp']: a('s_setprio 0')
if OPT['s2at'] > 42: s2()
a.post(6)
a.stamp()
a(f's_or_b32 s60, {sCP}, {sW}')
a('s_cmp_lg_u32 s60, 0')
a('s_cbranch_scc1 L_noep')
for q in range(4): a(f'v_add_u32 v{40+q}, {WS_FLAG + 8192*q}, v39')
a(f's_mov_b32 {sSPIN}, 0')
a.place('L_ep')
for q in range(4): a(f'buffer_load_dwordx2 v[{44+2*q}:{45+2*q}], v{40+q}, {srd(WS)}, 0 offen sc1', track=False)
a('s_waitcnt vmcnt(0)')
a('s_mov_b64 s[60:61], exec')
for q in range(4):
    a(f'v_cmp_eq_u32 vcc, {sTAG}, v{44+2*q}'); a('s_and_b64 s[60:61], s[60:61], vcc')
    a(f'v_cmp_eq_u32 vcc, {sNTAG}, v{45+2*q}'); a('s_and_b64 s[60:61], s[60:61], vcc')
a('s_cmp_eq_u64 s[60:61], exec')
a('s_cbranch_scc1 L_epok')
a(f's_add_u32 {sSPIN}, {sSPIN}, 1'); a(f's_cmp_lt_u32 {sSPIN}, 0x20000'); a('s_cbranch_scc1 L_ep')
a.place('L_epok')
a(f'v_mov_b32 v40, {WS_E}'); a(f'v_mov_b32 v41, {sTAG}')
a('s_mov_b64 exec, 1')
a(f'buffer_store_dword v41, v40, {srd(WS)}, 0 offen sc1', track=False)
a('s_mov_b64 exec, -1')
a.place('L_noep')
a.expect(1, 4, sleep=2)
a.stamp()
if OPT['hp']: a('s_setprio 2')
for s_ in range(28, 43): wr(s_)
a.post(7)
if OPT['hp']: a('s_setprio 0')
a.stamp()
for _ in range(OPT['ydelay']): a('s_sleep 4')
a.poll_issue(vP3, 20, '0xff'); a.poll_check(vP3, 20, '0xff')
a.stamp()
a(f's_add_u32 m0, {sW2K}, {YT}')
for n in range(2): y = a(f'buffer_load_dwordx4 {v(vL16)}, {srd(WS)}, {sYL} offen offset:{1024*n} sc1 lds')
a.wait_vm(y); a.post(8, False)
a.wait_all_lg()
a.finish()

C = a = Prog('C', 4)
a.gap = 0
vCSR, vSTW, vXR, vWR, vYR, vCSW = 3, 11, 12, 20, 9, 8
vKA, vKB, vSHR, vUS = 212, 213, 214, 215
(vUA, vHA, vDU, vXW, vXRd, vYS, vE2W, vE2R, vSTa, vSTb, vSTS, vOTa, vOTb, vOTR, vOUT) = range(216, 231)
AR = 234
F = {k: 198 + i for i, k in enumerate(('l4', 'n', 'g', 'b', 'l1', 'l3', 'r', 'x', 'h', 't0', 't1', 't2'))}
def fx(s):
    for k, r in F.items(): s = s.replace('%' + k, f'v{r}')
    return s
def e(s): a(fx(s))
if OPT['prio']: a(f's_setprio {OPT["prio"]}')
a(f's_mov_b32 {sMASK}, 0xffff0000')
e('v_lshrrev_b32 %l4, 4, v1'); e('v_lshrrev_b32 %g, 5, v1'); e('v_and_b32 %b, 15, v1'); e('v_and_b32 %h, 1, %l4')
a(f's_lshl_b32 s60, {sW}, 1'); e('v_add_u32 %t0, s60, %g')
e('v_add_u32 %t1, 1, %b'); e('v_and_b32 %t1, 7, %t1'); e('v_xor_b32 %t1, %t1, %t0')
e('v_lshlrev_b32 %t2, 9, %b'); e('v_lshl_add_u32 %t2, %h, 3, %t2'); e(f'v_add_u32 %t2, {KB + 5*128}, %t2')
e(f'v_lshl_add_u32 {v(vKA)}, %t1, 4, %t2')
e('v_add_u32 %t1, 2, %b'); e('v_and_b32 %t1, 7, %t1'); e('v_xor_b32 %t1, %t1, %t0')
e(f'v_lshl_add_u32 {v(vKB)}, %t1, 4, %t2')
a(f's_lshl_b32 s60, {sW}, 7'); a(f's_add_u32 s60, s60, {SB}')
e(f'v_lshlrev_b32 {v(vSHR)}, 5, %l4'); a(f'v_add_u32 {v(vSHR)}, s60, {v(vSHR)}')
e(f'v_lshlrev_b32 {v(vUS)}, 14, %l4'); e(f'v_lshl_add_u32 {v(vUS)}, %b, 4, {v(vUS)}')
common2(a)
a('s_waitcnt lgkmcnt(0)')
a(f's_mov_b64 s[40:41], s[86:87]')
a(f's_mov_b64 s[{OUT}:{OUT+1}], s[94:95]')
a(f's_mov_b64 s[{WS}:{WS+1}], s[98:99]')
a(f's_load_dword {sE}, s[{WS}:{WS+1}], {WS_E}')
a(f's_lshl_b32 s60, {sCP}, 2')
a(f's_load_dword {sD}, s[40:41], s60')
spf = []
if OPT['spf']:
    a(f's_lshl_b32 s60, {sCP}, 13'); a(f's_add_u32 s60, s60, {sW2K}')
    a('s_add_u32 s84, s84, s60'); a('s_addc_u32 s85, s85, 0')
    a(f's_lshl_b32 s60, s2, 2'); a(f's_add_u32 s60, s60, {sW}'); a(f's_mul_i32 s60, s60, {11*128}'); a(f's_min_u32 s60, s60, {1409024 - 11*128}')
    a('s_add_u32 s92, s92, s60'); a('s_addc_u32 s93, s93, 0')
    for j in range(11): a(f's_load_dword s100, s[92:93], {128*j}')
    for j in range(32): a(f's_load_dword s100, s[84:85], {64*j}')
a(f's_lshl_b32 s60, {sDS}, 18'); a(f's_lshl_b32 s61, {st}, 8'); a('s_add_u32 s60, s60, s61')
a(f's_lshl_b32 s61, {sW}, 16'); a('s_add_u32 s60, s60, s61'); a(f's_add_u32 {sUS0}, s60, {WS_U}'); a(f's_add_u32 {sUS1}, {sUS0}, 8192')
a(f's_mov_b32 {sONES}, 0x3f803f80')
e('v_and_b32 %n, 31, v1'); e('v_and_b32 %l1, 1, v1'); e('v_and_b32 %l3, 3, v1'); e('v_bfe_u32 %r, v1, 2, 2')
e('v_bfe_u32 %t0, v1, 1, 3'); e('v_xor_b32 %t0, %t0, %g'); e('v_lshlrev_b32 %t0, 4, %t0')
e('v_lshl_add_u32 %x, %n, 7, %t0')
e(f'v_add_u32 %t0, {sW4K}, %x')
e('v_lshl_add_u32 %t1, %g, 3, %r'); e('v_mul_u32_u24 %t1, 192, %t1')
e('v_lshl_add_u32 %t1, %h, 5, %t1'); e('v_lshl_add_u32 %t1, %l3, 3, %t1')
for i in range(4):
    a(f's_add_u32 s60, {sW}, {i}'); a('s_and_b32 s60, s60, 3'); a('s_lshl_b32 s61, s60, 5')
    e(f'v_xor_b32 {v(vXR+i)}, s61, %t0')
    a('s_mul_i32 s61, s60, 3072')
    e(f'v_add_u32 {v(vWR+i)}, s61, %t1')
ACC, XF, WF, SU, SQ, CS = 32, 80, 112, 160, 162, 164
for r in range(SU, CS+3): a(f'v_mov_b32 {v(r)}, 0')
a('s_waitcnt lgkmcnt(0)')
a(f's_add_u32 {sTAG}, {sE}, 1'); a(f's_not_b32 {sNTAG}, {sTAG}')
a.post(0)
a.stamp()
S = []
def s_(*xs):
    for x in xs: S.append(fx(x))
for i in range(4): s_(f'v_add_u32 {v(vXR+4+i)}, {2*SLOT}, {v(vXR+i)}', f'v_add_u32 {v(vWR+4+i)}, {2*SLOT}, {v(vWR+i)}')
s_(f'v_mov_b32 v252, {sTAG}', f'v_mov_b32 v253, {sNTAG}')
s_(f's_lshl_b32 s60, {sCP}, 7', f's_lshl_b32 s61, {sW}, 15', 's_add_u32 s60, s60, s61', f's_add_u32 s60, s60, {WS_FLAG}')
s_(f'v_lshlrev_b32 {v(vFL)}, 3, %b', f'v_add_u32 {v(vFL)}, s60, {v(vFL)}')
NS1 = len(S)
s_(f's_mov_b32 s{OUT+2}, 2097152', f's_mov_b32 s{OUT+3}, 0x20000', f's_mov_b32 {sSELLO}, 0x05040100')
s_(f's_lshl_b32 {sD0}, {sD}, 16', f's_and_b32 {sD1}, {sD}, {sMASK}')
s_(f's_and_b32 s61, {st}, 1', 's_lshl_b32 s61, s61, 1', f's_add_u32 s61, s61, {sTH}', 's_lshl_b32 s61, s61, 8', f's_add_u32 s61, s61, {STATS}')
s_('v_lshlrev_b32 %t0, 3, %n', f'v_add_u32 {v(vSTS)}, s61, %t0')
s_(f's_lshl_b32 s60, {sW}, 8', f's_add_u32 s60, s60, {STATS}', f'v_add_u32 {v(vSTW)}, s60, %t0')
s_(f'v_add_u32 {v(vCSR)}, {CSUM}, {v(vL16)}', f's_lshl_b32 s60, {sW}, 2', f'v_add_u32 {v(vCSW)}, s60, {v(vCSR)}')
s_(f's_lshl_b32 s60, {sT}, 2', f's_add_u32 s60, s60, {sW}', 's_mul_i32 s60, s60, 86', f's_lshl_b32 s61, {sP0}, 1', 's_add_u32 s60, s60, s61', 's_lshl_b32 s60, s60, 10')
s_(f's_add_u32 {sHS}, s60, {WS_H}', f's_add_u32 {sHS3}, {sHS}, 4096')
S.append([f's_cmp_lt_u32 {sM1}, 11', f's_cselect_b32 {sHS3}, {sHS3}, {OOB}'])
s_(f's_mul_i32 s60, {sKH}, {CVCH}', f's_add_u32 s60, s60, {CV+448-192}', f's_lshl_b32 s61, {sTH}, 8', 's_sub_u32 s60, s60, s61')
s_(f'v_mul_u32_u24 {v(vUA)}, {U1OFF}, %l1', 'v_lshrrev_b32 %t0, 1, %b', 'v_lshl_add_u32 %t0, %t0, 2, %l4')
s_(f'v_lshl_add_u32 {v(vUA)}, %t0, 4, {v(vUA)}', f'v_add_u32 {v(vUA)}, s60, {v(vUA)}')
s_('v_xor_b32 %t0, 1, %l1', f'v_mul_u32_u24 {v(vHA)}, {HBD}, %t0', f'v_lshl_add_u32 {v(vHA)}, %b, 2, {v(vHA)}')
s_('v_lshlrev_b32 %t0, 4, %l4', f'v_sub_u32 {v(vHA)}, {v(vHA)}, %t0')
s_(f's_mul_i32 s60, {sKH}, {HCH}', 's_add_u32 s61, s60, s61', f's_add_u32 s61, s61, {HBASE+64-12}', f'v_add_u32 {v(vHA)}, s61, {v(vHA)}')
s_(f's_lshl_b32 s60, {st}, 1', f's_add_u32 s60, s60, {sTH}', 's_mul_i32 s60, s60, 86', f's_mul_i32 s61, {sKH}, 43', 's_add_u32 s60, s60, s61', 's_lshl_b32 s60, s60, 10')
s_(f's_add_u32 {sHL}, s60, {WS_H}')
s_('v_lshlrev_b32 %t0, 4, %r', 'v_lshl_add_u32 %t0, %l4, 7, %t0', 'v_xor_b32 %t1, 3, %l3', 'v_lshl_add_u32 %t0, %t1, 2, %t0')
s_(f's_add_u32 s60, {sM0W}, {CV+U1OFF+448}', f'v_add_u32 {v(vDU)}, s60, %t0')
s_(f's_lshl_b32 s60, {sW}, 13', f's_add_u32 s60, s60, {CV}', f'v_add_u32 {v(vXW)}, s60, {v(vL16)}')
s_(f's_add_u32 s60, {sW2K}, {CV}', f'v_add_u32 {v(vXRd)}, s60, {v(vL16)}')
s_(f'v_lshlrev_b32 {v(vYS)}, 16, %l4', f'v_lshl_add_u32 {v(vYS)}, %b, 4, {v(vYS)}')
s_(f's_lshl_b32 s60, {sW}, 19', f's_lshl_b32 s61, {sCP}, 8', 's_add_u32 s60, s60, s61', f's_add_u32 {sYS0}, s60, {WS_Y}', f's_add_u32 {sYS1}, {sYS0}, 0x40000')
s_('v_lshl_add_u32 %t0, %g, 2, %r', 'v_lshlrev_b32 %t0, 7, %t0', 'v_bfe_u32 %t1, v1, 3, 1', 'v_lshl_add_u32 %t0, %t1, 6, %t0')
s_('v_lshl_add_u32 %t0, %h, 5, %t0', 'v_lshl_add_u32 %t0, %l1, 4, %t0', 'v_bfe_u32 %t1, v1, 1, 1', 'v_lshl_add_u32 %t0, %t1, 3, %t0')
s_(f's_lshl_b32 s60, {sKH}, 6', 'v_xor_b32 %t0, s60, %t0', f's_lshl_b32 s61, {sKH}, 11')
s_(f'v_add_u32 {v(AR)}, s61, %t0', f'v_xor_b32 {v(AR+1)}, 64, {v(AR)}')
for k in (1, 2): s_(f'v_add_u32 {v(AR+2*k)}, {61440*k}, {v(AR)}', f'v_add_u32 {v(AR+2*k+1)}, {61440*k}, {v(AR+1)}')
s_(f'v_lshlrev_b32 {v(vYR)}, 10, %g', 'v_bfe_u32 %t1, v1, 1, 4', f'v_lshl_add_u32 {v(vYR)}, %t1, 4, {v(vYR)}', f'v_lshl_add_u32 {v(vYR)}, %l1, 2, {v(vYR)}')
s_(f's_lshl_b32 s61, {sKH}, 12', f's_lshl_b32 {sO0}, {sTH}, 3', f's_add_u32 s61, s61, {sO0}', f's_add_u32 s61, s61, {YT}', f'v_add_u32 {v(vYR)}, s61, {v(vYR)}')
s_('v_xor_b32 %t0, s60, %x', f's_lshl_b32 s61, {sTH}, 12', f's_add_u32 s61, s61, {XST}', f'v_add_u32 {v(vSTa)}, s61, %t0', f'v_xor_b32 {v(vSTb)}, 32, {v(vSTa)}')
s_(f's_add_u32 s61, {sW4K}, {EX}', f'v_add_u32 {v(vE2W)}, s61, {v(vL16)}')
s_(f's_xor_b32 s61, {sW4K}, 8192', f's_add_u32 s61, s61, {EX}', f'v_add_u32 {v(vE2R)}, s61, {v(vL16)}')
s_(f's_add_u32 s61, {sW2K}, {OT}', 'v_bfe_u32 %t0, v1, 1, 2', 'v_xor_b32 %t0, %t0, %g', 'v_lshlrev_b32 %t0, 4, %t0')
s_('v_lshl_add_u32 %t0, %n, 6, %t0', f'v_add_u32 {v(vOTa)}, s61, %t0', f'v_xor_b32 {v(vOTb)}, 32, {v(vOTa)}')
s_('v_lshrrev_b32 %t1, 2, v1', 'v_bfe_u32 %t0, v1, 3, 2', 'v_xor_b32 %t0, %t0, %l3', 'v_lshlrev_b32 %t0, 4, %t0', 'v_lshl_add_u32 %t0, %t1, 6, %t0')
s_(f'v_add_u32 {v(vOTR)}, s61, %t0', 'v_lshlrev_b32 %t1, 10, %t1', f'v_lshl_add_u32 {v(vOUT)}, %l3, 4, %t1')
s_(f's_lshl_b32 {sO0}, {st}, 16', f's_lshl_b32 s61, {sDS}, 7', f's_add_u32 {sO0}, {sO0}, s61', f's_lshl_b32 s61, {sTH}, 15')
s_(f's_add_u32 {sO0}, {sO0}, s61', f's_add_u32 {sO0}, {sO0}, s60', f's_add_u32 {sO1}, {sO0}, 16384')

KR, VR, SR, PA = 168, 182, 190, 240
WP, KU, VU, TP = 32, 48, 76, 92
a.bar('kv')
a.stamp()
for p in range(2): a(f'ds_read_b128 {v(SR+4*p,4)}, {v(vSHR)} offset:{16*p}')
for r in range(7): a(f'ds_read_b64 {v(KR+2*r,2)}, {v(vKA if r < 3 else vKB)} offset:{128*r}')
for r in range(4): a(f'ds_read_b64 {v(VR+2*r,2)}, {v(vKB)} offset:{VB-KB+128*(r+3)}')
for x in S[:NS1]: a(x)
S = S[NS1:]
for c in range(4):
    p, e_ = c >> 1, c & 1
    for jj in range(2): a(lo(WP+8*p+4*jj+e_, SR+2*c+jj)); a(hi(WP+8*p+4*jj+2+e_, SR+2*c+jj))
for p in range(2):
    for r in range(7): a(lo(KU+4*r+2*p, KR+2*r+p)); a(hi(KU+4*r+2*p+1, KR+2*r+p))
    for r in range(4): a(lo(VU+4*r+2*p, VR+2*r+p)); a(hi(VU+4*r+2*p+1, VR+2*r+p))
    for i in range(4): a(f'v_pk_mul_f32 {v(TP+2*i,2)}, {v(KU+4*i+2*p,2)}, {v(WP+8*p+6,2)}')
    for j in (2, 1, 0):
        for i in range(4): a(f'v_pk_fma_f32 {v(TP+2*i,2)}, {v(KU+4*(i+3-j)+2*p,2)}, {v(WP+8*p+2*j,2)}, {v(TP+2*i,2)}')
    for i in range(4): a(f'v_pk_mul_f32 {v(TP+2*i,2)}, {v(TP+2*i,2)}, {v(VU+4*i+2*p,2)}')
    for i in range(4): a(f'v_cvt_pk_bf16_f32 {v(PA+4*p+i)}, {v(TP+2*i)}, {v(TP+2*i+1)}')
    ust = a(f'buffer_store_dwordx4 {v(PA+4*p,4)}, {v(vUS)}, {srd(WS)}, {(sUS0, sUS1)[p]} offen sc1')
ust_t = a.t

AX, BX, vM, vRS, vS, vC3 = 168, 180, 184, 185, 186, 188
stats = [
    f'v_add_f32 {v(SU)}, {v(SU)}, {v(SU+1)}', f'v_add_f32 {v(SQ)}, {v(SQ)}, {v(SQ+1)}',
    f'v_mov_b32 {v(SU+1)}, {v(SU)}', f'v_mov_b32 {v(SQ+1)}, {v(SQ)}',
    f'v_permlane32_swap_b32 {v(SU)}, {v(SU+1)}', f'v_permlane32_swap_b32 {v(SQ)}, {v(SQ+1)}',
    f'v_add_f32 {v(SU)}, {v(SU)}, {v(SU+1)}', f'v_add_f32 {v(SQ)}, {v(SQ)}, {v(SQ+1)}',
    f'v_mul_f32 {v(SU)}, 0x3b000000, {v(SU)}', f'v_mul_f32 {v(SQ)}, 0x3b000000, {v(SQ)}',
    f'v_fma_f32 {v(SQ)}, -{v(SU)}, {v(SU)}, {v(SQ)}', f'v_max_f32 {v(SQ)}, 0, {v(SQ)}',
    f'v_cvt_pk_bf16_f32 v190, {v(SU)}, {v(SQ)}', 'v_xor_b32 v191, 0x8000, v190',
    f'v_perm_b32 {v(BX)}, v191, v191, {sSELLO}', f'v_mov_b32 {v(BX+1)}, {v(BX)}', f'v_mov_b32 {v(BX+2)}, {v(BX)}', f'v_mov_b32 {v(BX+3)}, {v(BX)}',
    lo(vM, 190), hi(191, 190), 'v_add_f32 v191, 0x3727c5ac, v191',
    'v_cvt_pk_bf16_f32 v191, v191, v191', lo(191, 191), 'v_sqrt_f32 v191, v191',
    'v_cvt_pk_bf16_f32 v191, v191, v191', lo(vS, 191), f'v_rcp_f32 {v(vRS)}, {v(vS)}',
    f'v_mul_f32 {v(vC3)}, 0xbfb8aa3b, {v(vRS)}', f'ds_write_b64 {v(vSTW)}, {v(vM,2)}']
def rdx(c):
    st_ = 4 * ((c % 4) >> 1); off = (c & 1) * SLOT
    return [f'ds_read_b128 {v(XF+16*(c&1)+4*i,4)}, {v(vXR+st_+i)} offset:{off}' for i in range(4)]
def rdw(c, i):
    st_ = 4 * ((c % 4) >> 1); off = (c & 1) * SLOT
    return [f'ds_read_b64_tr_b16 {v(WF+12*i+4*ft+2*rd,2)}, {v(vWR+st_+i)} offset:{off+16384+rd*768+ft*64}' for ft in range(3) for rd in range(2)]
a.stamp()
a.bar('c0')
a.stamp()
for x in rdx(0) + rdw(0, 0) + rdw(0, 1): a(x)
a.fq = S
flag1 = False
for c in range(8):
    X = XF + 16*(c & 1)
    late = rdw(c, 2) + rdw(c, 3)
    for i in range(4):
        for d in range(4):
            a(f'v_dot2c_f32_bf16 {v(SU+(d&1))}, {sONES}, {v(X+4*i+d)}'); a(f'v_dot2c_f32_bf16 {v(SQ+(d&1))}, {v(X+4*i+d)}, {v(X+4*i+d)}')
    for d in range(4):
        for ft in range(3): a(f'v_dot2c_f32_bf16 {v(CS+ft)}, {sONES}, {v(WF+4*ft+d)}')
    if c == 7:
        a.drain_f()
        for ft in range(3): a.fq += [hi(192+ft, CS+ft), f'v_sub_f32 v{195+ft}, {v(CS+ft)}, v{192+ft}']
        for ft in range(3): a.fq += [f'v_cvt_pk_bf16_f32 v{192+ft}, v{192+ft}, v{195+ft}', f'ds_write_b32 {v(vCSW)}, v{192+ft} offset:{1024*ft}']
        a.fq += stats
    def mm(i, ft):
        cin = '0' if (c == 0 and i == 0) else v(ACC+16*ft, 16)
        return f'v_mfma_f32_32x32x16_bf16 {v(ACC+16*ft,16)}, {v(WF+12*i+4*ft,4)}, {v(X+4*i,4)}, {cin}'
    for i in range(3):
        for ft in range(3):
            a(mm(i, ft))
            for x in late[:3]: a(x)
            late = late[3:]
            if 4 <= c < 7 and (i, ft) == (2, 0): a.peek(0)
            if c == 7 and (i, ft) == (2, 0):
                assert len(a.fq) <= len(stats), len(a.fq)
                a.post(1)
    if not flag1 and a.t - ust_t > OPT['f1d']:
        a.wait_vm(ust); a.flag_store(1); flag1 = True
    if c < 4: a.bar(f'c{c+1}')
    elif c < 7: a.expect(0, c - 3, True)
    a.stamp(1)
    nxt_ = rdx(c+1) + rdw(c+1, 0) + rdw(c+1, 1) if c < 7 else []
    for ft in range(3):
        a(mm(3, ft))
        if c == 7 and ft == 0: a.peek(1)
        if c == 7 and ft == 1:
            a.expect(1, 1, True)
            nxt_ = [f'ds_read_b128 {v(AX+4*q,4)}, {v(vCSR)} offset:{1024*q}' for q in range(3)]
        for x in nxt_[:6]: a(x)
        nxt_ = nxt_[6:]
a.drain_f()
for ft in range(3):
    a(f'v_mfma_f32_32x32x16_bf16 {v(ACC+16*ft,16)}, {v(AX+4*ft,4)}, {v(BX,4)}, {v(ACC+16*ft,16)}')
a.stamp()

CA, DU, DR = 160, 192, 208
def FA(set_, mu): return (80 if set_ == 0 else 32) + 4*mu
def FB(set_, nu): return 112 + 4*nu if set_ == 0 else (64 + 4*nu if nu < 4 else 144 + 4*(nu-4))
def rdA(rp, mu): return f'ds_read_b128 {v(FA(rp&1,mu),4)}, {v(vUA)} offset:{512*mu - 64*rp + 192}'
def rdB(rp, nu): return [f'ds_read_b64 {v(FB(rp&1,nu)+2*h,2)}, {v(vHA)} offset:{512*nu + 64*rp + 8*h}' for h in range(2)]
def reads(rp):
    r = rdB(rp, 0) + [rdA(rp, mu) for mu in range(8)]
    for nu in range(1, 8): r += rdB(rp, nu)
    return r
TS, HO = 144, 168
first = reads(0)
for fr in range(6):
    base = ACC + 8*fr; t = TS + 8*(fr & 1); o = HO + 4*(fr & 1)
    if fr == OPT['ubar']: a.expect(0, 4, True)
    def side(n):
        if fr >= OPT['ubar']:
            for x in first[:n]: a(x)
            del first[:n]
    for p in range(4): a(f'v_pk_mul_f32 {v(t+2*p,2)}, {v(base+2*p,2)}, {v(vC3,2)} op_sel_hi:[1,0]')
    side(6)
    for q in range(8): a(f'v_exp_f32 {v(t+q)}, {v(t+q)}')
    side(6)
    for p in range(4): a(f'v_pk_fma_f32 {v(t+2*p,2)}, {v(t+2*p,2)}, {v(vS,2)}, {v(vS,2)} op_sel_hi:[1,0,0]')
    if fr == OPT['ubar'] - 1: a.peek(0)
    for q in range(8): a(f'v_rcp_f32 {v(t+q)}, {v(t+q)}')
    for p in range(4): a(f'v_pk_mul_f32 {v(t+2*p,2)}, {v(t+2*p,2)}, {v(base+2*p,2)}')
    for p in range(4): a(f'v_cvt_pk_bf16_f32 {v(o+p)}, {v(t+2*p)}, {v(t+2*p+1)}')
    so, im = (sHS, fr*1024) if fr < 4 else (sHS3, (fr-4)*1024)
    hst = a(f'buffer_store_dwordx4 {v(o,4)}, {v(vL16)}, {srd(WS)}, {so} offen offset:{im} sc1')
a.stamp()
if OPT['ubar'] == 6:
    a.expect(0, 4, True)
    for x in first[:12]: a(x)
    del first[:12]

G2A, XR, XS, YR, XU, DM, YU = 32, 32, 152, 208, 160, 176, 192
AFB = [64, 72, 144]
RING = list(range(80, 144, 4)) + [12, 16, 20, 24, 240, 244, 248]
NR = len(RING)
def hreg(s): return RING[s % NR]
def rd2(s):
    o = w2slot(s); k = 2 * (o // 61440); o -= 30720 * k
    return [f'ds_read_b64_tr_b16 {v(AFB[s%3]+4*dt+2*rd,2)}, {v(AR+k+dt)} offset:{o + rd*1024}' for dt in (1, 0) for rd in range(2)]
hops = {}
def hld(s):
    def f():
        if s % 4 == 0: a(f's_add_u32 {sA}, {sHL}, {s*1024}')
        a(f'buffer_load_dwordx4 {v(hreg(s),4)}, {v(vL16)}, {srd(WS)}, {sA} offen offset:{(s%4)*1024} sc1')
    hops[s] = f
    return f
cnt = 0
for rp in range(4):
    rd = (first if rp == 0 else []) + (reads(rp + 1) if rp < 3 else [])
    if rp == 1:
        rd += [f'ds_read_b32 {v(DR+4*c+2*jj+h)}, {v(vDU)} offset:{c*CVCH + 512*jj + 64*h}' for c in range(2) for jj in range(2) for h in range(2)]
    if rp == 2:
        for c in range(2):
            for jj in range(2):
                for h in range(2):
                    src = DR+4*c+2*jj+h; d = DU+8*jj+4*c+2*h
                    a.fq += [hi(d, src), lo(d+1, src), f'v_mul_f32 {v(d)}, {(sD0, sD1)[c]}, {v(d)}', f'v_mul_f32 {v(d+1)}, {(sD0, sD1)[c]}, {v(d+1)}']
    for nu in range(8):
        if rp == 2 and nu == 5:
            assert not rd
            a.post(2); a.peek(0)
        if rp == 3 and nu == 0:
            a.stamp(); a.expect(0, 5, True); a.stamp()
            for s in range(OPT['hburst']): a.do(hld(s))
            a.gap = OPT['hgap']
            a.vq = [hld(s) for s in range(OPT['hburst'], NR)]
            a.peek(1)
        if rp == 3 and nu == 1: a.expect(1, 2, True)
        for mu in range(8 - nu):
            j = nu + mu
            if cnt == OPT['sig2']:
                a.stamp(); a.wait_vm(hst); a.stamp(); a.flag_store(2)
            cin = '0' if (rp == 0 and nu == 0) else v(CA+4*j, 4)
            a(f'v_mfma_f32_16x16x32_bf16 {v(CA+4*j,4)}, {v(FA(rp&1,mu),4)}, {v(FB(rp&1,nu),4)}, {cin}')
            cnt += 1
            for _ in range(2 if (rp == 0 and cnt <= 8) else 1):
                if rd: a(rd.pop(0))
            if rp == 3 and mu == 0 and nu >= 2: a(f'ds_write_b128 {v(vXW)}, {v(CA+4*(nu-2),4)} offset:{1024*(nu-2)}')
    assert not rd
a.drain_f()
a.stamp()
for j in (6, 7): a(f'ds_write_b128 {v(vXW)}, {v(CA+4*j,4)} offset:{1024*j}')
a.post(3)
a.expect(1, 3)
for jj in range(2):
    for sw in range(4): a(f'ds_read_b128 {v(XR+16*jj+4*sw,4)}, {v(vXRd)} offset:{8192*sw + 1024*jj}')
a.peek(0)
for jj in range(2):
    for hf in range(2):
        for c in range(2):
            for r in range(2): a(f'v_pk_add_f32 {v(DU+8*jj+4*c+2*r,2)}, {v(DU+8*jj+4*c+2*r,2)}, {v(XR+16*jj+8*c+4*hf+2*r,2)}')
    for r in range(4): a(f'v_cvt_pk_bf16_f32 {v(DR+4*jj+r)}, {v(DU+8*jj+r)}, {v(DU+8*jj+4+r)}')
    yst = a(f'buffer_store_dwordx4 {v(DR+4*jj,4)}, {v(vYS)}, {srd(WS)}, {(sYS0, sYS1)[jj]} offen sc1')
    if jj == 0:
        a.expect(0, 6, True)
        for x in rd2(0) + rd2(1): a(x)
a.stamp()

pre = []
for k in range(8): pre += [lo(XU+2*k, XS+k), hi(XU+2*k+1, XS+k)]
for k in range(16): pre.append(f'v_sub_f32 {v(DM+k)}, {v(XU+k)}, v232')
for k in range(16): pre.append(f'v_mul_f32 {v(DM+k)}, {v(DM+k)}, v233')
post_ = []
for k in range(8): post_ += [lo(YU+2*k, YR+k), hi(YU+2*k+1, YR+k)]
for k in range(16): post_.append(f'v_fmac_f32 {v(XU+k)}, {v(DM+k)}, {v(YU+k)}')
yreads = [f'ds_read_b32 {v(YR+4*grp+q)}, {v(vYR)} offset:{(8*grp+q)*256}' for grp in range(2) for q in range(4)]
for s in range(43):
    if s > 0 and s + NR - 1 < 43: a.vq.append(hld(s + NR - 1))
    if s == 8: a.post(4); a.stamp()
    if s == 18: a.post(5)
    if s == 26: a.expect(0, 7, True); a.stamp()
    if s == OPT['sig3']: a.wait_vm(yst); a.flag_store(3)
    side = rd2(s + 2) if s + 2 < 43 else []
    if s == 2: side += [f'ds_read_b128 {v(XS,4)}, {v(vSTa)}', f'ds_read_b128 {v(XS+4,4)}, {v(vSTb)}', f'ds_read_b64 v[232:233], {v(vSTS)}']
    if s == 4: a.fq += pre
    if s == 30: a.expect(1, 5, True)
    if s == OPT['ybar']:
        a.stamp(); a.expect(0, 8, True); a.stamp()
        side += yreads
    if s == OPT['ybar'] + 2: a.fq += post_
    if hops[s] in a.vq: a.drain_v(hops[s])
    h = (len(side) + 1) // 2
    for dt in (1, 0):
        cin = '0' if s == 0 else v(G2A+16*dt, 16)
        a(f'v_mfma_f32_32x32x16_bf16 {v(G2A+16*dt,16)}, {v(AFB[s%3]+4*dt,4)}, {v(hreg(s),4)}, {cin}')
        for x in side[:h]: a(x)
        side = side[h:]
    if s + 2 in (26, OPT['ybar']): a.peek(0)
    if s == 28: a.peek(1)
a.drain_f()
a.stamp()
for k in range(4): a(f'ds_write_b128 {v(vE2W)}, {v(G2A+16+4*k,4)} offset:{1024*k}')
a.post(6)
for k in range(8): a(f'v_pk_add_f32 {v(XU+2*k,2)}, {v(XU+2*k,2)}, {v(G2A+2*k,2)}')
a.expect(1, 6)
for k in range(4): a(f'ds_read_b128 {v(80+4*k,4)}, {v(vE2R)} offset:{1024*k}')
for h in range(2):
    for k in range(4*h, 4*h+4): a(f'v_pk_add_f32 {v(XU+2*k,2)}, {v(XU+2*k,2)}, {v(80+2*k,2)}')
    for k in range(4*h, 4*h+4): a(f'v_cvt_pk_bf16_f32 {v(96+k)}, {v(XU+2*k)}, {v(XU+2*k+1)}')
    a(f'ds_write_b128 {v((vOTa, vOTb)[h])}, {v(96+4*h,4)}')
a.wait_all_lg()
a(f'ds_read_b128 v[104:107], {v(vOTR)}'); a(f'ds_read_b128 v[108:111], {v(vOTR)} offset:1024')
a(f'buffer_store_dwordx4 v[104:107], {v(vOUT)}, {srd(OUT)}, {sO0} offen{OSC}')
a(f'buffer_store_dwordx4 v[108:111], {v(vOUT)}, {srd(OUT)}, {sO1} offen{OSC}')
a.stamp()
print('estimated compute cycles', int(a.t), file=sys.stderr)
a.finish()
assert L.bars == C.bars, (L.bars, C.bars)

lines = P.lines + L1lines + ['L_compute:'] + C.lines + L.lines + ['L_end:', '    s_endpgm']
if OPT['skel']:
    drop = ('v_mfma', 'v_dot', 'v_pk_', 'v_exp', 'v_rcp', 'ds_read_b64', 'v_fmac', 'v_mul_f32', 'v_cvt_pk', 'ds_write_b128', 'v_perm_b32', 'v_add_f32', 'v_sub_f32')
    lines = [l for l in lines if not l.strip().startswith(drop)]
hdr = open('parallel_sum__ssm_conv_h3__dense_activation_silu__prompt.s.ref').read().split('\n')
hdr = [l for l in hdr if l.startswith(';') and '@launch' not in l]
out = '\n'.join(hdr) + f'\n; @launch grid=(256,1,1) block=(512,1,1) lds={LDS_SIZE}\n'
out += f'''.amdgcn_target "amdgcn-amd-amdhsa--gfx950"
.text
.globl {NAME}
.p2align 8
.type {NAME},@function
{NAME}:
''' + '\n'.join(lines) + f'''
.section .rodata,"a"
.p2align 6
.amdhsa_kernel {NAME}
  .amdhsa_next_free_vgpr 256
  .amdhsa_next_free_sgpr 102
  .amdhsa_accum_offset 256
  .amdhsa_group_segment_fixed_size 0
  .amdhsa_kernarg_size 96
  .amdhsa_user_sgpr_count 2
  .amdhsa_user_sgpr_kernarg_segment_ptr 1
  .amdhsa_system_sgpr_workgroup_id_x 1
.end_amdhsa_kernel
'''
open(sys.argv[1], 'w').write(out)
print(dbg, file=sys.stderr)
print('lines', len(lines), 'stamps L/C', L.nstamp, C.nstamp, file=sys.stderr)
```

```python
import sys
from emit import Asm

NAME = "parallel_sum__ssm_conv_h3__dense_activation_silu__prompt_kernel"
OPT = dict(stamps=0, sg=0, probe=-2, base=60000, who=1, skel=0,
           map=0, rot=0, prio=1, look=10, lookkv=7, cap=8, hat=8, t2at=-2, t3at=-2, upat=0, ulat=9, ubat=21,
           pwat=34, s2at=42, psleep=4, pdelay=0, f1d=1000, ubar=5, sig2=50, sig3=2, hburst=10, hgap=64,
           g2at=24, ybar=40, osc=1, ht=0, ydelay=0, lprio=0, t2mode=0, spf=0, sw2=0, hp=1, dsx=4, ntkv=1, ntx=0, nth=0, na=43, wper=2, gate=1, afd=2, nx=0, esl=2, nodma=0, nohl=0, notail=0, nodot=0, nosync=0, kvfirst=1, yk=5, hhot=0, hfl=1, wm=14, wk=10, bg=0, bgfrom=2, selft=0, tw=1, cap2=6)
for x in sys.argv[2:]:
    k, v = x.split('='); assert k in OPT, k; OPT[k] = int(v)

WS_E, WS_FLAG, WS_STAMP, WS_U, WS_Y, WS_H, WS_SIZE = 0, 0x80000, 0x40000, 0x100000, 0x300000, 0x500000, 0x1000000
FPH = 0x20000
OOB = 0x7f000000
SLOT = 28672
CV = 114688; CVCH = 9216; U1OFF = 4640; HBASE = CV + 18432; HCH = 8448; HBD = 4228
KB, VB, SB = CV, CV + 8192, CV + 9216 + 8192
XST = 150016; STATS = 158208; CSUM = 159232; PW = CSUM + 3072
LDS_SIZE = 163840
def w2slot(s): return (s if s < 36 else s - 36) * 4096
YT, EX, OT = 8*4096, 12*4096, 10*4096
Q, K, V, SH, HK, W1, W2, OUT, WS = 4, 8, 12, 16, 20, 24, 28, 32, 36
def srd(r): return f's[{r}:{r+3}]'
sD, sE, sT, sM1, st, sDS, sCP, sW, sWV, sTAG, sNTAG, sP0 = [f's{i}' for i in range(42, 54)]
sXO, sW1O, sHS, sHS3, sW2O, sHL = [f's{i}' for i in range(54, 60)]
sM0W, sW4K, sW3K, sSELLO, sSELHI, sONES = [f's{i}' for i in range(62, 68)]
sPAIR = 's[68:69]'
sSPIN, sTH, sKH, sMASK, sW2K, sI = [f's{i}' for i in range(70, 76)]
sHM0, sHSO, sD0, sD1, sA, sB, sG, sUS0 = [f's{i}' for i in range(76, 84)]
sUS1 = 's86'
sUL, sYS0, sYS1, sYL, sO0, sO1, sROT, sC = [f's{i}' for i in range(88, 96)]
sSTASH = 's101'
def v(n, c=1): return f'v{n}' if c == 1 else f'v[{n}:{n+c-1}]'
OSC = ' sc1' if OPT['osc'] else ''
vL16, vSTAMP, vFL, vPWB, vPWM, vPWT = 2, 31, 28, 29, 30, 255

class Prog(Asm):
    def __init__(self, name, pwr):
        super().__init__(); self.name = name; self.bars = []; self.nstamp = 0; self.pwr = pwr
    def label(self):
        self.nlabel += 1; return f'{self.name}{self.nlabel}'
    def bar(self, tag, lg=True):
        self.lock()
        if lg: self.wait_all_lg()
        self('s_barrier'); self.bars.append(tag)
        self.unlock()
    def post(self, n, lg=True):
        self.lock()
        self(f'v_mov_b32 {v(vPWT)}, {n}')
        if lg: self.wait_all_lg()
        self('s_mov_b64 exec, 1')
        self(f'ds_write_b32 {v(vPWM)}, {v(vPWT)}')
        self('s_mov_b64 exec, -1')
        self.unlock()
    def peek(self, grp):
        self(f'ds_read_b128 {v(self.pwr,4)}, {v(vPWB)} offset:{16*grp}')
    def expect(self, grp, n, peeked=False, sleep=0):
        r = self.pwr
        self.lock()
        if not peeked: self.peek(grp)
        top, done = self.label(), self.label()
        self.wait_lg(self.pend[('v', r)][1])
        self.place(top)
        self(f'v_min3_u32 {v(r)}, {v(r)}, {v(r+1)}, {v(r+2)}')
        self(f'v_min_u32 {v(r)}, {v(r)}, {v(r+3)}')
        self(f'v_cmp_gt_u32 vcc, {n}, {v(r)}')
        self(f's_cbranch_vccz {done}')
        t0 = self.t
        if sleep: self(f's_sleep {sleep}')
        self(f'ds_read_b128 {v(r,4)}, {v(vPWB)} offset:{16*grp}', track=False)
        self('s_waitcnt lgkmcnt(0)')
        self(f's_branch {top}')
        self.place(done)
        self.t = t0 + (0 if peeked else 100)
        self.unlock()
    def stamp(self, g=0, coarse=False):
        if coarse and OPT['sg'] == 3: g = 3
        if g == 0: self.est = getattr(self, 'est', []) + [int(self.t)]
        if not OPT['stamps'] or g != OPT['sg']: return
        k = self.nstamp; self.nstamp += 1
        self.lock(); self.wait_all_lg()
        self('s_memtime s[96:97]'); self('s_waitcnt lgkmcnt(0)')
        self('s_sub_u32 s96, s96, s3')
        self(f'v_writelane_b32 {v(vSTAMP)}, s96, {k}')
        self.unlock()
    def dma(self, vaddr, rs, soff, m0expr, extra='', track=True):
        self(m0expr)
        return self(f'buffer_load_dwordx4 {v(vaddr)}, {srd(rs)}, {soff} offen{extra} lds', track=track)
    def flag_store(self, phase):
        self.lock()
        self(f's_mov_b32 {sG}, {(phase-1)*FPH}')
        self('s_mov_b64 exec, 0xffff')
        self(f'buffer_store_dwordx2 v[252:253], {v(vFL)}, {srd(WS)}, {sG} offen sc1')
        self('s_mov_b64 exec, -1')
        self.unlock()
    def poll_issue(self, vaddr, dst, mask):
        self(f's_mov_b64 exec, {mask}')
        r = self(f'buffer_load_dwordx2 {v(dst,2)}, {v(vaddr)}, {srd(WS)}, 0 offen sc1')
        self('s_mov_b64 exec, -1')
        return r
    def poll_check(self, vaddr, dst, mask):
        self.lock()
        top, done = self.label(), self.label()
        self(f's_mov_b32 {sSPIN}, 0')
        self(f's_mov_b64 exec, {mask}')
        self.wait_vm(self.pend[('v', dst)][1])
        self.place(top)
        self(f'v_cmp_eq_u32 vcc, {sTAG}, {v(dst)}')
        self(f'v_cmp_eq_u32 {sPAIR}, {sNTAG}, {v(dst+1)}')
        self(f's_and_b64 vcc, vcc, {sPAIR}')
        self('s_cmp_eq_u64 vcc, exec')
        self(f's_cbranch_scc1 {done}')
        self(f's_add_u32 {sSPIN}, {sSPIN}, 1')
        self(f's_cmp_gt_u32 {sSPIN}, {0 if OPT["nosync"] else 0x20000}')
        self(f's_cbranch_scc1 {done}')
        self(f's_sleep {OPT["psleep"]}')
        self(f'buffer_load_dwordx2 {v(dst,2)}, {v(vaddr)}, {srd(WS)}, 0 offen sc1', track=False)
        self('s_waitcnt vmcnt(0)')
        self(f's_branch {top}')
        self.place(done)
        self('s_mov_b64 exec, -1')
        self.unlock()
    def finish(self):
        a = self
        if OPT['stamps']:
            a('s_waitcnt vmcnt(0)')
            a.stamp(OPT['sg'])
            if OPT['probe'] > -2 and (a.name == 'C') == (OPT['who'] == 1):
                a(f's_mov_b32 s60, {OPT["base"]}')
                if OPT['probe'] >= 0:
                    a(f'v_readlane_b32 s61, {v(vSTAMP)}, {OPT["probe"]}'); a('s_add_u32 s60, s60, s61')
                l = a.label(); a.place(l)
                a('s_memtime s[96:97]'); a('s_waitcnt lgkmcnt(0)'); a('s_sub_u32 s96, s96, s3'); a('s_cmp_lt_u32 s96, s60'); a(f's_cbranch_scc1 {l}')
            a('s_lshl_b32 s60, s2, 3'); a(f's_add_u32 s60, s60, {sWV}'); a('s_lshl_b32 s60, s60, 7'); a(f's_add_u32 s60, s60, {WS_STAMP}')
            a('v_lshlrev_b32 v128, 2, v1')
            a('s_mov_b64 exec, 0xffffffff')
            a(f'buffer_store_dword {v(vSTAMP)}, v128, {srd(WS)}, s60 offen')
        a('s_endpgm')

def lo(d, s): return f'v_lshlrev_b32 {v(d)}, 16, {v(s)}'
def hi(d, s): return f'v_and_b32 {v(d)}, {sMASK}, {v(s)}'

P = a = Prog('P', 0)
a('s_cmp_ge_u32 s2, 256')
a('s_cbranch_scc1 L_end')
if OPT['stamps']:
    a('s_memtime s[68:69]'); a('s_memrealtime s[70:71]'); a('s_waitcnt lgkmcnt(0)'); a('s_mov_b32 s3, s68')
    a(f'v_mov_b32 {v(vSTAMP)}, 0'); a(f'v_writelane_b32 {v(vSTAMP)}, s70, 31')
a('s_load_dwordx16 s[76:91], s[0:1], 0')
a('s_load_dwordx8 s[92:99], s[0:1], 64')
a('v_lshrrev_b32 v3, 6, v0')
a('v_and_b32 v1, 63, v0')
a('s_getpc_b64 s[60:61]')
a.place('L_pc')
a(f'v_readfirstlane_b32 {sWV}, v3')
a(f's_lshr_b32 {sI}, s2, 3')
a('v_lshlrev_b32 v39, 7, v1')
a(f's_and_b32 s62, {sI}, 7'); a('s_lshl_b32 s62, s62, 12')
a(f's_cmp_ge_u32 {sWV}, 4'); a('s_cselect_b32 s62, s62, 0')
a(f's_lshl_b32 s63, {sWV}, 10'); a('s_add_u32 s62, s62, s63')
a('v_add_u32 v3, s62, v39')
a('v_min_u32 v3, L_end-L_pc, v3')
a('s_mov_b64 exec, 0xff')
a('global_load_dword v254, v3, s[60:61]', track=False)
a('s_mov_b64 exec, -1')
a(f's_and_b32 {sW}, {sWV}, 3')
a('s_and_b32 s60, s2, 7')
lg = OPT['map']
a(f's_lshr_b32 {sT}, s60, {lg}'); a(f's_lshl_b32 {sT}, {sT}, {1+lg}')
a(f's_and_b32 s61, {sI}, {(2<<lg)-1}'); a(f's_add_u32 {sT}, {sT}, s61')
a(f's_and_b32 {sM1}, s60, {(1<<lg)-1}'); a(f's_lshl_b32 {sM1}, {sM1}, {4-lg}')
a(f's_lshr_b32 s61, {sI}, {1+lg}'); a(f's_add_u32 {sM1}, {sM1}, s61')
a(f's_and_b32 s61, {sM1}, 1')
a(f's_lshl_b32 {st}, {sT}, 1')
a(f's_add_u32 {st}, {st}, s61')
a(f's_lshr_b32 {sDS}, {sM1}, 1')
if OPT['dsx']: a(f's_xor_b32 {sDS}, {sDS}, {OPT["dsx"]}')
a(f's_lshl_b32 {sW2K}, {sW}, 11')
a(f'v_lshlrev_b32 {v(vL16)}, 4, v1')
a(f's_cmp_ge_u32 {sWV}, 4')
a('s_cbranch_scc1 L_compute')
def common2(a):
    a(f's_lshl_b32 {sCP}, {sDS}, 5'); a(f's_add_u32 {sCP}, {sCP}, {st}')
    a(f's_lshl_b32 {sW4K}, {sW}, 12'); a(f's_lshl_b32 {sM0W}, {sW}, 10')
    a(f's_and_b32 {sTH}, {sW}, 1'); a(f's_lshr_b32 {sKH}, {sW}, 1')
    a(f's_mul_i32 {sP0}, {sM1}, 3'); a(f's_lshl_b32 s60, {sM1}, 1'); a('s_add_u32 s60, s60, 11'); a(f's_min_u32 {sP0}, {sP0}, s60')
    a(f's_mov_b32 s{WS+2}, {WS_SIZE}'); a(f's_mov_b32 s{WS+3}, 0x20000')
    a(f'v_mov_b32 {v(vPWB)}, {PW}'); a(f's_lshl_b32 s60, {sWV}, 2'); a(f'v_add_u32 {v(vPWM)}, s60, {v(vPWB)}')

L = a = Prog('L', 56)
vXA, vWA, vKD, vHALO, vT43, vW2A, vW2W, vP2, vP3 = 4, 8, 12, 14, 15, 16, 17, 18, 19
vP1, vUL, vULp, vUW, vZU, vZH, vW2W2, vW2W3, UR, PO, WT = 22, 23, 24, 25, 26, 27, 11, 3, 236, 40, 64
vXRd, vYS, vDU, XRL, DUL, DRL = 246, 247, 248, 64, 96, 112
if OPT['lprio']: a(f's_setprio {OPT["lprio"]}')
for r, n in ((W1, 1409024), (Q, 2097152), (K, 2097152), (V, 2097152), (SH, 4096)):
    a(f's_mov_b32 s{r+2}, {n}'); a(f's_mov_b32 s{r+3}, 0x20000')
a(f'v_min_u32 {v(vT43)}, {42*128}, v39')
a('v_lshrrev_b32 v33, 3, v1'); a('v_and_b32 v34, 7, v1'); a('v_lshlrev_b32 v33, 10, v33')
a(f's_lshl_b32 s60, {st}, 16'); a(f's_lshl_b32 s61, {sW}, 14'); a('s_add_u32 s60, s60, s61')
a(f's_lshl_b32 s61, {sDS}, 7'); a(f's_add_u32 {sSTASH}, s60, s61')
a('v_lshrrev_b32 v35, 5, v1'); a('v_xor_b32 v35, v35, v34'); a('v_lshl_add_u32 v38, v35, 4, v33')
a(f's_lshl_b32 s60, {sW}, 6'); a('s_and_b32 s60, s60, 64'); a('s_xor_b32 s61, s60, 32')
a(f'v_xor_b32 {v(vKD)}, s61, v38')
a('s_xor_b32 s61, s60, 64')
a(f'v_xor_b32 {v(vKD+1)}, s61, v38'); a(f'v_add_u32 {v(vKD+1)}, 8192, {v(vKD+1)}')
a(f'v_add_u32 v38, {sSTASH}, v38'); a(f'v_subrev_u32 {v(vHALO)}, 8192, v38')
a(f's_lshl_b32 {sXO}, {sT}, 17')
a('s_waitcnt lgkmcnt(0)')
a(f's_mov_b64 s[{W1}:{W1+1}], s[90:91]')
a(f's_mov_b64 s[{Q}:{Q+1}], s[76:77]')
a(f's_mov_b64 s[{K}:{K+1}], s[78:79]')
a(f's_mov_b64 s[{V}:{V+1}], s[80:81]')
a(f's_mov_b64 s[{SH}:{SH+1}], s[82:83]')
seq = {}
def first_touch():
    l = [a.label() for _ in range(2)]
    a(f's_cmp_lg_u32 {sW}, 2'); a(f's_cbranch_scc1 {l[0]}')
    a(f's_mul_i32 s60, s2, {43*128}')
    a(f'buffer_load_dword v254, {v(vT43)}, {srd(W1)}, s60 offen', track=False); a(f's_branch {l[1]}')
    a.place(l[0])
    a(f's_lshl_b32 s61, {sM1}, 13'); a(f's_add_u32 s60, {sXO}, s61')
    a(f'buffer_load_dword v254, v39, {srd(Q)}, s60 offen' + ' nt' * OPT['ntx'], track=False)
    a.place(l[1])
def kv4():
    for rs, base in ((K, KB), (V, VB)):
        for n in range(2): seq['kv'] = a.dma(vKD+n, rs, sSTASH, f's_add_u32 m0, {sW2K}, {base + 1024 + n*1024}', ' nt' * OPT['ntkv'])
l = [a.label() for _ in range(4)]
a(f's_cmp_ge_u32 {sW}, 2'); a(f's_cbranch_scc1 {l[0]}')
a(f's_cmp_lg_u32 {sW}, 0'); a(f's_cbranch_scc1 {l[2]}')
a.dma(vHALO, K, '0', f's_mov_b32 m0, {KB}', track=False); a(f's_branch {l[3]}')
a.place(l[2])
a(f's_lshl_b32 s60, {sDS}, 9')
a.dma(vL16, SH, 's60', f's_mov_b32 m0, {SB}', track=False)
a(f's_branch {l[3]}')
a.place(l[0])
if not OPT['kvfirst']: first_touch()
a.place(l[3])
kv4()
if OPT['kvfirst']:
    a(f's_cmp_ge_u32 {sW}, 2'); a(f's_cbranch_scc1 {l[1]}')
    a('s_mov_b64 exec, 1')
    a(f'buffer_load_dword v254, {v(vL16)}, {srd(SH)}, 0 offen'); a.pend.pop(('v', 254))
    a('s_mov_b64 exec, -1')
    lj = a.label(); a(f's_branch {lj}')
    a.place(l[1])
    first_touch()
    a.place(lj)
a(f's_mov_b64 s[{HK}:{HK+1}], s[84:85]')
a(f's_mov_b64 s[{W2}:{W2+1}], s[92:93]')
a(f's_mov_b64 s[{WS}:{WS+1}], s[98:99]')
a(f's_load_dword {sE}, s[{WS}:{WS+1}], {WS_E}')
common2(a)
a(f's_lshl_b32 s60, {sCP}, 2')
a(f's_load_dword {sD}, s[86:87], s60')
a('v_lshrrev_b32 v32, 4, v1')
a('v_xor_b32 v35, v34, v32')
a(f'v_lshl_add_u32 {v(vXA)}, v35, 4, v33')
a(f'v_xor_b32 {v(vXA+1)}, 64, {v(vXA)}')
a(f'v_add_u32 {v(vXA+1)}, 8192, {v(vXA+1)}')
a(f'v_add_u32 {v(vXA+2)}, 16384, {v(vXA)}')
a(f'v_add_u32 {v(vXA+3)}, 16384, {v(vXA+1)}')
a(f's_lshl_b32 s60, {sW}, 15'); a(f's_add_u32 {sXO}, {sXO}, s60')
a(f's_mul_i32 {sW3K}, {sW}, 3072')
a(f's_cmp_lt_u32 {sM1}, 11')
a('s_cselect_b32 s61, 12, 8')
a(f'v_mov_b32 v3, {OOB}')
for j in range(3):
    if j: a(f'v_add_u32 v36, {64*j}, v1')
    src = 'v36' if j else 'v1'
    a(f'v_mul_u32_u24 v37, 5462, {src}')
    a('v_lshrrev_b32 v37, 16, v37')
    a('v_mul_u32_u24 v35, 12, v37')
    a(f'v_sub_u32 v35, {src}, v35')
    a('v_cmp_gt_u32 vcc, s61, v35')
    a('v_mul_u32_u24 v37, 2752, v37')
    a(f'v_lshl_add_u32 {v(vWA+j)}, v35, 4, v37')
    a(f'v_cndmask_b32 {v(vWA+j)}, v3, {v(vWA+j)}, vcc')
a(f's_mul_i32 {sW1O}, {sW}, {16*2752}'); a(f's_lshl_b32 s60, {sP0}, 6'); a(f's_add_u32 {sW1O}, {sW1O}, s60')
if OPT['rot'] == 1: a(f's_and_b32 {sROT}, {sM1}, 7')
elif OPT['rot'] == 2:
    a(f's_lshl_b32 {sROT}, {sT}, 2'); a(f's_add_u32 {sROT}, {sROT}, {sM1}')
for r, n in ((HK, 2097152), (W2, 1409024)):
    a(f's_mov_b32 s{r+2}, {n}'); a(f's_mov_b32 s{r+3}, 0x20000')

ops = []
def op(name, gate, fn): ops.append((name, gate, fn))
def touch2():
    if OPT['t2mode']:
        a(f's_lshl_b32 {sG}, {sI}, 2'); a(f's_add_u32 {sG}, {sG}, {sW}')
        if OPT['map'] == 1:
            a(f's_mul_i32 {sG}, {sG}, 43'); a('v_min_u32 v253, 42, v1'); a(f'v_add_u32 v253, {sG}, v253')
            a('v_and_b32 v252, 3, v253'); a('v_lshrrev_b32 v253, 2, v253'); a('v_lshlrev_b32 v253, 10, v253'); a('v_lshl_add_u32 v253, v252, 7, v253')
            a(f's_and_b32 {sG}, {sDS}, 4'); a(f's_lshl_b32 {sG}, {sG}, 7')
            a(f'buffer_load_dword v254, v253, {srd(W2)}, {sG} offen')
        else:
            a(f's_mul_i32 {sG}, {sG}, {86*128}')
            a(f'buffer_load_dword v254, {v(vT43)}, {srd(W2)}, {sG} offen')
            a(f's_add_u32 {sG}, {sG}, {43*128}')
            a(f'buffer_load_dword v253, {v(vT43)}, {srd(W2)}, {sG} offen')
        return
    l = a.label()
    a(f's_cmp_lg_u32 {sW}, 2'); a(f's_cbranch_scc1 {l}')
    a(f's_mul_i32 {sG}, s2, {43*128}')
    a(f'buffer_load_dword v254, {v(vT43)}, {srd(W2)}, {sG} offen', track=False)
    a.place(l)
def touch3():
    l = a.label()
    a(f's_cmp_lg_u32 {sW}, 3'); a(f's_cbranch_scc1 {l}')
    a(f's_mul_i32 {sG}, {sI}, {43*1024}'); a(f'v_lshlrev_b32 v253, 3, {v(vT43)}')
    a(f'buffer_load_dword v254, v253, {srd(W2)}, {sG} offen offset:384', track=False)
    a.place(l)
def add_chunk(c):
    slot = (c % 4) * SLOT
    gate = f'c{c-3}' if c >= 4 else None
    def w(j):
        def f():
            if j == 0:
                if c == OPT['t2at']: touch2()
                if c == OPT['t3at']: touch3()
                if OPT['rot']:
                    a(f's_add_u32 {sC}, {sROT}, {c}'); a(f's_and_b32 {sC}, {sC}, 7')
                    a(f's_mul_i32 {sB}, {sC}, {64*2752}'); a(f's_add_u32 {sB}, {sB}, {sW1O}')
                    a(f's_lshl_b32 {sA}, {sC}, 7'); a(f's_add_u32 {sA}, {sA}, {sXO}')
                else:
                    a(f's_add_u32 {sB}, {sW1O}, {c*64*2752}'); a(f's_add_u32 {sA}, {sXO}, {c*128}')
            return a.dma(vWA+j, W1, sB, f's_add_u32 m0, {sW3K}, {slot + 16384 + j*1024}')
        return f
    for j in range(3): op(f'w{c}_{j}', gate, w(j))
    for n in range(4): op(f'x{c}_{n}', gate, lambda n=n: a.dma(vXA+n, Q, sA, f's_add_u32 m0, {sW4K}, {slot + n*1024}'))
def add_h():
    for n in range(4):
        def f(n=n):
            if n == 0 and OPT['t2at'] == -2: touch2()
            if n == 0 and OPT['t3at'] == -2: touch3()
            a(f's_mov_b32 m0, {sHM0}')
            return a(f'buffer_load_dwordx4 {v(vL16)}, {srd(HK)}, {sHSO} offen offset:{n*1024}{" nt" * OPT["nth"]} lds')
        op(f'h{n}', None, f)
def w2op(s):
    a(f's_add_u32 {sO0}, {sW2O}, {s*16384}')
    return a(f'buffer_load_dwordx4 {v(WT+4*s,4)}, {v(vW2A)}, {srd(W2)}, {sO0} offen')
def uload():
    a.poll_check(vP1, 20, '0x1ff')
    a(f'buffer_load_dwordx4 {v(UR,4)}, {v(vUL)}, {srd(WS)}, {sUL} offen sc1')
    a(f'buffer_load_dwordx4 {v(UR+4,4)}, {v(vUL)}, {srd(WS)}, {sUL} offen offset:16 sc1')
    return a(f'buffer_load_dword {v(UR+8)}, {v(vULp)}, {srd(WS)}, {sUL} offen sc1')
def ubuild():
    if OPT['hp']: a('s_setprio 2')
    for i in range(4): a(f'v_mov_b32 v{60+i}, 0')
    a(f'ds_write_b128 {v(vZU)}, v[60:63]'); a(f'ds_write_b32 {v(vZH)}, v60')
    for c in range(2):
        sel = sSELLO if c == 0 else sSELHI
        for k in range(4):
            hi0 = UR + 5 - 2*k if k < 3 else UR + 8
            a(f'v_perm_b32 {v(PO+8*c+k)}, {v(hi0)}, {v(UR+6-2*k)}, {sel}')
        a(f'ds_write_b128 {v(vUW)}, {v(PO+8*c,4)} offset:{c*CVCH}')
        for k in range(4): a(f'v_perm_b32 {v(PO+8*c+4+k)}, {v(UR+6-2*k)}, {v(UR+7-2*k)}, {sel}')
        a(f'ds_write_b128 {v(vUW)}, {v(PO+8*c+4,4)} offset:{c*CVCH+U1OFF}')
    flush_posts(True)
    a.wait_all_lg()
    for c in range(2):
        for jj in range(2):
            for h in range(2): a(f'ds_read_b32 {v(DRL+4*c+2*jj+h)}, {v(vDU)} offset:{c*CVCH + 512*jj + 64*h}')
    a.wait_vm(max(seq['st1'], seq['h3']))
    a.post(4); a.stamp()
    for c in range(2):
        for jj in range(2):
            for h in range(2):
                src = DRL+4*c+2*jj+h; d = DUL+8*jj+4*c+2*h
                for x in (hi(d, src), lo(d+1, src), f'v_mul_f32 {v(d)}, {(sD0, sD1)[c]}, {v(d)}', f'v_mul_f32 {v(d+1)}, {(sD0, sD1)[c]}, {v(d+1)}'): a(x)
    a(f'v_mov_b32 v252, {sTAG}'); a(f'v_mov_b32 v253, {sNTAG}')
    if OPT['hp']: a('s_setprio 0')
    return a.vm_n
nbg = 0
wlist = list(range(28, 43)) + list(range(OPT['nx']))
for c in range(8):
    if c == OPT['hat']: add_h()
    add_chunk(c)
    if OPT['bgfrom'] <= c < 7:
        for _ in range(OPT['bg']):
            op(f'W{wlist[nbg]}', None, lambda s_=wlist[nbg]: w2op(s_)); nbg += 1
for n in range(2): op(f'st{n}', None, lambda n=n: a.dma(vXA+n, Q, sSTASH, f's_add_u32 m0, {sW2K}, {XST + n*1024}'))
if OPT['hat'] == 8: add_h()
for s_ in wlist[nbg:]: op(f'W{s_}', None, lambda s_=s_: w2op(s_))
b0 = [o[0] for o in ops].index('w7_0')
for nm, pos, fn in (('ub', OPT['ubat'], ubuild), ('ul', OPT['ulat'], uload), ('up', OPT['upat'], lambda: a.poll_issue(vP1, 20, '0x1ff'))):
    ops.insert(b0 + pos, (nm, 'c4', fn))
names = [o[0] for o in ops]
nxt = [0]
posts = [('x5_3', 1), ('x6_3', 2), ('x7_3', 3)]
capped = [False]
dbg = []
def flush_posts(force=False):
    while posts and posts[0][0] in seq and (force or a.vm_done >= seq[posts[0][0]]):
        a.wait_vm(seq[posts[0][0]]); a.post(posts[0][1], False); a.stamp(); posts.pop(0)
def issue_upto(idx):
    while nxt[0] <= min(idx, len(ops) - 1):
        name, gate, fn = ops[nxt[0]]
        if gate is not None and gate not in a.bars: return
        if capped[0]:
            a.wait_vm(a.vm_n - OPT['cap'] + 1); flush_posts()
        nxt[0] += 1
        seq[name] = fn()
        if capped[0] and (name in ('x7_3', 'st1', 'h3', 'up', 'ul', 'ub') or (name[0] == 'W' and int(name[1:]) % 3 == 0)):
            a.stamp(2); dbg.append(name)
issue_upto(OPT['lookkv'] - 1)
a('s_branch L_loader2')
L1lines = a.lines; a.lines = ['L_loader2:']
a(f's_mul_i32 s60, {sKH}, {HCH}'); a(f's_mul_i32 s61, {sTH}, {HBD}'); a('s_add_u32 s61, s61, s60'); a(f's_add_u32 {sHM0}, s61, {HBASE+64}')
a(f's_lshl_b32 {sHSO}, {sCP}, 13'); a(f's_add_u32 {sUL}, {sHSO}, {WS_U}'); a(f's_lshl_b32 s61, {sKH}, 12'); a(f's_add_u32 {sHSO}, {sHSO}, s61')
a('s_waitcnt lgkmcnt(0)')
a(f's_add_u32 {sTAG}, {sE}, 1'); a(f's_not_b32 {sNTAG}, {sTAG}')
a.post(0)
a.wait_vm(seq['kv']); a.bar('kv'); a.stamp()
D = OPT['look']
for c in range(5):
    issue_upto(names.index(f'x{c}_3') + D)
    if c == 0:
        a('v_and_b32 v35, 1, v32'); a('v_lshlrev_b32 v35, 2, v35'); a('v_xor_b32 v35, v35, v34')
        a(f'v_lshl_add_u32 {v(vW2A)}, v35, 4, v33')
        a(f's_mul_i32 {sW2O}, {sKH}, {43*16*1024}'); a(f's_lshl_b32 s61, {sTH}, 13'); a(f's_add_u32 {sW2O}, {sW2O}, s61')
        a(f's_lshl_b32 s61, {sDS}, 7'); a(f's_add_u32 {sW2O}, {sW2O}, s61')
        a(f'v_add_u32 {v(vW2W)}, {sM0W}, {v(vL16)}')
        a(f'v_add_u32 {v(vW2W2)}, 61440, {v(vW2W)}'); a(f'v_add_u32 {v(vW2W3)}, 122880, {v(vW2W)}')
        a(f's_lshl_b32 s60, {st}, 1'); a(f's_add_u32 s60, s60, {sTH}'); a('s_mul_i32 s60, s60, 86')
        a(f's_mul_i32 s61, {sKH}, 43'); a('s_add_u32 s60, s60, s61'); a('s_lshl_b32 s60, s60, 10')
        a(f's_add_u32 {sHL}, s60, {WS_H}')
        a(f's_mul_i32 s60, {sKH}, 7'); a('v_min_u32 v38, 8, v1'); a('v_add_u32 v35, s60, v38')
        a('v_lshrrev_b32 v36, 1, v35'); a(f'v_xor_b32 v36, {OPT["dsx"]}, v36'); a('v_lshlrev_b32 v36, 12, v36'); a('v_and_b32 v35, 1, v35'); a('v_lshl_add_u32 v37, v35, 7, v36')
        a(f's_lshl_b32 s60, {sT}, 8'); a(f's_add_u32 s60, s60, {WS_FLAG + FPH}')
        a(f's_and_b32 s61, {st}, 1'); a('s_lshl_b32 s61, s61, 1'); a(f's_add_u32 s61, s61, {sTH}')
        a('s_lshl_b32 s61, s61, 15'); a('s_add_u32 s61, s61, s60')
        a(f'v_add_u32 {v(vP2)}, s61, v37')
    if c == 2:
        a(f's_lshl_b32 s60, {sDS}, 12'); a(f's_and_b32 s61, {st}, 24'); a('s_lshl_b32 s61, s61, 12'); a('s_add_u32 s60, s60, s61'); a(f's_add_u32 s60, s60, {WS_FLAG}')
        a(f's_lshl_b32 s61, {sW}, 3'); a('v_add_u32 v35, s61, v38'); a('v_max_u32 v35, 1, v35'); a('v_subrev_u32 v35, 1, v35')
        a('v_lshlrev_b32 v35, 7, v35'); a(f'v_add_u32 {v(vP1)}, s60, v35')
        a(f's_add_u32 s60, s60, {sM0W}'); a(f's_add_u32 s60, s60, {2*FPH}')
        a('v_lshlrev_b32 v35, 7, v34'); a(f'v_add_u32 {v(vP3)}, s60, v35')
        a(f's_lshl_b32 s60, {st}, 16'); a(f's_lshl_b32 s61, {sDS}, 13'); a('s_add_u32 s60, s60, s61'); a(f's_add_u32 s60, s60, {sW2K}')
        a(f's_add_u32 {sYL}, s60, {WS_Y}')
        a(f'v_lshlrev_b32 {v(vUL)}, 5, v0'); a(f'v_subrev_u32 {v(vULp)}, 4, {v(vUL)}')
        a(f'v_add_u32 {v(vUW)}, {CV+448}, {v(vW2W)}')
        a(f's_mul_i32 s60, {sKH}, {CVCH}'); a(f's_mul_i32 s61, {sTH}, {U1OFF}'); a('s_add_u32 s61, s61, s60'); a(f's_add_u32 s61, s61, {CV}')
        a('v_min_u32 v35, 27, v1'); a('v_lshlrev_b32 v35, 4, v35'); a(f'v_add_u32 {v(vZU)}, s61, v35')
        a(f's_sub_u32 s61, {sHM0}, 64'); a('v_and_b32 v35, 15, v1'); a('v_lshlrev_b32 v35, 2, v35'); a(f'v_add_u32 {v(vZH)}, s61, v35')
        a(f's_mov_b32 {sSELLO}, 0x05040100'); a(f's_mov_b32 {sSELHI}, 0x07060302')
    if OPT['sw2']:
        if c == 0:
            a(f's_lshl_b32 s60, {sI}, 2'); a(f's_add_u32 s60, s60, {sW}'); a('s_mul_i32 s60, s60, 11'); a('s_min_u32 s60, s60, 1365'); a('s_lshl_b32 s60, s60, 10')
            a(f's_and_b32 s61, {sDS}, 4'); a('s_lshl_b32 s61, s61, 7'); a('s_add_u32 s60, s60, s61')
            a(f's_add_u32 s40, s{W2}, s60'); a(f's_addc_u32 s41, s{W2+1}, 0')
            sw2 = [r*1024 + q*64 for r in range(11) for q in range(8)]
        for o in sw2[:OPT['sw2']]: a(f's_load_dword s100, s[40:41], {o}')
        sw2 = sw2[OPT['sw2']:]
    if c == 3:
        a(f's_mov_b32 {sMASK}, 0xffff0000'); a(f's_lshl_b32 {sD0}, {sD}, 16'); a(f's_and_b32 {sD1}, {sD}, {sMASK}')
        a('v_and_b32 v36, 15, v1')
        a('v_bfe_u32 v35, v1, 2, 2'); a('v_lshlrev_b32 v35, 4, v35'); a('v_lshl_add_u32 v35, v32, 7, v35')
        a('v_and_b32 v37, 3, v1'); a('v_xor_b32 v37, 3, v37'); a('v_lshl_add_u32 v35, v37, 2, v35')
        a(f's_add_u32 s60, {sM0W}, {CV+U1OFF+448}'); a(f'v_add_u32 {v(vDU)}, s60, v35')
        a(f's_add_u32 s60, {sW2K}, {CV}'); a(f'v_add_u32 {v(vXRd)}, s60, {v(vL16)}')
        a(f'v_lshlrev_b32 {v(vYS)}, 16, v32'); a(f'v_lshl_add_u32 {v(vYS)}, v36, 4, {v(vYS)}')
        a(f's_lshl_b32 s60, {sW}, 19'); a(f's_lshl_b32 s61, {sCP}, 8'); a('s_add_u32 s60, s60, s61'); a(f's_add_u32 {sYS0}, s60, {WS_Y}')
        a(f's_add_u32 {sYS1}, {sYS0}, 0x40000')
        a(f's_lshl_b32 s60, {sCP}, 7'); a(f's_lshl_b32 s61, {sW}, 15'); a('s_add_u32 s60, s60, s61'); a(f's_add_u32 s60, s60, {WS_FLAG}')
        a(f'v_lshlrev_b32 {v(vFL)}, 3, v36'); a(f'v_add_u32 {v(vFL)}, s60, {v(vFL)}')
    a.wait_vm(seq[f'x{c}_3'])
    a.bar(f'c{c}', False)
    a.stamp()
capped[0] = True
def wr(s_):
    if OPT['notail']: return
    o = w2slot(s_); k = o // 61440
    a(f'ds_write_b128 {v((vW2W, vW2W2, vW2W3)[k])}, {v(WT+4*s_,4)} offset:{o - 61440*k}')
def wdma(s_):
    if OPT['nodma']: return
    a.wait_vm(a.vm_n - OPT['cap2'] + 1)
    a(f's_add_u32 {sO0}, {sW2O}, {s_*16384}')
    return a.dma(vW2A, W2, sO0, f's_add_u32 m0, {sM0W}, {w2slot(s_)}')
issue_upto(999)
flush_posts(True)
a.stamp()
a.expect(1, 1, sleep=OPT['esl'])
a.stamp()
for s_ in range(28):
    if s_ == OPT['wm']: a.expect(1, 2, sleep=OPT['esl'])
    if s_ == OPT['wm'] + OPT['wk']:
        a.stamp(); a.poll_issue(vP2, 20, '0x1ff')
    wl = wdma(s_)
if OPT['wm'] + OPT['wk'] >= 28:
    a.stamp(); a.poll_issue(vP2, 20, '0x1ff')
a.poll_check(vP2, 20, '0x1ff')
a.post(5, False)
a.stamp()
a.wait_vm(wl); a.post(6, False)
a.expect(1, 4, sleep=1)
a('s_setprio 2')
for jj in range(2):
    for sw in range(4): a(f'ds_read_b128 {v(XRL+16*jj+4*sw,4)}, {v(vXRd)} offset:{8192*sw + 1024*jj}')
for jj in range(2):
    for hf in range(2):
        for c in range(2):
            for r in range(4): a(f'v_add_f32 {v(DUL+8*jj+4*c+r)}, {v(DUL+8*jj+4*c+r)}, {v(XRL+16*jj+8*c+4*hf+r)}')
    for r in range(4): a(f'v_cvt_pk_bf16_f32 {v(XRL+16*jj+r)}, {v(DUL+8*jj+r)}, {v(DUL+8*jj+4+r)}')
    yst = a(f'buffer_store_dwordx4 {v(XRL+16*jj,4)}, {v(vYS)}, {srd(WS)}, {(sYS0, sYS1)[jj]} offen sc1')
a.post(7)
a('s_setprio 0')
a.expect(0, 7)
for s_ in range(28, 36):
    wr(s_)
    if s_ == 28 + OPT['yk']: a.wait_vm(yst); a.flag_store(3); a.stamp()
a.expect(1, 6, sleep=OPT['esl'])
for s_ in range(36, 43): wr(s_)
a.post(8)
a.stamp()
a(f's_or_b32 s60, {sCP}, {sW}')
a('s_cmp_lg_u32 s60, 0')
a('s_cbranch_scc1 L_noep')
for q in range(4): a(f'v_add_u32 v{40+q}, {WS_FLAG + 8192*q}, v39')
a(f's_mov_b32 {sSPIN}, 0')
a.place('L_ep')
for q in range(4): a(f'buffer_load_dwordx2 v[{44+2*q}:{45+2*q}], v{40+q}, {srd(WS)}, 0 offen sc1', track=False)
a('s_waitcnt vmcnt(0)')
a('s_mov_b64 s[60:61], exec')
for q in range(4):
    a(f'v_cmp_eq_u32 vcc, {sTAG}, v{44+2*q}'); a('s_and_b64 s[60:61], s[60:61], vcc')
    a(f'v_cmp_eq_u32 vcc, {sNTAG}, v{45+2*q}'); a('s_and_b64 s[60:61], s[60:61], vcc')
a('s_cmp_eq_u64 s[60:61], exec')
a('s_cbranch_scc1 L_epok')
a(f's_add_u32 {sSPIN}, {sSPIN}, 1'); a(f's_cmp_lt_u32 {sSPIN}, {0 if OPT["nosync"] else 0x20000}'); a('s_cbranch_scc1 L_ep')
a.place('L_epok')
a(f'v_mov_b32 v40, {WS_E}'); a(f'v_mov_b32 v41, {sTAG}')
a('s_mov_b64 exec, 1')
a(f'buffer_store_dword v41, v40, {srd(WS)}, 0 offen sc1', track=False)
a('s_mov_b64 exec, -1')
a.place('L_noep')
for _ in range(OPT['ydelay']): a('s_sleep 4')
a.poll_issue(vP3, 20, '0xff'); a.poll_check(vP3, 20, '0xff')
a.stamp()
a(f's_add_u32 m0, {sW2K}, {YT}')
for n in range(2): y = a(f'buffer_load_dwordx4 {v(vL16)}, {srd(WS)}, {sYL} offen offset:{1024*n} sc1 lds')
a.wait_vm(y); a.post(9, False)
a.wait_all_lg()
a.finish()

C = a = Prog('C', 4)
a.gap = 0
vCSR, vSTW, vXR, vWR, vYR, vCSW = 3, 11, 12, 20, 9, 8
vKA, vKB, vSHR, vUS = 212, 213, 214, 215
(vUA, vHA, vDU, vXW, vXRd, vYS, vE2W, vE2R, vSTa, vSTb, vSTS, vOTa, vOTb, vOTR, vOUT) = range(216, 231)
AR = 234
F = {k: 198 + i for i, k in enumerate(('l4', 'n', 'g', 'b', 'l1', 'l3', 'r', 'x', 'h', 't0', 't1', 't2'))}
def fx(s):
    for k, r in F.items(): s = s.replace('%' + k, f'v{r}')
    return s
def e(s): a(fx(s))
if OPT['prio']: a(f's_setprio {OPT["prio"]}')
a(f's_mov_b32 {sMASK}, 0xffff0000')
e('v_lshrrev_b32 %l4, 4, v1'); e('v_lshrrev_b32 %g, 5, v1'); e('v_and_b32 %b, 15, v1'); e('v_and_b32 %h, 1, %l4')
a(f's_lshl_b32 s60, {sW}, 1'); e('v_add_u32 %t0, s60, %g')
e('v_add_u32 %t1, 1, %b'); e('v_and_b32 %t1, 7, %t1'); e('v_xor_b32 %t1, %t1, %t0')
e('v_lshlrev_b32 %t2, 9, %b'); e('v_lshl_add_u32 %t2, %h, 3, %t2'); e(f'v_add_u32 %t2, {KB + 5*128}, %t2')
e(f'v_lshl_add_u32 {v(vKA)}, %t1, 4, %t2')
e('v_add_u32 %t1, 2, %b'); e('v_and_b32 %t1, 7, %t1'); e('v_xor_b32 %t1, %t1, %t0')
e(f'v_lshl_add_u32 {v(vKB)}, %t1, 4, %t2')
a(f's_lshl_b32 s60, {sW}, 7'); a(f's_add_u32 s60, s60, {SB}')
e(f'v_lshlrev_b32 {v(vSHR)}, 5, %l4'); a(f'v_add_u32 {v(vSHR)}, s60, {v(vSHR)}')
e(f'v_lshlrev_b32 {v(vUS)}, 14, %l4'); e(f'v_lshl_add_u32 {v(vUS)}, %b, 4, {v(vUS)}')
common2(a)
a('s_waitcnt lgkmcnt(0)')
a(f's_mov_b64 s[{OUT}:{OUT+1}], s[94:95]')
a(f's_mov_b64 s[{WS}:{WS+1}], s[98:99]')
a(f's_load_dword {sE}, s[{WS}:{WS+1}], {WS_E}')
spf = []
if OPT['spf']:
    a(f's_lshl_b32 s60, {sCP}, 13'); a(f's_add_u32 s60, s60, {sW2K}')
    a('s_add_u32 s84, s84, s60'); a('s_addc_u32 s85, s85, 0')
    a(f's_lshl_b32 s60, s2, 2'); a(f's_add_u32 s60, s60, {sW}'); a(f's_mul_i32 s60, s60, {11*128}'); a(f's_min_u32 s60, s60, {1409024 - 11*128}')
    a('s_add_u32 s92, s92, s60'); a('s_addc_u32 s93, s93, 0')
    for j in range(11): a(f's_load_dword s100, s[92:93], {128*j}')
    for j in range(32): a(f's_load_dword s100, s[84:85], {64*j}')
a(f's_lshl_b32 s60, {sDS}, 18'); a(f's_lshl_b32 s61, {st}, 8'); a('s_add_u32 s60, s60, s61')
a(f's_lshl_b32 s61, {sW}, 16'); a('s_add_u32 s60, s60, s61'); a(f's_add_u32 {sUS0}, s60, {WS_U}'); a(f's_add_u32 {sUS1}, {sUS0}, 8192')
a(f's_mov_b32 {sONES}, 0x3f803f80')
e('v_and_b32 %n, 31, v1'); e('v_and_b32 %l1, 1, v1'); e('v_and_b32 %l3, 3, v1'); e('v_bfe_u32 %r, v1, 2, 2')
e('v_bfe_u32 %t0, v1, 1, 3'); e('v_xor_b32 %t0, %t0, %g'); e('v_lshlrev_b32 %t0, 4, %t0')
e('v_lshl_add_u32 %x, %n, 7, %t0')
e(f'v_add_u32 %t0, {sW4K}, %x')
e('v_lshl_add_u32 %t1, %g, 3, %r'); e('v_mul_u32_u24 %t1, 192, %t1')
e('v_lshl_add_u32 %t1, %h, 5, %t1'); e('v_lshl_add_u32 %t1, %l3, 3, %t1')
for i in range(4):
    a(f's_add_u32 s60, {sW}, {i}'); a('s_and_b32 s60, s60, 3'); a('s_lshl_b32 s61, s60, 5')
    e(f'v_xor_b32 {v(vXR+i)}, s61, %t0')
    a('s_mul_i32 s61, s60, 3072')
    e(f'v_add_u32 {v(vWR+i)}, s61, %t1')
ACC, XF, WF, SU, SQ, CS = 32, 80, 112, 160, 162, 164
for r in range(SU, CS+3): a(f'v_mov_b32 {v(r)}, 0')
a('s_waitcnt lgkmcnt(0)')
a(f's_add_u32 {sTAG}, {sE}, 1'); a(f's_not_b32 {sNTAG}, {sTAG}')
a.post(0)
a.stamp()
S = []
def s_(*xs):
    for x in xs: S.append(fx(x))
for i in range(4): s_(f'v_add_u32 {v(vXR+4+i)}, {2*SLOT}, {v(vXR+i)}', f'v_add_u32 {v(vWR+4+i)}, {2*SLOT}, {v(vWR+i)}')
s_(f'v_mov_b32 v252, {sTAG}', f'v_mov_b32 v253, {sNTAG}')
s_(f's_lshl_b32 s60, {sCP}, 7', f's_lshl_b32 s61, {sW}, 15', 's_add_u32 s60, s60, s61', f's_add_u32 s60, s60, {WS_FLAG}')
s_(f'v_lshlrev_b32 {v(vFL)}, 3, %b', f'v_add_u32 {v(vFL)}, s60, {v(vFL)}')
NS1 = len(S)
s_(f's_mov_b32 s{OUT+2}, 2097152', f's_mov_b32 s{OUT+3}, 0x20000', f's_mov_b32 {sSELLO}, 0x05040100')
s_(f's_and_b32 s61, {st}, 1', 's_lshl_b32 s61, s61, 1', f's_add_u32 s61, s61, {sTH}', 's_lshl_b32 s61, s61, 8', f's_add_u32 s61, s61, {STATS}')
s_('v_lshlrev_b32 %t0, 3, %n', f'v_add_u32 {v(vSTS)}, s61, %t0')
s_(f's_lshl_b32 s60, {sW}, 8', f's_add_u32 s60, s60, {STATS}', f'v_add_u32 {v(vSTW)}, s60, %t0')
s_(f'v_add_u32 {v(vCSR)}, {CSUM}, {v(vL16)}', f's_lshl_b32 s60, {sW}, 2', f'v_add_u32 {v(vCSW)}, s60, {v(vCSR)}')
s_(f's_lshl_b32 s60, {sT}, 2', f's_add_u32 s60, s60, {sW}', 's_mul_i32 s60, s60, 86', f's_lshl_b32 s61, {sP0}, 1', 's_add_u32 s60, s60, s61', 's_lshl_b32 s60, s60, 10')
s_(f's_add_u32 {sHS}, s60, {WS_H}', f's_add_u32 {sHS3}, {sHS}, 4096')
S.append([f's_cmp_lt_u32 {sM1}, 11', f's_cselect_b32 {sHS3}, {sHS3}, {OOB}', 's_cselect_b32 s85, 0xffff, 0'])
s_('s_mov_b32 s84, -1', 'v_lshlrev_b32 v10, 7, v1')
sSELF = 's[84:85]'
s_(f's_mul_i32 s60, {sKH}, {CVCH}', f's_add_u32 s60, s60, {CV+448-192}', f's_lshl_b32 s61, {sTH}, 8', 's_sub_u32 s60, s60, s61')
s_(f'v_mul_u32_u24 {v(vUA)}, {U1OFF}, %l1', 'v_lshrrev_b32 %t0, 1, %b', 'v_lshl_add_u32 %t0, %t0, 2, %l4')
s_(f'v_lshl_add_u32 {v(vUA)}, %t0, 4, {v(vUA)}', f'v_add_u32 {v(vUA)}, s60, {v(vUA)}')
s_('v_xor_b32 %t0, 1, %l1', f'v_mul_u32_u24 {v(vHA)}, {HBD}, %t0', f'v_lshl_add_u32 {v(vHA)}, %b, 2, {v(vHA)}')
s_('v_lshlrev_b32 %t0, 4, %l4', f'v_sub_u32 {v(vHA)}, {v(vHA)}, %t0')
s_(f's_mul_i32 s60, {sKH}, {HCH}', 's_add_u32 s61, s60, s61', f's_add_u32 s61, s61, {HBASE+64-12}', f'v_add_u32 {v(vHA)}, s61, {v(vHA)}')
s_(f's_lshl_b32 s60, {st}, 1', f's_add_u32 s60, s60, {sTH}', 's_mul_i32 s60, s60, 86', f's_mul_i32 s61, {sKH}, 43', 's_add_u32 s60, s60, s61', 's_lshl_b32 s60, s60, 10')
s_(f's_add_u32 {sHL}, s60, {WS_H}')
s_(f's_lshl_b32 s60, {sW}, 13', f's_add_u32 s60, s60, {CV}', f'v_add_u32 {v(vXW)}, s60, {v(vL16)}')
s_('v_lshl_add_u32 %t0, %g, 2, %r', 'v_lshlrev_b32 %t0, 7, %t0', 'v_bfe_u32 %t1, v1, 3, 1', 'v_lshl_add_u32 %t0, %t1, 6, %t0')
s_('v_lshl_add_u32 %t0, %h, 5, %t0', 'v_lshl_add_u32 %t0, %l1, 4, %t0', 'v_bfe_u32 %t1, v1, 1, 1', 'v_lshl_add_u32 %t0, %t1, 3, %t0')
s_(f's_lshl_b32 s60, {sKH}, 6', 'v_xor_b32 %t0, s60, %t0', f's_lshl_b32 s61, {sKH}, 11')
s_(f'v_add_u32 {v(AR)}, s61, %t0', f'v_xor_b32 {v(AR+1)}, 64, {v(AR)}')
for k in (1, 2): s_(f'v_add_u32 {v(AR+2*k)}, {61440*k}, {v(AR)}', f'v_add_u32 {v(AR+2*k+1)}, {61440*k}, {v(AR+1)}')
s_(f'v_lshlrev_b32 {v(vYR)}, 10, %g', 'v_bfe_u32 %t1, v1, 1, 4', f'v_lshl_add_u32 {v(vYR)}, %t1, 4, {v(vYR)}', f'v_lshl_add_u32 {v(vYR)}, %l1, 2, {v(vYR)}')
s_(f's_lshl_b32 s61, {sKH}, 12', f's_lshl_b32 {sO0}, {sTH}, 3', f's_add_u32 s61, s61, {sO0}', f's_add_u32 s61, s61, {YT}', f'v_add_u32 {v(vYR)}, s61, {v(vYR)}')
s_('v_xor_b32 %t0, s60, %x', f's_lshl_b32 s61, {sTH}, 12', f's_add_u32 s61, s61, {XST}', f'v_add_u32 {v(vSTa)}, s61, %t0', f'v_xor_b32 {v(vSTb)}, 32, {v(vSTa)}')
s_(f's_add_u32 s61, {sW4K}, {EX}', f'v_add_u32 {v(vE2W)}, s61, {v(vL16)}')
s_(f's_xor_b32 s61, {sW4K}, 8192', f's_add_u32 s61, s61, {EX}', f'v_add_u32 {v(vE2R)}, s61, {v(vL16)}')
s_(f's_add_u32 s61, {sW2K}, {OT}', 'v_bfe_u32 %t0, v1, 1, 2', 'v_xor_b32 %t0, %t0, %g', 'v_lshlrev_b32 %t0, 4, %t0')
s_('v_lshl_add_u32 %t0, %n, 6, %t0', f'v_add_u32 {v(vOTa)}, s61, %t0', f'v_xor_b32 {v(vOTb)}, 32, {v(vOTa)}')
s_('v_lshrrev_b32 %t1, 2, v1', 'v_bfe_u32 %t0, v1, 3, 2', 'v_xor_b32 %t0, %t0, %l3', 'v_lshlrev_b32 %t0, 4, %t0', 'v_lshl_add_u32 %t0, %t1, 6, %t0')
s_(f'v_add_u32 {v(vOTR)}, s61, %t0', 'v_lshlrev_b32 %t1, 10, %t1', f'v_lshl_add_u32 {v(vOUT)}, %l3, 4, %t1')
s_(f's_lshl_b32 {sO0}, {st}, 16', f's_lshl_b32 s61, {sDS}, 7', f's_add_u32 {sO0}, {sO0}, s61', f's_lshl_b32 s61, {sTH}, 15')
s_(f's_add_u32 {sO0}, {sO0}, s61', f's_add_u32 {sO0}, {sO0}, s60', f's_add_u32 {sO1}, {sO0}, 16384')

KR, VR, SR, PA = 168, 182, 190, 240
WP, KU, VU, TP = 32, 48, 76, 92
a.bar('kv')
a.stamp()
for p in range(2): a(f'ds_read_b128 {v(SR+4*p,4)}, {v(vSHR)} offset:{16*p}')
for r in range(7): a(f'ds_read_b64 {v(KR+2*r,2)}, {v(vKA if r < 3 else vKB)} offset:{128*r}')
for r in range(4): a(f'ds_read_b64 {v(VR+2*r,2)}, {v(vKB)} offset:{VB-KB+128*(r+3)}')
for x in S[:NS1]: a(x)
S = S[NS1:]
for c in range(4):
    p, e_ = c >> 1, c & 1
    for jj in range(2): a(lo(WP+8*p+4*jj+e_, SR+2*c+jj)); a(hi(WP+8*p+4*jj+2+e_, SR+2*c+jj))
for p in range(2):
    for r in range(7): a(lo(KU+4*r+2*p, KR+2*r+p)); a(hi(KU+4*r+2*p+1, KR+2*r+p))
    for r in range(4): a(lo(VU+4*r+2*p, VR+2*r+p)); a(hi(VU+4*r+2*p+1, VR+2*r+p))
    for i in range(4): a(f'v_pk_mul_f32 {v(TP+2*i,2)}, {v(KU+4*i+2*p,2)}, {v(WP+8*p+6,2)}')
    for j in (2, 1, 0):
        for i in range(4): a(f'v_pk_fma_f32 {v(TP+2*i,2)}, {v(KU+4*(i+3-j)+2*p,2)}, {v(WP+8*p+2*j,2)}, {v(TP+2*i,2)}')
    for i in range(4): a(f'v_pk_mul_f32 {v(TP+2*i,2)}, {v(TP+2*i,2)}, {v(VU+4*i+2*p,2)}')
    for i in range(4): a(f'v_cvt_pk_bf16_f32 {v(PA+4*p+i)}, {v(TP+2*i)}, {v(TP+2*i+1)}')
    ust = a(f'buffer_store_dwordx4 {v(PA+4*p,4)}, {v(vUS)}, {srd(WS)}, {(sUS0, sUS1)[p]} offen sc1')
ust_t = a.t

AX, BX, vM, vRS, vS, vC3 = 168, 180, 184, 185, 186, 188
stats = [
    f'v_add_f32 {v(SU)}, {v(SU)}, {v(SU+1)}', f'v_add_f32 {v(SQ)}, {v(SQ)}, {v(SQ+1)}',
    f'v_mov_b32 {v(SU+1)}, {v(SU)}', f'v_mov_b32 {v(SQ+1)}, {v(SQ)}',
    f'v_permlane32_swap_b32 {v(SU)}, {v(SU+1)}', f'v_permlane32_swap_b32 {v(SQ)}, {v(SQ+1)}',
    f'v_add_f32 {v(SU)}, {v(SU)}, {v(SU+1)}', f'v_add_f32 {v(SQ)}, {v(SQ)}, {v(SQ+1)}',
    f'v_mul_f32 {v(SU)}, 0x3b000000, {v(SU)}', f'v_mul_f32 {v(SQ)}, 0x3b000000, {v(SQ)}',
    f'v_fma_f32 {v(SQ)}, -{v(SU)}, {v(SU)}, {v(SQ)}', f'v_max_f32 {v(SQ)}, 0, {v(SQ)}',
    f'v_cvt_pk_bf16_f32 v190, {v(SU)}, {v(SQ)}', 'v_xor_b32 v191, 0x8000, v190',
    f'v_perm_b32 {v(BX)}, v191, v191, {sSELLO}', f'v_mov_b32 {v(BX+1)}, {v(BX)}', f'v_mov_b32 {v(BX+2)}, {v(BX)}', f'v_mov_b32 {v(BX+3)}, {v(BX)}',
    lo(vM, 190), hi(191, 190), 'v_add_f32 v191, 0x3727c5ac, v191',
    'v_cvt_pk_bf16_f32 v191, v191, v191', lo(191, 191), 'v_sqrt_f32 v191, v191',
    'v_cvt_pk_bf16_f32 v191, v191, v191', lo(vS, 191), f'v_rcp_f32 {v(vRS)}, {v(vS)}',
    f'v_mul_f32 {v(vC3)}, 0xbfb8aa3b, {v(vRS)}', f'ds_write_b64 {v(vSTW)}, {v(vM,2)}']
def rdx(c):
    st_ = 4 * ((c % 4) >> 1); off = (c & 1) * SLOT
    return [f'ds_read_b128 {v(XF+16*(c&1)+4*i,4)}, {v(vXR+st_+i)} offset:{off}' for i in range(4)]
def rdw(c, i):
    st_ = 4 * ((c % 4) >> 1); off = (c & 1) * SLOT
    return [f'ds_read_b64_tr_b16 {v(WF+12*i+4*ft+2*rd,2)}, {v(vWR+st_+i)} offset:{off+16384+rd*768+ft*64}' for ft in range(3) for rd in range(2)]
a.stamp()
a.bar('c0')
a.stamp(0, True)
for x in rdx(0) + rdw(0, 0) + rdw(0, 1): a(x)
a.fq = S
flag1 = False
for c in range(8):
    X = XF + 16*(c & 1)
    late = rdw(c, 2) + rdw(c, 3)
    for i in range(4):
        for d in range(4 if OPT['nodot'] < 2 else 0):
            a(f'v_dot2c_f32_bf16 {v(SU+(d&1))}, {sONES}, {v(X+4*i+d)}'); a(f'v_dot2c_f32_bf16 {v(SQ+(d&1))}, {v(X+4*i+d)}, {v(X+4*i+d)}')
    for d in range(4 if OPT['nodot'] < 1 else 0):
        for ft in range(3): a(f'v_dot2c_f32_bf16 {v(CS+ft)}, {sONES}, {v(WF+4*ft+d)}')
    if c == 7:
        a.drain_f()
        for ft in range(3): a.fq += [hi(192+ft, CS+ft), f'v_sub_f32 v{195+ft}, {v(CS+ft)}, v{192+ft}']
        for ft in range(3): a.fq += [f'v_cvt_pk_bf16_f32 v{192+ft}, v{192+ft}, v{195+ft}', f'ds_write_b32 {v(vCSW)}, v{192+ft} offset:{1024*ft}']
        a.fq += stats
    def mm(i, ft):
        cin = '0' if (c == 0 and i == 0) else v(ACC+16*ft, 16)
        return f'v_mfma_f32_32x32x16_bf16 {v(ACC+16*ft,16)}, {v(WF+12*i+4*ft,4)}, {v(X+4*i,4)}, {cin}'
    for i in range(3):
        for ft in range(3):
            a(mm(i, ft))
            for x in late[:3]: a(x)
            late = late[3:]
            if 4 <= c < 7 and (i, ft) == (2, 0): a.peek(0)
            if c == 7 and (i, ft) == (2, 0):
                assert len(a.fq) <= len(stats), len(a.fq)
                a.post(1)
    if not flag1 and a.t - ust_t > OPT['f1d']:
        a.wait_vm(ust); a.flag_store(1); flag1 = True
    if c < 4: a.bar(f'c{c+1}')
    elif c < 7: a.expect(0, c - 3, True)
    a.stamp(1)
    nxt_ = rdx(c+1) + rdw(c+1, 0) + rdw(c+1, 1) if c < 7 else []
    for ft in range(3):
        a(mm(3, ft))
        if c == 7 and ft == 0: a.peek(1)
        if c == 7 and ft == 1:
            a.expect(1, 1, True)
            nxt_ = [f'ds_read_b128 {v(AX+4*q,4)}, {v(vCSR)} offset:{1024*q}' for q in range(3)]
        for x in nxt_[:6]: a(x)
        nxt_ = nxt_[6:]
a.drain_f()
for ft in range(3):
    a(f'v_mfma_f32_32x32x16_bf16 {v(ACC+16*ft,16)}, {v(AX+4*ft,4)}, {v(BX,4)}, {v(ACC+16*ft,16)}')
a.stamp(0, True)

CA, DU, DR = 160, 192, 208
def FA(set_, mu): return (80 if set_ == 0 else 32) + 4*mu
def FB(set_, nu): return 112 + 4*nu if set_ == 0 else (64 + 4*nu if nu < 4 else 144 + 4*(nu-4))
def rdA(rp, mu): return f'ds_read_b128 {v(FA(rp&1,mu),4)}, {v(vUA)} offset:{512*mu - 64*rp + 192}'
def rdB(rp, nu): return [f'ds_read_b64 {v(FB(rp&1,nu)+2*h,2)}, {v(vHA)} offset:{512*nu + 64*rp + 8*h}' for h in range(2)]
def reads(rp):
    r = rdB(rp, 0) + [rdA(rp, mu) for mu in range(8)]
    for nu in range(1, 8): r += rdB(rp, nu)
    return r
TS, HO = 144, 168
first = reads(0)
for fr in range(6):
    base = ACC + 8*fr; t = TS + 8*(fr & 1); o = HO + 4*(fr & 1)
    if fr == OPT['ubar']: a.expect(0, 4, True)
    def side(n):
        if fr >= OPT['ubar']:
            for x in first[:n]: a(x)
            del first[:n]
    for p in range(4): a(f'v_pk_mul_f32 {v(t+2*p,2)}, {v(base+2*p,2)}, {v(vC3,2)} op_sel_hi:[1,0]')
    side(6)
    for q in range(8): a(f'v_exp_f32 {v(t+q)}, {v(t+q)}')
    side(6)
    for p in range(4): a(f'v_pk_fma_f32 {v(t+2*p,2)}, {v(t+2*p,2)}, {v(vS,2)}, {v(vS,2)} op_sel_hi:[1,0,0]')
    if fr == OPT['ubar'] - 1: a.peek(0)
    for q in range(8): a(f'v_rcp_f32 {v(t+q)}, {v(t+q)}')
    for p in range(4): a(f'v_pk_mul_f32 {v(t+2*p,2)}, {v(t+2*p,2)}, {v(base+2*p,2)}')
    for p in range(4): a(f'v_cvt_pk_bf16_f32 {v(o+p)}, {v(t+2*p)}, {v(t+2*p+1)}')
    so, im = (sHS, fr*1024) if fr < 4 else (sHS3, (fr-4)*1024)
    hst = a(f'buffer_store_dwordx4 {v(o,4)}, {v(vL16)}, {srd(WS)}, {so} offen offset:{im} sc1')
a.stamp(0, True)
if OPT['ubar'] == 6:
    a.expect(0, 4, True)
    for x in first[:12]: a(x)
    del first[:12]

G2A, XR, XS, YR, XU, DM, YU = 32, 32, 152, 208, 160, 176, 192
AFD = OPT['afd']
AFB = [64, 72, 144, 12, 20][:AFD+1]
RING = list(range(80, 144, 4)) + [240, 244, 248] + [24, 20, 16, 12][:2*(4-AFD)]
NR = len(RING)
def hreg(s): return RING[s % NR]
def rd2(s):
    o = w2slot(s); k = 2 * (o // 61440); o -= 30720 * k
    return [f'ds_read_b64_tr_b16 {v(AFB[s%(AFD+1)]+4*dt+2*rd,2)}, {v(AR+k+dt)} offset:{o + rd*1024}' for dt in (1, 0) for rd in range(2)]
hops = {}
def hld(s):
    def f():
        if OPT['nohl']: return
        if s % 4 == 0: a(f's_add_u32 {sA}, {sHL}, {0 if OPT["hhot"] else s*1024}')
        a(f'buffer_load_dwordx4 {v(hreg(s),4)}, {v(vL16)}, {srd(WS)}, {sA} offen offset:{(s%4)*1024}' + ['', ' sc1', ' nt'][OPT['hfl']])
    hops[s] = f
    return f
def hgate(peeked):
    a.stamp(); a.expect(0, 5, peeked); a.stamp()
    for s in range(OPT['hburst']): a.do(hld(s))
    a.gap = OPT['hgap']
    a.vq = [hld(s) for s in range(OPT['hburst'], NR)]
cnt = 0
for rp in range(4):
    rd = (first if rp == 0 else []) + (reads(rp + 1) if rp < 3 else [])
    order = [(nu, mu) for nu in range(8) for mu in range(8 - nu)]
    if rp == 3: order = [(nu, j - nu) for j in range(8) for nu in range(j + 1)]
    wq = []
    for idx, (nu, mu) in enumerate(order):
        j = nu + mu
        if rp == 2 and idx == 27:
            assert not rd
            a.post(3)
        if rp == 2 and idx == 33: a.peek(0 if OPT['gate'] == 0 else 1)
        if rp == 3 and idx == 0 and OPT['gate'] == 0:
            hgate(True); a.peek(1)
        if rp == 3 and idx == (6 if OPT['gate'] == 0 else 3): a.expect(1, 3, True)
        if cnt == OPT['sig2']:
            a.stamp(); a.wait_vm(hst); a.stamp(); a.flag_store(2)
            if OPT['selft']:
                a.do([f's_mov_b64 exec, {sSELF}', f'buffer_load_dword v254, v10, {srd(WS)}, {sHS} offen sc1', 's_mov_b64 exec, -1'])
            a.post(2, False)
        cin = '0' if (rp == 0 and nu == 0) else v(CA+4*j, 4)
        a(f'v_mfma_f32_16x16x32_bf16 {v(CA+4*j,4)}, {v(FA(rp&1,mu),4)}, {v(FB(rp&1,nu),4)}, {cin}')
        cnt += 1
        for _ in range(2 if (rp == 0 and cnt <= 8) else 1):
            if rd: a(rd.pop(0))
        if rp == 3:
            if mu == 0: wq.append((idx + 6, j))
            if idx >= 7 and idx % 4 == 3 and wq and wq[0][0] <= idx:
                jj_ = wq.pop(0)[1]; a(f'ds_write_b128 {v(vXW)}, {v(CA+4*jj_,4)} offset:{1024*jj_}')
    assert not rd
a.drain_f()
a.stamp()
for _, j in wq: a(f'ds_write_b128 {v(vXW)}, {v(CA+4*j,4)} offset:{1024*j}')
a.post(4)
a.stamp(0, True)
if OPT['gate'] == 1: hgate(False)
a.expect(0, 6)
for q in range(AFD):
    for x in rd2(q): a(x)

pre = []
for k in range(8): pre += [lo(XU+2*k, XS+k), hi(XU+2*k+1, XS+k)]
for k in range(16): pre.append(f'v_sub_f32 {v(DM+k)}, {v(XU+k)}, v232')
for k in range(16): pre.append(f'v_mul_f32 {v(DM+k)}, {v(DM+k)}, v233')
post_ = []
for k in range(8): post_ += [lo(YU+2*k, YR+k), hi(YU+2*k+1, YR+k)]
for k in range(16): post_.append(f'v_fmac_f32 {v(XU+k)}, {v(DM+k)}, {v(YU+k)}')
yreads = [f'ds_read_b32 {v(YR+4*grp+q)}, {v(vYR)} offset:{(8*grp+q)*256}' for grp in range(2) for q in range(4)]
for s in range(43):
    if s > 0 and s + NR - 1 < 43: a.vq.append(hld(s + NR - 1))
    if s == 8: a.post(6); a.stamp()
    if s == 20: a.post(8)
    if s == 28 - AFD: a.expect(0, 8, True); a.stamp()
    side = rd2(s + AFD) if s + AFD < 43 else []
    if s == 2: side += [f'ds_read_b128 {v(XS,4)}, {v(vSTa)}', f'ds_read_b128 {v(XS+4,4)}, {v(vSTb)}', f'ds_read_b64 v[232:233], {v(vSTS)}']
    if s == 4: a.fq += pre
    if s == 30: a.expect(1, 8, True)
    if s == OPT['ybar']:
        a.stamp(); a.expect(0, 9, True); a.stamp()
        side += yreads
    if s == OPT['ybar'] + 2: a.fq += post_
    if hops[s] in a.vq: a.drain_v(hops[s])
    h = (len(side) + 1) // 2
    for dt in (1, 0):
        cin = '0' if s == 0 else v(G2A+16*dt, 16)
        a(f'v_mfma_f32_32x32x16_bf16 {v(G2A+16*dt,16)}, {v(AFB[s%(AFD+1)]+4*dt,4)}, {v(hreg(s),4)}, {cin}')
        for x in side[:h]: a(x)
        side = side[h:]
    if s + 2 in (28 - AFD, OPT['ybar']): a.peek(0)
    if s == 28: a.peek(1)
a.drain_f()
a.stamp(0, True)
for k in range(4): a(f'ds_write_b128 {v(vE2W)}, {v(G2A+16+4*k,4)} offset:{1024*k}')
a.post(9)
for k in range(8): a(f'v_pk_add_f32 {v(XU+2*k,2)}, {v(XU+2*k,2)}, {v(G2A+2*k,2)}')
a.expect(1, 9)
for k in range(4): a(f'ds_read_b128 {v(80+4*k,4)}, {v(vE2R)} offset:{1024*k}')
for h in range(2):
    for k in range(4*h, 4*h+4): a(f'v_pk_add_f32 {v(XU+2*k,2)}, {v(XU+2*k,2)}, {v(80+2*k,2)}')
    for k in range(4*h, 4*h+4): a(f'v_cvt_pk_bf16_f32 {v(96+k)}, {v(XU+2*k)}, {v(XU+2*k+1)}')
    a(f'ds_write_b128 {v((vOTa, vOTb)[h])}, {v(96+4*h,4)}')
a.wait_all_lg()
a(f'ds_read_b128 v[104:107], {v(vOTR)}'); a(f'ds_read_b128 v[108:111], {v(vOTR)} offset:1024')
a(f'buffer_store_dwordx4 v[104:107], {v(vOUT)}, {srd(OUT)}, {sO0} offen{OSC}')
a(f'buffer_store_dwordx4 v[108:111], {v(vOUT)}, {srd(OUT)}, {sO1} offen{OSC}')
a.stamp()
print('estimated compute cycles', a.est, file=sys.stderr)
a.finish()
assert L.bars == C.bars, (L.bars, C.bars)

lines = P.lines + L1lines + ['L_compute:'] + C.lines + L.lines + ['L_end:', '    s_endpgm']
if OPT['skel']:
    drop = ('v_mfma', 'v_dot', 'v_pk_', 'v_exp', 'v_rcp', 'ds_read_b64', 'v_fmac', 'v_mul_f32', 'v_cvt_pk', 'ds_write_b128', 'v_perm_b32', 'v_add_f32', 'v_sub_f32')
    lines = [l for l in lines if not l.strip().startswith(drop)]
hdr = open('parallel_sum__ssm_conv_h3__dense_activation_silu__prompt.s.ref').read().split('\n')
hdr = [l for l in hdr if l.startswith(';') and '@launch' not in l]
out = '\n'.join(hdr) + f'\n; @launch grid=(256,1,1) block=(512,1,1) lds={LDS_SIZE}\n'
out += f'''.amdgcn_target "amdgcn-amd-amdhsa--gfx950"
.text
.globl {NAME}
.p2align 8
.type {NAME},@function
{NAME}:
''' + '\n'.join(lines) + f'''
.section .rodata,"a"
.p2align 6
.amdhsa_kernel {NAME}
  .amdhsa_next_free_vgpr 256
  .amdhsa_next_free_sgpr 102
  .amdhsa_accum_offset 256
  .amdhsa_group_segment_fixed_size 0
  .amdhsa_kernarg_size 96
  .amdhsa_user_sgpr_count 2
  .amdhsa_user_sgpr_kernarg_segment_ptr 1
  .amdhsa_system_sgpr_workgroup_id_x 1
.end_amdhsa_kernel
'''
open(sys.argv[1], 'w').write(out)
print(dbg, file=sys.stderr)
print('lines', len(lines), 'stamps L/C', L.nstamp, C.nstamp, file=sys.stderr)
```

```python
import re

def regs_of(tok):
    tok = tok.strip()
    tok = re.sub(r'^-|^\||\|$', '', tok)
    m = re.match(r'^abs\((.*)\)$', tok)
    if m: tok = m.group(1)
    m = re.match(r'^([vas])(\d+)$', tok)
    if m: return {(m.group(1), int(m.group(2)))}
    m = re.match(r'^([vas])\[(\d+):(\d+)\]$', tok)
    if m: return {(m.group(1), i) for i in range(int(m.group(2)), int(m.group(3)) + 1)}
    if tok == 'vcc': return {('s', 'vcc')}
    if tok == 'exec': return {('s', 'exec')}
    if tok == 'm0': return {('s', 'm0')}
    return set()

TRANS = ('v_exp_f32', 'v_rcp_f32', 'v_sqrt_f32', 'v_rsq_f32', 'v_log_f32')

class Ins:
    def __init__(self, text):
        self.text = text
        parts = text.split(None, 1)
        self.mn = parts[0]
        rest = parts[1] if len(parts) > 1 else ''
        ops, depth, cur = [], 0, ''
        for ch in rest:
            if ch in '[(': depth += 1
            if ch in '])': depth -= 1
            if ch == ',' and depth == 0: ops.append(cur.strip()); cur = ''
            else: cur += ch
        if cur.strip(): ops.append(cur.strip())
        self.mods = ''
        if ops:
            sp = ops[-1].split(None, 1)
            ops[-1] = sp[0]
            if len(sp) > 1: self.mods = sp[1]
        self.ops = ops
        mn = self.mn
        self.kind = ('mfma' if mn.startswith('v_mfma') else 'valu' if mn.startswith('v_') else
                     'ds' if mn.startswith('ds_') else 'vmem' if mn.startswith(('buffer_', 'global_')) else 'salu')
        R = [regs_of(o) for o in ops]
        self.w, self.r = set(), set()
        self.states = 1
        self.lds_dma = False
        self.wide_store = False
        if self.kind == 'mfma':
            self.w = R[0]; self.A, self.B, self.C = R[1], R[2], R[3]; self.r = R[1] | R[2] | R[3]
            self.passes = 8 if '32x32x16' in mn else 4
        elif self.kind == 'valu':
            if mn == 'v_nop': pass
            else:
                self.w = set(R[0]); self.r = set().union(*R[1:]) if len(R) > 1 else set()
                if mn.startswith(('v_fmac', 'v_dot2c', 'v_permlane')): self.r |= R[0]
                if mn.startswith('v_permlane'): self.w |= R[1]
                if mn.startswith(('v_add_co', 'v_sub_co', 'v_addc_co')): self.w |= R[1];
                if mn.startswith('v_cndmask') and len(ops) == 3: self.r |= {('s', 'vcc')}
        elif self.kind == 'ds':
            if mn.startswith('ds_read'): self.w = R[0]; self.r = set().union(*R[1:])
            else: self.r = set().union(*R)
        elif self.kind == 'vmem':
            if mn == 'buffer_wbl2' or mn == 'buffer_inv': pass
            elif 'lds' in self.mods.split():
                self.lds_dma = True; self.r = set().union(*R) | {('s', 'm0')}
            elif '_load_' in mn:
                self.w = R[0]; self.r = set().union(*R[1:])
                if 'd16' in mn: self.r |= R[0]
            else:
                self.r = set().union(*R)
                self.data = R[1] if mn.startswith('global_') else R[0]
                self.wide_store = mn.endswith(('x3', 'x4'))
        else:
            if mn == 's_nop': self.states = int(ops[0]) + 1
            elif mn.startswith(('s_cmp', 's_cbranch', 's_branch', 's_waitcnt', 's_barrier', 's_sleep', 's_setprio', 's_endpgm')):
                self.r = set().union(*R) if R else set()
            else:
                self.w = set(R[0]) if R else set(); self.r = set().union(*R[1:]) if len(R) > 1 else set()
                if 'saveexec' in mn: self.w |= {('s', 'exec')}

def vec(x): return {r for r in x if r[0] in 'va'}
def sca(x): return {r for r in x if r[0] == 's'}

def need(p, c):
    n = 0
    if p.kind == 'valu':
        wv, ws = vec(p.w), sca(p.w)
        isdot = p.mn.startswith('v_dot')
        if c.kind == 'mfma' and wv & c.r: n = max(n, 3 if isdot else 2)
        if c.kind == 'valu':
            if wv & c.r:
                if c.mn.startswith(('v_readfirstlane', 'v_readlane')): n = max(n, 1)
                if c.mn.startswith('v_permlane') or 'dpp' in c.mn or 'row_' in c.mods or 'quad_perm' in c.mods: n = max(n, 2)
                if p.mn in TRANS and c.mn not in TRANS: n = max(n, 1)
            if ws & c.r: n = max(n, 2)
        if isdot and (wv & (c.r | c.w)):
            same_acc = c.mn == p.mn and c.w == p.w and not (wv & set().union(*[regs_of(o) for o in c.ops[1:3]]))
            if not same_acc: n = max(n, 3)
        if c.kind == 'vmem' and ws & c.r: n = max(n, 5)
    elif p.kind == 'mfma':
        P = p.passes
        if c.kind == 'mfma':
            if p.w & (c.A | c.B): n = max(n, P + 4)
            if p.w & c.C and not (c.C == p.w and c.mn == p.mn): n = max(n, P + 2)
            if p.w & c.w and not (c.w == p.w and c.mn == p.mn): n = max(n, P + 2)
        elif c.kind in ('valu', 'ds', 'vmem'):
            if p.w & (c.r | c.w): n = max(n, P + 4)
            if c.kind == 'valu' and p.C & c.w: n = max(n, P - 1)
    elif p.kind == 'vmem' and p.wide_store:
        if p.data & c.w: n = max(n, 2 if c.kind in ('valu', 'mfma') else 1)
    elif p.kind == 'salu':
        if ('s', 'm0') in p.w and c.lds_dma: n = max(n, 1)
    return n

class Asm:
    def __init__(self):
        self.lines = []
        self.hist = []
        self.vm_n = 0; self.vm_done = 0
        self.lg_n = 0; self.lg_done = 0
        self.pend = {}
        self.nlabel = 0
        self.nops = 0
        self.t = 0.0; self.mf_free = 0.0
        self.vq = []; self.fq = []
        self.gap = 68; self.next_vm = 0.0; self.slack = 0.0
        self.busy = 0
        self.reserve = 0.0
    def raw(self, s): self.lines.append(s)
    def comment(self, s): self.lines.append('    ; ' + s)
    def _push(self, ins):
        if ins.kind == 'mfma':
            st = max(self.t, self.mf_free); self.t = st + 8; self.mf_free = st + 4 * ins.passes
        elif ins.mn.startswith(('v_pk_', 'v_dot')): self.t = max(self.t, self.mf_free + 12) + 4.5
        elif ins.mn in TRANS: self.t += 8.5
        elif ins.mn == 's_nop': self.t += 4 * ins.states
        elif ins.mn == 'ds_write_b128': self.t += 16
        elif ins.mn == 's_barrier': self.t += 30
        else: self.t += 4.5
        if ins.kind == 'vmem': self.next_vm = self.t + self.gap
        self.lines.append('    ' + ins.text)
        self.hist.append(ins)
        if len(self.hist) > 24: self.hist.pop(0)
    def wait_vm(self, seq):
        if seq <= self.vm_done: return
        n = min(self.vm_n - seq, 63)
        self._push(Ins(f's_waitcnt vmcnt({n})'))
        self.vm_done = self.vm_n - n
    def wait_lg(self, seq):
        if seq <= self.lg_done: return
        n = min(self.lg_n - seq, 15)
        if self.lines and self.lines[-1].startswith('    s_waitcnt vmcnt(') and 'lgkm' not in self.lines[-1]:
            self.lines[-1] += f' lgkmcnt({n})'
        else: self._push(Ins(f's_waitcnt lgkmcnt({n})'))
        self.lg_done = self.lg_n - n
    def wait_all_lg(self): self.wait_lg(self.lg_n)
    def wait_all_vm(self): self.wait_vm(self.vm_n)
    def do(self, x):
        self.busy += 1
        if callable(x): x()
        elif isinstance(x, list):
            for y in x: self(y)
        else: self(x)
        self.busy -= 1
    def lock(self): self.busy += 1
    def unlock(self): self.busy -= 1
    def service(self, before_mfma):
        if self.busy: return
        while True:
            if self.vq and self.t >= self.next_vm: self.do(self.vq.pop(0))
            elif before_mfma and self.fq and self.mf_free + self.slack - self.t >= 4.5 + self.reserve: self.do(self.fq.pop(0))
            else: break
    def drain_v(self, upto=None):
        while self.vq:
            x = self.vq.pop(0); self.do(x)
            if x is upto: break
    def drain_f(self, n=10**9):
        while self.fq and n > 0:
            self.service(False); self.do(self.fq.pop(0)); n -= 1
    def __call__(self, text, track=True):
        ins = Ins(text)
        self.service(ins.kind == 'mfma')
        vm = lg = 0
        for r in (ins.r | ins.w):
            if r in self.pend:
                cls, seq = self.pend[r]
                if cls == 'vm': vm = max(vm, seq)
                else: lg = max(lg, seq)
        if not track: assert vm <= self.vm_done and lg <= self.lg_done, 'untracked op needs a wait: ' + text
        if vm: self.wait_vm(vm)
        if lg: self.wait_lg(lg)
        for r in (ins.r | ins.w): self.pend.pop(r, None)
        dist = 0; pad = 0
        for p in reversed(self.hist):
            pad = max(pad, need(p, ins) - dist)
            dist += p.states
        while pad > 0:
            k = min(pad, 16)
            self._push(Ins(f's_nop {k-1}')); pad -= k; self.nops += k
        self._push(ins)
        if not track: return None
        if ins.kind == 'vmem':
            self.vm_n += 1
            assert self.vm_n - self.vm_done <= 63, "too many vm ops in flight: " + text
            for r in ins.w: self.pend[r] = ('vm', self.vm_n)
            return self.vm_n
        if ins.kind == 'ds':
            self.lg_n += 1
            for r in ins.w: self.pend[r] = ('lg', self.lg_n)
            return self.lg_n
        return None
    def label(self, name=None):
        if name is None:
            self.nlabel += 1; name = f'L{self.nlabel}'
        return name
    def place(self, name): self.lines.append(name + ':')
    def text(self): return '\n'.join(self.lines) + '\n'

def interleave(a, main, fill, first=0, per=1):
    def do(x):
        if callable(x): x()
        else: a(x)
    fi = 0; acc = 0.0
    for i, m in enumerate(main):
        do(m)
        if i >= first:
            acc += per
            while acc >= 1 and fi < len(fill):
                do(fill[fi]); fi += 1; acc -= 1
    while fi < len(fill):
        do(fill[fi]); fi += 1
```

```python
import sys
from emit import Asm

NAME = "parallel_sum__ssm_conv_h3__dense_activation_silu__prompt_kernel"
OPT = dict(stamps=0, sg=0, probe=-2, base=60000, who=1, skel=0,
           map=1, rot=3, prio=1, look=10, lookkv=7, cap=8, hat=8, t2at=-2, t3at=-2, upat=0, ulat=9, ubat=21,
           pwat=34, s2at=42, psleep=4, pdelay=0, f1d=1000, ubar=5, sig2=50, sig3=2, hburst=10, hgap=52,
           g2at=24, ybar=37, osc=1, ht=0, ydelay=0, lprio=0, t2mode=0, spf=0, sw2=0, hp=1, dsx=4, ntkv=1, ntx=0, nth=0, na=43, wper=2, gate=1, afd=4, nx=0, esl=2, nodma=0, nohl=0, notail=0, nodot=0, nosync=0, kvfirst=1, yk=3, yp=12, yc=4, lspf=0, t1=0, pc=1, res=4, lastk=4, fbar=1, hhot=0, hfl=1, wm=14, wk=10, bg=0, bgfrom=2, selft=0, tw=1, cap2=6)
for x in sys.argv[2:]:
    k, v = x.split('='); assert k in OPT, k; OPT[k] = int(v)

WS_E, WS_FLAG, WS_STAMP, WS_U, WS_Y, WS_H, WS_SIZE = 0, 0x80000, 0x40000, 0x100000, 0x300000, 0x500000, 0x1000000
FPH = 0x20000
OOB = 0x7f000000
SLOT = 28672
CV = 114688; CVCH = 9216; U1OFF = 4640; HBASE = CV + 18432; HCH = 8448; HBD = 4228
KB, VB, SB = CV, CV + 8192, CV + 9216 + 8192
XST = 150016; STATS = 158208; CSUM = 159232; PW = CSUM + 3072
LDS_SIZE = 163840
def w2slot(s): return (s if s < 36 else s - 36) * 4096
YT, EX, OT = 8*4096, 12*4096, 10*4096
Q, K, V, SH, HK, W1, W2, OUT, WS = 4, 8, 12, 16, 20, 24, 28, 32, 36
def srd(r): return f's[{r}:{r+3}]'
sD, sE, sT, sM1, st, sDS, sCP, sW, sWV, sTAG, sNTAG, sP0 = [f's{i}' for i in range(42, 54)]
sXO, sW1O, sHS, sHS3, sW2O, sHL = [f's{i}' for i in range(54, 60)]
sM0W, sW4K, sW3K, sSELLO, sSELHI, sONES = [f's{i}' for i in range(62, 68)]
sPAIR = 's[68:69]'
sSPIN, sTH, sKH, sMASK, sW2K, sI = [f's{i}' for i in range(70, 76)]
sHM0, sHSO, sD0, sD1, sA, sB, sG, sUS0 = [f's{i}' for i in range(76, 84)]
sUS1 = 's86'
sUL, sYS0, sYS1, sYL, sO0, sO1, sROT, sC = [f's{i}' for i in range(88, 96)]
sSTASH = 's101'
def v(n, c=1): return f'v{n}' if c == 1 else f'v[{n}:{n+c-1}]'
OSC = ' sc1' if OPT['osc'] else ''
vL16, vSTAMP, vFL, vPWB, vPWM, vPWT = 2, 31, 28, 29, 30, 255

class Prog(Asm):
    def __init__(self, name, pwr):
        super().__init__(); self.name = name; self.bars = []; self.nstamp = 0; self.pwr = pwr
    def label(self):
        self.nlabel += 1; return f'{self.name}{self.nlabel}'
    def bar(self, tag, lg=True):
        self.lock()
        if lg: self.wait_all_lg()
        self('s_barrier'); self.bars.append(tag)
        self.unlock()
    def post(self, n, lg=True):
        self.lock()
        self(f'v_mov_b32 {v(vPWT)}, {n}')
        if lg: self.wait_all_lg()
        self('s_mov_b64 exec, 1')
        self(f'ds_write_b32 {v(vPWM)}, {v(vPWT)}')
        self('s_mov_b64 exec, -1')
        self.unlock()
    def peek(self, grp):
        self(f'ds_read_b128 {v(self.pwr,4)}, {v(vPWB)} offset:{16*grp}')
    def expect(self, grp, n, peeked=False, sleep=0):
        r = self.pwr
        self.lock()
        if not peeked: self.peek(grp)
        top, done = self.label(), self.label()
        self.wait_lg(self.pend[('v', r)][1])
        self.place(top)
        self(f'v_min3_u32 {v(r)}, {v(r)}, {v(r+1)}, {v(r+2)}')
        self(f'v_min_u32 {v(r)}, {v(r)}, {v(r+3)}')
        self(f'v_cmp_gt_u32 vcc, {n}, {v(r)}')
        self(f's_cbranch_vccz {done}')
        t0 = self.t
        if sleep: self(f's_sleep {sleep}')
        self(f'ds_read_b128 {v(r,4)}, {v(vPWB)} offset:{16*grp}', track=False)
        self('s_waitcnt lgkmcnt(0)')
        self(f's_branch {top}')
        self.place(done)
        self.t = t0 + (0 if peeked else 100)
        self.unlock()
    def stamp(self, g=0, coarse=False):
        if coarse and OPT['sg'] == 3: g = 3
        if g == 0: self.est = getattr(self, 'est', []) + [int(self.t)]
        if not OPT['stamps'] or g != OPT['sg']: return
        k = self.nstamp; self.nstamp += 1
        self.lock(); self.wait_all_lg()
        self('s_memtime s[96:97]'); self('s_waitcnt lgkmcnt(0)')
        self('s_sub_u32 s96, s96, s3')
        self(f'v_writelane_b32 {v(vSTAMP)}, s96, {k}')
        self.unlock()
    def dma(self, vaddr, rs, soff, m0expr, extra='', track=True):
        self(m0expr)
        return self(f'buffer_load_dwordx4 {v(vaddr)}, {srd(rs)}, {soff} offen{extra} lds', track=track)
    def flag_store(self, phase):
        self.lock()
        self(f's_mov_b32 {sG}, {(phase-1)*FPH}')
        self('s_mov_b64 exec, 0xffff')
        self(f'buffer_store_dwordx2 v[252:253], {v(vFL)}, {srd(WS)}, {sG} offen sc1')
        self('s_mov_b64 exec, -1')
        self.unlock()
    def poll_issue(self, vaddr, dst, mask):
        self(f's_mov_b64 exec, {mask}')
        r = self(f'buffer_load_dwordx2 {v(dst,2)}, {v(vaddr)}, {srd(WS)}, 0 offen sc1')
        self('s_mov_b64 exec, -1')
        return r
    def poll_check(self, vaddr, dst, mask):
        self.lock()
        top, done = self.label(), self.label()
        self(f's_mov_b32 {sSPIN}, 0')
        self(f's_mov_b64 exec, {mask}')
        self.wait_vm(self.pend[('v', dst)][1])
        self.place(top)
        self(f'v_cmp_eq_u32 vcc, {sTAG}, {v(dst)}')
        self(f'v_cmp_eq_u32 {sPAIR}, {sNTAG}, {v(dst+1)}')
        self(f's_and_b64 vcc, vcc, {sPAIR}')
        self('s_cmp_eq_u64 vcc, exec')
        self(f's_cbranch_scc1 {done}')
        self(f's_add_u32 {sSPIN}, {sSPIN}, 1')
        self(f's_cmp_gt_u32 {sSPIN}, {0 if OPT["nosync"] else 0x20000}')
        self(f's_cbranch_scc1 {done}')
        self(f's_sleep {OPT["psleep"]}')
        self(f'buffer_load_dwordx2 {v(dst,2)}, {v(vaddr)}, {srd(WS)}, 0 offen sc1', track=False)
        self('s_waitcnt vmcnt(0)')
        self(f's_branch {top}')
        self.place(done)
        self('s_mov_b64 exec, -1')
        self.unlock()
    def finish(self):
        a = self
        if OPT['stamps']:
            a('s_waitcnt vmcnt(0)')
            a.stamp(OPT['sg'])
            if OPT['probe'] > -2 and (a.name == 'C') == (OPT['who'] == 1):
                a(f's_mov_b32 s60, {OPT["base"]}')
                if OPT['probe'] >= 0:
                    a(f'v_readlane_b32 s61, {v(vSTAMP)}, {OPT["probe"]}'); a('s_add_u32 s60, s60, s61')
                l = a.label(); a.place(l)
                a('s_memtime s[96:97]'); a('s_waitcnt lgkmcnt(0)'); a('s_sub_u32 s96, s96, s3'); a('s_cmp_lt_u32 s96, s60'); a(f's_cbranch_scc1 {l}')
            a('s_lshl_b32 s60, s2, 3'); a(f's_add_u32 s60, s60, {sWV}'); a('s_lshl_b32 s60, s60, 7'); a(f's_add_u32 s60, s60, {WS_STAMP}')
            a('v_lshlrev_b32 v128, 2, v1')
            a('s_mov_b64 exec, 0xffffffff')
            a(f'buffer_store_dword {v(vSTAMP)}, v128, {srd(WS)}, s60 offen')
        a('s_endpgm')

def lo(d, s): return f'v_lshlrev_b32 {v(d)}, 16, {v(s)}'
def hi(d, s): return f'v_and_b32 {v(d)}, {sMASK}, {v(s)}'

P = a = Prog('P', 0)
a('s_cmp_ge_u32 s2, 256')
a('s_cbranch_scc1 L_end')
if OPT['stamps']:
    a('s_memtime s[68:69]'); a('s_memrealtime s[70:71]'); a('s_waitcnt lgkmcnt(0)'); a('s_mov_b32 s3, s68')
    a(f'v_mov_b32 {v(vSTAMP)}, 0'); a(f'v_writelane_b32 {v(vSTAMP)}, s70, 31')
a('s_load_dwordx16 s[76:91], s[0:1], 0')
a('s_load_dwordx8 s[92:99], s[0:1], 64')
a('v_lshrrev_b32 v3, 6, v0')
a('v_and_b32 v1, 63, v0')
a('s_getpc_b64 s[60:61]')
a.place('L_pc')
a(f'v_readfirstlane_b32 {sWV}, v3')
a(f's_lshr_b32 {sI}, s2, 3')
a('v_lshlrev_b32 v39, 7, v1')
a(f's_and_b32 s62, {sI}, 7'); a('s_lshl_b32 s62, s62, 12')
a(f's_cmp_ge_u32 {sWV}, 4'); a('s_cselect_b32 s62, s62, 0')
a(f's_lshl_b32 s63, {sWV}, 10'); a('s_add_u32 s62, s62, s63')
a('v_add_u32 v3, s62, v39')
a('v_min_u32 v3, L_end-L_pc, v3')
a('s_mov_b64 exec, 0xff')
a('global_load_dword v254, v3, s[60:61]', track=False)
a('s_mov_b64 exec, -1')
a(f's_and_b32 {sW}, {sWV}, 3')
a('s_and_b32 s60, s2, 7')
lg = OPT['map']
a(f's_lshr_b32 {sT}, s60, {lg}'); a(f's_lshl_b32 {sT}, {sT}, {1+lg}')
a(f's_and_b32 s61, {sI}, {(2<<lg)-1}'); a(f's_add_u32 {sT}, {sT}, s61')
a(f's_and_b32 {sM1}, s60, {(1<<lg)-1}'); a(f's_lshl_b32 {sM1}, {sM1}, {4-lg}')
a(f's_lshr_b32 s61, {sI}, {1+lg}'); a(f's_add_u32 {sM1}, {sM1}, s61')
a(f's_and_b32 s61, {sM1}, 1')
a(f's_lshl_b32 {st}, {sT}, 1')
a(f's_add_u32 {st}, {st}, s61')
a(f's_lshr_b32 {sDS}, {sM1}, 1')
if OPT['dsx']: a(f's_xor_b32 {sDS}, {sDS}, {OPT["dsx"]}')
a(f's_lshl_b32 {sW2K}, {sW}, 11')
a(f'v_lshlrev_b32 {v(vL16)}, 4, v1')
a(f's_cmp_ge_u32 {sWV}, 4')
a('s_cbranch_scc1 L_compute')
def common2(a):
    a(f's_lshl_b32 {sCP}, {sDS}, 5'); a(f's_add_u32 {sCP}, {sCP}, {st}')
    a(f's_lshl_b32 {sW4K}, {sW}, 12'); a(f's_lshl_b32 {sM0W}, {sW}, 10')
    a(f's_and_b32 {sTH}, {sW}, 1'); a(f's_lshr_b32 {sKH}, {sW}, 1')
    a(f's_mul_i32 {sP0}, {sM1}, 3'); a(f's_lshl_b32 s60, {sM1}, 1'); a('s_add_u32 s60, s60, 11'); a(f's_min_u32 {sP0}, {sP0}, s60')
    a(f's_mov_b32 s{WS+2}, {WS_SIZE}'); a(f's_mov_b32 s{WS+3}, 0x20000')
    a(f'v_mov_b32 {v(vPWB)}, {PW}'); a(f's_lshl_b32 s60, {sWV}, 2'); a(f'v_add_u32 {v(vPWM)}, s60, {v(vPWB)}')

L = a = Prog('L', 56)
vXA, vWA, vKD, vHALO, vT43, vW2A, vW2W, vP2, vP3 = 4, 8, 12, 14, 15, 16, 17, 18, 19
vP1, vUL, vULp, vUW, vZU, vZH, vW2W2, vW2W3, UR, PO, WT = 22, 23, 24, 25, 26, 27, 11, 3, 236, 40, 64
vXRd, vYS, vDU, XRL, DUL, DRL = 246, 247, 248, 64, 96, 112
if OPT['lprio']: a(f's_setprio {OPT["lprio"]}')
for r, n in ((W1, 1409024), (Q, 2097152), (K, 2097152), (V, 2097152), (SH, 4096)):
    a(f's_mov_b32 s{r+2}, {n}'); a(f's_mov_b32 s{r+3}, 0x20000')
a(f'v_min_u32 {v(vT43)}, {42*128}, v39')
a('v_lshrrev_b32 v33, 3, v1'); a('v_and_b32 v34, 7, v1'); a('v_lshlrev_b32 v33, 10, v33')
a(f's_lshl_b32 s60, {st}, 16'); a(f's_lshl_b32 s61, {sW}, 14'); a('s_add_u32 s60, s60, s61')
a(f's_lshl_b32 s61, {sDS}, 7'); a(f's_add_u32 {sSTASH}, s60, s61')
a('v_lshrrev_b32 v35, 5, v1'); a('v_xor_b32 v35, v35, v34'); a('v_lshl_add_u32 v38, v35, 4, v33')
a(f's_lshl_b32 s60, {sW}, 6'); a('s_and_b32 s60, s60, 64'); a('s_xor_b32 s61, s60, 32')
a(f'v_xor_b32 {v(vKD)}, s61, v38')
a('s_xor_b32 s61, s60, 64')
a(f'v_xor_b32 {v(vKD+1)}, s61, v38'); a(f'v_add_u32 {v(vKD+1)}, 8192, {v(vKD+1)}')
a(f'v_add_u32 v38, {sSTASH}, v38'); a(f'v_subrev_u32 {v(vHALO)}, 8192, v38')
a(f's_lshl_b32 {sXO}, {sT}, 17')
a('s_waitcnt lgkmcnt(0)')
a(f's_mov_b64 s[{W1}:{W1+1}], s[90:91]')
a(f's_mov_b64 s[{Q}:{Q+1}], s[76:77]')
a(f's_mov_b64 s[{K}:{K+1}], s[78:79]')
a(f's_mov_b64 s[{V}:{V+1}], s[80:81]')
a(f's_mov_b64 s[{SH}:{SH+1}], s[82:83]')
seq = {}
def first_touch():
    l = [a.label() for _ in range(2)]
    a(f's_cmp_lg_u32 {sW}, 2'); a(f's_cbranch_scc1 {l[0]}')
    a(f's_mul_i32 s60, s2, {43*128}')
    a(f'buffer_load_dword v254, {v(vT43)}, {srd(W1)}, s60 offen', track=False); a(f's_branch {l[1]}')
    a.place(l[0])
    a(f's_lshl_b32 s61, {sM1}, 13'); a(f's_add_u32 s60, {sXO}, s61')
    a(f'buffer_load_dword v254, v39, {srd(Q)}, s60 offen' + ' nt' * OPT['ntx'], track=False)
    a.place(l[1])
def kv4():
    for rs, base in ((K, KB), (V, VB)):
        for n in range(2): seq['kv'] = a.dma(vKD+n, rs, sSTASH, f's_add_u32 m0, {sW2K}, {base + 1024 + n*1024}', ' nt' * OPT['ntkv'])
l = [a.label() for _ in range(4)]
a(f's_cmp_ge_u32 {sW}, 2'); a(f's_cbranch_scc1 {l[0]}')
a(f's_cmp_lg_u32 {sW}, 0'); a(f's_cbranch_scc1 {l[2]}')
a.dma(vHALO, K, '0', f's_mov_b32 m0, {KB}', track=False); a(f's_branch {l[3]}')
a.place(l[2])
a(f's_lshl_b32 s60, {sDS}, 9')
a.dma(vL16, SH, 's60', f's_mov_b32 m0, {SB}', track=False)
a(f's_branch {l[3]}')
a.place(l[0])
if not OPT['kvfirst']: first_touch()
a.place(l[3])
kv4()
if OPT['kvfirst'] and OPT['t1']:
    a(f's_cmp_ge_u32 {sW}, 2'); a(f's_cbranch_scc1 {l[1]}')
    a('s_mov_b64 exec, 1')
    a(f'buffer_load_dword v254, {v(vL16)}, {srd(SH)}, 0 offen'); a.pend.pop(('v', 254))
    a('s_mov_b64 exec, -1')
    lj = a.label(); a(f's_branch {lj}')
    a.place(l[1])
    first_touch()
    a.place(lj)
a(f's_mov_b64 s[{HK}:{HK+1}], s[84:85]')
a(f's_mov_b64 s[{W2}:{W2+1}], s[92:93]')
a(f's_mov_b64 s[{WS}:{WS+1}], s[98:99]')
a(f's_load_dword {sE}, s[{WS}:{WS+1}], {WS_E}')
common2(a)
a(f's_lshl_b32 s60, {sCP}, 2')
a(f's_load_dword {sD}, s[86:87], s60')
a('v_lshrrev_b32 v32, 4, v1')
a('v_xor_b32 v35, v34, v32')
a(f'v_lshl_add_u32 {v(vXA)}, v35, 4, v33')
a(f'v_xor_b32 {v(vXA+1)}, 64, {v(vXA)}')
a(f'v_add_u32 {v(vXA+1)}, 8192, {v(vXA+1)}')
a(f'v_add_u32 {v(vXA+2)}, 16384, {v(vXA)}')
a(f'v_add_u32 {v(vXA+3)}, 16384, {v(vXA+1)}')
a(f's_lshl_b32 s60, {sW}, 15'); a(f's_add_u32 {sXO}, {sXO}, s60')
a(f's_mul_i32 {sW3K}, {sW}, 3072')
a(f's_cmp_lt_u32 {sM1}, 11')
a('s_cselect_b32 s61, 12, 8')
a(f'v_mov_b32 v3, {OOB}')
for j in range(3):
    if j: a(f'v_add_u32 v36, {64*j}, v1')
    src = 'v36' if j else 'v1'
    a(f'v_mul_u32_u24 v37, 5462, {src}')
    a('v_lshrrev_b32 v37, 16, v37')
    a('v_mul_u32_u24 v35, 12, v37')
    a(f'v_sub_u32 v35, {src}, v35')
    a('v_cmp_gt_u32 vcc, s61, v35')
    a('v_mul_u32_u24 v37, 2752, v37')
    a(f'v_lshl_add_u32 {v(vWA+j)}, v35, 4, v37')
    a(f'v_cndmask_b32 {v(vWA+j)}, v3, {v(vWA+j)}, vcc')
a(f's_mul_i32 {sW1O}, {sW}, {16*2752}'); a(f's_lshl_b32 s60, {sP0}, 6'); a(f's_add_u32 {sW1O}, {sW1O}, s60')
if OPT['rot'] == 1: a(f's_and_b32 {sROT}, {sM1}, 7')
elif OPT['rot'] == 2:
    a(f's_lshl_b32 {sROT}, {sT}, 2'); a(f's_add_u32 {sROT}, {sROT}, {sM1}')
elif OPT['rot'] == 3:
    a(f's_lshr_b32 {sROT}, {sT}, 1'); a(f's_add_u32 {sROT}, {sROT}, {sM1}')
elif OPT['rot'] == 4:
    a(f's_add_u32 {sROT}, {sT}, {sM1}')
for r, n in ((HK, 2097152), (W2, 1409024)):
    a(f's_mov_b32 s{r+2}, {n}'); a(f's_mov_b32 s{r+3}, 0x20000')

ops = []
def op(name, gate, fn): ops.append((name, gate, fn))
def touch2():
    if OPT['t2mode']:
        a(f's_lshl_b32 {sG}, {sI}, 2'); a(f's_add_u32 {sG}, {sG}, {sW}')
        if OPT['map'] == 1:
            a(f's_mul_i32 {sG}, {sG}, 43'); a('v_min_u32 v253, 42, v1'); a(f'v_add_u32 v253, {sG}, v253')
            a('v_and_b32 v252, 3, v253'); a('v_lshrrev_b32 v253, 2, v253'); a('v_lshlrev_b32 v253, 10, v253'); a('v_lshl_add_u32 v253, v252, 7, v253')
            a(f's_and_b32 {sG}, {sDS}, 4'); a(f's_lshl_b32 {sG}, {sG}, 7')
            a(f'buffer_load_dword v254, v253, {srd(W2)}, {sG} offen')
        else:
            a(f's_mul_i32 {sG}, {sG}, {86*128}')
            a(f'buffer_load_dword v254, {v(vT43)}, {srd(W2)}, {sG} offen')
            a(f's_add_u32 {sG}, {sG}, {43*128}')
            a(f'buffer_load_dword v253, {v(vT43)}, {srd(W2)}, {sG} offen')
        return
    l = a.label()
    a(f's_cmp_lg_u32 {sW}, 2'); a(f's_cbranch_scc1 {l}')
    a(f's_mul_i32 {sG}, s2, {43*128}')
    a(f'buffer_load_dword v254, {v(vT43)}, {srd(W2)}, {sG} offen', track=False)
    a.place(l)
def touch3():
    l = a.label()
    a(f's_cmp_lg_u32 {sW}, 3'); a(f's_cbranch_scc1 {l}')
    a(f's_mul_i32 {sG}, {sI}, {43*1024}'); a(f'v_lshlrev_b32 v253, 3, {v(vT43)}')
    a(f'buffer_load_dword v254, v253, {srd(W2)}, {sG} offen offset:384', track=False)
    a.place(l)
def add_chunk(c):
    slot = (c % 4) * SLOT
    gate = f'c{c-3}' if c >= 4 else None
    def w(j):
        def f():
            if j == 0:
                if c == OPT['t2at']: touch2()
                if c == OPT['t3at']: touch3()
                if OPT['rot']:
                    a(f's_add_u32 {sC}, {sROT}, {c}'); a(f's_and_b32 {sC}, {sC}, 7')
                    a(f's_mul_i32 {sB}, {sC}, {64*2752}'); a(f's_add_u32 {sB}, {sB}, {sW1O}')
                    a(f's_lshl_b32 {sA}, {sC}, 7'); a(f's_add_u32 {sA}, {sA}, {sXO}')
                else:
                    a(f's_add_u32 {sB}, {sW1O}, {c*64*2752}'); a(f's_add_u32 {sA}, {sXO}, {c*128}')
            return a.dma(vWA+j, W1, sB, f's_add_u32 m0, {sW3K}, {slot + 16384 + j*1024}')
        return f
    for j in range(3): op(f'w{c}_{j}', gate, w(j))
    for n in range(4): op(f'x{c}_{n}', gate, lambda n=n: a.dma(vXA+n, Q, sA, f's_add_u32 m0, {sW4K}, {slot + n*1024}'))
def add_h():
    for n in range(4):
        def f(n=n):
            if n == 0 and OPT['t2at'] == -2: touch2()
            if n == 0 and OPT['t3at'] == -2: touch3()
            a(f's_mov_b32 m0, {sHM0}')
            return a(f'buffer_load_dwordx4 {v(vL16)}, {srd(HK)}, {sHSO} offen offset:{n*1024}{" nt" * OPT["nth"]} lds')
        op(f'h{n}', None, f)
def w2op(s):
    a(f's_add_u32 {sO0}, {sW2O}, {s*16384}')
    return a(f'buffer_load_dwordx4 {v(WT+4*s,4)}, {v(vW2A)}, {srd(W2)}, {sO0} offen')
def uload():
    a.poll_check(vP1, 20, '0x1ff')
    a(f'buffer_load_dwordx4 {v(UR,4)}, {v(vUL)}, {srd(WS)}, {sUL} offen sc1')
    a(f'buffer_load_dwordx4 {v(UR+4,4)}, {v(vUL)}, {srd(WS)}, {sUL} offen offset:16 sc1')
    return a(f'buffer_load_dword {v(UR+8)}, {v(vULp)}, {srd(WS)}, {sUL} offen sc1')
def ubuild():
    if OPT['hp']: a('s_setprio 2')
    for i in range(4): a(f'v_mov_b32 v{60+i}, 0')
    a(f'ds_write_b128 {v(vZU)}, v[60:63]'); a(f'ds_write_b32 {v(vZH)}, v60')
    for c in range(2):
        sel = sSELLO if c == 0 else sSELHI
        for k in range(4):
            hi0 = UR + 5 - 2*k if k < 3 else UR + 8
            a(f'v_perm_b32 {v(PO+8*c+k)}, {v(hi0)}, {v(UR+6-2*k)}, {sel}')
        a(f'ds_write_b128 {v(vUW)}, {v(PO+8*c,4)} offset:{c*CVCH}')
        for k in range(4): a(f'v_perm_b32 {v(PO+8*c+4+k)}, {v(UR+6-2*k)}, {v(UR+7-2*k)}, {sel}')
        a(f'ds_write_b128 {v(vUW)}, {v(PO+8*c+4,4)} offset:{c*CVCH+U1OFF}')
    flush_posts(True)
    a.wait_all_lg()
    for c in range(2):
        for jj in range(2):
            for h in range(2): a(f'ds_read_b32 {v(DRL+4*c+2*jj+h)}, {v(vDU)} offset:{c*CVCH + 512*jj + 64*h}')
    a.wait_vm(max(seq['st1'], seq['h3']))
    a.post(4); a.stamp(0, True)
    for c in range(2):
        for jj in range(2):
            for h in range(2):
                src = DRL+4*c+2*jj+h; d = DUL+8*jj+4*c+2*h
                for x in (hi(d, src), lo(d+1, src), f'v_mul_f32 {v(d)}, {(sD0, sD1)[c]}, {v(d)}', f'v_mul_f32 {v(d+1)}, {(sD0, sD1)[c]}, {v(d+1)}'): a(x)
    a(f'v_mov_b32 v252, {sTAG}'); a(f'v_mov_b32 v253, {sNTAG}')
    if OPT['hp']: a('s_setprio 0')
    return a.vm_n
nbg = 0
wlist = list(range(28, 43)) + list(range(OPT['nx']))
for c in range(8):
    if c == OPT['hat']: add_h()
    add_chunk(c)
    if OPT['bgfrom'] <= c < 7:
        for _ in range(OPT['bg']):
            op(f'W{wlist[nbg]}', None, lambda s_=wlist[nbg]: w2op(s_)); nbg += 1
for n in range(2): op(f'st{n}', None, lambda n=n: a.dma(vXA+n, Q, sSTASH, f's_add_u32 m0, {sW2K}, {XST + n*1024}'))
if OPT['hat'] == 8: add_h()
for s_ in wlist[nbg:]: op(f'W{s_}', None, lambda s_=s_: w2op(s_))
b0 = [o[0] for o in ops].index('w7_0')
for nm, pos, fn in (('ub', OPT['ubat'], ubuild), ('ul', OPT['ulat'], uload), ('up', OPT['upat'], lambda: a.poll_issue(vP1, 20, '0x1ff'))):
    ops.insert(b0 + pos, (nm, 'c4', fn))
names = [o[0] for o in ops]
nxt = [0]
posts = [('x5_3', 1), ('x6_3', 2), ('x7_3', 3)]
capped = [False]
dbg = []
def flush_posts(force=False):
    while posts and posts[0][0] in seq and (force or a.vm_done >= seq[posts[0][0]]):
        a.wait_vm(seq[posts[0][0]]); a.post(posts[0][1], False); a.stamp(); posts.pop(0)
def issue_upto(idx):
    while nxt[0] <= min(idx, len(ops) - 1):
        name, gate, fn = ops[nxt[0]]
        if gate is not None and gate not in a.bars: return
        if capped[0]:
            a.wait_vm(a.vm_n - OPT['cap'] + 1); flush_posts()
        nxt[0] += 1
        seq[name] = fn()
        if capped[0] and (name in ('x7_3', 'st1', 'h3', 'up', 'ul', 'ub') or (name[0] == 'W' and int(name[1:]) % 3 == 0)):
            a.stamp(2); dbg.append(name)
issue_upto(OPT['lookkv'] - 1)
a('s_branch L_loader2')
L1lines = a.lines; a.lines = ['L_loader2:']
a(f's_mul_i32 s60, {sKH}, {HCH}'); a(f's_mul_i32 s61, {sTH}, {HBD}'); a('s_add_u32 s61, s61, s60'); a(f's_add_u32 {sHM0}, s61, {HBASE+64}')
a(f's_lshl_b32 {sHSO}, {sCP}, 13'); a(f's_add_u32 {sUL}, {sHSO}, {WS_U}'); a(f's_lshl_b32 s61, {sKH}, 12'); a(f's_add_u32 {sHSO}, {sHSO}, s61')
a('s_waitcnt lgkmcnt(0)')
a(f's_add_u32 {sTAG}, {sE}, 1'); a(f's_not_b32 {sNTAG}, {sTAG}')
a.post(0)
a.wait_vm(seq['kv']); a.bar('kv'); a.stamp()
D = OPT['look']
for c in range(5):
    issue_upto(names.index(f'x{c}_3') + D)
    if c == 0:
        a('v_and_b32 v35, 1, v32'); a('v_lshlrev_b32 v35, 2, v35'); a('v_xor_b32 v35, v35, v34')
        a(f'v_lshl_add_u32 {v(vW2A)}, v35, 4, v33')
        a(f's_mul_i32 {sW2O}, {sKH}, {43*16*1024}'); a(f's_lshl_b32 s61, {sTH}, 13'); a(f's_add_u32 {sW2O}, {sW2O}, s61')
        a(f's_lshl_b32 s61, {sDS}, 7'); a(f's_add_u32 {sW2O}, {sW2O}, s61')
        a(f'v_add_u32 {v(vW2W)}, {sM0W}, {v(vL16)}')
        a(f'v_add_u32 {v(vW2W2)}, 61440, {v(vW2W)}'); a(f'v_add_u32 {v(vW2W3)}, 122880, {v(vW2W)}')
        a(f's_lshl_b32 s60, {st}, 1'); a(f's_add_u32 s60, s60, {sTH}'); a('s_mul_i32 s60, s60, 86')
        a(f's_mul_i32 s61, {sKH}, 43'); a('s_add_u32 s60, s60, s61'); a('s_lshl_b32 s60, s60, 10')
        a(f's_add_u32 {sHL}, s60, {WS_H}')
        a(f's_mul_i32 s60, {sKH}, 7'); a('v_min_u32 v38, 8, v1'); a('v_add_u32 v35, s60, v38')
        a('v_lshrrev_b32 v36, 1, v35'); a(f'v_xor_b32 v36, {OPT["dsx"]}, v36'); a('v_lshlrev_b32 v36, 12, v36'); a('v_and_b32 v35, 1, v35'); a('v_lshl_add_u32 v37, v35, 7, v36')
        a(f's_lshl_b32 s60, {sT}, 8'); a(f's_add_u32 s60, s60, {WS_FLAG + FPH}')
        a(f's_and_b32 s61, {st}, 1'); a('s_lshl_b32 s61, s61, 1'); a(f's_add_u32 s61, s61, {sTH}')
        a('s_lshl_b32 s61, s61, 15'); a('s_add_u32 s61, s61, s60')
        a(f'v_add_u32 {v(vP2)}, s61, v37')
    if c == 2:
        a(f's_lshl_b32 s60, {sDS}, 12'); a(f's_and_b32 s61, {st}, 24'); a('s_lshl_b32 s61, s61, 12'); a('s_add_u32 s60, s60, s61'); a(f's_add_u32 s60, s60, {WS_FLAG}')
        a(f's_lshl_b32 s61, {sW}, 3'); a('v_add_u32 v35, s61, v38'); a('v_max_u32 v35, 1, v35'); a('v_subrev_u32 v35, 1, v35')
        a('v_lshlrev_b32 v35, 7, v35'); a(f'v_add_u32 {v(vP1)}, s60, v35')
        a(f's_add_u32 s60, s60, {sM0W}'); a(f's_add_u32 s60, s60, {2*FPH}')
        a('v_lshlrev_b32 v35, 7, v34'); a(f'v_add_u32 {v(vP3)}, s60, v35')
        a(f's_lshl_b32 s60, {st}, 16'); a(f's_lshl_b32 s61, {sDS}, 13'); a('s_add_u32 s60, s60, s61'); a(f's_add_u32 s60, s60, {sW2K}')
        a(f's_add_u32 {sYL}, s60, {WS_Y}')
        a(f'v_lshlrev_b32 {v(vUL)}, 5, v0'); a(f'v_subrev_u32 {v(vULp)}, 4, {v(vUL)}')
        a(f'v_add_u32 {v(vUW)}, {CV+448}, {v(vW2W)}')
        a(f's_mul_i32 s60, {sKH}, {CVCH}'); a(f's_mul_i32 s61, {sTH}, {U1OFF}'); a('s_add_u32 s61, s61, s60'); a(f's_add_u32 s61, s61, {CV}')
        a('v_min_u32 v35, 27, v1'); a('v_lshlrev_b32 v35, 4, v35'); a(f'v_add_u32 {v(vZU)}, s61, v35')
        a(f's_sub_u32 s61, {sHM0}, 64'); a('v_and_b32 v35, 15, v1'); a('v_lshlrev_b32 v35, 2, v35'); a(f'v_add_u32 {v(vZH)}, s61, v35')
        a(f's_mov_b32 {sSELLO}, 0x05040100'); a(f's_mov_b32 {sSELHI}, 0x07060302')
    if OPT['sw2']:
        if c == 0:
            a(f's_lshl_b32 s60, {sI}, 2'); a(f's_add_u32 s60, s60, {sW}'); a('s_mul_i32 s60, s60, 11'); a('s_min_u32 s60, s60, 1365'); a('s_lshl_b32 s60, s60, 10')
            a(f's_and_b32 s61, {sDS}, 4'); a('s_lshl_b32 s61, s61, 7'); a('s_add_u32 s60, s60, s61')
            a(f's_add_u32 s40, s{W2}, s60'); a(f's_addc_u32 s41, s{W2+1}, 0')
            sw2 = [r*1024 + q*64 for r in range(11) for q in range(8)]
        for o in sw2[:OPT['sw2']]: a(f's_load_dword s100, s[40:41], {o}')
        sw2 = sw2[OPT['sw2']:]
    if OPT['lspf']:
        if c == 0:
            a(f's_lshl_b32 s60, {sCP}, 13'); a(f's_add_u32 s60, s60, {sW2K}')
            a(f's_add_u32 s40, s{HK}, s60'); a(f's_addc_u32 s41, s{HK+1}, 0')
            a(f's_lshl_b32 s60, s2, 2'); a(f's_add_u32 s60, s60, {sW}'); a(f's_mul_i32 s60, s60, {11*128}'); a(f's_min_u32 s60, s60, {1409024 - 11*128}')
            a(f's_add_u32 s84, s{W2}, s60'); a(f's_addc_u32 s85, s{W2+1}, 0')
            sp = [f's_load_dword s100, s[40:41], {128*j}' for j in range(16)] + [f's_load_dword s100, s[84:85], {128*j}' for j in range(11)]
        for x in sp[:OPT['lspf']]: a(x)
        sp = sp[OPT['lspf']:]
    if c == 3:
        a(f's_mov_b32 {sMASK}, 0xffff0000'); a(f's_lshl_b32 {sD0}, {sD}, 16'); a(f's_and_b32 {sD1}, {sD}, {sMASK}')
        a('v_and_b32 v36, 15, v1')
        a('v_bfe_u32 v35, v1, 2, 2'); a('v_lshlrev_b32 v35, 4, v35'); a('v_lshl_add_u32 v35, v32, 7, v35')
        a('v_and_b32 v37, 3, v1'); a('v_xor_b32 v37, 3, v37'); a('v_lshl_add_u32 v35, v37, 2, v35')
        a(f's_add_u32 s60, {sM0W}, {CV+U1OFF+448}'); a(f'v_add_u32 {v(vDU)}, s60, v35')
        a(f's_add_u32 s60, {sW2K}, {CV}'); a(f'v_add_u32 {v(vXRd)}, s60, {v(vL16)}')
        a(f'v_lshlrev_b32 {v(vYS)}, 16, v32'); a(f'v_lshl_add_u32 {v(vYS)}, v36, 4, {v(vYS)}')
        a(f's_lshl_b32 s60, {sW}, 19'); a(f's_lshl_b32 s61, {sCP}, 8'); a('s_add_u32 s60, s60, s61'); a(f's_add_u32 {sYS0}, s60, {WS_Y}')
        a(f's_add_u32 {sYS1}, {sYS0}, 0x40000')
        a(f's_lshl_b32 s60, {sCP}, 7'); a(f's_lshl_b32 s61, {sW}, 15'); a('s_add_u32 s60, s60, s61'); a(f's_add_u32 s60, s60, {WS_FLAG}')
        a(f'v_lshlrev_b32 {v(vFL)}, 3, v36'); a(f'v_add_u32 {v(vFL)}, s60, {v(vFL)}')
    a.wait_vm(seq[f'x{c}_3'])
    a.bar(f'c{c}', False)
    a.stamp()
capped[0] = True
def wr(s_):
    if OPT['notail']: return
    o = w2slot(s_); k = o // 61440
    a(f'ds_write_b128 {v((vW2W, vW2W2, vW2W3)[k])}, {v(WT+4*s_,4)} offset:{o - 61440*k}')
def wdma(s_):
    if OPT['nodma']: return
    a.wait_vm(a.vm_n - OPT['cap2'] + 1)
    a(f's_add_u32 {sO0}, {sW2O}, {s_*16384}')
    return a.dma(vW2A, W2, sO0, f's_add_u32 m0, {sM0W}, {w2slot(s_)}')
issue_upto(999)
flush_posts(True)
a.stamp()
a(f's_or_b32 s60, {sCP}, {sW}')
a('s_cmp_lg_u32 s60, 0')
a('s_cbranch_scc1 L_noep')
for q in range(4): a(f'v_add_u32 v{40+q}, {WS_FLAG + 8192*q}, v39')
a(f's_mov_b32 {sSPIN}, 0')
a.place('L_ep')
for q in range(4): a(f'buffer_load_dwordx2 v[{44+2*q}:{45+2*q}], v{40+q}, {srd(WS)}, 0 offen sc1', track=False)
a('s_waitcnt vmcnt(0)')
a('s_mov_b64 s[60:61], exec')
for q in range(4):
    a(f'v_cmp_eq_u32 vcc, {sTAG}, v{44+2*q}'); a('s_and_b64 s[60:61], s[60:61], vcc')
    a(f'v_cmp_eq_u32 vcc, {sNTAG}, v{45+2*q}'); a('s_and_b64 s[60:61], s[60:61], vcc')
a('s_cmp_eq_u64 s[60:61], exec')
a('s_cbranch_scc1 L_epok')
a(f's_add_u32 {sSPIN}, {sSPIN}, 1'); a(f's_cmp_lt_u32 {sSPIN}, {0 if OPT["nosync"] else 0x20000}'); a('s_cbranch_scc1 L_ep')
a.place('L_epok')
a(f'v_mov_b32 v40, {WS_E}'); a(f'v_mov_b32 v41, {sTAG}')
a('s_mov_b64 exec, 1')
a(f'buffer_store_dword v41, v40, {srd(WS)}, 0 offen sc1', track=False)
a('s_mov_b64 exec, -1')
a.place('L_noep')
a.expect(1, 1, sleep=OPT['esl'])
a.stamp()
for s_ in range(28):
    if s_ == OPT['wm']: a.expect(1, 2, sleep=OPT['esl'])
    if s_ == OPT['wm'] + OPT['wk']:
        a.stamp(); a.poll_issue(vP2, 20, '0x1ff')
    wl = wdma(s_)
if OPT['wm'] + OPT['wk'] >= 28:
    a.stamp(); a.poll_issue(vP2, 20, '0x1ff')
a.poll_check(vP2, 20, '0x1ff')
a.post(5, False)
a.stamp(0, True)
a.wait_vm(wl); a.post(6, False)
a.expect(1, 4, sleep=1)
a('s_setprio 2')
for jj in range(2):
    for sw in range(4): a(f'ds_read_b128 {v(XRL+16*jj+4*sw,4)}, {v(vXRd)} offset:{8192*sw + 1024*jj}')
for jj in range(2):
    for hf in range(2):
        for c in range(2):
            for r in range(4): a(f'v_add_f32 {v(DUL+8*jj+4*c+r)}, {v(DUL+8*jj+4*c+r)}, {v(XRL+16*jj+8*c+4*hf+r)}')
    for r in range(4): a(f'v_cvt_pk_bf16_f32 {v(XRL+16*jj+r)}, {v(DUL+8*jj+r)}, {v(DUL+8*jj+4+r)}')
    for r in range(4): a(f'v_min_u32 {v(XRL+16*jj+r)}, -2, {v(XRL+16*jj+r)}')
    yst = a(f'buffer_store_dwordx4 {v(XRL+16*jj,4)}, {v(vYS)}, {srd(WS)}, {(sYS0, sYS1)[jj]} offen sc1')
a.post(7)
a.stamp(0, True)
a('s_setprio 0')
a.expect(0, 7)
YB = 120
def yld(track=True):
    for n in range(2): a(f'buffer_load_dwordx4 {v(YB+4*n,4)}, {v(vL16)}, {srd(WS)}, {sYL} offen offset:{1024*n} sc1', track=track)
for s_ in range(28, 44):
    if s_ == 36: a.expect(1, 6, sleep=OPT['esl'])
    if s_ == 28 + OPT['yp']: yld()
    if s_ == 43: a.post(8); a.stamp()
    if s_ < 43: wr(s_)
for _ in range(OPT['ydelay']): a('s_sleep 4')
if OPT['yp'] > 15: yld()
top, done = a.label(), a.label()
a(f's_mov_b32 {sSPIN}, 0')
a.wait_all_vm()
a.place(top)
a(f'v_max3_u32 v20, {v(YB)}, {v(YB+1)}, {v(YB+2)}'); a(f'v_max3_u32 v21, {v(YB+3)}, {v(YB+4)}, {v(YB+5)}')
a(f'v_max3_u32 v20, v20, {v(YB+6)}, {v(YB+7)}'); a('v_max_u32 v20, v20, v21')
a('v_cmp_eq_u32 vcc, -1, v20')
a(f's_cbranch_vccz {done}')
a(f's_add_u32 {sSPIN}, {sSPIN}, 1'); a(f's_cmp_gt_u32 {sSPIN}, 0x20000'); a(f's_cbranch_scc1 {done}')
a(f's_sleep {OPT["psleep"]}')
yld(False)
a('s_waitcnt vmcnt(0)')
a(f's_branch {top}')
a.place(done)
a.stamp(0, True)
a('s_setprio 2')
a(f's_add_u32 s60, {sW2K}, {YT}'); a(f'v_add_u32 v20, s60, {v(vL16)}')
for n in range(2): a(f'ds_write_b128 v20, {v(YB+4*n,4)} offset:{1024*n}')
a.post(9)
a.wait_all_lg()
a.finish()

C = a = Prog('C', 4)
a.gap = 0
vCSR, vSTW, vXR, vWR, vYR, vCSW = 3, 11, 12, 20, 9, 8
vKA, vKB, vSHR, vUS = 212, 213, 214, 215
(vUA, vHA, vDU, vXW, vXRd, vYS, vE2W, vE2R, vSTa, vSTb, vSTS, vOTa, vOTb, vOTR, vOUT) = range(216, 231)
AR = 234
F = {k: 198 + i for i, k in enumerate(('l4', 'n', 'g', 'b', 'l1', 'l3', 'r', 'x', 'h', 't0', 't1', 't2'))}
def fx(s):
    for k, r in F.items(): s = s.replace('%' + k, f'v{r}')
    return s
def e(s): a(fx(s))
if OPT['prio']: a(f's_setprio {OPT["prio"]}')
a(f's_mov_b32 {sMASK}, 0xffff0000')
e('v_lshrrev_b32 %l4, 4, v1'); e('v_lshrrev_b32 %g, 5, v1'); e('v_and_b32 %b, 15, v1'); e('v_and_b32 %h, 1, %l4')
a(f's_lshl_b32 s60, {sW}, 1'); e('v_add_u32 %t0, s60, %g')
e('v_add_u32 %t1, 1, %b'); e('v_and_b32 %t1, 7, %t1'); e('v_xor_b32 %t1, %t1, %t0')
e('v_lshlrev_b32 %t2, 9, %b'); e('v_lshl_add_u32 %t2, %h, 3, %t2'); e(f'v_add_u32 %t2, {KB + 5*128}, %t2')
e(f'v_lshl_add_u32 {v(vKA)}, %t1, 4, %t2')
e('v_add_u32 %t1, 2, %b'); e('v_and_b32 %t1, 7, %t1'); e('v_xor_b32 %t1, %t1, %t0')
e(f'v_lshl_add_u32 {v(vKB)}, %t1, 4, %t2')
a(f's_lshl_b32 s60, {sW}, 7'); a(f's_add_u32 s60, s60, {SB}')
e(f'v_lshlrev_b32 {v(vSHR)}, 5, %l4'); a(f'v_add_u32 {v(vSHR)}, s60, {v(vSHR)}')
e(f'v_lshlrev_b32 {v(vUS)}, 14, %l4'); e(f'v_lshl_add_u32 {v(vUS)}, %b, 4, {v(vUS)}')
common2(a)
a('s_waitcnt lgkmcnt(0)')
a(f's_mov_b64 s[{OUT}:{OUT+1}], s[94:95]')
a(f's_mov_b64 s[{WS}:{WS+1}], s[98:99]')
a(f's_load_dword {sE}, s[{WS}:{WS+1}], {WS_E}')
spf = []
if OPT['spf']:
    a(f's_lshl_b32 s60, {sCP}, 13'); a(f's_add_u32 s60, s60, {sW2K}')
    a('s_add_u32 s84, s84, s60'); a('s_addc_u32 s85, s85, 0')
    a(f's_lshl_b32 s60, s2, 2'); a(f's_add_u32 s60, s60, {sW}'); a(f's_mul_i32 s60, s60, {11*128}'); a(f's_min_u32 s60, s60, {1409024 - 11*128}')
    a('s_add_u32 s92, s92, s60'); a('s_addc_u32 s93, s93, 0')
    for j in range(11): a(f's_load_dword s100, s[92:93], {128*j}')
    for j in range(32): a(f's_load_dword s100, s[84:85], {64*j}')
a(f's_lshl_b32 s60, {sDS}, 18'); a(f's_lshl_b32 s61, {st}, 8'); a('s_add_u32 s60, s60, s61')
a(f's_lshl_b32 s61, {sW}, 16'); a('s_add_u32 s60, s60, s61'); a(f's_add_u32 {sUS0}, s60, {WS_U}'); a(f's_add_u32 {sUS1}, {sUS0}, 8192')
a(f's_mov_b32 {sONES}, 0x3f803f80')
e('v_and_b32 %n, 31, v1'); e('v_and_b32 %l1, 1, v1'); e('v_and_b32 %l3, 3, v1'); e('v_bfe_u32 %r, v1, 2, 2')
e('v_bfe_u32 %t0, v1, 1, 3'); e('v_xor_b32 %t0, %t0, %g'); e('v_lshlrev_b32 %t0, 4, %t0')
e('v_lshl_add_u32 %x, %n, 7, %t0')
e(f'v_add_u32 %t0, {sW4K}, %x')
e('v_lshl_add_u32 %t1, %g, 3, %r'); e('v_mul_u32_u24 %t1, 192, %t1')
e('v_lshl_add_u32 %t1, %h, 5, %t1'); e('v_lshl_add_u32 %t1, %l3, 3, %t1')
for i in range(4):
    a(f's_add_u32 s60, {sW}, {i}'); a('s_and_b32 s60, s60, 3'); a('s_lshl_b32 s61, s60, 5')
    e(f'v_xor_b32 {v(vXR+i)}, s61, %t0')
    a('s_mul_i32 s61, s60, 3072')
    e(f'v_add_u32 {v(vWR+i)}, s61, %t1')
ACC, XF, WF, SU, SQ, CS = 32, 80, 112, 160, 162, 164
for r in range(SU, CS+3): a(f'v_mov_b32 {v(r)}, 0')
a('s_waitcnt lgkmcnt(0)')
a(f's_add_u32 {sTAG}, {sE}, 1'); a(f's_not_b32 {sNTAG}, {sTAG}')
a.post(0)
a.stamp()
a.reserve = OPT['res']
S = []
def s_(*xs):
    for x in xs: S.append(fx(x))
for i in range(4): s_(f'v_add_u32 {v(vXR+4+i)}, {2*SLOT}, {v(vXR+i)}', f'v_add_u32 {v(vWR+4+i)}, {2*SLOT}, {v(vWR+i)}')
s_(f'v_mov_b32 v252, {sTAG}', f'v_mov_b32 v253, {sNTAG}')
s_(f's_lshl_b32 s60, {sCP}, 7', f's_lshl_b32 s61, {sW}, 15', 's_add_u32 s60, s60, s61', f's_add_u32 s60, s60, {WS_FLAG}')
s_(f'v_lshlrev_b32 {v(vFL)}, 3, %b', f'v_add_u32 {v(vFL)}, s60, {v(vFL)}')
s_(f'v_lshlrev_b32 {v(vYS)}, 16, %l4', f'v_lshl_add_u32 {v(vYS)}, %b, 4, {v(vYS)}')
s_(f's_lshl_b32 s60, {sW}, 19', f's_lshl_b32 s61, {sCP}, 8', 's_add_u32 s60, s60, s61', f's_add_u32 {sYS0}, s60, {WS_Y}', f's_add_u32 {sYS1}, {sYS0}, 0x40000')
for i in range(4): s_(f'v_mov_b32 v{248+i}, -1')
NS1 = len(S)
s_(f's_mov_b32 s{OUT+2}, 2097152', f's_mov_b32 s{OUT+3}, 0x20000', f's_mov_b32 {sSELLO}, 0x05040100')
s_(f's_and_b32 s61, {st}, 1', 's_lshl_b32 s61, s61, 1', f's_add_u32 s61, s61, {sTH}', 's_lshl_b32 s61, s61, 8', f's_add_u32 s61, s61, {STATS}')
s_('v_lshlrev_b32 %t0, 3, %n', f'v_add_u32 {v(vSTS)}, s61, %t0')
s_(f's_lshl_b32 s60, {sW}, 8', f's_add_u32 s60, s60, {STATS}', f'v_add_u32 {v(vSTW)}, s60, %t0')
s_(f'v_add_u32 {v(vCSR)}, {CSUM}, {v(vL16)}', f's_lshl_b32 s60, {sW}, 2', f'v_add_u32 {v(vCSW)}, s60, {v(vCSR)}')
s_(f's_lshl_b32 s60, {sT}, 2', f's_add_u32 s60, s60, {sW}', 's_mul_i32 s60, s60, 86', f's_lshl_b32 s61, {sP0}, 1', 's_add_u32 s60, s60, s61', 's_lshl_b32 s60, s60, 10')
s_(f's_add_u32 {sHS}, s60, {WS_H}', f's_add_u32 {sHS3}, {sHS}, 4096')
S.append([f's_cmp_lt_u32 {sM1}, 11', f's_cselect_b32 {sHS3}, {sHS3}, {OOB}', 's_cselect_b32 s85, 0xffff, 0'])
s_('s_mov_b32 s84, -1', 'v_lshlrev_b32 v10, 7, v1')
sSELF = 's[84:85]'
s_(f's_mul_i32 s60, {sKH}, {CVCH}', f's_add_u32 s60, s60, {CV+448-192}', f's_lshl_b32 s61, {sTH}, 8', 's_sub_u32 s60, s60, s61')
s_(f'v_mul_u32_u24 {v(vUA)}, {U1OFF}, %l1', 'v_lshrrev_b32 %t0, 1, %b', 'v_lshl_add_u32 %t0, %t0, 2, %l4')
s_(f'v_lshl_add_u32 {v(vUA)}, %t0, 4, {v(vUA)}', f'v_add_u32 {v(vUA)}, s60, {v(vUA)}')
s_('v_xor_b32 %t0, 1, %l1', f'v_mul_u32_u24 {v(vHA)}, {HBD}, %t0', f'v_lshl_add_u32 {v(vHA)}, %b, 2, {v(vHA)}')
s_('v_lshlrev_b32 %t0, 4, %l4', f'v_sub_u32 {v(vHA)}, {v(vHA)}, %t0')
s_(f's_mul_i32 s60, {sKH}, {HCH}', 's_add_u32 s61, s60, s61', f's_add_u32 s61, s61, {HBASE+64-12}', f'v_add_u32 {v(vHA)}, s61, {v(vHA)}')
s_(f's_lshl_b32 s60, {st}, 1', f's_add_u32 s60, s60, {sTH}', 's_mul_i32 s60, s60, 86', f's_mul_i32 s61, {sKH}, 43', 's_add_u32 s60, s60, s61', 's_lshl_b32 s60, s60, 10')
s_(f's_add_u32 {sHL}, s60, {WS_H}')
s_(f's_lshl_b32 s60, {sW}, 13', f's_add_u32 s60, s60, {CV}', f'v_add_u32 {v(vXW)}, s60, {v(vL16)}')
s_('v_lshl_add_u32 %t0, %g, 2, %r', 'v_lshlrev_b32 %t0, 7, %t0', 'v_bfe_u32 %t1, v1, 3, 1', 'v_lshl_add_u32 %t0, %t1, 6, %t0')
s_('v_lshl_add_u32 %t0, %h, 5, %t0', 'v_lshl_add_u32 %t0, %l1, 4, %t0', 'v_bfe_u32 %t1, v1, 1, 1', 'v_lshl_add_u32 %t0, %t1, 3, %t0')
s_(f's_lshl_b32 s60, {sKH}, 6', 'v_xor_b32 %t0, s60, %t0', f's_lshl_b32 s61, {sKH}, 11')
s_(f'v_add_u32 {v(AR)}, s61, %t0', f'v_xor_b32 {v(AR+1)}, 64, {v(AR)}')
for k in (1, 2): s_(f'v_add_u32 {v(AR+2*k)}, {61440*k}, {v(AR)}', f'v_add_u32 {v(AR+2*k+1)}, {61440*k}, {v(AR+1)}')
s_(f'v_lshlrev_b32 {v(vYR)}, 10, %g', 'v_bfe_u32 %t1, v1, 1, 4', f'v_lshl_add_u32 {v(vYR)}, %t1, 4, {v(vYR)}', f'v_lshl_add_u32 {v(vYR)}, %l1, 2, {v(vYR)}')
s_(f's_lshl_b32 s61, {sKH}, 12', f's_lshl_b32 {sO0}, {sTH}, 3', f's_add_u32 s61, s61, {sO0}', f's_add_u32 s61, s61, {YT}', f'v_add_u32 {v(vYR)}, s61, {v(vYR)}')
s_('v_xor_b32 %t0, s60, %x', f's_lshl_b32 s61, {sTH}, 12', f's_add_u32 s61, s61, {XST}', f'v_add_u32 {v(vSTa)}, s61, %t0', f'v_xor_b32 {v(vSTb)}, 32, {v(vSTa)}')
s_(f's_add_u32 s61, {sW4K}, {EX}', f'v_add_u32 {v(vE2W)}, s61, {v(vL16)}')
s_(f's_xor_b32 s61, {sW4K}, 8192', f's_add_u32 s61, s61, {EX}', f'v_add_u32 {v(vE2R)}, s61, {v(vL16)}')
s_(f's_add_u32 s61, {sW2K}, {OT}', 'v_bfe_u32 %t0, v1, 1, 2', 'v_xor_b32 %t0, %t0, %g', 'v_lshlrev_b32 %t0, 4, %t0')
s_('v_lshl_add_u32 %t0, %n, 6, %t0', f'v_add_u32 {v(vOTa)}, s61, %t0', f'v_xor_b32 {v(vOTb)}, 32, {v(vOTa)}')
s_('v_lshrrev_b32 %t1, 2, v1', 'v_bfe_u32 %t0, v1, 3, 2', 'v_xor_b32 %t0, %t0, %l3', 'v_lshlrev_b32 %t0, 4, %t0', 'v_lshl_add_u32 %t0, %t1, 6, %t0')
s_(f'v_add_u32 {v(vOTR)}, s61, %t0', 'v_lshlrev_b32 %t1, 10, %t1', f'v_lshl_add_u32 {v(vOUT)}, %l3, 4, %t1')
s_(f's_lshl_b32 {sO0}, {st}, 16', f's_lshl_b32 s61, {sDS}, 7', f's_add_u32 {sO0}, {sO0}, s61', f's_lshl_b32 s61, {sTH}, 15')
s_(f's_add_u32 {sO0}, {sO0}, s61', f's_add_u32 {sO0}, {sO0}, s60', f's_add_u32 {sO1}, {sO0}, 16384')

KR, VR, SR, PA = 168, 182, 190, 240
WP, KU, VU, TP = 32, 48, 76, 92
if OPT['pc'] < 0:
    for x in S[:NS1]: a(x)
    S = S[NS1:]; NS1 = 0
    for jj in range(2): a(f'buffer_store_dwordx4 v[248:251], {v(vYS)}, {srd(WS)}, {(sYS0, sYS1)[jj]} offen sc1')
a.bar('kv')
a.stamp()
for p in range(2): a(f'ds_read_b128 {v(SR+4*p,4)}, {v(vSHR)} offset:{16*p}')
for r in range(7): a(f'ds_read_b64 {v(KR+2*r,2)}, {v(vKA if r < 3 else vKB)} offset:{128*r}')
for r in range(4): a(f'ds_read_b64 {v(VR+2*r,2)}, {v(vKB)} offset:{VB-KB+128*(r+3)}')
for x in S[:NS1]: a(x)
S = S[NS1:]
for c in range(4):
    p, e_ = c >> 1, c & 1
    for jj in range(2): a(lo(WP+8*p+4*jj+e_, SR+2*c+jj)); a(hi(WP+8*p+4*jj+2+e_, SR+2*c+jj))
for p in range(2):
    for r in range(7): a(lo(KU+4*r+2*p, KR+2*r+p)); a(hi(KU+4*r+2*p+1, KR+2*r+p))
    for r in range(4): a(lo(VU+4*r+2*p, VR+2*r+p)); a(hi(VU+4*r+2*p+1, VR+2*r+p))
    for i in range(4): a(f'v_pk_mul_f32 {v(TP+2*i,2)}, {v(KU+4*i+2*p,2)}, {v(WP+8*p+6,2)}')
    for j in (2, 1, 0):
        for i in range(4): a(f'v_pk_fma_f32 {v(TP+2*i,2)}, {v(KU+4*(i+3-j)+2*p,2)}, {v(WP+8*p+2*j,2)}, {v(TP+2*i,2)}')
    for i in range(4): a(f'v_pk_mul_f32 {v(TP+2*i,2)}, {v(TP+2*i,2)}, {v(VU+4*i+2*p,2)}')
    for i in range(4): a(f'v_cvt_pk_bf16_f32 {v(PA+4*p+i)}, {v(TP+2*i)}, {v(TP+2*i+1)}')
    ust = a(f'buffer_store_dwordx4 {v(PA+4*p,4)}, {v(vUS)}, {srd(WS)}, {(sUS0, sUS1)[p]} offen sc1')
if OPT['pc'] == 0:
    for jj in range(2): ust = a(f'buffer_store_dwordx4 v[248:251], {v(vYS)}, {srd(WS)}, {(sYS0, sYS1)[jj]} offen sc1')
ust_t = a.t

AX, BX, vM, vRS, vS, vC3 = 168, 180, 184, 185, 186, 188
stats = [
    f'v_add_f32 {v(SU)}, {v(SU)}, {v(SU+1)}', f'v_add_f32 {v(SQ)}, {v(SQ)}, {v(SQ+1)}',
    f'v_mov_b32 {v(SU+1)}, {v(SU)}', f'v_mov_b32 {v(SQ+1)}, {v(SQ)}',
    f'v_permlane32_swap_b32 {v(SU)}, {v(SU+1)}', f'v_permlane32_swap_b32 {v(SQ)}, {v(SQ+1)}',
    f'v_add_f32 {v(SU)}, {v(SU)}, {v(SU+1)}', f'v_add_f32 {v(SQ)}, {v(SQ)}, {v(SQ+1)}',
    f'v_mul_f32 {v(SU)}, 0x3b000000, {v(SU)}', f'v_mul_f32 {v(SQ)}, 0x3b000000, {v(SQ)}',
    f'v_fma_f32 {v(SQ)}, -{v(SU)}, {v(SU)}, {v(SQ)}', f'v_max_f32 {v(SQ)}, 0, {v(SQ)}',
    f'v_cvt_pk_bf16_f32 v190, {v(SU)}, {v(SQ)}', 'v_xor_b32 v191, 0x8000, v190',
    f'v_perm_b32 {v(BX)}, v191, v191, {sSELLO}', f'v_mov_b32 {v(BX+1)}, {v(BX)}', f'v_mov_b32 {v(BX+2)}, {v(BX)}', f'v_mov_b32 {v(BX+3)}, {v(BX)}',
    lo(vM, 190), hi(191, 190), 'v_add_f32 v191, 0x3727c5ac, v191',
    'v_cvt_pk_bf16_f32 v191, v191, v191', lo(191, 191), 'v_sqrt_f32 v191, v191',
    'v_cvt_pk_bf16_f32 v191, v191, v191', lo(vS, 191), f'v_rcp_f32 {v(vRS)}, {v(vS)}',
    f'v_mul_f32 {v(vC3)}, 0xbfb8aa3b, {v(vRS)}', f'ds_write_b64 {v(vSTW)}, {v(vM,2)}']
def rdx(c):
    st_ = 4 * ((c % 4) >> 1); off = (c & 1) * SLOT
    return [f'ds_read_b128 {v(XF+16*(c&1)+4*i,4)}, {v(vXR+st_+i)} offset:{off}' for i in range(4)]
def rdw(c, i):
    st_ = 4 * ((c % 4) >> 1); off = (c & 1) * SLOT
    return [f'ds_read_b64_tr_b16 {v(WF+12*i+4*ft+2*rd,2)}, {v(vWR+st_+i)} offset:{off+16384+rd*768+ft*64}' for ft in range(3) for rd in range(2)]
a.stamp()
a.bar('c0')
a.stamp(0, True)
for x in rdx(0) + rdw(0, 0) + rdw(0, 1): a(x)
a.fq = S
flag1 = False
for c in range(8):
    X = XF + 16*(c & 1)
    late = rdw(c, 2) + rdw(c, 3)
    for i in range(4):
        for d in range(4 if OPT['nodot'] < 2 else 0):
            a(f'v_dot2c_f32_bf16 {v(SU+(d&1))}, {sONES}, {v(X+4*i+d)}'); a(f'v_dot2c_f32_bf16 {v(SQ+(d&1))}, {v(X+4*i+d)}, {v(X+4*i+d)}')
    for d in range(4 if OPT['nodot'] < 1 else 0):
        for ft in range(3): a(f'v_dot2c_f32_bf16 {v(CS+ft)}, {sONES}, {v(WF+4*ft+d)}')
    if c == 7:
        a.drain_f()
        for ft in range(3): a.fq += [hi(192+ft, CS+ft), f'v_sub_f32 v{195+ft}, {v(CS+ft)}, v{192+ft}']
        for ft in range(3): a.fq += [f'v_cvt_pk_bf16_f32 v{192+ft}, v{192+ft}, v{195+ft}', f'ds_write_b32 {v(vCSW)}, v{192+ft} offset:{1024*ft}']
        a.fq += stats
    def mm(i, ft):
        cin = '0' if (c == 0 and i == 0) else v(ACC+16*ft, 16)
        return f'v_mfma_f32_32x32x16_bf16 {v(ACC+16*ft,16)}, {v(WF+12*i+4*ft,4)}, {v(X+4*i,4)}, {cin}'
    for i in range(3):
        for ft in range(3):
            a(mm(i, ft))
            for x in late[:3]: a(x)
            late = late[3:]
            if 4 <= c < 7 and (i, ft) == (2, 0): a.peek(0)
            if c == 7 and (i, ft) == (2, 0):
                assert len(a.fq) <= len(stats), len(a.fq)
                a.post(1)
    if c + 1 == OPT['pc']:
        for jj in range(2): ust = a(f'buffer_store_dwordx4 v[248:251], {v(vYS)}, {srd(WS)}, {(sYS0, sYS1)[jj]} offen sc1')
        ust_t = a.t
    if not flag1 and c >= OPT['pc'] and a.t - ust_t > OPT['f1d']:
        a.wait_vm(ust); a.flag_store(1); flag1 = True
    if c < 4: a.bar(f'c{c+1}')
    elif c < 7: a.expect(0, c - 3, True)
    a.stamp(1)
    nxt_ = rdx(c+1) + rdw(c+1, 0) + rdw(c+1, 1) if c < 7 else []
    for ft in range(3):
        a(mm(3, ft))
        if c == 7 and ft == 0: a.peek(1)
        if c == 7 and ft == 1:
            a.expect(1, 1, True)
            nxt_ = [f'ds_read_b128 {v(AX+4*q,4)}, {v(vCSR)} offset:{1024*q}' for q in range(3)]
        for x in nxt_[:6]: a(x)
        nxt_ = nxt_[6:]
a.drain_f()
for ft in range(3):
    a(f'v_mfma_f32_32x32x16_bf16 {v(ACC+16*ft,16)}, {v(AX+4*ft,4)}, {v(BX,4)}, {v(ACC+16*ft,16)}')
a.stamp(0, True)

CA, DU, DR = 160, 192, 208
def FA(set_, mu): return (80 if set_ == 0 else 32) + 4*mu
def FB(set_, nu): return 112 + 4*nu if set_ == 0 else (64 + 4*nu if nu < 4 else 144 + 4*(nu-4))
def rdA(rp, mu): return f'ds_read_b128 {v(FA(rp&1,mu),4)}, {v(vUA)} offset:{512*mu - 64*rp + 192}'
def rdB(rp, nu): return [f'ds_read_b64 {v(FB(rp&1,nu)+2*h,2)}, {v(vHA)} offset:{512*nu + 64*rp + 8*h}' for h in range(2)]
def reads(rp):
    r = rdB(rp, 0) + [rdA(rp, mu) for mu in range(8)]
    for nu in range(1, 8): r += rdB(rp, nu)
    return r
TS, HO = 144, 168
first = reads(0)
for fr in range(6):
    base = ACC + 8*fr; t = TS + 8*(fr & 1); o = HO + 4*(fr & 1)
    if fr == OPT['ubar']: a.expect(0, 4, True)
    def side(n):
        if fr >= OPT['ubar']:
            for x in first[:n]: a(x)
            del first[:n]
    for p in range(4): a(f'v_pk_mul_f32 {v(t+2*p,2)}, {v(base+2*p,2)}, {v(vC3,2)} op_sel_hi:[1,0]')
    side(6)
    for q in range(8): a(f'v_exp_f32 {v(t+q)}, {v(t+q)}')
    side(6)
    for p in range(4): a(f'v_pk_fma_f32 {v(t+2*p,2)}, {v(t+2*p,2)}, {v(vS,2)}, {v(vS,2)} op_sel_hi:[1,0,0]')
    if fr == OPT['ubar'] - 1: a.peek(0)
    for q in range(8): a(f'v_rcp_f32 {v(t+q)}, {v(t+q)}')
    for p in range(4): a(f'v_pk_mul_f32 {v(t+2*p,2)}, {v(t+2*p,2)}, {v(base+2*p,2)}')
    for p in range(4): a(f'v_cvt_pk_bf16_f32 {v(o+p)}, {v(t+2*p)}, {v(t+2*p+1)}')
    so, im = (sHS, fr*1024) if fr < 4 else (sHS3, (fr-4)*1024)
    hst = a(f'buffer_store_dwordx4 {v(o,4)}, {v(vL16)}, {srd(WS)}, {so} offen offset:{im} sc1')
a.stamp(0, True)
if OPT['ubar'] == 6:
    a.expect(0, 4, True)
    for x in first[:12]: a(x)
    del first[:12]

G2A, XR, XS, YR, XU, DM, YU = 32, 32, 152, 208, 160, 176, 192
AFD = OPT['afd']
AFB = [64, 72, 144, 12, 20][:AFD+1]
RING = list(range(80, 144, 4)) + [240, 244, 248] + [24, 20, 16, 12][:2*(4-AFD)]
NR = len(RING)
def hreg(s): return RING[s % NR]
def rd2(s):
    o = w2slot(s); k = 2 * (o // 61440); o -= 30720 * k
    return [f'ds_read_b64_tr_b16 {v(AFB[s%(AFD+1)]+4*dt+2*rd,2)}, {v(AR+k+dt)} offset:{o + rd*1024}' for dt in (1, 0) for rd in range(2)]
hops = {}
def hld(s):
    def f():
        if OPT['nohl']: return
        if s % 4 == 0: a(f's_add_u32 {sA}, {sHL}, {0 if OPT["hhot"] else s*1024}')
        a(f'buffer_load_dwordx4 {v(hreg(s),4)}, {v(vL16)}, {srd(WS)}, {sA} offen offset:{(s%4)*1024}' + ['', ' sc1', ' nt'][OPT['hfl']])
    hops[s] = f
    return f
def hgate(peeked):
    a.stamp(); a.expect(0, 5, peeked); a.stamp()
    for s in range(OPT['hburst']): a.do(hld(s))
    a.gap = OPT['hgap']
    a.vq = [hld(s) for s in range(OPT['hburst'], NR)]
cnt = 0
for rp in range(4):
    rd = (first if rp == 0 else []) + (reads(rp + 1) if rp < 3 else [])
    order = [(nu, mu) for nu in range(8) for mu in range(8 - nu)]
    if rp == 3: order = [(nu, j - nu) for j in range(8) for nu in range(j + 1)]
    wq = []
    for idx, (nu, mu) in enumerate(order):
        j = nu + mu
        if rp == 2 and idx == 27:
            assert not rd
            a.post(3)
        if rp == 2 and idx == 33: a.peek(0 if OPT['gate'] == 0 else 1)
        if rp == 3 and idx == 0 and OPT['gate'] == 0:
            hgate(True); a.peek(1)
        if rp == 3 and idx == (6 if OPT['gate'] == 0 else 3): a.expect(1, 3, True)
        if cnt == OPT['sig2']:
            a.stamp(); a.wait_vm(hst); a.stamp(); a.flag_store(2)
            if OPT['selft']:
                a.do([f's_mov_b64 exec, {sSELF}', f'buffer_load_dword v254, v10, {srd(WS)}, {sHS} offen sc1', 's_mov_b64 exec, -1'])
            a.post(2, False)
        cin = '0' if (rp == 0 and nu == 0) else v(CA+4*j, 4)
        a(f'v_mfma_f32_16x16x32_bf16 {v(CA+4*j,4)}, {v(FA(rp&1,mu),4)}, {v(FB(rp&1,nu),4)}, {cin}')
        cnt += 1
        for _ in range(2 if (rp == 0 and cnt <= 8) else 1):
            if rd: a(rd.pop(0))
        if rp == 3:
            if mu == 0: wq.append((idx + 6, j))
            if idx >= 7 and idx % 4 == 3 and wq and wq[0][0] <= idx:
                jj_ = wq.pop(0)[1]; a(f'ds_write_b128 {v(vXW)}, {v(CA+4*jj_,4)} offset:{1024*jj_}')
    assert not rd
a.drain_f()
a.stamp()
for _, j in wq: a(f'ds_write_b128 {v(vXW)}, {v(CA+4*j,4)} offset:{1024*j}')
a.post(4)
a.stamp(0, True)
if OPT['gate'] == 1: hgate(False)
a.expect(0, 6)
for q in range(AFD):
    for x in rd2(q): a(x)

pre = []
for k in range(8): pre += [lo(XU+2*k, XS+k), hi(XU+2*k+1, XS+k)]
for k in range(16): pre.append(f'v_sub_f32 {v(DM+k)}, {v(XU+k)}, v232')
for k in range(16): pre.append(f'v_mul_f32 {v(DM+k)}, {v(DM+k)}, v233')
post_ = []
for k in range(8): post_ += [lo(YU+2*k, YR+k), hi(YU+2*k+1, YR+k)]
for k in range(16): post_.append(f'v_fmac_f32 {v(XU+k)}, {v(DM+k)}, {v(YU+k)}')
yreads = [f'ds_read_b32 {v(YR+4*grp+q)}, {v(vYR)} offset:{(8*grp+q)*256}' for grp in range(2) for q in range(4)]
def g2mm(s, dt):
    cin = '0' if s == 0 else v(G2A+16*dt, 16)
    return f'v_mfma_f32_32x32x16_bf16 {v(G2A+16*dt,16)}, {v(AFB[s%(AFD+1)]+4*dt,4)}, {v(hreg(s),4)}, {cin}'
assert OPT['lastk'] <= AFD
for s in range(43):
    if s > 0 and s + NR - 1 < 43: a.vq.append(hld(s + NR - 1))
    if s == 8: a.post(6); a.stamp()
    if s == 20: a.post(8)
    if s == 28 - AFD: a.expect(0, 8, True); a.stamp()
    side = rd2(s + AFD) if s + AFD < 43 else []
    if s == 2: side += [f'ds_read_b128 {v(XS,4)}, {v(vSTa)}', f'ds_read_b128 {v(XS+4,4)}, {v(vSTb)}', f'ds_read_b64 v[232:233], {v(vSTS)}']
    if s == 4: a.fq += pre
    if s == 30: a.expect(1, 8, True)
    if s == OPT['ybar']:
        a.stamp(); a.expect(0, 9, True); a.stamp()
        side += yreads
    if s == OPT['ybar'] + 2: a.fq += post_
    if hops[s] in a.vq: a.drain_v(hops[s])
    h = (len(side) + 1) // 2
    for dt in (1, 0):
        if dt == 0 and s >= 43 - OPT['lastk']: continue
        a(g2mm(s, dt))
        for x in side[:h]: a(x)
        side = side[h:]
    for x in side: a(x)
    if s + 2 in (28 - AFD, OPT['ybar']): a.peek(0)
    if s == 28: a.peek(1)
wr_ = [f'ds_write_b128 {v(vE2W)}, {v(G2A+16+4*k,4)} offset:{1024*k}' for k in range(4)]
for s in range(43 - OPT['lastk'], 43):
    a(g2mm(s, 0))
    if s > 43 - OPT['lastk']: a(wr_.pop(0))
for x in wr_: a(x)
a.stamp(0, True)
if not OPT['fbar']: a.post(9)
a.drain_f()
for k in range(8): a(f'v_pk_add_f32 {v(XU+2*k,2)}, {v(XU+2*k,2)}, {v(G2A+2*k,2)}')
if OPT['fbar']:
    a.wait_all_lg(); a('s_barrier')
else: a.expect(1, 9)
for k in range(4): a(f'ds_read_b128 {v(64+4*k,4)}, {v(vE2R)} offset:{1024*k}')
for h in range(2):
    for k in range(4*h, 4*h+4): a(f'v_pk_add_f32 {v(XU+2*k,2)}, {v(XU+2*k,2)}, {v(64+2*k,2)}')
    for k in range(4*h, 4*h+4): a(f'v_cvt_pk_bf16_f32 {v(96+k)}, {v(XU+2*k)}, {v(XU+2*k+1)}')
    a(f'ds_write_b128 {v((vOTa, vOTb)[h])}, {v(96+4*h,4)}')
a.wait_all_lg()
a(f'ds_read_b128 v[104:107], {v(vOTR)}'); a(f'ds_read_b128 v[108:111], {v(vOTR)} offset:1024')
a(f'buffer_store_dwordx4 v[104:107], {v(vOUT)}, {srd(OUT)}, {sO0} offen{OSC}')
a(f'buffer_store_dwordx4 v[108:111], {v(vOUT)}, {srd(OUT)}, {sO1} offen{OSC}')
a.stamp()
print('estimated compute cycles', a.est, file=sys.stderr)
a.finish()
assert L.bars == C.bars, (L.bars, C.bars)

lines = P.lines + L1lines + ['L_compute:'] + C.lines + L.lines + ['L_end:', '    s_endpgm']
if OPT['skel']:
    drop = ('v_mfma', 'v_dot', 'v_pk_', 'v_exp', 'v_rcp', 'ds_read_b64', 'v_fmac', 'v_mul_f32', 'v_cvt_pk', 'ds_write_b128', 'v_perm_b32', 'v_add_f32', 'v_sub_f32')
    lines = [l for l in lines if not l.strip().startswith(drop)]
hdr = open('parallel_sum__ssm_conv_h3__dense_activation_silu__prompt.s.ref').read().split('\n')
hdr = [l for l in hdr if l.startswith(';') and '@launch' not in l]
out = '\n'.join(hdr) + f'\n; @launch grid=(256,1,1) block=(512,1,1) lds={LDS_SIZE}\n'
out += f'''.amdgcn_target "amdgcn-amd-amdhsa--gfx950"
.text
.globl {NAME}
.p2align 8
.type {NAME},@function
{NAME}:
''' + '\n'.join(lines) + f'''
.section .rodata,"a"
.p2align 6
.amdhsa_kernel {NAME}
  .amdhsa_next_free_vgpr 256
  .amdhsa_next_free_sgpr 102
  .amdhsa_accum_offset 256
  .amdhsa_group_segment_fixed_size 0
  .amdhsa_kernarg_size 96
  .amdhsa_user_sgpr_count 2
  .amdhsa_user_sgpr_kernarg_segment_ptr 1
  .amdhsa_system_sgpr_workgroup_id_x 1
.end_amdhsa_kernel
'''
open(sys.argv[1], 'w').write(out)
print(dbg, file=sys.stderr)
print('lines', len(lines), 'stamps L/C', L.nstamp, C.nstamp, file=sys.stderr)
```

```python
import sys
from emit import Asm

NAME = "parallel_sum__ssm_conv_h3__dense_activation_silu__prompt_kernel"
OPT = dict(stamps=0, sg=0, probe=-2, base=60000, who=1, skel=0,
           map=0, rot=0, prio=1, look=10, lookkv=7, cap=8, hat=8, t2at=-2, t3at=-2, upat=8, ulat=16, ubat=24,
           pwat=34, s2at=42, psleep=2, pdelay=0, f1d=1500, ubar=5, sig2=50, sig3=2, hburst=7, hgap=46,
           g2at=24, ybar=37, osc=1, ht=0, ydelay=0, lprio=0, t2mode=0, spf=0, sw2=0, hp=1, dsx=4, ntkv=1, ntx=0, nth=0, na=43, wper=2, gate=1, afd=4, nx=0, esl=4, nodma=0, nohl=0, notail=0, nodot=0, nosync=0, kvfirst=1, yk=3, yp=12, yc=4, lspf=0, t1=1, pc=9, res=4, lastk=4, fbar=1, fpre=1, tp=0, duat=20, cpf=0, th=0, w1=1, csv=0, early=0, cap1=10, pair=0, s2skip=0, cap3=6, pres=2, onew=1, w64=0, wsl=0, yprio=2, jit=0, wc=20, gidx=0, hhot=0, hfl=1, wm=14, wk=10, bg=0, bgfrom=2, selft=0, tw=1, cap2=6)
for x in sys.argv[2:]:
    k, v = x.split('='); assert k in OPT, k; OPT[k] = int(v)

WS_E, WS_FLAG, WS_STAMP, WS_U, WS_Y, WS_H, WS_SIZE = 0, 0x80000, 0x40000, 0x100000, 0x300000, 0x500000, 0x1000000
FPH = 0x20000
OOB = 0x7f000000
SLOT = 28672
CV = 114688; CVCH = 9216; U1OFF = 4640; HBASE = CV + 18432; HCH = 8448; HBD = 4228
KB, VB, SB = CV, CV + 8192, CV + 9216 + 8192
XST = 150016; STATS = 158208; CSUM = 159232; PW = CSUM + 3072
LDS_SIZE = 163840
def w2slot(s): return (s if s < 36 else s - 36) * 4096
YT, EX, OT = 8*4096, 12*4096, 10*4096
Q, K, V, SH, HK, W1, W2, OUT, WS = 4, 8, 12, 16, 20, 24, 28, 32, 36
def srd(r): return f's[{r}:{r+3}]'
sD, sE, sT, sM1, st, sDS, sCP, sW, sWV, sTAG, sNTAG, sP0 = [f's{i}' for i in range(42, 54)]
sXO, sW1O, sHS, sHS3, sW2O, sHL = [f's{i}' for i in range(54, 60)]
sM0W, sW4K, sW3K, sSELLO, sSELHI, sONES = [f's{i}' for i in range(62, 68)]
sPAIR = 's[68:69]'
sSPIN, sTH, sKH, sMASK, sW2K, sI = [f's{i}' for i in range(70, 76)]
sHM0, sHSO, sD0, sD1, sA, sB, sG, sUS0 = [f's{i}' for i in range(76, 84)]
sUS1 = 's86'
sUL, sYS0, sYS1, sYL, sO0, sO1, sROT, sC = [f's{i}' for i in range(88, 96)]
sSTASH = 's101'
def v(n, c=1): return f'v{n}' if c == 1 else f'v[{n}:{n+c-1}]'
OSC = ' sc1' if OPT['osc'] else ''
vL16, vSTAMP, vFL, vPWB, vPWM, vPWT = 2, 31, 28, 29, 30, 255

class Prog(Asm):
    def __init__(self, name, pwr):
        super().__init__(); self.name = name; self.bars = []; self.nstamp = 0; self.pwr = pwr
    def label(self):
        self.nlabel += 1; return f'{self.name}{self.nlabel}'
    def bar(self, tag, lg=True):
        self.lock()
        if lg: self.wait_all_lg()
        self('s_barrier'); self.bars.append(tag)
        self.unlock()
    def post(self, n, lg=True):
        self.lock()
        self(f'v_mov_b32 {v(vPWT)}, {n}')
        if lg: self.wait_all_lg()
        self('s_mov_b64 exec, 1')
        self(f'ds_write_b32 {v(vPWM)}, {v(vPWT)}')
        self('s_mov_b64 exec, -1')
        self.unlock()
    def peek(self, grp):
        self(f'ds_read_b128 {v(self.pwr,4)}, {v(vPWB)} offset:{16*grp}')
    def expect(self, grp, n, peeked=False, sleep=0):
        r = self.pwr
        self.lock()
        if not peeked: self.peek(grp)
        top, done = self.label(), self.label()
        self.wait_lg(self.pend[('v', r)][1])
        self.place(top)
        self(f'v_min3_u32 {v(r)}, {v(r)}, {v(r+1)}, {v(r+2)}')
        self(f'v_min_u32 {v(r)}, {v(r)}, {v(r+3)}')
        self(f'v_cmp_gt_u32 vcc, {n}, {v(r)}')
        self(f's_cbranch_vccz {done}')
        t0 = self.t
        if sleep: self(f's_sleep {sleep}')
        self(f'ds_read_b128 {v(r,4)}, {v(vPWB)} offset:{16*grp}', track=False)
        self('s_waitcnt lgkmcnt(0)')
        self(f's_branch {top}')
        self.place(done)
        self.t = t0 + (0 if peeked else 100)
        self.unlock()
    def stamp(self, g=0, coarse=False):
        if coarse and OPT['sg'] == 3: g = 3
        if OPT['jit'] and self.name != 'P':
            self.njit = getattr(self, 'njit', 0) + 1
            self.lock()
            l = self.label()
            self(f's_lshl_b32 s96, s2, 3'); self(f's_add_u32 s96, s96, {sWV}'); self(f's_add_u32 s96, s96, {sTAG}')
            self(f's_mul_i32 s96, s96, {(2654435761 * (2 * self.njit + 1 + OPT["jit"] * 64)) & 0xffffffff}'); self('s_lshr_b32 s96, s96, 28')
            self('s_cmp_gt_u32 s96, 2'); self(f's_cbranch_scc1 {l}')
            self(f's_sleep {(20, 60, 127)[self.njit % 3]}')
            self.place(l)
            self.unlock()
        if g == 0: self.est = getattr(self, 'est', []) + [int(self.t)]
        if not OPT['stamps'] or g != OPT['sg']: return
        k = self.nstamp; self.nstamp += 1
        self.lock(); self.wait_all_lg()
        self('s_memtime s[96:97]'); self('s_waitcnt lgkmcnt(0)')
        self('s_sub_u32 s96, s96, s3')
        self(f'v_writelane_b32 {v(vSTAMP)}, s96, {k}')
        self.unlock()
    def dma(self, vaddr, rs, soff, m0expr, extra='', track=True):
        self(m0expr)
        return self(f'buffer_load_dwordx4 {v(vaddr)}, {srd(rs)}, {soff} offen{extra} lds', track=track)
    def flag_store(self, phase):
        self.lock()
        self(f's_mov_b32 {sG}, {(phase-1)*FPH}')
        self('s_mov_b64 exec, 0xffff')
        self(f'buffer_store_dwordx2 v[252:253], {v(vFL)}, {srd(WS)}, {sG} offen sc1')
        self('s_mov_b64 exec, -1')
        self.unlock()
    def poll_issue(self, vaddr, dst, mask):
        self(f's_mov_b64 exec, {mask}')
        r = self(f'buffer_load_dwordx2 {v(dst,2)}, {v(vaddr)}, {srd(WS)}, 0 offen sc1')
        self('s_mov_b64 exec, -1')
        return r
    def poll_check(self, vaddr, dst, mask):
        self.lock()
        top, done = self.label(), self.label()
        self(f's_mov_b32 {sSPIN}, 0')
        self(f's_mov_b64 exec, {mask}')
        self.wait_vm(self.pend[('v', dst)][1])
        self.place(top)
        self(f'v_cmp_eq_u32 vcc, {sTAG}, {v(dst)}')
        self(f'v_cmp_eq_u32 {sPAIR}, {sNTAG}, {v(dst+1)}')
        self(f's_and_b64 vcc, vcc, {sPAIR}')
        self('s_cmp_eq_u64 vcc, exec')
        self(f's_cbranch_scc1 {done}')
        self(f's_add_u32 {sSPIN}, {sSPIN}, 1')
        self(f's_cmp_gt_u32 {sSPIN}, {0 if OPT["nosync"] else 0x20000}')
        self(f's_cbranch_scc1 {done}')
        self(f's_sleep {OPT["psleep"]}')
        self(f'buffer_load_dwordx2 {v(dst,2)}, {v(vaddr)}, {srd(WS)}, 0 offen sc1', track=False)
        self('s_waitcnt vmcnt(0)')
        self(f's_branch {top}')
        self.place(done)
        self('s_mov_b64 exec, -1')
        self.unlock()
    def finish(self):
        a = self
        if OPT['stamps']:
            a('s_waitcnt vmcnt(0)')
            a.stamp(OPT['sg'])
            if OPT['probe'] > -2 and (a.name == 'C') == (OPT['who'] == 1):
                a(f's_mov_b32 s60, {OPT["base"]}')
                if OPT['probe'] >= 0:
                    a(f'v_readlane_b32 s61, {v(vSTAMP)}, {OPT["probe"]}'); a('s_add_u32 s60, s60, s61')
                l = a.label(); a.place(l)
                a('s_memtime s[96:97]'); a('s_waitcnt lgkmcnt(0)'); a('s_sub_u32 s96, s96, s3'); a('s_cmp_lt_u32 s96, s60'); a(f's_cbranch_scc1 {l}')
            a('s_lshl_b32 s60, s2, 3'); a(f's_add_u32 s60, s60, {sWV}'); a('s_lshl_b32 s60, s60, 7'); a(f's_add_u32 s60, s60, {WS_STAMP}')
            a('v_lshlrev_b32 v128, 2, v1')
            a('s_mov_b64 exec, 0xffffffff')
            a(f'buffer_store_dword {v(vSTAMP)}, v128, {srd(WS)}, s60 offen')
        a('s_endpgm')

def lo(d, s): return f'v_lshlrev_b32 {v(d)}, 16, {v(s)}'
def hi(d, s): return f'v_and_b32 {v(d)}, {sMASK}, {v(s)}'

P = a = Prog('P', 0)
a('s_cmp_ge_u32 s2, 256')
a('s_cbranch_scc1 L_end')
if OPT['stamps']:
    a('s_memtime s[68:69]'); a('s_memrealtime s[70:71]'); a('s_waitcnt lgkmcnt(0)'); a('s_mov_b32 s3, s68')
    a(f'v_mov_b32 {v(vSTAMP)}, 0'); a(f'v_writelane_b32 {v(vSTAMP)}, s70, 31')
a('s_load_dwordx16 s[76:91], s[0:1], 0')
a('s_load_dwordx8 s[92:99], s[0:1], 64')
a('v_lshrrev_b32 v3, 6, v0')
a('v_and_b32 v1, 63, v0')
a('s_getpc_b64 s[60:61]')
a.place('L_pc')
a(f'v_readfirstlane_b32 {sWV}, v3')
a(f's_lshr_b32 {sI}, s2, 3')
a('v_lshlrev_b32 v39, 7, v1')
if OPT['cpf']:
    a(f's_lshl_b32 s62, {sWV}, 5'); a(f's_add_u32 s62, s62, {sI}'); a('s_mul_i32 s63, s62, 683'); a('s_lshr_b32 s63, s63, 16')
    a('s_mul_i32 s63, s63, 96'); a('s_sub_u32 s62, s62, s63'); a('s_lshl_b32 s62, s62, 8')
    a('v_add_u32 v3, s62, v39')
    a('v_min_u32 v3, L_end-L_pc, v3')
    a('s_mov_b64 exec, 3')
else:
    a(f's_and_b32 s62, {sI}, 7'); a('s_lshl_b32 s62, s62, 12')
    a(f's_cmp_ge_u32 {sWV}, 4'); a('s_cselect_b32 s62, s62, 0')
    a(f's_lshl_b32 s63, {sWV}, 10'); a('s_add_u32 s62, s62, s63')
    a('v_add_u32 v3, s62, v39')
    a('v_min_u32 v3, L_end-L_pc, v3')
    a('s_mov_b64 exec, 0xff')
a('global_load_dword v254, v3, s[60:61]', track=False)
a('s_mov_b64 exec, -1')
a(f's_and_b32 {sW}, {sWV}, 3')
a('s_and_b32 s60, s2, 7')
lg = OPT['map']
a(f's_lshr_b32 {sT}, s60, {lg}'); a(f's_lshl_b32 {sT}, {sT}, {1+lg}')
a(f's_and_b32 s61, {sI}, {(2<<lg)-1}'); a(f's_add_u32 {sT}, {sT}, s61')
a(f's_and_b32 {sM1}, s60, {(1<<lg)-1}'); a(f's_lshl_b32 {sM1}, {sM1}, {4-lg}')
a(f's_lshr_b32 s61, {sI}, {1+lg}'); a(f's_add_u32 {sM1}, {sM1}, s61')
a(f's_and_b32 s61, {sM1}, 1')
a(f's_lshl_b32 {st}, {sT}, 1')
a(f's_add_u32 {st}, {st}, s61')
a(f's_lshr_b32 {sDS}, {sM1}, 1')
if OPT['dsx']: a(f's_xor_b32 {sDS}, {sDS}, {OPT["dsx"]}')
a(f's_lshl_b32 {sW2K}, {sW}, 11')
a(f'v_lshlrev_b32 {v(vL16)}, 4, v1')
a(f's_cmp_ge_u32 {sWV}, 4')
a('s_cbranch_scc1 L_compute')
def common2(a):
    a(f's_lshl_b32 {sCP}, {sDS}, 5'); a(f's_add_u32 {sCP}, {sCP}, {st}')
    a(f's_lshl_b32 {sW4K}, {sW}, 12'); a(f's_lshl_b32 {sM0W}, {sW}, 10')
    a(f's_and_b32 {sTH}, {sW}, 1'); a(f's_lshr_b32 {sKH}, {sW}, 1')
    a(f's_mul_i32 {sP0}, {sM1}, 3'); a(f's_lshl_b32 s60, {sM1}, 1'); a('s_add_u32 s60, s60, 11'); a(f's_min_u32 {sP0}, {sP0}, s60')
    a(f's_mov_b32 s{WS+2}, {WS_SIZE}'); a(f's_mov_b32 s{WS+3}, 0x20000')
    a(f'v_mov_b32 {v(vPWB)}, {PW}'); a(f's_lshl_b32 s60, {sWV}, 2'); a(f'v_add_u32 {v(vPWM)}, s60, {v(vPWB)}')

L = a = Prog('L', 56)
vXA, vWA, vKD, vHALO, vT43, vW2A, vW2W, vP2, vP3 = 4, 8, 12, 14, 15, 16, 17, 18, 19
vP1, vUL, vULp, vUW, vZU, vZH, vW2W2, vW2W3, UR, PO, WT = 22, 23, 24, 25, 26, 27, 11, 3, 236, 40, 64
vXRd, vYS, vDU, XRL, DUL, DRL, TB = 246, 247, 248, 64, 96, 112, 128
if OPT['lprio']: a(f's_setprio {OPT["lprio"]}')
for r, n in ((W1, 1409024), (Q, 2097152), (K, 2097152), (V, 2097152), (SH, 4096)):
    a(f's_mov_b32 s{r+2}, {n}'); a(f's_mov_b32 s{r+3}, 0x20000')
a(f'v_min_u32 {v(vT43)}, {42*128}, v39')
a('v_lshrrev_b32 v33, 3, v1'); a('v_and_b32 v34, 7, v1'); a('v_lshlrev_b32 v33, 10, v33')
a(f's_lshl_b32 s60, {st}, 16'); a(f's_lshl_b32 s61, {sW}, 14'); a('s_add_u32 s60, s60, s61')
a(f's_lshl_b32 s61, {sDS}, 7'); a(f's_add_u32 {sSTASH}, s60, s61')
a('v_lshrrev_b32 v35, 5, v1'); a('v_xor_b32 v35, v35, v34'); a('v_lshl_add_u32 v38, v35, 4, v33')
a(f's_lshl_b32 s60, {sW}, 6'); a('s_and_b32 s60, s60, 64'); a('s_xor_b32 s61, s60, 32')
a(f'v_xor_b32 {v(vKD)}, s61, v38')
a('s_xor_b32 s61, s60, 64')
a(f'v_xor_b32 {v(vKD+1)}, s61, v38'); a(f'v_add_u32 {v(vKD+1)}, 8192, {v(vKD+1)}')
a(f'v_add_u32 v38, {sSTASH}, v38'); a(f'v_subrev_u32 {v(vHALO)}, 8192, v38')
a(f's_lshl_b32 {sXO}, {sT}, 17')
a('s_waitcnt lgkmcnt(0)')
a(f's_mov_b64 s[{W1}:{W1+1}], s[90:91]')
a(f's_mov_b64 s[{Q}:{Q+1}], s[76:77]')
a(f's_mov_b64 s[{K}:{K+1}], s[78:79]')
a(f's_mov_b64 s[{V}:{V+1}], s[80:81]')
a(f's_mov_b64 s[{SH}:{SH+1}], s[82:83]')
seq = {}
def first_touch():
    l = [a.label() for _ in range(2)]
    a(f's_cmp_lg_u32 {sW}, 2'); a(f's_cbranch_scc1 {l[0]}')
    a(f's_mul_i32 s60, s2, {43*128}')
    a(f'buffer_load_dword v254, {v(vT43)}, {srd(W1)}, s60 offen', track=False); a(f's_branch {l[1]}')
    a.place(l[0])
    a(f's_lshl_b32 s61, {sM1}, 13'); a(f's_add_u32 s60, {sXO}, s61')
    a(f'buffer_load_dword v254, v39, {srd(Q)}, s60 offen' + ' nt' * OPT['ntx'], track=False)
    a.place(l[1])
def kv4():
    for rs, base in ((K, KB), (V, VB)):
        for n in range(2): seq['kv'] = a.dma(vKD+n, rs, sSTASH, f's_add_u32 m0, {sW2K}, {base + 1024 + n*1024}', ' nt' * OPT['ntkv'])
l = [a.label() for _ in range(4)]
a(f's_cmp_ge_u32 {sW}, 2'); a(f's_cbranch_scc1 {l[0]}')
a(f's_cmp_lg_u32 {sW}, 0'); a(f's_cbranch_scc1 {l[2]}')
a.dma(vHALO, K, '0', f's_mov_b32 m0, {KB}', track=False); a(f's_branch {l[3]}')
a.place(l[2])
a(f's_lshl_b32 s60, {sDS}, 9')
a.dma(vL16, SH, 's60', f's_mov_b32 m0, {SB}', track=False)
a(f's_branch {l[3]}')
a.place(l[0])
if not OPT['kvfirst']: first_touch()
a.place(l[3])
kv4()
if OPT['kvfirst'] and OPT['t1']:
    a(f's_cmp_ge_u32 {sW}, 2'); a(f's_cbranch_scc1 {l[1]}')
    if OPT['th']:
        lk, lm = a.label(), a.label()
        a(f's_mov_b64 s[{HK}:{HK+1}], s[84:85]'); a(f's_mov_b64 s[{W2}:{W2+1}], s[92:93]')
        for r, n in ((HK, 2097152), (W2, 1409024)):
            a(f's_mov_b32 s{r+2}, {n}'); a(f's_mov_b32 s{r+3}, 0x20000')
        a(f's_cmp_lg_u32 {sW}, 0'); a(f's_cbranch_scc1 {lk}')
        a(f's_mul_i32 s60, s2, {43*128}')
        a(f'buffer_load_dword v254, {v(vT43)}, {srd(W2)}, s60 offen', track=False); a(f's_branch {lm}')
        a.place(lk)
        a(f's_lshl_b32 s60, {sDS}, 5'); a(f's_add_u32 s60, s60, {st}'); a('s_lshl_b32 s60, s60, 13')
        if OPT['th'] == 1: a('s_mov_b64 exec, 1')
        a(f'buffer_load_dword v254, v39, {srd(HK)}, s60 offen'); a.pend.pop(('v', 254))
        a('s_mov_b64 exec, -1')
        a.place(lm)
    else:
        a('s_mov_b64 exec, 1')
        a(f'buffer_load_dword v254, {v(vL16)}, {srd(SH)}, 0 offen'); a.pend.pop(('v', 254))
        a('s_mov_b64 exec, -1')
    lj = a.label(); a(f's_branch {lj}')
    a.place(l[1])
    first_touch()
    a.place(lj)
a(f's_mov_b64 s[{HK}:{HK+1}], s[84:85]')
a(f's_mov_b64 s[{W2}:{W2+1}], s[92:93]')
a(f's_mov_b64 s[{WS}:{WS+1}], s[98:99]')
a(f's_load_dword {sE}, s[{WS}:{WS+1}], {WS_E}')
common2(a)
a(f's_lshl_b32 s60, {sCP}, 2')
a(f's_load_dword {sD}, s[86:87], s60')
a('v_lshrrev_b32 v32, 4, v1')
a('v_xor_b32 v35, v34, v32')
a(f'v_lshl_add_u32 {v(vXA)}, v35, 4, v33')
a(f'v_xor_b32 {v(vXA+1)}, 64, {v(vXA)}')
a(f'v_add_u32 {v(vXA+1)}, 8192, {v(vXA+1)}')
a(f'v_add_u32 {v(vXA+2)}, 16384, {v(vXA)}')
a(f'v_add_u32 {v(vXA+3)}, 16384, {v(vXA+1)}')
a(f's_lshl_b32 s60, {sW}, 15'); a(f's_add_u32 {sXO}, {sXO}, s60')
a(f's_mul_i32 {sW3K}, {sW}, 3072')
a(f's_cmp_lt_u32 {sM1}, 11')
a('s_cselect_b32 s61, 12, 8')
a(f'v_mov_b32 v3, {OOB}')
for j in range(3):
    if j: a(f'v_add_u32 v36, {64*j}, v1')
    src = 'v36' if j else 'v1'
    a(f'v_mul_u32_u24 v37, 5462, {src}')
    a('v_lshrrev_b32 v37, 16, v37')
    a('v_mul_u32_u24 v35, 12, v37')
    a(f'v_sub_u32 v35, {src}, v35')
    a('v_cmp_gt_u32 vcc, s61, v35')
    a('v_mul_u32_u24 v37, 2752, v37')
    a(f'v_lshl_add_u32 {v(vWA+j)}, v35, 4, v37')
    a(f'v_cndmask_b32 {v(vWA+j)}, v3, {v(vWA+j)}, vcc')
a(f's_mul_i32 {sW1O}, {sW}, {16*2752}'); a(f's_lshl_b32 s60, {sP0}, 6'); a(f's_add_u32 {sW1O}, {sW1O}, s60')
if OPT['rot'] == 1: a(f's_and_b32 {sROT}, {sM1}, 7')
elif OPT['rot'] == 2:
    a(f's_lshl_b32 {sROT}, {sT}, 2'); a(f's_add_u32 {sROT}, {sROT}, {sM1}')
elif OPT['rot'] == 3:
    a(f's_lshr_b32 {sROT}, {sT}, 1'); a(f's_add_u32 {sROT}, {sROT}, {sM1}')
elif OPT['rot'] == 5:
    a(f's_lshl_b32 {sROT}, {sT}, 1'); a(f's_add_u32 {sROT}, {sROT}, {sM1}')
elif OPT['rot'] == 6:
    a(f's_lshl_b32 {sROT}, {sT}, 1')
elif OPT['rot'] == 7:
    a(f's_lshl_b32 {sROT}, {sT}, 2')
elif OPT['rot'] == 4:
    a(f's_add_u32 {sROT}, {sT}, {sM1}')
for r, n in ((HK, 2097152), (W2, 1409024)):
    a(f's_mov_b32 s{r+2}, {n}'); a(f's_mov_b32 s{r+3}, 0x20000')

ops = []
def op(name, gate, fn): ops.append((name, gate, fn))
def touch2():
    if OPT['t2mode']:
        a(f's_lshl_b32 {sG}, {sI}, 2'); a(f's_add_u32 {sG}, {sG}, {sW}')
        if OPT['map'] == 1:
            a(f's_mul_i32 {sG}, {sG}, 43'); a('v_min_u32 v253, 42, v1'); a(f'v_add_u32 v253, {sG}, v253')
            a('v_and_b32 v252, 3, v253'); a('v_lshrrev_b32 v253, 2, v253'); a('v_lshlrev_b32 v253, 10, v253'); a('v_lshl_add_u32 v253, v252, 7, v253')
            a(f's_and_b32 {sG}, {sDS}, 4'); a(f's_lshl_b32 {sG}, {sG}, 7')
            a(f'buffer_load_dword v254, v253, {srd(W2)}, {sG} offen')
        else:
            a(f's_mul_i32 {sG}, {sG}, {86*128}')
            a(f'buffer_load_dword v254, {v(vT43)}, {srd(W2)}, {sG} offen')
            a(f's_add_u32 {sG}, {sG}, {43*128}')
            a(f'buffer_load_dword v253, {v(vT43)}, {srd(W2)}, {sG} offen')
        return
    l = a.label()
    a(f's_cmp_lg_u32 {sW}, 2'); a(f's_cbranch_scc1 {l}')
    a(f's_mul_i32 {sG}, s2, {43*128}')
    a(f'buffer_load_dword v254, {v(vT43)}, {srd(W2)}, {sG} offen', track=False)
    a.place(l)
def touch3():
    l = a.label()
    a(f's_cmp_lg_u32 {sW}, 3'); a(f's_cbranch_scc1 {l}')
    a(f's_mul_i32 {sG}, {sI}, {43*1024}'); a(f'v_lshlrev_b32 v253, 3, {v(vT43)}')
    a(f'buffer_load_dword v254, v253, {srd(W2)}, {sG} offen offset:384', track=False)
    a.place(l)
def add_chunk(c):
    slot = (c % 4) * SLOT
    gate = f'c{c-3}' if c >= 4 else None
    def w(j):
        def f():
            if j == 0:
                if c == OPT['t2at']: touch2()
                if c == OPT['t3at']: touch3()
                if OPT['rot']:
                    a(f's_add_u32 {sC}, {sROT}, {c}'); a(f's_and_b32 {sC}, {sC}, 7')
                    a(f's_mul_i32 {sB}, {sC}, {64*2752}'); a(f's_add_u32 {sB}, {sB}, {sW1O}')
                    a(f's_lshl_b32 {sA}, {sC}, 7'); a(f's_add_u32 {sA}, {sA}, {sXO}')
                else:
                    a(f's_add_u32 {sB}, {sW1O}, {c*64*2752}')
            return a.dma(vWA+j, W1, sB, f's_add_u32 m0, {sW3K}, {slot + 16384 + j*1024}')
        return f
    for j in range(3): op(f'w{c}_{j}', gate, w(j))
    def xo(n):
        if n == 0 and not OPT['rot']: a(f's_add_u32 {sA}, {sXO}, {c*128}')
        return a.dma(vXA+n, Q, sA, f's_add_u32 m0, {sW4K}, {slot + n*1024}')
    for n in range(4): op(f'x{c}_{n}', gate, lambda n=n: xo(n))
def add_h():
    for n in range(4):
        def f(n=n):
            if n == 0 and OPT['t2at'] == -2: touch2()
            if n == 0 and OPT['t3at'] == -2: touch3()
            a(f's_mov_b32 m0, {sHM0}')
            return a(f'buffer_load_dwordx4 {v(vL16)}, {srd(HK)}, {sHSO} offen offset:{n*1024}{" nt" * OPT["nth"]} lds')
        op(f'h{n}', None, f)
def w2op(s):
    a(f's_add_u32 {sO0}, {sW2O}, {s*16384}')
    return a(f'buffer_load_dwordx4 {v(WT+4*s,4)}, {v(vW2A)}, {srd(W2)}, {sO0} offen')
def uload():
    a.poll_check(vP1, 20, '0x1ff')
    a(f'buffer_load_dwordx4 {v(UR,4)}, {v(vUL)}, {srd(WS)}, {sUL} offen sc1')
    a(f'buffer_load_dwordx4 {v(UR+4,4)}, {v(vUL)}, {srd(WS)}, {sUL} offen offset:16 sc1')
    return a(f'buffer_load_dword {v(UR+8)}, {v(vULp)}, {srd(WS)}, {sUL} offen sc1')
def ubuild():
    if OPT['hp']: a('s_setprio 2')
    a(f'ds_write_b128 {v(vZU)}, v[60:63]'); a(f'ds_write_b32 {v(vZH)}, v60')
    for c in range(2):
        sel = sSELLO if c == 0 else sSELHI
        for k in range(4):
            hi0 = UR + 5 - 2*k if k < 3 else UR + 8
            a(f'v_perm_b32 {v(PO+8*c+k)}, {v(hi0)}, {v(UR+6-2*k)}, {sel}')
        a(f'ds_write_b128 {v(vUW)}, {v(PO+8*c,4)} offset:{c*CVCH}')
        for k in range(4): a(f'v_perm_b32 {v(PO+8*c+4+k)}, {v(UR+6-2*k)}, {v(UR+7-2*k)}, {sel}')
        a(f'ds_write_b128 {v(vUW)}, {v(PO+8*c+4,4)} offset:{c*CVCH+U1OFF}')
    flush_posts(True)
    a.wait_all_lg()
    for c in range(2):
        for jj in range(2):
            for h in range(2): a(f'ds_read_b32 {v(DRL+4*c+2*jj+h)}, {v(vDU)} offset:{c*CVCH + 512*jj + 64*h}')
    a.wait_vm(max(seq['st1'], seq['h3']))
    a.post(4); a.stamp(0, True)
    if OPT['hp']: a('s_setprio 0')
    return a.vm_n
nbg = 0
wlist = list(range(28, 43)) + list(range(OPT['nx']))
for c in range(8):
    if c == OPT['hat']: add_h()
    add_chunk(c)
    if OPT['bgfrom'] <= c < 7:
        for _ in range(OPT['bg']):
            op(f'W{wlist[nbg]}', None, lambda s_=wlist[nbg]: w2op(s_)); nbg += 1
if OPT['pair']:
    assert not OPT['rot']
    d = {o[0]: o for o in ops}
    groups = {1: [(0, 1), (2, 3), (4, 5), (6, 7)], 2: [(0,), (1, 2), (3, 4), (5, 6), (7,)], 3: [(0,), (1, 2, 3), (4, 5), (6, 7)]}[OPT['pair']]
    ops[:] = [d[f'{k}{c}_{j}'] for g in groups for k, n in (('w', 3), ('x', 4)) for c in g for j in range(n)]
for n in range(2): op(f'st{n}', None, lambda n=n: a.dma(vXA+n, Q, sSTASH, f's_add_u32 m0, {sW2K}, {XST + n*1024}'))
if OPT['hat'] == 8: add_h()
for s_ in wlist[nbg:]: op(f'W{s_}', None, lambda s_=s_: w2op(s_))
b0 = [o[0] for o in ops].index('x7_3') - 6
for nm, pos, fn in (('ub', OPT['ubat'], ubuild), ('ul', OPT['ulat'], uload), ('up', OPT['upat'], lambda: a.poll_issue(vP1, 20, '0x1ff'))):
    ops.insert(b0 + pos, (nm, 'c4', fn))
names = [o[0] for o in ops]
nxt = [0]
posts = [('x5_3', 1), ('x6_3', 2), ('x7_3', 3)]
capped = [False]
dbg = []
def flush_posts(force=False):
    while posts and posts[0][0] in seq and (force or a.vm_done >= seq[posts[0][0]]):
        a.wait_vm(seq[posts[0][0]]); a.post(posts[0][1], False); a.stamp(); posts.pop(0)
def issue_upto(idx):
    while nxt[0] <= min(idx, len(ops) - 1):
        name, gate, fn = ops[nxt[0]]
        if gate is not None and gate not in a.bars: return
        if capped[0]:
            a.wait_vm(a.vm_n - (OPT['cap1'] if posts else OPT['cap']) + 1); flush_posts()
        nxt[0] += 1
        seq[name] = fn()
        if capped[0] and (name in ('x7_3', 'st1', 'h3', 'up', 'ul', 'ub') or (name[0] == 'W' and int(name[1:]) % 3 == 0)):
            a.stamp(2); dbg.append(name)
issue_upto(OPT['lookkv'] - 1)
a('s_branch L_loader2')
L1lines = a.lines; a.lines = ['L_loader2:']
a(f's_mul_i32 s60, {sKH}, {HCH}'); a(f's_mul_i32 s61, {sTH}, {HBD}'); a('s_add_u32 s61, s61, s60'); a(f's_add_u32 {sHM0}, s61, {HBASE+64}')
a(f's_lshl_b32 {sHSO}, {sCP}, 13'); a(f's_add_u32 {sUL}, {sHSO}, {WS_U}'); a(f's_lshl_b32 s61, {sKH}, 12'); a(f's_add_u32 {sHSO}, {sHSO}, s61')
a('s_waitcnt lgkmcnt(0)')
a(f's_add_u32 {sTAG}, {sE}, 1'); a(f's_not_b32 {sNTAG}, {sTAG}')
a.post(0)
a('v_and_b32 v35, 1, v32'); a('v_lshlrev_b32 v35, 2, v35'); a('v_xor_b32 v35, v35, v34')
a(f'v_lshl_add_u32 {v(vW2A)}, v35, 4, v33')
a(f's_mul_i32 {sW2O}, {sKH}, {43*16*1024}'); a(f's_lshl_b32 s61, {sTH}, 13'); a(f's_add_u32 {sW2O}, {sW2O}, s61')
a(f's_lshl_b32 s61, {sDS}, 7'); a(f's_add_u32 {sW2O}, {sW2O}, s61')
a(f'v_add_u32 {v(vW2W)}, {sM0W}, {v(vL16)}')
a(f'v_add_u32 {v(vW2W2)}, 61440, {v(vW2W)}'); a(f'v_add_u32 {v(vW2W3)}, 122880, {v(vW2W)}')
a(f's_lshl_b32 s60, {st}, 1'); a(f's_add_u32 s60, s60, {sTH}'); a('s_mul_i32 s60, s60, 86')
a(f's_mul_i32 s61, {sKH}, 43'); a('s_add_u32 s60, s60, s61'); a('s_lshl_b32 s60, s60, 10')
a(f's_add_u32 {sHL}, s60, {WS_H}')
a(f's_mul_i32 s60, {sKH}, 7'); a('v_min_u32 v38, 8, v1'); a('v_add_u32 v35, s60, v38')
a('v_lshrrev_b32 v36, 1, v35'); a(f'v_xor_b32 v36, {OPT["dsx"]}, v36'); a('v_lshlrev_b32 v36, 12, v36'); a('v_and_b32 v35, 1, v35'); a('v_lshl_add_u32 v37, v35, 7, v36')
a(f's_lshl_b32 s60, {sT}, 8'); a(f's_add_u32 s60, s60, {WS_FLAG + FPH}')
a(f's_and_b32 s61, {st}, 1'); a('s_lshl_b32 s61, s61, 1'); a(f's_add_u32 s61, s61, {sTH}')
a('s_lshl_b32 s61, s61, 15'); a('s_add_u32 s61, s61, s60')
a(f'v_add_u32 {v(vP2)}, s61, v37')
a(f's_lshl_b32 s60, {sDS}, 12'); a(f's_and_b32 s61, {st}, 24'); a('s_lshl_b32 s61, s61, 12'); a('s_add_u32 s60, s60, s61'); a(f's_add_u32 s60, s60, {WS_FLAG}')
a(f's_lshl_b32 s61, {sW}, 3'); a('v_add_u32 v35, s61, v38'); a('v_max_u32 v35, 1, v35'); a('v_subrev_u32 v35, 1, v35')
a('v_lshlrev_b32 v35, 7, v35'); a(f'v_add_u32 {v(vP1)}, s60, v35')
a(f's_add_u32 s60, s60, {sM0W}'); a(f's_add_u32 s60, s60, {2*FPH}')
a('v_lshlrev_b32 v35, 7, v34'); a(f'v_add_u32 {v(vP3)}, s60, v35')
a(f's_lshl_b32 s60, {st}, 16'); a(f's_lshl_b32 s61, {sDS}, 13'); a('s_add_u32 s60, s60, s61'); a(f's_add_u32 s60, s60, {sW2K}')
a(f's_add_u32 {sYL}, s60, {WS_Y}')
a(f'v_lshlrev_b32 {v(vUL)}, 5, v0'); a(f'v_subrev_u32 {v(vULp)}, 4, {v(vUL)}')
a(f'v_add_u32 {v(vUW)}, {CV+448}, {v(vW2W)}')
a(f's_mul_i32 s60, {sKH}, {CVCH}'); a(f's_mul_i32 s61, {sTH}, {U1OFF}'); a('s_add_u32 s61, s61, s60'); a(f's_add_u32 s61, s61, {CV}')
a('v_min_u32 v35, 27, v1'); a('v_lshlrev_b32 v35, 4, v35'); a(f'v_add_u32 {v(vZU)}, s61, v35')
a(f's_sub_u32 s61, {sHM0}, 64'); a('v_and_b32 v35, 15, v1'); a('v_lshlrev_b32 v35, 2, v35'); a(f'v_add_u32 {v(vZH)}, s61, v35')
a(f's_mov_b32 {sSELLO}, 0x05040100'); a(f's_mov_b32 {sSELHI}, 0x07060302')
a(f's_mov_b32 {sMASK}, 0xffff0000'); a(f's_lshl_b32 {sD0}, {sD}, 16'); a(f's_and_b32 {sD1}, {sD}, {sMASK}')
a('v_and_b32 v36, 15, v1')
a('v_bfe_u32 v35, v1, 2, 2'); a('v_lshlrev_b32 v35, 4, v35'); a('v_lshl_add_u32 v35, v32, 7, v35')
a('v_and_b32 v37, 3, v1'); a('v_xor_b32 v37, 3, v37'); a('v_lshl_add_u32 v35, v37, 2, v35')
a(f's_add_u32 s60, {sM0W}, {CV+U1OFF+448}'); a(f'v_add_u32 {v(vDU)}, s60, v35')
a(f's_add_u32 s60, {sW2K}, {CV}'); a(f'v_add_u32 {v(vXRd)}, s60, {v(vL16)}')
a(f'v_lshlrev_b32 {v(vYS)}, 16, v32'); a(f'v_lshl_add_u32 {v(vYS)}, v36, 4, {v(vYS)}')
a(f's_lshl_b32 s60, {sW}, 19'); a(f's_lshl_b32 s61, {sCP}, 8'); a('s_add_u32 s60, s60, s61'); a(f's_add_u32 {sYS0}, s60, {WS_Y}')
a(f's_add_u32 {sYS1}, {sYS0}, 0x40000')
a(f's_lshl_b32 s60, {sCP}, 7'); a(f's_lshl_b32 s61, {sW}, 15'); a('s_add_u32 s60, s60, s61'); a(f's_add_u32 s60, s60, {WS_FLAG}')
a(f'v_lshlrev_b32 {v(vFL)}, 3, v36'); a(f'v_add_u32 {v(vFL)}, s60, {v(vFL)}')
a(f'v_mul_u32_u24 {v(TB)}, 5, v34'); a(f'v_add_u32 {v(TB)}, {sTAG}, {v(TB)}')
for r in range(1, 4): a(f'v_lshrrev_b32 {v(TB+r)}, {r}, {v(TB)}')
for i in range(4): a(f'v_mov_b32 v{60+i}, 0')
a.wait_vm(seq['kv']); a.bar('kv'); a.stamp()
D = OPT['look']
for c in range(5):
    issue_upto(names.index(f'x{c}_3') + D)
    a.wait_vm(seq[f'x{c}_3'])
    a.bar(f'c{c}', False)
    a.stamp()
capped[0] = True
def wr(s_):
    if OPT['notail']: return
    o = w2slot(s_); k = o // 61440
    if OPT['w64'] == 1:
        for q in range(2): a(f'ds_write_b64 {v((vW2W, vW2W2, vW2W3)[k])}, {v(WT+4*s_+2*q,2)} offset:{o - 61440*k + 8*q}')
    elif OPT['w64'] == 2:
        for q in range(4): a(f'ds_write_b32 {v((vW2W, vW2W2, vW2W3)[k])}, {v(WT+4*s_+q)} offset:{o - 61440*k + 4*q}')
    else: a(f'ds_write_b128 {v((vW2W, vW2W2, vW2W3)[k])}, {v(WT+4*s_,4)} offset:{o - 61440*k}')
    if OPT['wsl']: a(f's_sleep {OPT["wsl"]}')
def wdma(s_):
    if OPT['nodma']: return
    a.wait_vm(a.vm_n - (OPT['cap2'] if s_ < OPT['wm'] else OPT['cap3']) + 1)
    a(f's_add_u32 {sO0}, {sW2O}, {s_*16384}')
    return a.dma(vW2A, W2, sO0, f's_add_u32 m0, {sM0W}, {w2slot(s_)}')
issue_upto(999)
flush_posts(True)
a.stamp()
a(f's_or_b32 s60, {sCP}, {sW}')
a('s_cmp_lg_u32 s60, 0')
a('s_cbranch_scc1 L_noep')
for q in range(4): a(f'v_add_u32 v{40+q}, {WS_FLAG + 8192*q}, v39')
a(f's_mov_b32 {sSPIN}, 0')
a.place('L_ep')
for q in range(4): a(f'buffer_load_dwordx2 v[{44+2*q}:{45+2*q}], v{40+q}, {srd(WS)}, 0 offen sc1', track=False)
a('s_waitcnt vmcnt(0)')
a('s_mov_b64 s[60:61], exec')
for q in range(4):
    a(f'v_cmp_eq_u32 vcc, {sTAG}, v{44+2*q}'); a('s_and_b64 s[60:61], s[60:61], vcc')
    a(f'v_cmp_eq_u32 vcc, {sNTAG}, v{45+2*q}'); a('s_and_b64 s[60:61], s[60:61], vcc')
a('s_cmp_eq_u64 s[60:61], exec')
a('s_cbranch_scc1 L_epok')
a(f's_add_u32 {sSPIN}, {sSPIN}, 1'); a(f's_cmp_lt_u32 {sSPIN}, {0 if OPT["nosync"] else 0x20000}'); a('s_cbranch_scc1 L_ep')
a.place('L_epok')
a(f'v_mov_b32 v40, {WS_E}'); a(f'v_mov_b32 v41, {sTAG}')
a('s_mov_b64 exec, 1')
a(f'buffer_store_dword v41, v40, {srd(WS)}, 0 offen sc1', track=False)
a('s_mov_b64 exec, -1')
a.place('L_noep')
a.expect(1, 1, sleep=OPT['esl'])
a.stamp()
def dumul():
    for c in range(2):
        for jj in range(2):
            for h in range(2):
                src = DRL+4*c+2*jj+h; d = DUL+8*jj+4*c+2*h
                for x in (hi(d, src), lo(d+1, src), f'v_mul_f32 {v(d)}, {(sD0, sD1)[c]}, {v(d)}', f'v_mul_f32 {v(d+1)}, {(sD0, sD1)[c]}, {v(d+1)}'): a(x)
for s_ in range(28):
    if s_ == OPT['duat']: dumul()
    if OPT['s2skip']:
        if s_ == OPT['s2skip']: a.post(5, False); a.stamp(0, True)
        wl = wdma(s_); continue
    if s_ == OPT['wm']: a.expect(1, 2, sleep=OPT['esl'])
    if s_ == OPT['wm'] + OPT['wk']:
        a.stamp(); a.poll_issue(vP2, 20, '0x1ff')
    if s_ == OPT['wm'] + OPT['wk'] + OPT['wc']:
        a.poll_check(vP2, 20, '0x1ff'); a.post(5, False); a.stamp(0, True)
    wl = wdma(s_)
if OPT['wm'] + OPT['wk'] >= 28:
    a.stamp(); a.poll_issue(vP2, 20, '0x1ff')
if OPT['wm'] + OPT['wk'] + OPT['wc'] >= 28 and not OPT['s2skip']:
    a.poll_check(vP2, 20, '0x1ff')
    a.post(5, False)
    a.stamp(0, True)
a.wait_vm(wl); a.post(6, False)
if OPT['duat'] >= 28: dumul()
a.expect(1, 4, sleep=1)
a(f's_setprio {OPT["yprio"]}')
for jj in range(2):
    for sw in range(4): a(f'ds_read_b128 {v(XRL+16*jj+4*sw,4)}, {v(vXRd)} offset:{8192*sw + 1024*jj}')
for jj in range(2):
    for hf in range(2):
        for c in range(2):
            for r in range(4): a(f'v_add_f32 {v(DUL+8*jj+4*c+r)}, {v(DUL+8*jj+4*c+r)}, {v(XRL+16*jj+8*c+4*hf+r)}')
    for r in range(4):
        a(f'v_cvt_pk_bf16_f32 {v(XRL+16*jj+r)}, {v(DUL+8*jj+4+r)}, {v(DUL+8*jj+4+r)}')
        a(f'v_add_u32 {v(DUL+8*jj+r)}, 0x10000, {v(DUL+8*jj+r)}')
    for r in range(4): a(f'v_perm_b32 {v(XRL+16*jj+r)}, {v(XRL+16*jj+r)}, {v(DUL+8*jj+r)}, {sSELHI}')
    for r in range(4): a(f'v_bfi_b32 {v(XRL+16*jj+r)}, 1, {v(TB+r)}, {v(XRL+16*jj+r)}')
    yst = a(f'buffer_store_dwordx4 {v(XRL+16*jj,4)}, {v(vYS)}, {srd(WS)}, {(sYS0, sYS1)[jj]} offen sc1')
a.post(7)
a.stamp(0, True)
a(f's_setprio {OPT["tp"]}')
a.expect(0, 7)
YB = 120
def yld(track=True):
    for n in range(2): a(f'buffer_load_dwordx4 {v(YB+4*n,4)}, {v(vL16)}, {srd(WS)}, {sYL} offen offset:{1024*n} sc1', track=track)
for s_ in range(28, 44):
    if s_ == 36:
        a.post(8); a.expect(1, 6, sleep=OPT['esl'])
    if s_ == 28 + OPT['yp']: yld()
    if s_ == 43: a.post(9); a.stamp(0, True); a('s_setprio 0')
    if s_ < 43: wr(s_)
for _ in range(OPT['ydelay']): a('s_sleep 4')
if OPT['yp'] > 15: yld()
top, done = a.label(), a.label()
a(f's_mov_b32 {sSPIN}, 0')
a.wait_all_vm()
a.place(top)
a(f'v_xor_b32 v20, {v(YB)}, {v(TB)}')
for k in range(1, 8): a(f'v_bitop3_b32 v20, v20, {v(YB+k)}, {v(TB+(k&3))} bitop3:0xf6')
a('v_and_b32 v20, 1, v20')
a('v_cmp_ne_u32 vcc, 0, v20')
a(f's_cbranch_vccz {done}')
a(f's_add_u32 {sSPIN}, {sSPIN}, 1'); a(f's_cmp_gt_u32 {sSPIN}, 0x20000'); a(f's_cbranch_scc1 {done}')
a(f's_sleep {OPT["psleep"]}')
yld(False)
a('s_waitcnt vmcnt(0)')
a(f's_branch {top}')
a.place(done)
a.stamp(0, True)
a('s_setprio 2')
a(f's_add_u32 s60, {sW2K}, {YT}'); a(f'v_add_u32 v20, s60, {v(vL16)}')
for k in range(8): a(f'v_and_b32 {v(YB+k)}, -2, {v(YB+k)}')
for n in range(2): a(f'ds_write_b128 v20, {v(YB+4*n,4)} offset:{1024*n}')
a.post(10)
a.wait_all_lg()
a.finish()

C = a = Prog('C', 4)
a.gap = 0
vCSR, vSTW, vXR, vWR, vYR, vCSW = 3, 11, 12, 20, 9, 8
vKA, vKB, vSHR, vUS = 212, 213, 214, 215
(vUA, vHA, vDU, vXW, vXRd, vYS, vE2W, vE2R, vSTa, vSTb, vSTS, vOTa, vOTb, vOTR, vOUT) = range(216, 231)
AR = 234
F = {k: 198 + i for i, k in enumerate(('l4', 'n', 'g', 'b', 'l1', 'l3', 'r', 'x', 'h', 't0', 't1', 't2'))}
def fx(s):
    for k, r in F.items(): s = s.replace('%' + k, f'v{r}')
    return s
def e(s): a(fx(s))
if OPT['prio']: a(f's_setprio {OPT["prio"]}')
a(f's_mov_b32 {sMASK}, 0xffff0000')
e('v_lshrrev_b32 %l4, 4, v1'); e('v_lshrrev_b32 %g, 5, v1'); e('v_and_b32 %b, 15, v1'); e('v_and_b32 %h, 1, %l4')
a(f's_lshl_b32 s60, {sW}, 1'); e('v_add_u32 %t0, s60, %g')
e('v_add_u32 %t1, 1, %b'); e('v_and_b32 %t1, 7, %t1'); e('v_xor_b32 %t1, %t1, %t0')
e('v_lshlrev_b32 %t2, 9, %b'); e('v_lshl_add_u32 %t2, %h, 3, %t2'); e(f'v_add_u32 %t2, {KB + 5*128}, %t2')
e(f'v_lshl_add_u32 {v(vKA)}, %t1, 4, %t2')
e('v_add_u32 %t1, 2, %b'); e('v_and_b32 %t1, 7, %t1'); e('v_xor_b32 %t1, %t1, %t0')
e(f'v_lshl_add_u32 {v(vKB)}, %t1, 4, %t2')
a(f's_lshl_b32 s60, {sW}, 7'); a(f's_add_u32 s60, s60, {SB}')
e(f'v_lshlrev_b32 {v(vSHR)}, 5, %l4'); a(f'v_add_u32 {v(vSHR)}, s60, {v(vSHR)}')
e(f'v_lshlrev_b32 {v(vUS)}, 14, %l4'); e(f'v_lshl_add_u32 {v(vUS)}, %b, 4, {v(vUS)}')
common2(a)
a('s_waitcnt lgkmcnt(0)')
a(f's_mov_b64 s[{OUT}:{OUT+1}], s[94:95]')
a(f's_mov_b64 s[{WS}:{WS+1}], s[98:99]')
a(f's_load_dword {sE}, s[{WS}:{WS+1}], {WS_E}')
spf = []
if OPT['spf']:
    a(f's_lshl_b32 s60, {sCP}, 13'); a(f's_add_u32 s60, s60, {sW2K}')
    a('s_add_u32 s84, s84, s60'); a('s_addc_u32 s85, s85, 0')
    a(f's_lshl_b32 s60, s2, 2'); a(f's_add_u32 s60, s60, {sW}'); a(f's_mul_i32 s60, s60, {11*128}'); a(f's_min_u32 s60, s60, {1409024 - 11*128}')
    a('s_add_u32 s92, s92, s60'); a('s_addc_u32 s93, s93, 0')
    for j in range(11): a(f's_load_dword s100, s[92:93], {128*j}')
    for j in range(32): a(f's_load_dword s100, s[84:85], {64*j}')
a(f's_lshl_b32 s60, {sDS}, 18'); a(f's_lshl_b32 s61, {st}, 8'); a('s_add_u32 s60, s60, s61')
a(f's_lshl_b32 s61, {sW}, 16'); a('s_add_u32 s60, s60, s61'); a(f's_add_u32 {sUS0}, s60, {WS_U}'); a(f's_add_u32 {sUS1}, {sUS0}, 8192')
a(f's_mov_b32 {sONES}, 0x3f803f80')
e('v_and_b32 %n, 31, v1'); e('v_and_b32 %l1, 1, v1'); e('v_and_b32 %l3, 3, v1'); e('v_bfe_u32 %r, v1, 2, 2')
e('v_bfe_u32 %t0, v1, 1, 3'); e('v_xor_b32 %t0, %t0, %g'); e('v_lshlrev_b32 %t0, 4, %t0')
e('v_lshl_add_u32 %x, %n, 7, %t0')
e(f'v_add_u32 %t0, {sW4K}, %x')
e('v_lshl_add_u32 %t1, %g, 3, %r'); e('v_mul_u32_u24 %t1, 192, %t1')
e('v_lshl_add_u32 %t1, %h, 5, %t1'); e('v_lshl_add_u32 %t1, %l3, 3, %t1')
for i in range(4):
    a(f's_add_u32 s60, {sW}, {i}'); a('s_and_b32 s60, s60, 3'); a('s_lshl_b32 s61, s60, 5')
    e(f'v_xor_b32 {v(vXR+i)}, s61, %t0')
    a('s_mul_i32 s61, s60, 3072')
    e(f'v_add_u32 {v(vWR+i)}, s61, %t1')
ACC, XF, WF, SU, SQ, CS = 32, 80, 112, 160, 162, 164
for r in range(SU, CS+3): a(f'v_mov_b32 {v(r)}, 0')
a('s_waitcnt lgkmcnt(0)')
a(f's_add_u32 {sTAG}, {sE}, 1'); a(f's_not_b32 {sNTAG}, {sTAG}')
a.post(0)
a.stamp()
a.reserve = OPT['res']
S = []
def s_(*xs):
    for x in xs: S.append(fx(x))
for i in range(4): s_(f'v_add_u32 {v(vXR+4+i)}, {2*SLOT}, {v(vXR+i)}', f'v_add_u32 {v(vWR+4+i)}, {2*SLOT}, {v(vWR+i)}')
s_(f'v_mov_b32 v252, {sTAG}', f'v_mov_b32 v253, {sNTAG}')
s_(f's_lshl_b32 s60, {sCP}, 7', f's_lshl_b32 s61, {sW}, 15', 's_add_u32 s60, s60, s61', f's_add_u32 s60, s60, {WS_FLAG}')
s_(f'v_lshlrev_b32 {v(vFL)}, 3, %b', f'v_add_u32 {v(vFL)}, s60, {v(vFL)}')
NS1 = len(S)
s_(f's_mov_b32 s{OUT+2}, 2097152', f's_mov_b32 s{OUT+3}, 0x20000', f's_mov_b32 {sSELLO}, 0x05040100')
s_(f's_and_b32 s61, {st}, 1', 's_lshl_b32 s61, s61, 1', f's_add_u32 s61, s61, {sTH}', 's_lshl_b32 s61, s61, 8', f's_add_u32 s61, s61, {STATS}')
s_('v_lshlrev_b32 %t0, 3, %n', f'v_add_u32 {v(vSTS)}, s61, %t0')
s_(f's_lshl_b32 s60, {sW}, 8', f's_add_u32 s60, s60, {STATS}', f'v_add_u32 {v(vSTW)}, s60, %t0')
s_(f'v_add_u32 {v(vCSR)}, {CSUM}, {v(vL16)}', f's_lshl_b32 s60, {sW}, 2', f'v_add_u32 {v(vCSW)}, s60, {v(vCSR)}')
s_(f's_lshl_b32 s60, {sT}, 2', f's_add_u32 s60, s60, {sW}', 's_mul_i32 s60, s60, 86', f's_lshl_b32 s61, {sP0}, 1', 's_add_u32 s60, s60, s61', 's_lshl_b32 s60, s60, 10')
s_(f's_add_u32 {sHS}, s60, {WS_H}', f's_add_u32 {sHS3}, {sHS}, 4096')
S.append([f's_cmp_lt_u32 {sM1}, 11', f's_cselect_b32 {sHS3}, {sHS3}, {OOB}', 's_cselect_b32 s85, 0xffff, 0'])
s_('s_mov_b32 s84, -1', 'v_lshlrev_b32 v10, 7, v1')
sSELF = 's[84:85]'
s_(f's_mul_i32 s60, {sKH}, {CVCH}', f's_add_u32 s60, s60, {CV+448-192}', f's_lshl_b32 s61, {sTH}, 8', 's_sub_u32 s60, s60, s61')
s_(f'v_mul_u32_u24 {v(vUA)}, {U1OFF}, %l1', 'v_lshrrev_b32 %t0, 1, %b', 'v_lshl_add_u32 %t0, %t0, 2, %l4')
s_(f'v_lshl_add_u32 {v(vUA)}, %t0, 4, {v(vUA)}', f'v_add_u32 {v(vUA)}, s60, {v(vUA)}')
s_('v_xor_b32 %t0, 1, %l1', f'v_mul_u32_u24 {v(vHA)}, {HBD}, %t0', f'v_lshl_add_u32 {v(vHA)}, %b, 2, {v(vHA)}')
s_('v_lshlrev_b32 %t0, 4, %l4', f'v_sub_u32 {v(vHA)}, {v(vHA)}, %t0')
s_(f's_mul_i32 s60, {sKH}, {HCH}', 's_add_u32 s61, s60, s61', f's_add_u32 s61, s61, {HBASE+64-12}', f'v_add_u32 {v(vHA)}, s61, {v(vHA)}')
s_(f's_lshl_b32 s60, {st}, 1', f's_add_u32 s60, s60, {sTH}', 's_mul_i32 s60, s60, 86', f's_mul_i32 s61, {sKH}, 43', 's_add_u32 s60, s60, s61', 's_lshl_b32 s60, s60, 10')
s_(f's_add_u32 {sHL}, s60, {WS_H}')
s_(f's_lshl_b32 s60, {sW}, 13', f's_add_u32 s60, s60, {CV}', f'v_add_u32 {v(vXW)}, s60, {v(vL16)}')
s_('v_lshl_add_u32 %t0, %g, 2, %r', 'v_lshlrev_b32 %t0, 7, %t0', 'v_bfe_u32 %t1, v1, 3, 1', 'v_lshl_add_u32 %t0, %t1, 6, %t0')
s_('v_lshl_add_u32 %t0, %h, 5, %t0', 'v_lshl_add_u32 %t0, %l1, 4, %t0', 'v_bfe_u32 %t1, v1, 1, 1', 'v_lshl_add_u32 %t0, %t1, 3, %t0')
s_(f's_lshl_b32 s60, {sKH}, 6', 'v_xor_b32 %t0, s60, %t0', f's_lshl_b32 s61, {sKH}, 11')
s_(f'v_add_u32 {v(AR)}, s61, %t0', f'v_xor_b32 {v(AR+1)}, 64, {v(AR)}')
for k in (1, 2): s_(f'v_add_u32 {v(AR+2*k)}, {61440*k}, {v(AR)}', f'v_add_u32 {v(AR+2*k+1)}, {61440*k}, {v(AR+1)}')
s_(f'v_lshlrev_b32 {v(vYR)}, 10, %g', 'v_bfe_u32 %t1, v1, 1, 4', f'v_lshl_add_u32 {v(vYR)}, %t1, 4, {v(vYR)}', f'v_lshl_add_u32 {v(vYR)}, %l1, 2, {v(vYR)}')
s_(f's_lshl_b32 s61, {sKH}, 12', f's_lshl_b32 {sO0}, {sTH}, 3', f's_add_u32 s61, s61, {sO0}', f's_add_u32 s61, s61, {YT}', f'v_add_u32 {v(vYR)}, s61, {v(vYR)}')
s_('v_xor_b32 %t0, s60, %x', f's_lshl_b32 s61, {sTH}, 12', f's_add_u32 s61, s61, {XST}', f'v_add_u32 {v(vSTa)}, s61, %t0', f'v_xor_b32 {v(vSTb)}, 32, {v(vSTa)}')
s_(f's_add_u32 s61, {sW4K}, {EX}', f'v_add_u32 {v(vE2W)}, s61, {v(vL16)}')
s_(f's_xor_b32 s61, {sW4K}, 8192', f's_add_u32 s61, s61, {EX}', f'v_add_u32 {v(vE2R)}, s61, {v(vL16)}')
s_(f's_add_u32 s61, {sW2K}, {OT}', 'v_bfe_u32 %t0, v1, 1, 2', 'v_xor_b32 %t0, %t0, %g', 'v_lshlrev_b32 %t0, 4, %t0')
s_('v_lshl_add_u32 %t0, %n, 6, %t0', f'v_add_u32 {v(vOTa)}, s61, %t0', f'v_xor_b32 {v(vOTb)}, 32, {v(vOTa)}')
s_('v_lshrrev_b32 %t1, 2, v1', 'v_bfe_u32 %t0, v1, 3, 2', 'v_xor_b32 %t0, %t0, %l3', 'v_lshlrev_b32 %t0, 4, %t0', 'v_lshl_add_u32 %t0, %t1, 6, %t0')
s_(f'v_add_u32 {v(vOTR)}, s61, %t0', 'v_lshlrev_b32 %t1, 10, %t1', f'v_lshl_add_u32 {v(vOUT)}, %l3, 4, %t1')
s_(f's_lshl_b32 {sO0}, {st}, 16', f's_lshl_b32 s61, {sDS}, 7', f's_add_u32 {sO0}, {sO0}, s61', f's_lshl_b32 s61, {sTH}, 15')
s_(f's_add_u32 {sO0}, {sO0}, s61', f's_add_u32 {sO0}, {sO0}, s60', f's_add_u32 {sO1}, {sO0}, 16384')

KR, VR, SR, PA = 168, 182, 190, 240
WP, KU, VU, TP = 32, 48, 76, 92
if OPT['fpre']:
    for x in S[:NS1]: a(x)
    S = S[NS1:]; NS1 = 0
    a(f'v_mov_b32 v252, {sNTAG}')
    for ph in (1, 2)[2-OPT['fpre']:]: a.flag_store(ph)
    a(f'v_mov_b32 v252, {sTAG}')
if OPT['early']:
    for x in S: a.do(x)
    S = []; NS1 = 0
if OPT['pc'] < 0:
    for x in S[:NS1]: a(x)
    S = S[NS1:]; NS1 = 0
    for jj in range(2): a(f'buffer_store_dwordx4 v[248:251], {v(vYS)}, {srd(WS)}, {(sYS0, sYS1)[jj]} offen sc1')
a.bar('kv')
a.stamp()
for p in range(2): a(f'ds_read_b128 {v(SR+4*p,4)}, {v(vSHR)} offset:{16*p}')
for r in range(7): a(f'ds_read_b64 {v(KR+2*r,2)}, {v(vKA if r < 3 else vKB)} offset:{128*r}')
for r in range(4): a(f'ds_read_b64 {v(VR+2*r,2)}, {v(vKB)} offset:{VB-KB+128*(r+3)}')
for x in S[:NS1]: a(x)
S = S[NS1:]
for c in range(4):
    p, e_ = c >> 1, c & 1
    for jj in range(2): a(lo(WP+8*p+4*jj+e_, SR+2*c+jj)); a(hi(WP+8*p+4*jj+2+e_, SR+2*c+jj))
for p in range(2):
    for r in range(7): a(lo(KU+4*r+2*p, KR+2*r+p)); a(hi(KU+4*r+2*p+1, KR+2*r+p))
    for r in range(4): a(lo(VU+4*r+2*p, VR+2*r+p)); a(hi(VU+4*r+2*p+1, VR+2*r+p))
    for i in range(4): a(f'v_pk_mul_f32 {v(TP+2*i,2)}, {v(KU+4*i+2*p,2)}, {v(WP+8*p+6,2)}')
    for j in (2, 1, 0):
        for i in range(4): a(f'v_pk_fma_f32 {v(TP+2*i,2)}, {v(KU+4*(i+3-j)+2*p,2)}, {v(WP+8*p+2*j,2)}, {v(TP+2*i,2)}')
    for i in range(4): a(f'v_pk_mul_f32 {v(TP+2*i,2)}, {v(TP+2*i,2)}, {v(VU+4*i+2*p,2)}')
    for i in range(4): a(f'v_cvt_pk_bf16_f32 {v(PA+4*p+i)}, {v(TP+2*i)}, {v(TP+2*i+1)}')
    ust = a(f'buffer_store_dwordx4 {v(PA+4*p,4)}, {v(vUS)}, {srd(WS)}, {(sUS0, sUS1)[p]} offen sc1')
if OPT['pc'] == 0:
    for jj in range(2): ust = a(f'buffer_store_dwordx4 v[248:251], {v(vYS)}, {srd(WS)}, {(sYS0, sYS1)[jj]} offen sc1')
ust_t = a.t

AX, BX, vM, vRS, vS, vC3 = 168, 180, 184, 185, 186, 188
stats = [
    f'v_add_f32 {v(SU)}, {v(SU)}, {v(SU+1)}', f'v_add_f32 {v(SQ)}, {v(SQ)}, {v(SQ+1)}',
    f'v_mov_b32 {v(SU+1)}, {v(SU)}', f'v_mov_b32 {v(SQ+1)}, {v(SQ)}',
    f'v_permlane32_swap_b32 {v(SU)}, {v(SU+1)}', f'v_permlane32_swap_b32 {v(SQ)}, {v(SQ+1)}',
    f'v_add_f32 {v(SU)}, {v(SU)}, {v(SU+1)}', f'v_add_f32 {v(SQ)}, {v(SQ)}, {v(SQ+1)}',
    f'v_mul_f32 {v(SU)}, 0x3b000000, {v(SU)}', f'v_mul_f32 {v(SQ)}, 0x3b000000, {v(SQ)}',
    f'v_fma_f32 {v(SQ)}, -{v(SU)}, {v(SU)}, {v(SQ)}', f'v_max_f32 {v(SQ)}, 0, {v(SQ)}',
    f'v_cvt_pk_bf16_f32 v190, {v(SU)}, {v(SQ)}', 'v_xor_b32 v191, 0x8000, v190',
    f'v_perm_b32 {v(BX)}, v191, v191, {sSELLO}', f'v_mov_b32 {v(BX+1)}, {v(BX)}', f'v_mov_b32 {v(BX+2)}, {v(BX)}', f'v_mov_b32 {v(BX+3)}, {v(BX)}',
    lo(vM, 190), hi(191, 190), 'v_add_f32 v191, 0x3727c5ac, v191',
    'v_cvt_pk_bf16_f32 v191, v191, v191', lo(191, 191), 'v_sqrt_f32 v191, v191',
    'v_cvt_pk_bf16_f32 v191, v191, v191', lo(vS, 191), f'v_rcp_f32 {v(vRS)}, {v(vS)}',
    f'v_mul_f32 {v(vC3)}, 0xbfb8aa3b, {v(vRS)}', f'ds_write_b64 {v(vSTW)}, {v(vM,2)}']
def rdx(c):
    st_ = 4 * ((c % 4) >> 1); off = (c & 1) * SLOT
    return [f'ds_read_b128 {v(XF+16*(c&1)+4*i,4)}, {v(vXR+st_+i)} offset:{off}' for i in range(4)]
def rdw(c, i):
    st_ = 4 * ((c % 4) >> 1); off = (c & 1) * SLOT
    return [f'ds_read_b64_tr_b16 {v(WF+12*i+4*ft+2*rd,2)}, {v(vWR+st_+i)} offset:{off+16384+rd*768+ft*64}' for ft in range(3) for rd in range(2)]
a.stamp()
a.bar('c0')
a.stamp(0, True)
for x in rdx(0) + rdw(0, 0) + rdw(0, 1): a(x)
a.fq = S
flag1 = False
for c in range(8):
    X = XF + 16*(c & 1)
    late = rdw(c, 2) + rdw(c, 3)
    if OPT['w1']: a.wait_lg(a.pend[('v', X+12)][1])
    for i in range(4):
        if OPT['w1'] and i == 2: a.wait_lg(a.pend[('v', WF+10)][1])
        for d in range(4 if OPT['nodot'] < 2 else 0):
            a(f'v_dot2c_f32_bf16 {v(SU+(d&1))}, {sONES}, {v(X+4*i+d)}'); a(f'v_dot2c_f32_bf16 {v(SQ+(d&1))}, {v(X+4*i+d)}, {v(X+4*i+d)}')
    ncs = OPT['csv'] if 1 <= c < 7 else 0
    if ncs:
        cq = []
        for d in range(4 - ncs, 4):
            for ft in range(3): cq += [lo(240+2*ft, WF+4*ft+d), hi(241+2*ft, WF+4*ft+d)]
            for ft in range(3): cq += [f'v_add_f32 v{246+ft}, v{246+ft}, v{240+2*ft}', f'v_add_f32 v{249+ft}, v{249+ft}, v{241+2*ft}']
        a.fq = cq + a.fq; nrest = len(a.fq) - len(cq)
    for d in range(4 - ncs):
        for ft in range(3): a(f'v_dot2c_f32_bf16 {v(CS+ft)}, {sONES}, {v(WF+4*ft+d)}')
    if c == 7:
        a.drain_f()
        if OPT['csv']:
            for ft in range(3): a.fq += [f'v_add_f32 v{246+ft}, v{246+ft}, v{249+ft}']
            for ft in range(3): a.fq += [f'v_add_f32 {v(CS+ft)}, {v(CS+ft)}, v{246+ft}']
        for ft in range(3): a.fq += [hi(192+ft, CS+ft), f'v_sub_f32 v{195+ft}, {v(CS+ft)}, v{192+ft}']
        for ft in range(3): a.fq += [f'v_cvt_pk_bf16_f32 v{192+ft}, v{192+ft}, v{195+ft}', f'ds_write_b32 {v(vCSW)}, v{192+ft} offset:{1024*ft}']
        a.fq += stats
    def mm(i, ft):
        cin = '0' if (c == 0 and i == 0) else v(ACC+16*ft, 16)
        return f'v_mfma_f32_32x32x16_bf16 {v(ACC+16*ft,16)}, {v(WF+12*i+4*ft,4)}, {v(X+4*i,4)}, {cin}'
    for i in range(3):
        for ft in range(3):
            a(mm(i, ft))
            for x in late[:3]: a(x)
            late = late[3:]
            if 4 <= c < 7 and (i, ft) == (2, 0): a.peek(0)
            if c == 7 and (i, ft) == (2, 0):
                a.drain_f(len(a.fq) - len(stats))
                a.post(1)
    if ncs: a.drain_f(len(a.fq) - nrest)
    if c == 0 and OPT['csv']:
        for q in range(6): a(f'v_mov_b32 v{246+q}, 0')
    if not flag1 and a.t - ust_t > OPT['f1d']:
        a.wait_vm(ust); a.flag_store(1); flag1 = True
    if c < 4: a.bar(f'c{c+1}')
    elif c < 7: a.expect(0, c - 3, True)
    a.stamp(1)
    nxt_ = rdx(c+1) + rdw(c+1, 0) + rdw(c+1, 1) if c < 7 else []
    for ft in range(3):
        a(mm(3, ft))
        if c == 7 and ft == 0: a.peek(1)
        if c == 7 and ft == 1:
            a.expect(1, 1, True)
            nxt_ = [f'ds_read_b128 {v(AX+4*q,4)}, {v(vCSR)} offset:{1024*q}' for q in range(3)]
        for x in nxt_[:6]: a(x)
        nxt_ = nxt_[6:]
a.drain_f()
for ft in range(3):
    a(f'v_mfma_f32_32x32x16_bf16 {v(ACC+16*ft,16)}, {v(AX+4*ft,4)}, {v(BX,4)}, {v(ACC+16*ft,16)}')
a.stamp(0, True); a.stamp(4)

CA, DU, DR = 160, 192, 208
def FA(set_, mu): return (80 if set_ == 0 else 32) + 4*mu
def FB(set_, nu): return 112 + 4*nu if set_ == 0 else (64 + 4*nu if nu < 4 else 144 + 4*(nu-4))
def rdA(rp, mu): return f'ds_read_b128 {v(FA(rp&1,mu),4)}, {v(vUA)} offset:{512*mu - 64*rp + 192}'
def rdB(rp, nu): return [f'ds_read_b64 {v(FB(rp&1,nu)+2*h,2)}, {v(vHA)} offset:{512*nu + 64*rp + 8*h}' for h in range(2)]
def reads(rp):
    r = rdB(rp, 0) + [rdA(rp, mu) for mu in range(8)]
    for nu in range(1, 8): r += rdB(rp, nu)
    return r
TS, HO = 144, 168
first = reads(0)
for fr in range(6):
    base = ACC + 8*fr; t = TS + 8*(fr & 1); o = HO + 4*(fr & 1)
    if fr == OPT['ubar']: a.expect(0, 4, True)
    def side(n):
        if fr >= OPT['ubar']:
            for x in first[:n]: a(x)
            del first[:n]
    for p in range(4): a(f'v_pk_mul_f32 {v(t+2*p,2)}, {v(base+2*p,2)}, {v(vC3,2)} op_sel_hi:[1,0]')
    side(6)
    for q in range(8): a(f'v_exp_f32 {v(t+q)}, {v(t+q)}')
    side(6)
    for p in range(4): a(f'v_pk_fma_f32 {v(t+2*p,2)}, {v(t+2*p,2)}, {v(vS,2)}, {v(vS,2)} op_sel_hi:[1,0,0]')
    if fr == OPT['ubar'] - 1: a.peek(0)
    for q in range(8): a(f'v_rcp_f32 {v(t+q)}, {v(t+q)}')
    for p in range(4): a(f'v_pk_mul_f32 {v(t+2*p,2)}, {v(t+2*p,2)}, {v(base+2*p,2)}')
    for p in range(4): a(f'v_cvt_pk_bf16_f32 {v(o+p)}, {v(t+2*p)}, {v(t+2*p+1)}')
    so, im = (sHS, fr*1024) if fr < 4 else (sHS3, (fr-4)*1024)
    a.stamp(4)
    hst = a(f'buffer_store_dwordx4 {v(o,4)}, {v(vL16)}, {srd(WS)}, {so} offen offset:{im} sc1')
    a.stamp(4)
a.stamp(0, True)
if OPT['ubar'] == 6:
    a.expect(0, 4, True)
    for x in first[:12]: a(x)
    del first[:12]

G2A, XR, XS, YR, XU, DM, YU = 32, 32, 152, 208, 160, 176, 192
AFD = OPT['afd']
AFB = [64, 72, 144, 12, 20][:AFD+1]
RING = list(range(80, 144, 4)) + [240, 244, 248] + [24, 20, 16, 12][:2*(4-AFD)]
NR = len(RING)
def hreg(s): return RING[s % NR]
def rd2(s):
    o = w2slot(s); k = 2 * (o // 61440); o -= 30720 * k
    return [f'ds_read_b64_tr_b16 {v(AFB[s%(AFD+1)]+4*dt+2*rd,2)}, {v(AR+k+dt)} offset:{o + rd*1024}' for dt in (1, 0) for rd in range(2)]
hops = {}
def hld(s):
    def f():
        if OPT['nohl']: return
        if s % 4 == 0: a(f's_add_u32 {sA}, {sHL}, {0 if OPT["hhot"] else s*1024}')
        a(f'buffer_load_dwordx4 {v(hreg(s),4)}, {v(vL16)}, {srd(WS)}, {sA} offen offset:{(s%4)*1024}' + ['', ' sc1', ' nt'][OPT['hfl']])
    hops[s] = f
    return f
def hgate(peeked):
    a.stamp(); a.expect(0, 5, peeked); a.stamp()
    for s in range(OPT['hburst']):
        if s == OPT['hburst'] - 2 and OPT['gate'] == 1: a.peek(0)
        a.do(hld(s))
    a.gap = OPT['hgap']
    a.vq = [hld(s) for s in range(OPT['hburst'], NR)]
cnt = 0
for rp in range(4):
    rd = (first if rp == 0 else []) + (reads(rp + 1) if rp < 3 else [])
    order = [(nu, mu) for nu in range(8) for mu in range(8 - nu)]
    if rp == 3: order = [(nu, j - nu) for j in range(8) for nu in range(j + 1)]
    wq = []
    for idx, (nu, mu) in enumerate(order):
        j = nu + mu
        if rp == 2 and idx == 27:
            assert not rd
            a.post(3)
        if rp == 2 and idx == 33: a.peek(1)
        if rp == 3 and idx == 3: a.expect(1, 3, True)
        if rp == 3 and OPT['gate'] == 0:
            if idx == max(OPT['gidx'] - 5, 3): a.peek(0)
            if idx == max(OPT['gidx'], 6): hgate(True)
        if cnt == OPT['sig2']:
            a.stamp(); a.wait_vm(hst); a.stamp(); a.flag_store(2)
            if OPT['selft']:
                a.do([f's_mov_b64 exec, {sSELF}', f'buffer_load_dword v254, v10, {srd(WS)}, {sHS} offen sc1', 's_mov_b64 exec, -1'])
            a.post(2, False)
        cin = '0' if (rp == 0 and nu == 0) else v(CA+4*j, 4)
        a(f'v_mfma_f32_16x16x32_bf16 {v(CA+4*j,4)}, {v(FA(rp&1,mu),4)}, {v(FB(rp&1,nu),4)}, {cin}')
        cnt += 1
        for _ in range(2 if (rp == 0 and cnt <= 8) else 1):
            if rd: a(rd.pop(0))
        if rp == 3:
            if mu == 0: wq.append((idx + 6, j))
            if idx >= 7 and idx % 4 == 3 and wq and wq[0][0] <= idx:
                jj_ = wq.pop(0)[1]; a(f'ds_write_b128 {v(vXW)}, {v(CA+4*jj_,4)} offset:{1024*jj_}')
    assert not rd
a.drain_f()
a.stamp()
for _, j in wq: a(f'ds_write_b128 {v(vXW)}, {v(CA+4*j,4)} offset:{1024*j}')
if OPT['gate'] == 1: a.peek(0)
a.post(4)
a.stamp(0, True)
if OPT['gate'] == 1: hgate(True)
a.stamp(5); a.expect(0, 6, OPT['gate'] == 1); a.stamp(5)
for q in range(AFD):
    for x in rd2(q): a(x)

pre = []
for k in range(8): pre += [lo(XU+2*k, XS+k), hi(XU+2*k+1, XS+k)]
for k in range(16): pre.append(f'v_sub_f32 {v(DM+k)}, {v(XU+k)}, v232')
for k in range(16): pre.append(f'v_mul_f32 {v(DM+k)}, {v(DM+k)}, v233')
post_ = []
for k in range(8): post_ += [lo(YU+2*k, YR+k), hi(YU+2*k+1, YR+k)]
for k in range(16): post_.append(f'v_fmac_f32 {v(XU+k)}, {v(DM+k)}, {v(YU+k)}')
yreads = [f'ds_read_b32 {v(YR+4*grp+q)}, {v(vYR)} offset:{(8*grp+q)*256}' for grp in range(2) for q in range(4)]
def g2mm(s, dt):
    cin = '0' if s == 0 else v(G2A+16*dt, 16)
    return f'v_mfma_f32_32x32x16_bf16 {v(G2A+16*dt,16)}, {v(AFB[s%(AFD+1)]+4*dt,4)}, {v(hreg(s),4)}, {cin}'
assert OPT['lastk'] <= AFD
for s in range(43):
    if s > 0 and s + NR - 1 < 43: a.vq.append(hld(s + NR - 1))
    if s == 10: a.post(6, False); a.stamp()
    if s == 20: a.post(8, False)
    if s == 28 - AFD: a.stamp(5); a.expect(0, 8, True); a.stamp(); a.stamp(5)
    side = rd2(s + AFD) if s + AFD < 43 else []
    if s == OPT['pres']: side += [f'ds_read_b128 {v(XS,4)}, {v(vSTa)}', f'ds_read_b128 {v(XS+4,4)}, {v(vSTb)}', f'ds_read_b64 v[232:233], {v(vSTS)}']
    if s == OPT['pres'] + 2: a.fq += pre
    if s == 28: a.expect(1, 8, True)
    if s == 36 - AFD: a.stamp(5); a.expect(0, 9, True); a.stamp(5)
    if s == OPT['ybar']:
        a.stamp(); a.stamp(5); a.expect(0, 10, True); a.stamp(); a.stamp(5)
        side += yreads
    if s == OPT['ybar'] + 2: a.fq += post_
    if hops[s] in a.vq: a.drain_v(hops[s])
    h = (len(side) + 1) // 2
    for dt in (1, 0):
        if dt == 0 and s >= 43 - OPT['lastk']: continue
        if OPT['onew'] and dt == 1:
            a.service(True)
            if ('v', hreg(s)) in a.pend: a.wait_vm(a.pend[('v', hreg(s))][1])
            a.wait_lg(a.pend[('v', AFB[s%(AFD+1)]+2)][1])
        a(g2mm(s, dt))
        for x in side[:h]: a(x)
        side = side[h:]
    for x in side: a(x)
    if s + 2 in (28 - AFD, 36 - AFD, OPT['ybar']): a.peek(0)
    if s == 26: a.peek(1)
wr_ = [f'ds_write_b128 {v(vE2W)}, {v(G2A+16+4*k,4)} offset:{1024*k}' for k in range(4)]
for s in range(43 - OPT['lastk'], 43):
    a(g2mm(s, 0))
    if s > 43 - OPT['lastk']: a(wr_.pop(0))
for x in wr_: a(x)
a.stamp(0, True); a.stamp(5)
if not OPT['fbar']: a.post(9)
a.drain_f()
for k in range(8): a(f'v_pk_add_f32 {v(XU+2*k,2)}, {v(XU+2*k,2)}, {v(G2A+2*k,2)}')
if OPT['fbar']:
    a.wait_all_lg(); a('s_barrier')
else: a.expect(1, 9)
for k in range(4): a(f'ds_read_b128 {v(64+4*k,4)}, {v(vE2R)} offset:{1024*k}')
for h in range(2):
    for k in range(4*h, 4*h+4): a(f'v_pk_add_f32 {v(XU+2*k,2)}, {v(XU+2*k,2)}, {v(64+2*k,2)}')
    for k in range(4*h, 4*h+4): a(f'v_cvt_pk_bf16_f32 {v(96+k)}, {v(XU+2*k)}, {v(XU+2*k+1)}')
    a(f'ds_write_b128 {v((vOTa, vOTb)[h])}, {v(96+4*h,4)}')
a.wait_all_lg()
a(f'ds_read_b128 v[104:107], {v(vOTR)}'); a(f'ds_read_b128 v[108:111], {v(vOTR)} offset:1024')
a(f'buffer_store_dwordx4 v[104:107], {v(vOUT)}, {srd(OUT)}, {sO0} offen{OSC}')
a(f'buffer_store_dwordx4 v[108:111], {v(vOUT)}, {srd(OUT)}, {sO1} offen{OSC}')
a.stamp()
print('estimated compute cycles', a.est, file=sys.stderr)
a.finish()
assert L.bars == C.bars, (L.bars, C.bars)

lines = P.lines + L1lines + ['L_compute:'] + C.lines + L.lines + ['L_end:', '    s_endpgm']
if OPT['skel']:
    drop = ('v_mfma', 'v_dot', 'v_pk_', 'v_exp', 'v_rcp', 'ds_read_b64', 'v_fmac', 'v_mul_f32', 'v_cvt_pk', 'ds_write_b128', 'v_perm_b32', 'v_add_f32', 'v_sub_f32')
    lines = [l for l in lines if not l.strip().startswith(drop)]
hdr = open('parallel_sum__ssm_conv_h3__dense_activation_silu__prompt.s.ref').read().split('\n')
hdr = [l for l in hdr if l.startswith(';') and '@launch' not in l]
out = '\n'.join(hdr) + f'\n; @launch grid=(256,1,1) block=(512,1,1) lds={LDS_SIZE}\n'
out += f'''.amdgcn_target "amdgcn-amd-amdhsa--gfx950"
.text
.globl {NAME}
.p2align 8
.type {NAME},@function
{NAME}:
''' + '\n'.join(lines) + f'''
.section .rodata,"a"
.p2align 6
.amdhsa_kernel {NAME}
  .amdhsa_next_free_vgpr 256
  .amdhsa_next_free_sgpr 102
  .amdhsa_accum_offset 256
  .amdhsa_group_segment_fixed_size 0
  .amdhsa_kernarg_size 96
  .amdhsa_user_sgpr_count 2
  .amdhsa_user_sgpr_kernarg_segment_ptr 1
  .amdhsa_system_sgpr_workgroup_id_x 1
.end_amdhsa_kernel
'''
open(sys.argv[1], 'w').write(out)
print(dbg, file=sys.stderr)
print('lines', len(lines), 'stamps L/C', L.nstamp, C.nstamp, file=sys.stderr)
```

```python
import sys
from emit import Asm

NAME = "parallel_sum__ssm_conv_h3__dense_activation_silu__prompt_kernel"
OPT = dict(stamps=0, sg=0, probe=-2, base=60000, who=1, skel=0,
           map=0, rot=0, prio=1, look=10, lookkv=7, cap=8, hat=8, t2at=-2, t3at=-2, upat=8, ulat=16, ubat=24,
           pwat=34, s2at=42, psleep=2, pdelay=0, f1d=1500, ubar=5, sig2=50, sig3=2, hburst=7, hgap=46,
           g2at=24, ybar=37, osc=1, ht=0, ydelay=0, lprio=0, t2mode=0, spf=0, sw2=0, hp=1, dsx=4, ntkv=1, ntx=0, nth=0, na=43, wper=2, gate=1, afd=4, nx=0, esl=4, nodma=0, nohl=0, notail=0, nodot=0, nosync=0, kvfirst=1, yk=3, yp=12, yc=4, lspf=0, t1=1, pc=9, res=4, lastk=4, fbar=1, fpre=1, tp=0, duat=20, cpf=0, th=0, w1=1, csv=0, early=0, cap1=10, pair=0, s2skip=0, cap3=6, pres=2, onew=1, w64=0, wsl=0, yprio=2, jit=0, wc=20, gidx=0, hhot=0, hfl=1, wm=14, wk=10, bg=0, bgfrom=2, selft=0, tw=1, cap2=6)
for x in sys.argv[2:]:
    k, v = x.split('='); assert k in OPT, k; OPT[k] = int(v)

WS_E, WS_FLAG, WS_STAMP, WS_U, WS_Y, WS_H, WS_SIZE = 0, 0x80000, 0x40000, 0x100000, 0x300000, 0x500000, 0x1000000
FPH = 0x20000
OOB = 0x7f000000
SLOT = 28672
CV = 114688; CVCH = 9216; U1OFF = 4640; HBASE = CV + 18432; HCH = 8448; HBD = 4228
KB, VB, SB = CV, CV + 8192, CV + 9216 + 8192
XST = 150016; STATS = 158208; CSUM = 159232; PW = CSUM + 3072
LDS_SIZE = 163840
def w2slot(s): return (s if s < 36 else s - 36) * 4096
YT, EX, OT = 8*4096, 12*4096, 10*4096
Q, K, V, SH, HK, W1, W2, OUT, WS = 4, 8, 12, 16, 20, 24, 28, 32, 36
def srd(r): return f's[{r}:{r+3}]'
sD, sE, sT, sM1, st, sDS, sCP, sW, sWV, sTAG, sNTAG, sP0 = [f's{i}' for i in range(42, 54)]
sXO, sW1O, sHS, sHS3, sW2O, sHL = [f's{i}' for i in range(54, 60)]
sM0W, sW4K, sW3K, sSELLO, sSELHI, sONES = [f's{i}' for i in range(62, 68)]
sPAIR = 's[68:69]'
sSPIN, sTH, sKH, sMASK, sW2K, sI = [f's{i}' for i in range(70, 76)]
sHM0, sHSO, sD0, sD1, sA, sB, sG, sUS0 = [f's{i}' for i in range(76, 84)]
sUS1 = 's86'
sUL, sYS0, sYS1, sYL, sO0, sO1, sROT, sC = [f's{i}' for i in range(88, 96)]
sSTASH = 's101'
def v(n, c=1): return f'v{n}' if c == 1 else f'v[{n}:{n+c-1}]'
OSC = ' sc1' if OPT['osc'] else ''
vL16, vSTAMP, vFL, vPWB, vPWM, vPWT = 2, 31, 28, 29, 30, 255

class Prog(Asm):
    def __init__(self, name, pwr):
        super().__init__(); self.name = name; self.bars = []; self.nstamp = 0; self.pwr = pwr
    def label(self):
        self.nlabel += 1; return f'{self.name}{self.nlabel}'
    def bar(self, tag, lg=True):
        self.lock()
        if lg: self.wait_all_lg()
        self('s_barrier'); self.bars.append(tag)
        self.unlock()
    def post(self, n, lg=True):
        self.lock()
        self(f'v_mov_b32 {v(vPWT)}, {n}')
        if lg: self.wait_all_lg()
        self('s_mov_b64 exec, 1')
        self(f'ds_write_b32 {v(vPWM)}, {v(vPWT)}')
        self('s_mov_b64 exec, -1')
        self.unlock()
    def peek(self, grp):
        self(f'ds_read_b128 {v(self.pwr,4)}, {v(vPWB)} offset:{16*grp}')
    def expect(self, grp, n, peeked=False, sleep=0):
        r = self.pwr
        self.lock()
        if not peeked: self.peek(grp)
        top, done = self.label(), self.label()
        self.wait_lg(self.pend[('v', r)][1])
        self.place(top)
        self(f'v_min3_u32 {v(r)}, {v(r)}, {v(r+1)}, {v(r+2)}')
        self(f'v_min_u32 {v(r)}, {v(r)}, {v(r+3)}')
        self(f'v_cmp_gt_u32 vcc, {n}, {v(r)}')
        self(f's_cbranch_vccz {done}')
        t0 = self.t
        if sleep: self(f's_sleep {sleep}')
        self(f'ds_read_b128 {v(r,4)}, {v(vPWB)} offset:{16*grp}', track=False)
        self('s_waitcnt lgkmcnt(0)')
        self(f's_branch {top}')
        self.place(done)
        self.t = t0 + (0 if peeked else 100)
        self.unlock()
    def stamp(self, g=0, coarse=False):
        if coarse and OPT['sg'] == 3: g = 3
        if OPT['jit'] and self.name != 'P':
            self.njit = getattr(self, 'njit', 0) + 1
            self.lock()
            l = self.label()
            self(f's_lshl_b32 s96, s2, 3'); self(f's_add_u32 s96, s96, {sWV}'); self(f's_add_u32 s96, s96, {sTAG}')
            self(f's_mul_i32 s96, s96, {(2654435761 * (2 * self.njit + 1 + OPT["jit"] * 64)) & 0xffffffff}'); self('s_lshr_b32 s96, s96, 28')
            self('s_cmp_gt_u32 s96, 2'); self(f's_cbranch_scc1 {l}')
            self(f's_sleep {(20, 60, 127)[self.njit % 3]}')
            self.place(l)
            self.unlock()
        if g == 0: self.est = getattr(self, 'est', []) + [int(self.t)]
        if not OPT['stamps'] or g != OPT['sg']: return
        k = self.nstamp; self.nstamp += 1
        self.lock(); self.wait_all_lg()
        self('s_memtime s[96:97]'); self('s_waitcnt lgkmcnt(0)')
        self('s_sub_u32 s96, s96, s3')
        self(f'v_writelane_b32 {v(vSTAMP)}, s96, {k}')
        self.unlock()
    def dma(self, vaddr, rs, soff, m0expr, extra='', track=True):
        self(m0expr)
        return self(f'buffer_load_dwordx4 {v(vaddr)}, {srd(rs)}, {soff} offen{extra} lds', track=track)
    def flag_store(self, phase):
        self.lock()
        self(f's_mov_b32 {sG}, {(phase-1)*FPH}')
        self('s_mov_b64 exec, 0xffff')
        self(f'buffer_store_dwordx2 v[252:253], {v(vFL)}, {srd(WS)}, {sG} offen sc1')
        self('s_mov_b64 exec, -1')
        self.unlock()
    def poll_issue(self, vaddr, dst, mask):
        self(f's_mov_b64 exec, {mask}')
        r = self(f'buffer_load_dwordx2 {v(dst,2)}, {v(vaddr)}, {srd(WS)}, 0 offen sc1')
        self('s_mov_b64 exec, -1')
        return r
    def poll_check(self, vaddr, dst, mask):
        self.lock()
        top, done = self.label(), self.label()
        self(f's_mov_b32 {sSPIN}, 0')
        self(f's_mov_b64 exec, {mask}')
        self.wait_vm(self.pend[('v', dst)][1])
        self.place(top)
        self(f'v_cmp_eq_u32 vcc, {sTAG}, {v(dst)}')
        self(f'v_cmp_eq_u32 {sPAIR}, {sNTAG}, {v(dst+1)}')
        self(f's_and_b64 vcc, vcc, {sPAIR}')
        self('s_cmp_eq_u64 vcc, exec')
        self(f's_cbranch_scc1 {done}')
        self(f's_add_u32 {sSPIN}, {sSPIN}, 1')
        self(f's_cmp_gt_u32 {sSPIN}, {0 if OPT["nosync"] else 0x20000}')
        self(f's_cbranch_scc1 {done}')
        self(f's_sleep {OPT["psleep"]}')
        self(f'buffer_load_dwordx2 {v(dst,2)}, {v(vaddr)}, {srd(WS)}, 0 offen sc1', track=False)
        self('s_waitcnt vmcnt(0)')
        self(f's_branch {top}')
        self.place(done)
        self('s_mov_b64 exec, -1')
        self.unlock()
    def finish(self):
        a = self
        if OPT['stamps']:
            a('s_waitcnt vmcnt(0)')
            a.stamp(OPT['sg'])
            if OPT['probe'] > -2 and (a.name == 'C') == (OPT['who'] == 1):
                a(f's_mov_b32 s60, {OPT["base"]}')
                if OPT['probe'] == 99:
                    a('s_load_dwordx2 s[84:85], s[0:1], 80'); a('s_mov_b32 s86, 256'); a('s_mov_b32 s87, 0x20000'); a('s_waitcnt lgkmcnt(0)')
                    a(f'v_readlane_b32 s61, {v(vSTAMP)}, 31'); a('v_mov_b32 v128, 0'); a('v_mov_b32 v129, s61'); a('v_not_b32 v130, v129')
                    lz = a.label()
                    a(f's_cmp_lg_u32 {sW}, 0'); a(f's_cbranch_scc1 {lz}')
                    a('s_mov_b64 exec, 1')
                    a('buffer_atomic_umax v129, v128, s[84:87], 0 offen sc1'); a('buffer_atomic_umax v130, v128, s[84:87], 0 offen offset:128 sc1')
                    a('s_mov_b64 exec, -1')
                    a.place(lz)
                    l = a.label(); a.place(l)
                    a('s_memtime s[96:97]'); a('s_waitcnt lgkmcnt(0)'); a('s_sub_u32 s96, s96, s3'); a('s_cmp_lt_u32 s96, 70000'); a(f's_cbranch_scc1 {l}')
                    a('buffer_load_dword v131, v128, s[84:87], 0 offen sc1'); a('buffer_load_dword v132, v128, s[84:87], 0 offen offset:128 sc1')
                    a('v_not_b32 v132, v132'); a('v_sub_u32 v131, v131, v132'); a('v_readfirstlane_b32 s61, v131'); a('s_mul_i32 s61, s61, 95'); a('s_add_u32 s60, s60, s61')
                elif OPT['probe'] >= 0:
                    a(f'v_readlane_b32 s61, {v(vSTAMP)}, {OPT["probe"]}'); a('s_add_u32 s60, s60, s61')
                l = a.label(); a.place(l)
                a('s_memtime s[96:97]'); a('s_waitcnt lgkmcnt(0)'); a('s_sub_u32 s96, s96, s3'); a('s_cmp_lt_u32 s96, s60'); a(f's_cbranch_scc1 {l}')
            a('s_lshl_b32 s60, s2, 3'); a(f's_add_u32 s60, s60, {sWV}'); a('s_lshl_b32 s60, s60, 7'); a(f's_add_u32 s60, s60, {WS_STAMP}')
            a('v_lshlrev_b32 v128, 2, v1')
            a('s_mov_b64 exec, 0xffffffff')
            a(f'buffer_store_dword {v(vSTAMP)}, v128, {srd(WS)}, s60 offen')
        a('s_endpgm')

def lo(d, s): return f'v_lshlrev_b32 {v(d)}, 16, {v(s)}'
def hi(d, s): return f'v_and_b32 {v(d)}, {sMASK}, {v(s)}'

P = a = Prog('P', 0)
a('s_cmp_ge_u32 s2, 256')
a('s_cbranch_scc1 L_end')
if OPT['stamps']:
    a('s_memtime s[68:69]'); a('s_memrealtime s[70:71]'); a('s_waitcnt lgkmcnt(0)'); a('s_mov_b32 s3, s68')
    a(f'v_mov_b32 {v(vSTAMP)}, 0'); a(f'v_writelane_b32 {v(vSTAMP)}, s70, 31')
a('s_load_dwordx16 s[76:91], s[0:1], 0')
a('s_load_dwordx8 s[92:99], s[0:1], 64')
a('v_lshrrev_b32 v3, 6, v0')
a('v_and_b32 v1, 63, v0')
a('s_getpc_b64 s[60:61]')
a.place('L_pc')
a(f'v_readfirstlane_b32 {sWV}, v3')
a(f's_lshr_b32 {sI}, s2, 3')
a('v_lshlrev_b32 v39, 7, v1')
if OPT['cpf']:
    a(f's_lshl_b32 s62, {sWV}, 5'); a(f's_add_u32 s62, s62, {sI}'); a('s_mul_i32 s63, s62, 683'); a('s_lshr_b32 s63, s63, 16')
    a('s_mul_i32 s63, s63, 96'); a('s_sub_u32 s62, s62, s63'); a('s_lshl_b32 s62, s62, 8')
    a('v_add_u32 v3, s62, v39')
    a('v_min_u32 v3, L_end-L_pc, v3')
    a('s_mov_b64 exec, 3')
else:
    a(f's_and_b32 s62, {sI}, 7'); a('s_lshl_b32 s62, s62, 12')
    a(f's_cmp_ge_u32 {sWV}, 4'); a('s_cselect_b32 s62, s62, 0')
    a(f's_lshl_b32 s63, {sWV}, 10'); a('s_add_u32 s62, s62, s63')
    a('v_add_u32 v3, s62, v39')
    a('v_min_u32 v3, L_end-L_pc, v3')
    a('s_mov_b64 exec, 0xff')
a('global_load_dword v254, v3, s[60:61]', track=False)
a('s_mov_b64 exec, -1')
a(f's_and_b32 {sW}, {sWV}, 3')
a('s_and_b32 s60, s2, 7')
lg = OPT['map']
a(f's_lshr_b32 {sT}, s60, {lg}'); a(f's_lshl_b32 {sT}, {sT}, {1+lg}')
a(f's_and_b32 s61, {sI}, {(2<<lg)-1}'); a(f's_add_u32 {sT}, {sT}, s61')
a(f's_and_b32 {sM1}, s60, {(1<<lg)-1}'); a(f's_lshl_b32 {sM1}, {sM1}, {4-lg}')
a(f's_lshr_b32 s61, {sI}, {1+lg}'); a(f's_add_u32 {sM1}, {sM1}, s61')
a(f's_and_b32 s61, {sM1}, 1')
a(f's_lshl_b32 {st}, {sT}, 1')
a(f's_add_u32 {st}, {st}, s61')
a(f's_lshr_b32 {sDS}, {sM1}, 1')
if OPT['dsx']: a(f's_xor_b32 {sDS}, {sDS}, {OPT["dsx"]}')
a(f's_lshl_b32 {sW2K}, {sW}, 11')
a(f'v_lshlrev_b32 {v(vL16)}, 4, v1')
a(f's_cmp_ge_u32 {sWV}, 4')
a('s_cbranch_scc1 L_compute')
def common2(a):
    a(f's_lshl_b32 {sCP}, {sDS}, 5'); a(f's_add_u32 {sCP}, {sCP}, {st}')
    a(f's_lshl_b32 {sW4K}, {sW}, 12'); a(f's_lshl_b32 {sM0W}, {sW}, 10')
    a(f's_and_b32 {sTH}, {sW}, 1'); a(f's_lshr_b32 {sKH}, {sW}, 1')
    a(f's_mul_i32 {sP0}, {sM1}, 3'); a(f's_lshl_b32 s60, {sM1}, 1'); a('s_add_u32 s60, s60, 11'); a(f's_min_u32 {sP0}, {sP0}, s60')
    a(f's_mov_b32 s{WS+2}, {WS_SIZE}'); a(f's_mov_b32 s{WS+3}, 0x20000')
    a(f'v_mov_b32 {v(vPWB)}, {PW}'); a(f's_lshl_b32 s60, {sWV}, 2'); a(f'v_add_u32 {v(vPWM)}, s60, {v(vPWB)}')

L = a = Prog('L', 56)
vXA, vWA, vKD, vHALO, vT43, vW2A, vW2W, vP2, vP3 = 4, 8, 12, 14, 15, 16, 17, 18, 19
vP1, vUL, vULp, vUW, vZU, vZH, vW2W2, vW2W3, UR, PO, WT = 22, 23, 24, 25, 26, 27, 11, 3, 236, 40, 64
vXRd, vYS, vDU, XRL, DUL, DRL, TB = 246, 247, 248, 64, 96, 112, 128
if OPT['lprio']: a(f's_setprio {OPT["lprio"]}')
for r, n in ((W1, 1409024), (Q, 2097152), (K, 2097152), (V, 2097152), (SH, 4096)):
    a(f's_mov_b32 s{r+2}, {n}'); a(f's_mov_b32 s{r+3}, 0x20000')
a(f'v_min_u32 {v(vT43)}, {42*128}, v39')
a('v_lshrrev_b32 v33, 3, v1'); a('v_and_b32 v34, 7, v1'); a('v_lshlrev_b32 v33, 10, v33')
a(f's_lshl_b32 s60, {st}, 16'); a(f's_lshl_b32 s61, {sW}, 14'); a('s_add_u32 s60, s60, s61')
a(f's_lshl_b32 s61, {sDS}, 7'); a(f's_add_u32 {sSTASH}, s60, s61')
a('v_lshrrev_b32 v35, 5, v1'); a('v_xor_b32 v35, v35, v34'); a('v_lshl_add_u32 v38, v35, 4, v33')
a(f's_lshl_b32 s60, {sW}, 6'); a('s_and_b32 s60, s60, 64'); a('s_xor_b32 s61, s60, 32')
a(f'v_xor_b32 {v(vKD)}, s61, v38')
a('s_xor_b32 s61, s60, 64')
a(f'v_xor_b32 {v(vKD+1)}, s61, v38'); a(f'v_add_u32 {v(vKD+1)}, 8192, {v(vKD+1)}')
a(f'v_add_u32 v38, {sSTASH}, v38'); a(f'v_subrev_u32 {v(vHALO)}, 8192, v38')
a(f's_lshl_b32 {sXO}, {sT}, 17')
a('s_waitcnt lgkmcnt(0)')
a(f's_mov_b64 s[{W1}:{W1+1}], s[90:91]')
a(f's_mov_b64 s[{Q}:{Q+1}], s[76:77]')
a(f's_mov_b64 s[{K}:{K+1}], s[78:79]')
a(f's_mov_b64 s[{V}:{V+1}], s[80:81]')
a(f's_mov_b64 s[{SH}:{SH+1}], s[82:83]')
seq = {}
def first_touch():
    l = [a.label() for _ in range(2)]
    a(f's_cmp_lg_u32 {sW}, 2'); a(f's_cbranch_scc1 {l[0]}')
    a(f's_mul_i32 s60, s2, {43*128}')
    a(f'buffer_load_dword v254, {v(vT43)}, {srd(W1)}, s60 offen', track=False); a(f's_branch {l[1]}')
    a.place(l[0])
    a(f's_lshl_b32 s61, {sM1}, 13'); a(f's_add_u32 s60, {sXO}, s61')
    a(f'buffer_load_dword v254, v39, {srd(Q)}, s60 offen' + ' nt' * OPT['ntx'], track=False)
    a.place(l[1])
def kv4():
    for rs, base in ((K, KB), (V, VB)):
        for n in range(2): seq['kv'] = a.dma(vKD+n, rs, sSTASH, f's_add_u32 m0, {sW2K}, {base + 1024 + n*1024}', ' nt' * OPT['ntkv'])
l = [a.label() for _ in range(4)]
a(f's_cmp_ge_u32 {sW}, 2'); a(f's_cbranch_scc1 {l[0]}')
a(f's_cmp_lg_u32 {sW}, 0'); a(f's_cbranch_scc1 {l[2]}')
a.dma(vHALO, K, '0', f's_mov_b32 m0, {KB}', track=False); a(f's_branch {l[3]}')
a.place(l[2])
a(f's_lshl_b32 s60, {sDS}, 9')
a.dma(vL16, SH, 's60', f's_mov_b32 m0, {SB}', track=False)
a(f's_branch {l[3]}')
a.place(l[0])
if not OPT['kvfirst']: first_touch()
a.place(l[3])
kv4()
if OPT['kvfirst'] and OPT['t1']:
    a(f's_cmp_ge_u32 {sW}, 2'); a(f's_cbranch_scc1 {l[1]}')
    if OPT['th']:
        lk, lm = a.label(), a.label()
        a(f's_mov_b64 s[{HK}:{HK+1}], s[84:85]'); a(f's_mov_b64 s[{W2}:{W2+1}], s[92:93]')
        for r, n in ((HK, 2097152), (W2, 1409024)):
            a(f's_mov_b32 s{r+2}, {n}'); a(f's_mov_b32 s{r+3}, 0x20000')
        a(f's_cmp_lg_u32 {sW}, 0'); a(f's_cbranch_scc1 {lk}')
        a(f's_mul_i32 s60, s2, {43*128}')
        a(f'buffer_load_dword v254, {v(vT43)}, {srd(W2)}, s60 offen', track=False); a(f's_branch {lm}')
        a.place(lk)
        a(f's_lshl_b32 s60, {sDS}, 5'); a(f's_add_u32 s60, s60, {st}'); a('s_lshl_b32 s60, s60, 13')
        if OPT['th'] == 1: a('s_mov_b64 exec, 1')
        a(f'buffer_load_dword v254, v39, {srd(HK)}, s60 offen'); a.pend.pop(('v', 254))
        a('s_mov_b64 exec, -1')
        a.place(lm)
    else:
        a('s_mov_b64 exec, 1')
        a(f'buffer_load_dword v254, {v(vL16)}, {srd(SH)}, 0 offen'); a.pend.pop(('v', 254))
        a('s_mov_b64 exec, -1')
    lj = a.label(); a(f's_branch {lj}')
    a.place(l[1])
    first_touch()
    a.place(lj)
a(f's_mov_b64 s[{HK}:{HK+1}], s[84:85]')
a(f's_mov_b64 s[{W2}:{W2+1}], s[92:93]')
a(f's_mov_b64 s[{WS}:{WS+1}], s[98:99]')
a(f's_load_dword {sE}, s[{WS}:{WS+1}], {WS_E}')
common2(a)
a(f's_lshl_b32 s60, {sCP}, 2')
a(f's_load_dword {sD}, s[86:87], s60')
a('v_lshrrev_b32 v32, 4, v1')
a('v_xor_b32 v35, v34, v32')
a(f'v_lshl_add_u32 {v(vXA)}, v35, 4, v33')
a(f'v_xor_b32 {v(vXA+1)}, 64, {v(vXA)}')
a(f'v_add_u32 {v(vXA+1)}, 8192, {v(vXA+1)}')
a(f'v_add_u32 {v(vXA+2)}, 16384, {v(vXA)}')
a(f'v_add_u32 {v(vXA+3)}, 16384, {v(vXA+1)}')
a(f's_lshl_b32 s60, {sW}, 15'); a(f's_add_u32 {sXO}, {sXO}, s60')
a(f's_mul_i32 {sW3K}, {sW}, 3072')
a(f's_cmp_lt_u32 {sM1}, 11')
a('s_cselect_b32 s61, 12, 8')
a(f'v_mov_b32 v3, {OOB}')
for j in range(3):
    if j: a(f'v_add_u32 v36, {64*j}, v1')
    src = 'v36' if j else 'v1'
    a(f'v_mul_u32_u24 v37, 5462, {src}')
    a('v_lshrrev_b32 v37, 16, v37')
    a('v_mul_u32_u24 v35, 12, v37')
    a(f'v_sub_u32 v35, {src}, v35')
    a('v_cmp_gt_u32 vcc, s61, v35')
    a('v_mul_u32_u24 v37, 2752, v37')
    a(f'v_lshl_add_u32 {v(vWA+j)}, v35, 4, v37')
    a(f'v_cndmask_b32 {v(vWA+j)}, v3, {v(vWA+j)}, vcc')
a(f's_mul_i32 {sW1O}, {sW}, {16*2752}'); a(f's_lshl_b32 s60, {sP0}, 6'); a(f's_add_u32 {sW1O}, {sW1O}, s60')
if OPT['rot'] == 1: a(f's_and_b32 {sROT}, {sM1}, 7')
elif OPT['rot'] == 2:
    a(f's_lshl_b32 {sROT}, {sT}, 2'); a(f's_add_u32 {sROT}, {sROT}, {sM1}')
elif OPT['rot'] == 3:
    a(f's_lshr_b32 {sROT}, {sT}, 1'); a(f's_add_u32 {sROT}, {sROT}, {sM1}')
elif OPT['rot'] == 5:
    a(f's_lshl_b32 {sROT}, {sT}, 1'); a(f's_add_u32 {sROT}, {sROT}, {sM1}')
elif OPT['rot'] == 6:
    a(f's_lshl_b32 {sROT}, {sT}, 1')
elif OPT['rot'] == 7:
    a(f's_lshl_b32 {sROT}, {sT}, 2')
elif OPT['rot'] == 4:
    a(f's_add_u32 {sROT}, {sT}, {sM1}')
for r, n in ((HK, 2097152), (W2, 1409024)):
    a(f's_mov_b32 s{r+2}, {n}'); a(f's_mov_b32 s{r+3}, 0x20000')

ops = []
def op(name, gate, fn): ops.append((name, gate, fn))
def touch2():
    if OPT['t2mode']:
        a(f's_lshl_b32 {sG}, {sI}, 2'); a(f's_add_u32 {sG}, {sG}, {sW}')
        if OPT['map'] == 1:
            a(f's_mul_i32 {sG}, {sG}, 43'); a('v_min_u32 v253, 42, v1'); a(f'v_add_u32 v253, {sG}, v253')
            a('v_and_b32 v252, 3, v253'); a('v_lshrrev_b32 v253, 2, v253'); a('v_lshlrev_b32 v253, 10, v253'); a('v_lshl_add_u32 v253, v252, 7, v253')
            a(f's_and_b32 {sG}, {sDS}, 4'); a(f's_lshl_b32 {sG}, {sG}, 7')
            a(f'buffer_load_dword v254, v253, {srd(W2)}, {sG} offen')
        else:
            a(f's_mul_i32 {sG}, {sG}, {86*128}')
            a(f'buffer_load_dword v254, {v(vT43)}, {srd(W2)}, {sG} offen')
            a(f's_add_u32 {sG}, {sG}, {43*128}')
            a(f'buffer_load_dword v253, {v(vT43)}, {srd(W2)}, {sG} offen')
        return
    l = a.label()
    a(f's_cmp_lg_u32 {sW}, 2'); a(f's_cbranch_scc1 {l}')
    a(f's_mul_i32 {sG}, s2, {43*128}')
    a(f'buffer_load_dword v254, {v(vT43)}, {srd(W2)}, {sG} offen', track=False)
    a.place(l)
def touch3():
    l = a.label()
    a(f's_cmp_lg_u32 {sW}, 3'); a(f's_cbranch_scc1 {l}')
    a(f's_mul_i32 {sG}, {sI}, {43*1024}'); a(f'v_lshlrev_b32 v253, 3, {v(vT43)}')
    a(f'buffer_load_dword v254, v253, {srd(W2)}, {sG} offen offset:384', track=False)
    a.place(l)
def add_chunk(c):
    slot = (c % 4) * SLOT
    gate = f'c{c-3}' if c >= 4 else None
    def w(j):
        def f():
            if j == 0:
                if c == OPT['t2at']: touch2()
                if c == OPT['t3at']: touch3()
                if OPT['rot']:
                    a(f's_add_u32 {sC}, {sROT}, {c}'); a(f's_and_b32 {sC}, {sC}, 7')
                    a(f's_mul_i32 {sB}, {sC}, {64*2752}'); a(f's_add_u32 {sB}, {sB}, {sW1O}')
                    a(f's_lshl_b32 {sA}, {sC}, 7'); a(f's_add_u32 {sA}, {sA}, {sXO}')
                else:
                    a(f's_add_u32 {sB}, {sW1O}, {c*64*2752}')
            return a.dma(vWA+j, W1, sB, f's_add_u32 m0, {sW3K}, {slot + 16384 + j*1024}')
        return f
    for j in range(3): op(f'w{c}_{j}', gate, w(j))
    def xo(n):
        if n == 0 and not OPT['rot']: a(f's_add_u32 {sA}, {sXO}, {c*128}')
        return a.dma(vXA+n, Q, sA, f's_add_u32 m0, {sW4K}, {slot + n*1024}')
    for n in range(4): op(f'x{c}_{n}', gate, lambda n=n: xo(n))
def add_h():
    for n in range(4):
        def f(n=n):
            if n == 0 and OPT['t2at'] == -2: touch2()
            if n == 0 and OPT['t3at'] == -2: touch3()
            a(f's_mov_b32 m0, {sHM0}')
            return a(f'buffer_load_dwordx4 {v(vL16)}, {srd(HK)}, {sHSO} offen offset:{n*1024}{" nt" * OPT["nth"]} lds')
        op(f'h{n}', None, f)
def w2op(s):
    if s == 28 and OPT['t2at'] == -3: touch2()
    if s == 28 and OPT['t3at'] == -3: touch3()
    a(f's_add_u32 {sO0}, {sW2O}, {s*16384}')
    return a(f'buffer_load_dwordx4 {v(WT+4*s,4)}, {v(vW2A)}, {srd(W2)}, {sO0} offen')
def uload():
    a.poll_check(vP1, 20, '0x1ff')
    a(f'buffer_load_dwordx4 {v(UR,4)}, {v(vUL)}, {srd(WS)}, {sUL} offen sc1')
    a(f'buffer_load_dwordx4 {v(UR+4,4)}, {v(vUL)}, {srd(WS)}, {sUL} offen offset:16 sc1')
    return a(f'buffer_load_dword {v(UR+8)}, {v(vULp)}, {srd(WS)}, {sUL} offen sc1')
def ubuild():
    if OPT['hp']: a('s_setprio 2')
    a(f'ds_write_b128 {v(vZU)}, v[60:63]'); a(f'ds_write_b32 {v(vZH)}, v60')
    for c in range(2):
        sel = sSELLO if c == 0 else sSELHI
        for k in range(4):
            hi0 = UR + 5 - 2*k if k < 3 else UR + 8
            a(f'v_perm_b32 {v(PO+8*c+k)}, {v(hi0)}, {v(UR+6-2*k)}, {sel}')
        a(f'ds_write_b128 {v(vUW)}, {v(PO+8*c,4)} offset:{c*CVCH}')
        for k in range(4): a(f'v_perm_b32 {v(PO+8*c+4+k)}, {v(UR+6-2*k)}, {v(UR+7-2*k)}, {sel}')
        a(f'ds_write_b128 {v(vUW)}, {v(PO+8*c+4,4)} offset:{c*CVCH+U1OFF}')
    flush_posts(True)
    a.wait_all_lg()
    for c in range(2):
        for jj in range(2):
            for h in range(2): a(f'ds_read_b32 {v(DRL+4*c+2*jj+h)}, {v(vDU)} offset:{c*CVCH + 512*jj + 64*h}')
    a.wait_vm(max(seq['st1'], seq['h3']))
    a.post(4); a.stamp(0, True)
    if OPT['hp']: a('s_setprio 0')
    return a.vm_n
nbg = 0
wlist = list(range(28, 43)) + list(range(OPT['nx']))
for c in range(8):
    if c == OPT['hat']: add_h()
    add_chunk(c)
    if OPT['bgfrom'] <= c < 7:
        for _ in range(OPT['bg']):
            op(f'W{wlist[nbg]}', None, lambda s_=wlist[nbg]: w2op(s_)); nbg += 1
if OPT['pair']:
    assert not OPT['rot']
    d = {o[0]: o for o in ops}
    groups = {1: [(0, 1), (2, 3), (4, 5), (6, 7)], 2: [(0,), (1, 2), (3, 4), (5, 6), (7,)], 3: [(0,), (1, 2, 3), (4, 5), (6, 7)]}[OPT['pair']]
    ops[:] = [d[f'{k}{c}_{j}'] for g in groups for k, n in (('w', 3), ('x', 4)) for c in g for j in range(n)]
for n in range(2): op(f'st{n}', None, lambda n=n: a.dma(vXA+n, Q, sSTASH, f's_add_u32 m0, {sW2K}, {XST + n*1024}'))
if OPT['hat'] == 8: add_h()
for s_ in wlist[nbg:]: op(f'W{s_}', None, lambda s_=s_: w2op(s_))
b0 = [o[0] for o in ops].index('x7_3') - 6
for nm, pos, fn in (('ub', OPT['ubat'], ubuild), ('ul', OPT['ulat'], uload), ('up', OPT['upat'], lambda: a.poll_issue(vP1, 20, '0x1ff'))):
    ops.insert(b0 + pos, (nm, 'c4', fn))
names = [o[0] for o in ops]
nxt = [0]
posts = [('x5_3', 1), ('x6_3', 2), ('x7_3', 3)]
capped = [False]
dbg = []
def flush_posts(force=False):
    while posts and posts[0][0] in seq and (force or a.vm_done >= seq[posts[0][0]]):
        a.wait_vm(seq[posts[0][0]]); a.post(posts[0][1], False); a.stamp(); posts.pop(0)
def issue_upto(idx):
    while nxt[0] <= min(idx, len(ops) - 1):
        name, gate, fn = ops[nxt[0]]
        if gate is not None and gate not in a.bars: return
        if capped[0]:
            a.wait_vm(a.vm_n - (OPT['cap1'] if posts else OPT['cap']) + 1); flush_posts()
        nxt[0] += 1
        seq[name] = fn()
        if capped[0] and (name in ('x7_3', 'st1', 'h3', 'up', 'ul', 'ub') or (name[0] == 'W' and int(name[1:]) % 3 == 0)):
            a.stamp(2); dbg.append(name)
issue_upto(OPT['lookkv'] - 1)
a('s_branch L_loader2')
L1lines = a.lines; a.lines = ['L_loader2:']
a(f's_mul_i32 s60, {sKH}, {HCH}'); a(f's_mul_i32 s61, {sTH}, {HBD}'); a('s_add_u32 s61, s61, s60'); a(f's_add_u32 {sHM0}, s61, {HBASE+64}')
a(f's_lshl_b32 {sHSO}, {sCP}, 13'); a(f's_add_u32 {sUL}, {sHSO}, {WS_U}'); a(f's_lshl_b32 s61, {sKH}, 12'); a(f's_add_u32 {sHSO}, {sHSO}, s61')
a('s_waitcnt lgkmcnt(0)')
a(f's_add_u32 {sTAG}, {sE}, 1'); a(f's_not_b32 {sNTAG}, {sTAG}')
a.post(0)
a('v_and_b32 v35, 1, v32'); a('v_lshlrev_b32 v35, 2, v35'); a('v_xor_b32 v35, v35, v34')
a(f'v_lshl_add_u32 {v(vW2A)}, v35, 4, v33')
a(f's_mul_i32 {sW2O}, {sKH}, {43*16*1024}'); a(f's_lshl_b32 s61, {sTH}, 13'); a(f's_add_u32 {sW2O}, {sW2O}, s61')
a(f's_lshl_b32 s61, {sDS}, 7'); a(f's_add_u32 {sW2O}, {sW2O}, s61')
a(f'v_add_u32 {v(vW2W)}, {sM0W}, {v(vL16)}')
a(f'v_add_u32 {v(vW2W2)}, 61440, {v(vW2W)}'); a(f'v_add_u32 {v(vW2W3)}, 122880, {v(vW2W)}')
a(f's_lshl_b32 s60, {st}, 1'); a(f's_add_u32 s60, s60, {sTH}'); a('s_mul_i32 s60, s60, 86')
a(f's_mul_i32 s61, {sKH}, 43'); a('s_add_u32 s60, s60, s61'); a('s_lshl_b32 s60, s60, 10')
a(f's_add_u32 {sHL}, s60, {WS_H}')
a(f's_mul_i32 s60, {sKH}, 7'); a('v_min_u32 v38, 8, v1'); a('v_add_u32 v35, s60, v38')
a('v_lshrrev_b32 v36, 1, v35'); a(f'v_xor_b32 v36, {OPT["dsx"]}, v36'); a('v_lshlrev_b32 v36, 12, v36'); a('v_and_b32 v35, 1, v35'); a('v_lshl_add_u32 v37, v35, 7, v36')
a(f's_lshl_b32 s60, {sT}, 8'); a(f's_add_u32 s60, s60, {WS_FLAG + FPH}')
a(f's_and_b32 s61, {st}, 1'); a('s_lshl_b32 s61, s61, 1'); a(f's_add_u32 s61, s61, {sTH}')
a('s_lshl_b32 s61, s61, 15'); a('s_add_u32 s61, s61, s60')
a(f'v_add_u32 {v(vP2)}, s61, v37')
a(f's_lshl_b32 s60, {sDS}, 12'); a(f's_and_b32 s61, {st}, 24'); a('s_lshl_b32 s61, s61, 12'); a('s_add_u32 s60, s60, s61'); a(f's_add_u32 s60, s60, {WS_FLAG}')
a(f's_lshl_b32 s61, {sW}, 3'); a('v_add_u32 v35, s61, v38'); a('v_max_u32 v35, 1, v35'); a('v_subrev_u32 v35, 1, v35')
a('v_lshlrev_b32 v35, 7, v35'); a(f'v_add_u32 {v(vP1)}, s60, v35')
a(f's_add_u32 s60, s60, {sM0W}'); a(f's_add_u32 s60, s60, {2*FPH}')
a('v_lshlrev_b32 v35, 7, v34'); a(f'v_add_u32 {v(vP3)}, s60, v35')
a(f's_lshl_b32 s60, {st}, 16'); a(f's_lshl_b32 s61, {sDS}, 13'); a('s_add_u32 s60, s60, s61'); a(f's_add_u32 s60, s60, {sW2K}')
a(f's_add_u32 {sYL}, s60, {WS_Y}')
a(f'v_lshlrev_b32 {v(vUL)}, 5, v0'); a(f'v_subrev_u32 {v(vULp)}, 4, {v(vUL)}')
a(f'v_add_u32 {v(vUW)}, {CV+448}, {v(vW2W)}')
a(f's_mul_i32 s60, {sKH}, {CVCH}'); a(f's_mul_i32 s61, {sTH}, {U1OFF}'); a('s_add_u32 s61, s61, s60'); a(f's_add_u32 s61, s61, {CV}')
a('v_min_u32 v35, 27, v1'); a('v_lshlrev_b32 v35, 4, v35'); a(f'v_add_u32 {v(vZU)}, s61, v35')
a(f's_sub_u32 s61, {sHM0}, 64'); a('v_and_b32 v35, 15, v1'); a('v_lshlrev_b32 v35, 2, v35'); a(f'v_add_u32 {v(vZH)}, s61, v35')
a(f's_mov_b32 {sSELLO}, 0x05040100'); a(f's_mov_b32 {sSELHI}, 0x07060302')
a(f's_mov_b32 {sMASK}, 0xffff0000'); a(f's_lshl_b32 {sD0}, {sD}, 16'); a(f's_and_b32 {sD1}, {sD}, {sMASK}')
a('v_and_b32 v36, 15, v1')
a('v_bfe_u32 v35, v1, 2, 2'); a('v_lshlrev_b32 v35, 4, v35'); a('v_lshl_add_u32 v35, v32, 7, v35')
a('v_and_b32 v37, 3, v1'); a('v_xor_b32 v37, 3, v37'); a('v_lshl_add_u32 v35, v37, 2, v35')
a(f's_add_u32 s60, {sM0W}, {CV+U1OFF+448}'); a(f'v_add_u32 {v(vDU)}, s60, v35')
a(f's_add_u32 s60, {sW2K}, {CV}'); a(f'v_add_u32 {v(vXRd)}, s60, {v(vL16)}')
a(f'v_lshlrev_b32 {v(vYS)}, 16, v32'); a(f'v_lshl_add_u32 {v(vYS)}, v36, 4, {v(vYS)}')
a(f's_lshl_b32 s60, {sW}, 19'); a(f's_lshl_b32 s61, {sCP}, 8'); a('s_add_u32 s60, s60, s61'); a(f's_add_u32 {sYS0}, s60, {WS_Y}')
a(f's_add_u32 {sYS1}, {sYS0}, 0x40000')
a(f's_lshl_b32 s60, {sCP}, 7'); a(f's_lshl_b32 s61, {sW}, 15'); a('s_add_u32 s60, s60, s61'); a(f's_add_u32 s60, s60, {WS_FLAG}')
a(f'v_lshlrev_b32 {v(vFL)}, 3, v36'); a(f'v_add_u32 {v(vFL)}, s60, {v(vFL)}')
a(f'v_mul_u32_u24 {v(TB)}, 5, v34'); a(f'v_add_u32 {v(TB)}, {sTAG}, {v(TB)}')
for r in range(1, 4): a(f'v_lshrrev_b32 {v(TB+r)}, {r}, {v(TB)}')
for i in range(4): a(f'v_mov_b32 v{60+i}, 0')
a.wait_vm(seq['kv']); a.bar('kv'); a.stamp()
D = OPT['look']
for c in range(5):
    issue_upto(names.index(f'x{c}_3') + D)
    a.wait_vm(seq[f'x{c}_3'])
    a.bar(f'c{c}', False)
    a.stamp()
capped[0] = True
def wr(s_):
    if OPT['notail']: return
    o = w2slot(s_); k = o // 61440
    if OPT['w64'] == 1:
        for q in range(2): a(f'ds_write_b64 {v((vW2W, vW2W2, vW2W3)[k])}, {v(WT+4*s_+2*q,2)} offset:{o - 61440*k + 8*q}')
    elif OPT['w64'] == 2:
        for q in range(4): a(f'ds_write_b32 {v((vW2W, vW2W2, vW2W3)[k])}, {v(WT+4*s_+q)} offset:{o - 61440*k + 4*q}')
    else: a(f'ds_write_b128 {v((vW2W, vW2W2, vW2W3)[k])}, {v(WT+4*s_,4)} offset:{o - 61440*k}')
    if OPT['wsl']: a(f's_sleep {OPT["wsl"]}')
def wdma(s_):
    if OPT['nodma']: return
    a.wait_vm(a.vm_n - (OPT['cap2'] if s_ < OPT['wm'] else OPT['cap3']) + 1)
    a(f's_add_u32 {sO0}, {sW2O}, {s_*16384}')
    return a.dma(vW2A, W2, sO0, f's_add_u32 m0, {sM0W}, {w2slot(s_)}')
issue_upto(999)
flush_posts(True)
a.stamp()
a(f's_or_b32 s60, {sCP}, {sW}')
a('s_cmp_lg_u32 s60, 0')
a('s_cbranch_scc1 L_noep')
for q in range(4): a(f'v_add_u32 v{40+q}, {WS_FLAG + 8192*q}, v39')
a(f's_mov_b32 {sSPIN}, 0')
a.place('L_ep')
for q in range(4): a(f'buffer_load_dwordx2 v[{44+2*q}:{45+2*q}], v{40+q}, {srd(WS)}, 0 offen sc1', track=False)
a('s_waitcnt vmcnt(0)')
a('s_mov_b64 s[60:61], exec')
for q in range(4):
    a(f'v_cmp_eq_u32 vcc, {sTAG}, v{44+2*q}'); a('s_and_b64 s[60:61], s[60:61], vcc')
    a(f'v_cmp_eq_u32 vcc, {sNTAG}, v{45+2*q}'); a('s_and_b64 s[60:61], s[60:61], vcc')
a('s_cmp_eq_u64 s[60:61], exec')
a('s_cbranch_scc1 L_epok')
a(f's_add_u32 {sSPIN}, {sSPIN}, 1'); a(f's_cmp_lt_u32 {sSPIN}, {0 if OPT["nosync"] else 0x20000}'); a('s_cbranch_scc1 L_ep')
a.place('L_epok')
a(f'v_mov_b32 v40, {WS_E}'); a(f'v_mov_b32 v41, {sTAG}')
a('s_mov_b64 exec, 1')
a(f'buffer_store_dword v41, v40, {srd(WS)}, 0 offen sc1', track=False)
a('s_mov_b64 exec, -1')
a.place('L_noep')
a.expect(1, 1, sleep=OPT['esl'])
a.stamp()
def dumul():
    for c in range(2):
        for jj in range(2):
            for h in range(2):
                src = DRL+4*c+2*jj+h; d = DUL+8*jj+4*c+2*h
                for x in (hi(d, src), lo(d+1, src), f'v_mul_f32 {v(d)}, {(sD0, sD1)[c]}, {v(d)}', f'v_mul_f32 {v(d+1)}, {(sD0, sD1)[c]}, {v(d+1)}'): a(x)
for s_ in range(28):
    if s_ == OPT['duat']: dumul()
    if OPT['s2skip']:
        if s_ == OPT['s2skip']: a.post(5, False); a.stamp(0, True)
        wl = wdma(s_); continue
    if s_ == OPT['wm']: a.expect(1, 2, sleep=OPT['esl'])
    if s_ == OPT['wm'] + OPT['wk']:
        a.stamp(); a.poll_issue(vP2, 20, '0x1ff')
    if s_ == OPT['wm'] + OPT['wk'] + OPT['wc']:
        a.poll_check(vP2, 20, '0x1ff'); a.post(5, False); a.stamp(0, True)
    wl = wdma(s_)
if OPT['wm'] + OPT['wk'] >= 28:
    a.stamp(); a.poll_issue(vP2, 20, '0x1ff')
if OPT['wm'] + OPT['wk'] + OPT['wc'] >= 28 and not OPT['s2skip']:
    a.poll_check(vP2, 20, '0x1ff')
    a.post(5, False)
    a.stamp(0, True)
a.wait_vm(wl); a.post(6, False)
if OPT['duat'] >= 28: dumul()
a.expect(1, 4, sleep=1)
a(f's_setprio {OPT["yprio"]}')
for jj in range(2):
    for sw in range(4): a(f'ds_read_b128 {v(XRL+16*jj+4*sw,4)}, {v(vXRd)} offset:{8192*sw + 1024*jj}')
for jj in range(2):
    for hf in range(2):
        for c in range(2):
            for r in range(4): a(f'v_add_f32 {v(DUL+8*jj+4*c+r)}, {v(DUL+8*jj+4*c+r)}, {v(XRL+16*jj+8*c+4*hf+r)}')
    for r in range(4):
        a(f'v_cvt_pk_bf16_f32 {v(XRL+16*jj+r)}, {v(DUL+8*jj+4+r)}, {v(DUL+8*jj+4+r)}')
        a(f'v_add_u32 {v(DUL+8*jj+r)}, 0x10000, {v(DUL+8*jj+r)}')
    for r in range(4): a(f'v_perm_b32 {v(XRL+16*jj+r)}, {v(XRL+16*jj+r)}, {v(DUL+8*jj+r)}, {sSELHI}')
    for r in range(4): a(f'v_bfi_b32 {v(XRL+16*jj+r)}, 1, {v(TB+r)}, {v(XRL+16*jj+r)}')
    yst = a(f'buffer_store_dwordx4 {v(XRL+16*jj,4)}, {v(vYS)}, {srd(WS)}, {(sYS0, sYS1)[jj]} offen sc1')
a.post(7)
a.stamp(0, True)
a(f's_setprio {OPT["tp"]}')
a.expect(0, 7)
YB = 120
def yld(track=True):
    for n in range(2): a(f'buffer_load_dwordx4 {v(YB+4*n,4)}, {v(vL16)}, {srd(WS)}, {sYL} offen offset:{1024*n} sc1', track=track)
for s_ in range(28, 44):
    if s_ == 36:
        a.post(8); a.expect(1, 6, sleep=OPT['esl'])
    if s_ == 28 + OPT['yp']: yld()
    if s_ == 43: a.post(9); a.stamp(0, True); a('s_setprio 0')
    if s_ < 43: wr(s_)
for _ in range(OPT['ydelay']): a('s_sleep 4')
if OPT['yp'] > 15: yld()
top, done = a.label(), a.label()
a(f's_mov_b32 {sSPIN}, 0')
a.wait_all_vm()
a.place(top)
a(f'v_xor_b32 v20, {v(YB)}, {v(TB)}')
for k in range(1, 8): a(f'v_bitop3_b32 v20, v20, {v(YB+k)}, {v(TB+(k&3))} bitop3:0xf6')
a('v_and_b32 v20, 1, v20')
a('v_cmp_ne_u32 vcc, 0, v20')
a(f's_cbranch_vccz {done}')
a(f's_add_u32 {sSPIN}, {sSPIN}, 1'); a(f's_cmp_gt_u32 {sSPIN}, 0x20000'); a(f's_cbranch_scc1 {done}')
a(f's_sleep {OPT["psleep"]}')
yld(False)
a('s_waitcnt vmcnt(0)')
a(f's_branch {top}')
a.place(done)
a.stamp(0, True)
a('s_setprio 2')
a(f's_add_u32 s60, {sW2K}, {YT}'); a(f'v_add_u32 v20, s60, {v(vL16)}')
for k in range(8): a(f'v_and_b32 {v(YB+k)}, -2, {v(YB+k)}')
for n in range(2): a(f'ds_write_b128 v20, {v(YB+4*n,4)} offset:{1024*n}')
a.post(10)
a.wait_all_lg()
a.finish()

C = a = Prog('C', 4)
a.gap = 0
vCSR, vSTW, vXR, vWR, vYR, vCSW = 3, 11, 12, 20, 9, 8
vKA, vKB, vSHR, vUS = 212, 213, 214, 215
(vUA, vHA, vDU, vXW, vXRd, vYS, vE2W, vE2R, vSTa, vSTb, vSTS, vOTa, vOTb, vOTR, vOUT) = range(216, 231)
AR = 234
F = {k: 198 + i for i, k in enumerate(('l4', 'n', 'g', 'b', 'l1', 'l3', 'r', 'x', 'h', 't0', 't1', 't2'))}
def fx(s):
    for k, r in F.items(): s = s.replace('%' + k, f'v{r}')
    return s
def e(s): a(fx(s))
if OPT['prio']: a(f's_setprio {OPT["prio"]}')
a(f's_mov_b32 {sMASK}, 0xffff0000')
e('v_lshrrev_b32 %l4, 4, v1'); e('v_lshrrev_b32 %g, 5, v1'); e('v_and_b32 %b, 15, v1'); e('v_and_b32 %h, 1, %l4')
a(f's_lshl_b32 s60, {sW}, 1'); e('v_add_u32 %t0, s60, %g')
e('v_add_u32 %t1, 1, %b'); e('v_and_b32 %t1, 7, %t1'); e('v_xor_b32 %t1, %t1, %t0')
e('v_lshlrev_b32 %t2, 9, %b'); e('v_lshl_add_u32 %t2, %h, 3, %t2'); e(f'v_add_u32 %t2, {KB + 5*128}, %t2')
e(f'v_lshl_add_u32 {v(vKA)}, %t1, 4, %t2')
e('v_add_u32 %t1, 2, %b'); e('v_and_b32 %t1, 7, %t1'); e('v_xor_b32 %t1, %t1, %t0')
e(f'v_lshl_add_u32 {v(vKB)}, %t1, 4, %t2')
a(f's_lshl_b32 s60, {sW}, 7'); a(f's_add_u32 s60, s60, {SB}')
e(f'v_lshlrev_b32 {v(vSHR)}, 5, %l4'); a(f'v_add_u32 {v(vSHR)}, s60, {v(vSHR)}')
e(f'v_lshlrev_b32 {v(vUS)}, 14, %l4'); e(f'v_lshl_add_u32 {v(vUS)}, %b, 4, {v(vUS)}')
common2(a)
a('s_waitcnt lgkmcnt(0)')
a(f's_mov_b64 s[{OUT}:{OUT+1}], s[94:95]')
a(f's_mov_b64 s[{WS}:{WS+1}], s[98:99]')
a(f's_load_dword {sE}, s[{WS}:{WS+1}], {WS_E}')
spf = []
if OPT['spf']:
    a(f's_lshl_b32 s60, {sCP}, 13'); a(f's_add_u32 s60, s60, {sW2K}')
    a('s_add_u32 s84, s84, s60'); a('s_addc_u32 s85, s85, 0')
    a(f's_lshl_b32 s60, s2, 2'); a(f's_add_u32 s60, s60, {sW}'); a(f's_mul_i32 s60, s60, {11*128}'); a(f's_min_u32 s60, s60, {1409024 - 11*128}')
    a('s_add_u32 s92, s92, s60'); a('s_addc_u32 s93, s93, 0')
    for j in range(11): a(f's_load_dword s100, s[92:93], {128*j}')
    for j in range(32): a(f's_load_dword s100, s[84:85], {64*j}')
a(f's_lshl_b32 s60, {sDS}, 18'); a(f's_lshl_b32 s61, {st}, 8'); a('s_add_u32 s60, s60, s61')
a(f's_lshl_b32 s61, {sW}, 16'); a('s_add_u32 s60, s60, s61'); a(f's_add_u32 {sUS0}, s60, {WS_U}'); a(f's_add_u32 {sUS1}, {sUS0}, 8192')
a(f's_mov_b32 {sONES}, 0x3f803f80')
e('v_and_b32 %n, 31, v1'); e('v_and_b32 %l1, 1, v1'); e('v_and_b32 %l3, 3, v1'); e('v_bfe_u32 %r, v1, 2, 2')
e('v_bfe_u32 %t0, v1, 1, 3'); e('v_xor_b32 %t0, %t0, %g'); e('v_lshlrev_b32 %t0, 4, %t0')
e('v_lshl_add_u32 %x, %n, 7, %t0')
e(f'v_add_u32 %t0, {sW4K}, %x')
e('v_lshl_add_u32 %t1, %g, 3, %r'); e('v_mul_u32_u24 %t1, 192, %t1')
e('v_lshl_add_u32 %t1, %h, 5, %t1'); e('v_lshl_add_u32 %t1, %l3, 3, %t1')
for i in range(4):
    a(f's_add_u32 s60, {sW}, {i}'); a('s_and_b32 s60, s60, 3'); a('s_lshl_b32 s61, s60, 5')
    e(f'v_xor_b32 {v(vXR+i)}, s61, %t0')
    a('s_mul_i32 s61, s60, 3072')
    e(f'v_add_u32 {v(vWR+i)}, s61, %t1')
ACC, XF, WF, SU, SQ, CS = 32, 80, 112, 160, 162, 164
for r in range(SU, CS+3): a(f'v_mov_b32 {v(r)}, 0')
a('s_waitcnt lgkmcnt(0)')
a(f's_add_u32 {sTAG}, {sE}, 1'); a(f's_not_b32 {sNTAG}, {sTAG}')
a.post(0)
a.stamp()
a.reserve = OPT['res']
S = []
def s_(*xs):
    for x in xs: S.append(fx(x))
for i in range(4): s_(f'v_add_u32 {v(vXR+4+i)}, {2*SLOT}, {v(vXR+i)}', f'v_add_u32 {v(vWR+4+i)}, {2*SLOT}, {v(vWR+i)}')
s_(f'v_mov_b32 v252, {sTAG}', f'v_mov_b32 v253, {sNTAG}')
s_(f's_lshl_b32 s60, {sCP}, 7', f's_lshl_b32 s61, {sW}, 15', 's_add_u32 s60, s60, s61', f's_add_u32 s60, s60, {WS_FLAG}')
s_(f'v_lshlrev_b32 {v(vFL)}, 3, %b', f'v_add_u32 {v(vFL)}, s60, {v(vFL)}')
NS1 = len(S)
s_(f's_mov_b32 s{OUT+2}, 2097152', f's_mov_b32 s{OUT+3}, 0x20000', f's_mov_b32 {sSELLO}, 0x05040100')
s_(f's_and_b32 s61, {st}, 1', 's_lshl_b32 s61, s61, 1', f's_add_u32 s61, s61, {sTH}', 's_lshl_b32 s61, s61, 8', f's_add_u32 s61, s61, {STATS}')
s_('v_lshlrev_b32 %t0, 3, %n', f'v_add_u32 {v(vSTS)}, s61, %t0')
s_(f's_lshl_b32 s60, {sW}, 8', f's_add_u32 s60, s60, {STATS}', f'v_add_u32 {v(vSTW)}, s60, %t0')
s_(f'v_add_u32 {v(vCSR)}, {CSUM}, {v(vL16)}', f's_lshl_b32 s60, {sW}, 2', f'v_add_u32 {v(vCSW)}, s60, {v(vCSR)}')
s_(f's_lshl_b32 s60, {sT}, 2', f's_add_u32 s60, s60, {sW}', 's_mul_i32 s60, s60, 86', f's_lshl_b32 s61, {sP0}, 1', 's_add_u32 s60, s60, s61', 's_lshl_b32 s60, s60, 10')
s_(f's_add_u32 {sHS}, s60, {WS_H}', f's_add_u32 {sHS3}, {sHS}, 4096')
S.append([f's_cmp_lt_u32 {sM1}, 11', f's_cselect_b32 {sHS3}, {sHS3}, {OOB}', 's_cselect_b32 s85, 0xffff, 0'])
s_('s_mov_b32 s84, -1', 'v_lshlrev_b32 v10, 7, v1')
sSELF = 's[84:85]'
s_(f's_mul_i32 s60, {sKH}, {CVCH}', f's_add_u32 s60, s60, {CV+448-192}', f's_lshl_b32 s61, {sTH}, 8', 's_sub_u32 s60, s60, s61')
s_(f'v_mul_u32_u24 {v(vUA)}, {U1OFF}, %l1', 'v_lshrrev_b32 %t0, 1, %b', 'v_lshl_add_u32 %t0, %t0, 2, %l4')
s_(f'v_lshl_add_u32 {v(vUA)}, %t0, 4, {v(vUA)}', f'v_add_u32 {v(vUA)}, s60, {v(vUA)}')
s_('v_xor_b32 %t0, 1, %l1', f'v_mul_u32_u24 {v(vHA)}, {HBD}, %t0', f'v_lshl_add_u32 {v(vHA)}, %b, 2, {v(vHA)}')
s_('v_lshlrev_b32 %t0, 4, %l4', f'v_sub_u32 {v(vHA)}, {v(vHA)}, %t0')
s_(f's_mul_i32 s60, {sKH}, {HCH}', 's_add_u32 s61, s60, s61', f's_add_u32 s61, s61, {HBASE+64-12}', f'v_add_u32 {v(vHA)}, s61, {v(vHA)}')
s_(f's_lshl_b32 s60, {st}, 1', f's_add_u32 s60, s60, {sTH}', 's_mul_i32 s60, s60, 86', f's_mul_i32 s61, {sKH}, 43', 's_add_u32 s60, s60, s61', 's_lshl_b32 s60, s60, 10')
s_(f's_add_u32 {sHL}, s60, {WS_H}')
s_(f's_lshl_b32 s60, {sW}, 13', f's_add_u32 s60, s60, {CV}', f'v_add_u32 {v(vXW)}, s60, {v(vL16)}')
s_('v_lshl_add_u32 %t0, %g, 2, %r', 'v_lshlrev_b32 %t0, 7, %t0', 'v_bfe_u32 %t1, v1, 3, 1', 'v_lshl_add_u32 %t0, %t1, 6, %t0')
s_('v_lshl_add_u32 %t0, %h, 5, %t0', 'v_lshl_add_u32 %t0, %l1, 4, %t0', 'v_bfe_u32 %t1, v1, 1, 1', 'v_lshl_add_u32 %t0, %t1, 3, %t0')
s_(f's_lshl_b32 s60, {sKH}, 6', 'v_xor_b32 %t0, s60, %t0', f's_lshl_b32 s61, {sKH}, 11')
s_(f'v_add_u32 {v(AR)}, s61, %t0', f'v_xor_b32 {v(AR+1)}, 64, {v(AR)}')
for k in (1, 2): s_(f'v_add_u32 {v(AR+2*k)}, {61440*k}, {v(AR)}', f'v_add_u32 {v(AR+2*k+1)}, {61440*k}, {v(AR+1)}')
s_(f'v_lshlrev_b32 {v(vYR)}, 10, %g', 'v_bfe_u32 %t1, v1, 1, 4', f'v_lshl_add_u32 {v(vYR)}, %t1, 4, {v(vYR)}', f'v_lshl_add_u32 {v(vYR)}, %l1, 2, {v(vYR)}')
s_(f's_lshl_b32 s61, {sKH}, 12', f's_lshl_b32 {sO0}, {sTH}, 3', f's_add_u32 s61, s61, {sO0}', f's_add_u32 s61, s61, {YT}', f'v_add_u32 {v(vYR)}, s61, {v(vYR)}')
s_('v_xor_b32 %t0, s60, %x', f's_lshl_b32 s61, {sTH}, 12', f's_add_u32 s61, s61, {XST}', f'v_add_u32 {v(vSTa)}, s61, %t0', f'v_xor_b32 {v(vSTb)}, 32, {v(vSTa)}')
s_(f's_add_u32 s61, {sW4K}, {EX}', f'v_add_u32 {v(vE2W)}, s61, {v(vL16)}')
s_(f's_xor_b32 s61, {sW4K}, 8192', f's_add_u32 s61, s61, {EX}', f'v_add_u32 {v(vE2R)}, s61, {v(vL16)}')
s_(f's_add_u32 s61, {sW2K}, {OT}', 'v_bfe_u32 %t0, v1, 1, 2', 'v_xor_b32 %t0, %t0, %g', 'v_lshlrev_b32 %t0, 4, %t0')
s_('v_lshl_add_u32 %t0, %n, 6, %t0', f'v_add_u32 {v(vOTa)}, s61, %t0', f'v_xor_b32 {v(vOTb)}, 32, {v(vOTa)}')
s_('v_lshrrev_b32 %t1, 2, v1', 'v_bfe_u32 %t0, v1, 3, 2', 'v_xor_b32 %t0, %t0, %l3', 'v_lshlrev_b32 %t0, 4, %t0', 'v_lshl_add_u32 %t0, %t1, 6, %t0')
s_(f'v_add_u32 {v(vOTR)}, s61, %t0', 'v_lshlrev_b32 %t1, 10, %t1', f'v_lshl_add_u32 {v(vOUT)}, %l3, 4, %t1')
s_(f's_lshl_b32 {sO0}, {st}, 16', f's_lshl_b32 s61, {sDS}, 7', f's_add_u32 {sO0}, {sO0}, s61', f's_lshl_b32 s61, {sTH}, 15')
s_(f's_add_u32 {sO0}, {sO0}, s61', f's_add_u32 {sO0}, {sO0}, s60', f's_add_u32 {sO1}, {sO0}, 16384')

KR, VR, SR, PA = 168, 182, 190, 240
WP, KU, VU, TP = 32, 48, 76, 92
if OPT['fpre']:
    for x in S[:NS1]: a(x)
    S = S[NS1:]; NS1 = 0
    a(f'v_mov_b32 v252, {sNTAG}')
    for ph in (1, 2)[2-OPT['fpre']:]: a.flag_store(ph)
    a(f'v_mov_b32 v252, {sTAG}')
if OPT['early']:
    for x in S: a.do(x)
    S = []; NS1 = 0
if OPT['pc'] < 0:
    for x in S[:NS1]: a(x)
    S = S[NS1:]; NS1 = 0
    for jj in range(2): a(f'buffer_store_dwordx4 v[248:251], {v(vYS)}, {srd(WS)}, {(sYS0, sYS1)[jj]} offen sc1')
a.bar('kv')
a.stamp()
for p in range(2): a(f'ds_read_b128 {v(SR+4*p,4)}, {v(vSHR)} offset:{16*p}')
for r in range(7): a(f'ds_read_b64 {v(KR+2*r,2)}, {v(vKA if r < 3 else vKB)} offset:{128*r}')
for r in range(4): a(f'ds_read_b64 {v(VR+2*r,2)}, {v(vKB)} offset:{VB-KB+128*(r+3)}')
for x in S[:NS1]: a(x)
S = S[NS1:]
for c in range(4):
    p, e_ = c >> 1, c & 1
    for jj in range(2): a(lo(WP+8*p+4*jj+e_, SR+2*c+jj)); a(hi(WP+8*p+4*jj+2+e_, SR+2*c+jj))
for p in range(2):
    for r in range(7): a(lo(KU+4*r+2*p, KR+2*r+p)); a(hi(KU+4*r+2*p+1, KR+2*r+p))
    for r in range(4): a(lo(VU+4*r+2*p, VR+2*r+p)); a(hi(VU+4*r+2*p+1, VR+2*r+p))
    for i in range(4): a(f'v_pk_mul_f32 {v(TP+2*i,2)}, {v(KU+4*i+2*p,2)}, {v(WP+8*p+6,2)}')
    for j in (2, 1, 0):
        for i in range(4): a(f'v_pk_fma_f32 {v(TP+2*i,2)}, {v(KU+4*(i+3-j)+2*p,2)}, {v(WP+8*p+2*j,2)}, {v(TP+2*i,2)}')
    for i in range(4): a(f'v_pk_mul_f32 {v(TP+2*i,2)}, {v(TP+2*i,2)}, {v(VU+4*i+2*p,2)}')
    for i in range(4): a(f'v_cvt_pk_bf16_f32 {v(PA+4*p+i)}, {v(TP+2*i)}, {v(TP+2*i+1)}')
    ust = a(f'buffer_store_dwordx4 {v(PA+4*p,4)}, {v(vUS)}, {srd(WS)}, {(sUS0, sUS1)[p]} offen sc1')
if OPT['pc'] == 0:
    for jj in range(2): ust = a(f'buffer_store_dwordx4 v[248:251], {v(vYS)}, {srd(WS)}, {(sYS0, sYS1)[jj]} offen sc1')
ust_t = a.t

AX, BX, vM, vRS, vS, vC3 = 168, 180, 184, 185, 186, 188
stats = [
    f'v_add_f32 {v(SU)}, {v(SU)}, {v(SU+1)}', f'v_add_f32 {v(SQ)}, {v(SQ)}, {v(SQ+1)}',
    f'v_mov_b32 {v(SU+1)}, {v(SU)}', f'v_mov_b32 {v(SQ+1)}, {v(SQ)}',
    f'v_permlane32_swap_b32 {v(SU)}, {v(SU+1)}', f'v_permlane32_swap_b32 {v(SQ)}, {v(SQ+1)}',
    f'v_add_f32 {v(SU)}, {v(SU)}, {v(SU+1)}', f'v_add_f32 {v(SQ)}, {v(SQ)}, {v(SQ+1)}',
    f'v_mul_f32 {v(SU)}, 0x3b000000, {v(SU)}', f'v_mul_f32 {v(SQ)}, 0x3b000000, {v(SQ)}',
    f'v_fma_f32 {v(SQ)}, -{v(SU)}, {v(SU)}, {v(SQ)}', f'v_max_f32 {v(SQ)}, 0, {v(SQ)}',
    f'v_cvt_pk_bf16_f32 v190, {v(SU)}, {v(SQ)}', 'v_xor_b32 v191, 0x8000, v190',
    f'v_perm_b32 {v(BX)}, v191, v191, {sSELLO}', f'v_mov_b32 {v(BX+1)}, {v(BX)}', f'v_mov_b32 {v(BX+2)}, {v(BX)}', f'v_mov_b32 {v(BX+3)}, {v(BX)}',
    lo(vM, 190), hi(191, 190), 'v_add_f32 v191, 0x3727c5ac, v191',
    'v_cvt_pk_bf16_f32 v191, v191, v191', lo(191, 191), 'v_sqrt_f32 v191, v191',
    'v_cvt_pk_bf16_f32 v191, v191, v191', lo(vS, 191), f'v_rcp_f32 {v(vRS)}, {v(vS)}',
    f'v_mul_f32 {v(vC3)}, 0xbfb8aa3b, {v(vRS)}', f'ds_write_b64 {v(vSTW)}, {v(vM,2)}']
def rdx(c):
    st_ = 4 * ((c % 4) >> 1); off = (c & 1) * SLOT
    return [f'ds_read_b128 {v(XF+16*(c&1)+4*i,4)}, {v(vXR+st_+i)} offset:{off}' for i in range(4)]
def rdw(c, i):
    st_ = 4 * ((c % 4) >> 1); off = (c & 1) * SLOT
    return [f'ds_read_b64_tr_b16 {v(WF+12*i+4*ft+2*rd,2)}, {v(vWR+st_+i)} offset:{off+16384+rd*768+ft*64}' for ft in range(3) for rd in range(2)]
a.stamp()
a.bar('c0')
a.stamp(0, True)
for x in rdx(0) + rdw(0, 0) + rdw(0, 1): a(x)
a.fq = S
flag1 = False
for c in range(8):
    X = XF + 16*(c & 1)
    late = rdw(c, 2) + rdw(c, 3)
    if OPT['w1']: a.wait_lg(a.pend[('v', X+12)][1])
    for i in range(4):
        if OPT['w1'] and i == 2: a.wait_lg(a.pend[('v', WF+10)][1])
        for d in range(4 if OPT['nodot'] < 2 else 0):
            a(f'v_dot2c_f32_bf16 {v(SU+(d&1))}, {sONES}, {v(X+4*i+d)}'); a(f'v_dot2c_f32_bf16 {v(SQ+(d&1))}, {v(X+4*i+d)}, {v(X+4*i+d)}')
    ncs = OPT['csv'] if 1 <= c < 7 else 0
    if ncs:
        cq = []
        for d in range(4 - ncs, 4):
            for ft in range(3): cq += [lo(240+2*ft, WF+4*ft+d), hi(241+2*ft, WF+4*ft+d)]
            for ft in range(3): cq += [f'v_add_f32 v{246+ft}, v{246+ft}, v{240+2*ft}', f'v_add_f32 v{249+ft}, v{249+ft}, v{241+2*ft}']
        a.fq = cq + a.fq; nrest = len(a.fq) - len(cq)
    for d in range(4 - ncs):
        for ft in range(3): a(f'v_dot2c_f32_bf16 {v(CS+ft)}, {sONES}, {v(WF+4*ft+d)}')
    if c == 7:
        a.drain_f()
        if OPT['csv']:
            for ft in range(3): a.fq += [f'v_add_f32 v{246+ft}, v{246+ft}, v{249+ft}']
            for ft in range(3): a.fq += [f'v_add_f32 {v(CS+ft)}, {v(CS+ft)}, v{246+ft}']
        for ft in range(3): a.fq += [hi(192+ft, CS+ft), f'v_sub_f32 v{195+ft}, {v(CS+ft)}, v{192+ft}']
        for ft in range(3): a.fq += [f'v_cvt_pk_bf16_f32 v{192+ft}, v{192+ft}, v{195+ft}', f'ds_write_b32 {v(vCSW)}, v{192+ft} offset:{1024*ft}']
        a.fq += stats
    def mm(i, ft):
        cin = '0' if (c == 0 and i == 0) else v(ACC+16*ft, 16)
        return f'v_mfma_f32_32x32x16_bf16 {v(ACC+16*ft,16)}, {v(WF+12*i+4*ft,4)}, {v(X+4*i,4)}, {cin}'
    for i in range(3):
        for ft in range(3):
            a(mm(i, ft))
            for x in late[:3]: a(x)
            late = late[3:]
            if 4 <= c < 7 and (i, ft) == (2, 0): a.peek(0)
            if c == 7 and (i, ft) == (2, 0):
                a.drain_f(len(a.fq) - len(stats))
                a.post(1)
    if ncs: a.drain_f(len(a.fq) - nrest)
    if c == 0 and OPT['csv']:
        for q in range(6): a(f'v_mov_b32 v{246+q}, 0')
    if not flag1 and a.t - ust_t > OPT['f1d']:
        a.wait_vm(ust); a.flag_store(1); flag1 = True
    if c < 4: a.bar(f'c{c+1}')
    elif c < 7: a.expect(0, c - 3, True)
    a.stamp(1)
    nxt_ = rdx(c+1) + rdw(c+1, 0) + rdw(c+1, 1) if c < 7 else []
    for ft in range(3):
        a(mm(3, ft))
        if c == 7 and ft == 0: a.peek(1)
        if c == 7 and ft == 1:
            a.expect(1, 1, True)
            nxt_ = [f'ds_read_b128 {v(AX+4*q,4)}, {v(vCSR)} offset:{1024*q}' for q in range(3)]
        for x in nxt_[:6]: a(x)
        nxt_ = nxt_[6:]
a.drain_f()
for ft in range(3):
    a(f'v_mfma_f32_32x32x16_bf16 {v(ACC+16*ft,16)}, {v(AX+4*ft,4)}, {v(BX,4)}, {v(ACC+16*ft,16)}')
a.stamp(0, True); a.stamp(4)

CA, DU, DR = 160, 192, 208
def FA(set_, mu): return (80 if set_ == 0 else 32) + 4*mu
def FB(set_, nu): return 112 + 4*nu if set_ == 0 else (64 + 4*nu if nu < 4 else 144 + 4*(nu-4))
def rdA(rp, mu): return f'ds_read_b128 {v(FA(rp&1,mu),4)}, {v(vUA)} offset:{512*mu - 64*rp + 192}'
def rdB(rp, nu): return [f'ds_read_b64 {v(FB(rp&1,nu)+2*h,2)}, {v(vHA)} offset:{512*nu + 64*rp + 8*h}' for h in range(2)]
def reads(rp):
    r = rdB(rp, 0) + [rdA(rp, mu) for mu in range(8)]
    for nu in range(1, 8): r += rdB(rp, nu)
    return r
TS, HO = 144, 168
first = reads(0)
for fr in range(6):
    base = ACC + 8*fr; t = TS + 8*(fr & 1); o = HO + 4*(fr & 1)
    if fr == OPT['ubar']: a.expect(0, 4, True)
    def side(n):
        if fr >= OPT['ubar']:
            for x in first[:n]: a(x)
            del first[:n]
    for p in range(4): a(f'v_pk_mul_f32 {v(t+2*p,2)}, {v(base+2*p,2)}, {v(vC3,2)} op_sel_hi:[1,0]')
    side(6)
    for q in range(8): a(f'v_exp_f32 {v(t+q)}, {v(t+q)}')
    side(6)
    for p in range(4): a(f'v_pk_fma_f32 {v(t+2*p,2)}, {v(t+2*p,2)}, {v(vS,2)}, {v(vS,2)} op_sel_hi:[1,0,0]')
    if fr == OPT['ubar'] - 1: a.peek(0)
    for q in range(8): a(f'v_rcp_f32 {v(t+q)}, {v(t+q)}')
    for p in range(4): a(f'v_pk_mul_f32 {v(t+2*p,2)}, {v(t+2*p,2)}, {v(base+2*p,2)}')
    for p in range(4): a(f'v_cvt_pk_bf16_f32 {v(o+p)}, {v(t+2*p)}, {v(t+2*p+1)}')
    so, im = (sHS, fr*1024) if fr < 4 else (sHS3, (fr-4)*1024)
    a.stamp(4)
    hst = a(f'buffer_store_dwordx4 {v(o,4)}, {v(vL16)}, {srd(WS)}, {so} offen offset:{im} sc1')
    a.stamp(4)
a.stamp(0, True)
if OPT['ubar'] == 6:
    a.expect(0, 4, True)
    for x in first[:12]: a(x)
    del first[:12]

G2A, XR, XS, YR, XU, DM, YU = 32, 32, 152, 208, 160, 176, 192
AFD = OPT['afd']
AFB = [64, 72, 144, 12, 20][:AFD+1]
RING = list(range(80, 144, 4)) + [240, 244, 248] + [24, 20, 16, 12][:2*(4-AFD)]
NR = len(RING)
def hreg(s): return RING[s % NR]
def rd2(s):
    o = w2slot(s); k = 2 * (o // 61440); o -= 30720 * k
    return [f'ds_read_b64_tr_b16 {v(AFB[s%(AFD+1)]+4*dt+2*rd,2)}, {v(AR+k+dt)} offset:{o + rd*1024}' for dt in (1, 0) for rd in range(2)]
hops = {}
def hld(s):
    def f():
        if OPT['nohl']: return
        if s % 4 == 0: a(f's_add_u32 {sA}, {sHL}, {0 if OPT["hhot"] else s*1024}')
        a(f'buffer_load_dwordx4 {v(hreg(s),4)}, {v(vL16)}, {srd(WS)}, {sA} offen offset:{(s%4)*1024}' + ['', ' sc1', ' nt'][OPT['hfl']])
    hops[s] = f
    return f
def hgate(peeked):
    a.stamp(); a.expect(0, 5, peeked); a.stamp()
    for s in range(OPT['hburst']):
        if s == OPT['hburst'] - 2 and OPT['gate'] == 1: a.peek(0)
        a.do(hld(s))
    a.gap = OPT['hgap']
    a.vq = [hld(s) for s in range(OPT['hburst'], NR)]
cnt = 0
for rp in range(4):
    rd = (first if rp == 0 else []) + (reads(rp + 1) if rp < 3 else [])
    order = [(nu, mu) for nu in range(8) for mu in range(8 - nu)]
    if rp == 3: order = [(nu, j - nu) for j in range(8) for nu in range(j + 1)]
    wq = []
    for idx, (nu, mu) in enumerate(order):
        j = nu + mu
        if rp == 2 and idx == 27:
            assert not rd
            a.post(3)
        if rp == 2 and idx == 33: a.peek(1)
        if rp == 3 and idx == 3: a.expect(1, 3, True)
        if rp == 3 and OPT['gate'] == 0:
            if idx == max(OPT['gidx'] - 5, 3): a.peek(0)
            if idx == max(OPT['gidx'], 6): hgate(True)
        if cnt == OPT['sig2']:
            a.stamp(); a.wait_vm(hst); a.stamp(); a.flag_store(2)
            if OPT['selft']:
                a.do([f's_mov_b64 exec, {sSELF}', f'buffer_load_dword v254, v10, {srd(WS)}, {sHS} offen sc1', 's_mov_b64 exec, -1'])
            a.post(2, False)
        cin = '0' if (rp == 0 and nu == 0) else v(CA+4*j, 4)
        a(f'v_mfma_f32_16x16x32_bf16 {v(CA+4*j,4)}, {v(FA(rp&1,mu),4)}, {v(FB(rp&1,nu),4)}, {cin}')
        cnt += 1
        for _ in range(2 if (rp == 0 and cnt <= 8) else 1):
            if rd: a(rd.pop(0))
        if rp == 3:
            if mu == 0: wq.append((idx + 6, j))
            if idx >= 7 and idx % 4 == 3 and wq and wq[0][0] <= idx:
                jj_ = wq.pop(0)[1]; a(f'ds_write_b128 {v(vXW)}, {v(CA+4*jj_,4)} offset:{1024*jj_}')
    assert not rd
a.drain_f()
a.stamp()
for _, j in wq: a(f'ds_write_b128 {v(vXW)}, {v(CA+4*j,4)} offset:{1024*j}')
if OPT['gate'] == 1: a.peek(0)
a.post(4)
a.stamp(0, True)
if OPT['gate'] == 1: hgate(True)
a.stamp(5); a.expect(0, 6, OPT['gate'] == 1); a.stamp(5)
for q in range(AFD):
    for x in rd2(q): a(x)

pre = []
for k in range(8): pre += [lo(XU+2*k, XS+k), hi(XU+2*k+1, XS+k)]
for k in range(16): pre.append(f'v_sub_f32 {v(DM+k)}, {v(XU+k)}, v232')
for k in range(16): pre.append(f'v_mul_f32 {v(DM+k)}, {v(DM+k)}, v233')
post_ = []
for k in range(8): post_ += [lo(YU+2*k, YR+k), hi(YU+2*k+1, YR+k)]
for k in range(16): post_.append(f'v_fmac_f32 {v(XU+k)}, {v(DM+k)}, {v(YU+k)}')
yreads = [f'ds_read_b32 {v(YR+4*grp+q)}, {v(vYR)} offset:{(8*grp+q)*256}' for grp in range(2) for q in range(4)]
def g2mm(s, dt):
    cin = '0' if s == 0 else v(G2A+16*dt, 16)
    return f'v_mfma_f32_32x32x16_bf16 {v(G2A+16*dt,16)}, {v(AFB[s%(AFD+1)]+4*dt,4)}, {v(hreg(s),4)}, {cin}'
assert OPT['lastk'] <= AFD
for s in range(43):
    if s > 0 and s + NR - 1 < 43: a.vq.append(hld(s + NR - 1))
    if s == 10: a.post(6, False); a.stamp()
    if s == 20: a.post(8, False)
    if s == 28 - AFD: a.stamp(5); a.expect(0, 8, True); a.stamp(); a.stamp(5)
    side = rd2(s + AFD) if s + AFD < 43 else []
    if s == OPT['pres']: side += [f'ds_read_b128 {v(XS,4)}, {v(vSTa)}', f'ds_read_b128 {v(XS+4,4)}, {v(vSTb)}', f'ds_read_b64 v[232:233], {v(vSTS)}']
    if s == OPT['pres'] + 2: a.fq += pre
    if s == 28: a.expect(1, 8, True)
    if s == 36 - AFD: a.stamp(5); a.expect(0, 9, True); a.stamp(5)
    if s == OPT['ybar']:
        a.stamp(); a.stamp(5); a.expect(0, 10, True); a.stamp(); a.stamp(5)
        side += yreads
    if s == OPT['ybar'] + 2: a.fq += post_
    if hops[s] in a.vq: a.drain_v(hops[s])
    h = (len(side) + 1) // 2
    for dt in (1, 0):
        if dt == 0 and s >= 43 - OPT['lastk']: continue
        if OPT['onew'] and dt == 1:
            a.service(True)
            if ('v', hreg(s)) in a.pend: a.wait_vm(a.pend[('v', hreg(s))][1])
            a.wait_lg(a.pend[('v', AFB[s%(AFD+1)]+2)][1])
        a(g2mm(s, dt))
        for x in side[:h]: a(x)
        side = side[h:]
    for x in side: a(x)
    if s + 2 in (28 - AFD, 36 - AFD, OPT['ybar']): a.peek(0)
    if s == 26: a.peek(1)
wr_ = [f'ds_write_b128 {v(vE2W)}, {v(G2A+16+4*k,4)} offset:{1024*k}' for k in range(4)]
for s in range(43 - OPT['lastk'], 43):
    a(g2mm(s, 0))
    if s > 43 - OPT['lastk']: a(wr_.pop(0))
for x in wr_: a(x)
a.stamp(0, True); a.stamp(5)
if not OPT['fbar']: a.post(9)
a.drain_f()
for k in range(8): a(f'v_pk_add_f32 {v(XU+2*k,2)}, {v(XU+2*k,2)}, {v(G2A+2*k,2)}')
if OPT['fbar']:
    a.wait_all_lg(); a('s_barrier')
else: a.expect(1, 9)
for k in range(4): a(f'ds_read_b128 {v(64+4*k,4)}, {v(vE2R)} offset:{1024*k}')
for h in range(2):
    for k in range(4*h, 4*h+4): a(f'v_pk_add_f32 {v(XU+2*k,2)}, {v(XU+2*k,2)}, {v(64+2*k,2)}')
    for k in range(4*h, 4*h+4): a(f'v_cvt_pk_bf16_f32 {v(96+k)}, {v(XU+2*k)}, {v(XU+2*k+1)}')
    a(f'ds_write_b128 {v((vOTa, vOTb)[h])}, {v(96+4*h,4)}')
a.wait_all_lg()
a(f'ds_read_b128 v[104:107], {v(vOTR)}'); a(f'ds_read_b128 v[108:111], {v(vOTR)} offset:1024')
a(f'buffer_store_dwordx4 v[104:107], {v(vOUT)}, {srd(OUT)}, {sO0} offen{OSC}')
a(f'buffer_store_dwordx4 v[108:111], {v(vOUT)}, {srd(OUT)}, {sO1} offen{OSC}')
a.stamp()
print('estimated compute cycles', a.est, file=sys.stderr)
a.finish()
assert L.bars == C.bars, (L.bars, C.bars)

lines = P.lines + L1lines + ['L_compute:'] + C.lines + L.lines + ['L_end:', '    s_endpgm']
if OPT['skel']:
    drop = ('v_mfma', 'v_dot', 'v_pk_', 'v_exp', 'v_rcp', 'ds_read_b64', 'v_fmac', 'v_mul_f32', 'v_cvt_pk', 'ds_write_b128', 'v_perm_b32', 'v_add_f32', 'v_sub_f32')
    lines = [l for l in lines if not l.strip().startswith(drop)]
hdr = open('parallel_sum__ssm_conv_h3__dense_activation_silu__prompt.s.ref').read().split('\n')
hdr = [l for l in hdr if l.startswith(';') and '@launch' not in l]
out = '\n'.join(hdr) + f'\n; @launch grid=(256,1,1) block=(512,1,1) lds={LDS_SIZE}\n'
out += f'''.amdgcn_target "amdgcn-amd-amdhsa--gfx950"
.text
.globl {NAME}
.p2align 8
.type {NAME},@function
{NAME}:
''' + '\n'.join(lines) + f'''
.section .rodata,"a"
.p2align 6
.amdhsa_kernel {NAME}
  .amdhsa_next_free_vgpr 256
  .amdhsa_next_free_sgpr 102
  .amdhsa_accum_offset 256
  .amdhsa_group_segment_fixed_size 0
  .amdhsa_kernarg_size 96
  .amdhsa_user_sgpr_count 2
  .amdhsa_user_sgpr_kernarg_segment_ptr 1
  .amdhsa_system_sgpr_workgroup_id_x 1
.end_amdhsa_kernel
'''
open(sys.argv[1], 'w').write(out)
print(dbg, file=sys.stderr)
print('lines', len(lines), 'stamps L/C', L.nstamp, C.nstamp, file=sys.stderr)
```

```python
import sys
from emit import Asm

NAME = "parallel_sum__ssm_conv_h3__dense_activation_silu__prompt_kernel"
OPT = dict(stamps=0, sg=0, probe=-2, base=60000, who=1, skel=0,
           map=0, rot=0, prio=1, look=10, lookkv=4, cap=8, hat=8, t2at=-2, t3at=-2, upat=8, ulat=16, ubat=24,
           pwat=34, s2at=42, psleep=2, pdelay=0, f1d=1000, ubar=5, sig2=50, sig3=2, hburst=7, hgap=46,
           g2at=24, ybar=37, osc=1, ht=0, ydelay=0, lprio=0, t2mode=0, spf=0, sw2=0, hp=1, dsx=4, ntkv=1, ntx=0, nth=0, na=43, wper=2, gate=1, afd=4, nx=0, esl=4, nodma=0, nohl=0, notail=0, nodot=0, nosync=0, kvfirst=1, yk=3, yp=12, yc=4, lspf=0, t1=1, pc=9, res=4, lastk=4, fbar=1, fpre=1, tp=0, duat=20, cpf=0, th=0, w1=1, csv=0, early=1, cap1=10, pair=0, s2skip=0, cap3=6, pres=2, udef=1, tlb=1, tlbm=1, look0=7, onew=1, w64=0, wsl=0, yprio=2, jit=0, wc=20, gidx=0, hhot=0, hfl=1, wm=14, wk=10, bg=0, bgfrom=2, selft=0, tw=1, cap2=6)
for x in sys.argv[2:]:
    k, v = x.split('='); assert k in OPT, k; OPT[k] = int(v)

WS_E, WS_FLAG, WS_STAMP, WS_U, WS_Y, WS_H, WS_SIZE = 0, 0x80000, 0x40000, 0x100000, 0x300000, 0x500000, 0x1000000
FPH = 0x20000
OOB = 0x7f000000
SLOT = 28672
CV = 114688; CVCH = 9216; U1OFF = 4640; HBASE = CV + 18432; HCH = 8448; HBD = 4228
KB, VB, SB = CV, CV + 8192, CV + 9216 + 8192
XST = 150016; STATS = 158208; CSUM = 159232; PW = CSUM + 3072
LDS_SIZE = 163840
def w2slot(s): return (s if s < 36 else s - 36) * 4096
YT, EX, OT = 8*4096, 12*4096, 10*4096
Q, K, V, SH, HK, W1, W2, OUT, WS = 4, 8, 12, 16, 20, 24, 28, 32, 36
def srd(r): return f's[{r}:{r+3}]'
sD, sE, sT, sM1, st, sDS, sCP, sW, sWV, sTAG, sNTAG, sP0 = [f's{i}' for i in range(42, 54)]
sXO, sW1O, sHS, sHS3, sW2O, sHL = [f's{i}' for i in range(54, 60)]
sM0W, sW4K, sW3K, sSELLO, sSELHI, sONES = [f's{i}' for i in range(62, 68)]
sPAIR = 's[68:69]'
sSPIN, sTH, sKH, sMASK, sW2K, sI = [f's{i}' for i in range(70, 76)]
sHM0, sHSO, sD0, sD1, sA, sB, sG, sUS0 = [f's{i}' for i in range(76, 84)]
sUS1 = 's86'
sUL, sYS0, sYS1, sYL, sO0, sO1, sROT, sC = [f's{i}' for i in range(88, 96)]
sSTASH = 's101'
def v(n, c=1): return f'v{n}' if c == 1 else f'v[{n}:{n+c-1}]'
OSC = ' sc1' if OPT['osc'] else ''
vL16, vSTAMP, vFL, vPWB, vPWM, vPWT = 2, 31, 28, 29, 30, 255

class Prog(Asm):
    def __init__(self, name, pwr):
        super().__init__(); self.name = name; self.bars = []; self.nstamp = 0; self.pwr = pwr
    def label(self):
        self.nlabel += 1; return f'{self.name}{self.nlabel}'
    def bar(self, tag, lg=True):
        self.lock()
        if lg: self.wait_all_lg()
        self('s_barrier'); self.bars.append(tag)
        self.unlock()
    def post(self, n, lg=True):
        self.lock()
        self(f'v_mov_b32 {v(vPWT)}, {n}')
        if lg: self.wait_all_lg()
        self('s_mov_b64 exec, 1')
        self(f'ds_write_b32 {v(vPWM)}, {v(vPWT)}')
        self('s_mov_b64 exec, -1')
        self.unlock()
    def peek(self, grp):
        self(f'ds_read_b128 {v(self.pwr,4)}, {v(vPWB)} offset:{16*grp}')
    def expect(self, grp, n, peeked=False, sleep=0):
        r = self.pwr
        self.lock()
        if not peeked: self.peek(grp)
        top, done = self.label(), self.label()
        self.wait_lg(self.pend[('v', r)][1])
        self.place(top)
        self(f'v_min3_u32 {v(r)}, {v(r)}, {v(r+1)}, {v(r+2)}')
        self(f'v_min_u32 {v(r)}, {v(r)}, {v(r+3)}')
        self(f'v_cmp_gt_u32 vcc, {n}, {v(r)}')
        self(f's_cbranch_vccz {done}')
        t0 = self.t
        if sleep: self(f's_sleep {sleep}')
        self(f'ds_read_b128 {v(r,4)}, {v(vPWB)} offset:{16*grp}', track=False)
        self('s_waitcnt lgkmcnt(0)')
        self(f's_branch {top}')
        self.place(done)
        self.t = t0 + (0 if peeked else 100)
        self.unlock()
    def stamp(self, g=0, coarse=False):
        if coarse and OPT['sg'] == 3: g = 3
        if OPT['jit'] and self.name != 'P':
            self.njit = getattr(self, 'njit', 0) + 1
            self.lock()
            l = self.label()
            self(f's_lshl_b32 s96, s2, 3'); self(f's_add_u32 s96, s96, {sWV}'); self(f's_add_u32 s96, s96, {sTAG}')
            self(f's_mul_i32 s96, s96, {(2654435761 * (2 * self.njit + 1 + OPT["jit"] * 64)) & 0xffffffff}'); self('s_lshr_b32 s96, s96, 28')
            self('s_cmp_gt_u32 s96, 2'); self(f's_cbranch_scc1 {l}')
            self(f's_sleep {(20, 60, 127)[self.njit % 3]}')
            self.place(l)
            self.unlock()
        if g == 0: self.est = getattr(self, 'est', []) + [int(self.t)]
        if not OPT['stamps'] or g != OPT['sg']: return
        k = self.nstamp; self.nstamp += 1
        self.lock(); self.wait_all_lg()
        self('s_memtime s[96:97]'); self('s_waitcnt lgkmcnt(0)')
        self('s_sub_u32 s96, s96, s3')
        self(f'v_writelane_b32 {v(vSTAMP)}, s96, {k}')
        self.unlock()
    def dma(self, vaddr, rs, soff, m0expr, extra='', track=True):
        self(m0expr)
        return self(f'buffer_load_dwordx4 {v(vaddr)}, {srd(rs)}, {soff} offen{extra} lds', track=track)
    def flag_store(self, phase):
        self.lock()
        self(f's_mov_b32 {sG}, {(phase-1)*FPH}')
        self('s_mov_b64 exec, 0xffff')
        self(f'buffer_store_dwordx2 v[252:253], {v(vFL)}, {srd(WS)}, {sG} offen sc1')
        self('s_mov_b64 exec, -1')
        self.unlock()
    def poll_issue(self, vaddr, dst, mask):
        self(f's_mov_b64 exec, {mask}')
        r = self(f'buffer_load_dwordx2 {v(dst,2)}, {v(vaddr)}, {srd(WS)}, 0 offen sc1')
        self('s_mov_b64 exec, -1')
        return r
    def poll_check(self, vaddr, dst, mask):
        self.lock()
        top, done = self.label(), self.label()
        self(f's_mov_b32 {sSPIN}, 0')
        self(f's_mov_b64 exec, {mask}')
        self.wait_vm(self.pend[('v', dst)][1])
        self.place(top)
        self(f'v_cmp_eq_u32 vcc, {sTAG}, {v(dst)}')
        self(f'v_cmp_eq_u32 {sPAIR}, {sNTAG}, {v(dst+1)}')
        self(f's_and_b64 vcc, vcc, {sPAIR}')
        self('s_cmp_eq_u64 vcc, exec')
        self(f's_cbranch_scc1 {done}')
        self(f's_add_u32 {sSPIN}, {sSPIN}, 1')
        self(f's_cmp_gt_u32 {sSPIN}, {0 if OPT["nosync"] else 0x20000}')
        self(f's_cbranch_scc1 {done}')
        self(f's_sleep {OPT["psleep"]}')
        self(f'buffer_load_dwordx2 {v(dst,2)}, {v(vaddr)}, {srd(WS)}, 0 offen sc1', track=False)
        self('s_waitcnt vmcnt(0)')
        self(f's_branch {top}')
        self.place(done)
        self('s_mov_b64 exec, -1')
        self.unlock()
    def finish(self):
        a = self
        if OPT['stamps']:
            a('s_waitcnt vmcnt(0)')
            a.stamp(OPT['sg'])
            if OPT['probe'] > -2 and (a.name == 'C') == (OPT['who'] == 1):
                a(f's_mov_b32 s60, {OPT["base"]}')
                if OPT['probe'] == 99:
                    a('s_load_dwordx2 s[84:85], s[0:1], 80'); a('s_mov_b32 s86, 256'); a('s_mov_b32 s87, 0x20000'); a('s_waitcnt lgkmcnt(0)')
                    a(f'v_readlane_b32 s61, {v(vSTAMP)}, 31'); a('v_mov_b32 v128, 0'); a('v_mov_b32 v129, s61'); a('v_not_b32 v130, v129')
                    lz = a.label()
                    a(f's_cmp_lg_u32 {sW}, 0'); a(f's_cbranch_scc1 {lz}')
                    a('s_mov_b64 exec, 1')
                    a('buffer_atomic_umax v129, v128, s[84:87], 0 offen sc1'); a('buffer_atomic_umax v130, v128, s[84:87], 0 offen offset:128 sc1')
                    a('s_mov_b64 exec, -1')
                    a.place(lz)
                    l = a.label(); a.place(l)
                    a('s_memtime s[96:97]'); a('s_waitcnt lgkmcnt(0)'); a('s_sub_u32 s96, s96, s3'); a('s_cmp_lt_u32 s96, 70000'); a(f's_cbranch_scc1 {l}')
                    a('buffer_load_dword v131, v128, s[84:87], 0 offen sc1'); a('buffer_load_dword v132, v128, s[84:87], 0 offen offset:128 sc1')
                    a('v_not_b32 v132, v132'); a('v_sub_u32 v131, v131, v132'); a('v_readfirstlane_b32 s61, v131'); a('s_mul_i32 s61, s61, 95'); a('s_add_u32 s60, s60, s61')
                elif OPT['probe'] >= 0:
                    a(f'v_readlane_b32 s61, {v(vSTAMP)}, {OPT["probe"]}'); a('s_add_u32 s60, s60, s61')
                l = a.label(); a.place(l)
                a('s_memtime s[96:97]'); a('s_waitcnt lgkmcnt(0)'); a('s_sub_u32 s96, s96, s3'); a('s_cmp_lt_u32 s96, s60'); a(f's_cbranch_scc1 {l}')
            a('s_lshl_b32 s60, s2, 3'); a(f's_add_u32 s60, s60, {sWV}'); a('s_lshl_b32 s60, s60, 7'); a(f's_add_u32 s60, s60, {WS_STAMP}')
            a('v_lshlrev_b32 v128, 2, v1')
            a('s_mov_b64 exec, 0xffffffff')
            a(f'buffer_store_dword {v(vSTAMP)}, v128, {srd(WS)}, s60 offen')
        a('s_endpgm')

def lo(d, s): return f'v_lshlrev_b32 {v(d)}, 16, {v(s)}'
def hi(d, s): return f'v_and_b32 {v(d)}, {sMASK}, {v(s)}'

P = a = Prog('P', 0)
a('s_cmp_ge_u32 s2, 256')
a('s_cbranch_scc1 L_end')
if OPT['stamps']:
    a('s_memtime s[68:69]'); a('s_memrealtime s[70:71]'); a('s_waitcnt lgkmcnt(0)'); a('s_mov_b32 s3, s68')
    a(f'v_mov_b32 {v(vSTAMP)}, 0'); a(f'v_writelane_b32 {v(vSTAMP)}, s70, 31')
a('s_load_dwordx16 s[76:91], s[0:1], 0')
a('s_load_dwordx8 s[92:99], s[0:1], 64')
a('v_lshrrev_b32 v3, 6, v0')
a('v_and_b32 v1, 63, v0')
a('s_getpc_b64 s[60:61]')
a.place('L_pc')
a(f'v_readfirstlane_b32 {sWV}, v3')
a(f's_lshr_b32 {sI}, s2, 3')
a('v_lshlrev_b32 v39, 7, v1')
if OPT['cpf']:
    a(f's_lshl_b32 s62, {sWV}, 5'); a(f's_add_u32 s62, s62, {sI}'); a('s_mul_i32 s63, s62, 683'); a('s_lshr_b32 s63, s63, 16')
    a('s_mul_i32 s63, s63, 96'); a('s_sub_u32 s62, s62, s63'); a('s_lshl_b32 s62, s62, 8')
    a('v_add_u32 v3, s62, v39')
    a('v_min_u32 v3, L_end-L_pc, v3')
    a('s_mov_b64 exec, 3')
else:
    a(f's_and_b32 s62, {sI}, 7'); a('s_lshl_b32 s62, s62, 12')
    a(f's_cmp_ge_u32 {sWV}, 4'); a('s_cselect_b32 s62, s62, 0')
    a(f's_lshl_b32 s63, {sWV}, 10'); a('s_add_u32 s62, s62, s63')
    a('v_add_u32 v3, s62, v39')
    a('v_min_u32 v3, L_end-L_pc, v3')
    a('s_mov_b64 exec, 0xff')
a('global_load_dword v254, v3, s[60:61]', track=False)
a('s_mov_b64 exec, -1')
a(f's_and_b32 {sW}, {sWV}, 3')
a('s_and_b32 s60, s2, 7')
lg = OPT['map']
a(f's_lshr_b32 {sT}, s60, {lg}'); a(f's_lshl_b32 {sT}, {sT}, {1+lg}')
a(f's_and_b32 s61, {sI}, {(2<<lg)-1}'); a(f's_add_u32 {sT}, {sT}, s61')
a(f's_and_b32 {sM1}, s60, {(1<<lg)-1}'); a(f's_lshl_b32 {sM1}, {sM1}, {4-lg}')
a(f's_lshr_b32 s61, {sI}, {1+lg}'); a(f's_add_u32 {sM1}, {sM1}, s61')
a(f's_and_b32 s61, {sM1}, 1')
a(f's_lshl_b32 {st}, {sT}, 1')
a(f's_add_u32 {st}, {st}, s61')
a(f's_lshr_b32 {sDS}, {sM1}, 1')
if OPT['dsx']: a(f's_xor_b32 {sDS}, {sDS}, {OPT["dsx"]}')
a(f's_lshl_b32 {sW2K}, {sW}, 11')
a(f'v_lshlrev_b32 {v(vL16)}, 4, v1')
a(f's_cmp_ge_u32 {sWV}, 4')
a('s_cbranch_scc1 L_compute')
def common2(a):
    a(f's_lshl_b32 {sCP}, {sDS}, 5'); a(f's_add_u32 {sCP}, {sCP}, {st}')
    a(f's_lshl_b32 {sW4K}, {sW}, 12'); a(f's_lshl_b32 {sM0W}, {sW}, 10')
    a(f's_and_b32 {sTH}, {sW}, 1'); a(f's_lshr_b32 {sKH}, {sW}, 1')
    a(f's_mul_i32 {sP0}, {sM1}, 3'); a(f's_lshl_b32 s60, {sM1}, 1'); a('s_add_u32 s60, s60, 11'); a(f's_min_u32 {sP0}, {sP0}, s60')
    a(f's_mov_b32 s{WS+2}, {WS_SIZE}'); a(f's_mov_b32 s{WS+3}, 0x20000')
    a(f'v_mov_b32 {v(vPWB)}, {PW}'); a(f's_lshl_b32 s60, {sWV}, 2'); a(f'v_add_u32 {v(vPWM)}, s60, {v(vPWB)}')

L = a = Prog('L', 56)
vXA, vWA, vKD, vHALO, vT43, vW2A, vW2W, vP2, vP3 = 4, 8, 12, 14, 15, 16, 17, 18, 19
vP1, vUL, vULp, vUW, vZU, vZH, vW2W2, vW2W3, UR, PO, WT = 22, 23, 24, 25, 26, 27, 11, 3, 236, 40, 64
vXRd, vYS, vDU, XRL, DUL, DRL, TB = 246, 247, 248, 64, 96, 112, 128
if OPT['lprio']: a(f's_setprio {OPT["lprio"]}')
for r, n in ((W1, 1409024), (Q, 2097152), (K, 2097152), (V, 2097152), (SH, 4096)):
    a(f's_mov_b32 s{r+2}, {n}'); a(f's_mov_b32 s{r+3}, 0x20000')
a(f'v_min_u32 {v(vT43)}, {42*128}, v39')
a('v_lshrrev_b32 v33, 3, v1'); a('v_and_b32 v34, 7, v1'); a('v_lshlrev_b32 v33, 10, v33')
a(f's_lshl_b32 s60, {st}, 16'); a(f's_lshl_b32 s61, {sW}, 14'); a('s_add_u32 s60, s60, s61')
a(f's_lshl_b32 s61, {sDS}, 7'); a(f's_add_u32 {sSTASH}, s60, s61')
a('v_lshrrev_b32 v35, 5, v1'); a('v_xor_b32 v35, v35, v34'); a('v_lshl_add_u32 v38, v35, 4, v33')
a(f's_lshl_b32 s60, {sW}, 6'); a('s_and_b32 s60, s60, 64'); a('s_xor_b32 s61, s60, 32')
a(f'v_xor_b32 {v(vKD)}, s61, v38')
a('s_xor_b32 s61, s60, 64')
a(f'v_xor_b32 {v(vKD+1)}, s61, v38'); a(f'v_add_u32 {v(vKD+1)}, 8192, {v(vKD+1)}')
a(f'v_add_u32 v38, {sSTASH}, v38'); a(f'v_subrev_u32 {v(vHALO)}, 8192, v38')
a(f's_lshl_b32 {sXO}, {sT}, 17')
a('s_waitcnt lgkmcnt(0)')
a(f's_mov_b64 s[{W1}:{W1+1}], s[90:91]')
a(f's_mov_b64 s[{Q}:{Q+1}], s[76:77]')
a(f's_mov_b64 s[{K}:{K+1}], s[78:79]')
a(f's_mov_b64 s[{V}:{V+1}], s[80:81]')
a(f's_mov_b64 s[{SH}:{SH+1}], s[82:83]')
seq = {}
def first_touch():
    l = [a.label() for _ in range(2)]
    a(f's_cmp_lg_u32 {sW}, 2'); a(f's_cbranch_scc1 {l[0]}')
    a(f's_mul_i32 s60, s2, {43*128}')
    a(f'buffer_load_dword v254, {v(vT43)}, {srd(W1)}, s60 offen', track=False); a(f's_branch {l[1]}')
    a.place(l[0])
    a(f's_lshl_b32 s61, {sM1}, 13'); a(f's_add_u32 s60, {sXO}, s61')
    a(f'buffer_load_dword v254, v39, {srd(Q)}, s60 offen' + ' nt' * OPT['ntx'], track=False)
    a.place(l[1])
def kv4():
    for rs, base in ((K, KB), (V, VB)):
        for n in range(2): seq['kv'] = a.dma(vKD+n, rs, sSTASH, f's_add_u32 m0, {sW2K}, {base + 1024 + n*1024}', ' nt' * OPT['ntkv'])
l = [a.label() for _ in range(4)]
a(f's_cmp_ge_u32 {sW}, 2'); a(f's_cbranch_scc1 {l[0]}')
a(f's_cmp_lg_u32 {sW}, 0'); a(f's_cbranch_scc1 {l[2]}')
a.dma(vHALO, K, '0', f's_mov_b32 m0, {KB}', track=False); a(f's_branch {l[3]}')
a.place(l[2])
a(f's_lshl_b32 s60, {sDS}, 9')
a.dma(vL16, SH, 's60', f's_mov_b32 m0, {SB}', track=False)
a(f's_branch {l[3]}')
a.place(l[0])
if not OPT['kvfirst']: first_touch()
a.place(l[3])
kv4()
if OPT['kvfirst'] and OPT['t1']:
    a(f's_cmp_ge_u32 {sW}, 2'); a(f's_cbranch_scc1 {l[1]}')
    if OPT['th']:
        lk, lm = a.label(), a.label()
        a(f's_mov_b64 s[{HK}:{HK+1}], s[84:85]'); a(f's_mov_b64 s[{W2}:{W2+1}], s[92:93]')
        for r, n in ((HK, 2097152), (W2, 1409024)):
            a(f's_mov_b32 s{r+2}, {n}'); a(f's_mov_b32 s{r+3}, 0x20000')
        a(f's_cmp_lg_u32 {sW}, 0'); a(f's_cbranch_scc1 {lk}')
        a(f's_mul_i32 s60, s2, {43*128}')
        a(f'buffer_load_dword v254, {v(vT43)}, {srd(W2)}, s60 offen', track=False); a(f's_branch {lm}')
        a.place(lk)
        a(f's_lshl_b32 s60, {sDS}, 5'); a(f's_add_u32 s60, s60, {st}'); a('s_lshl_b32 s60, s60, 13')
        if OPT['th'] == 1: a('s_mov_b64 exec, 1')
        a(f'buffer_load_dword v254, v39, {srd(HK)}, s60 offen'); a.pend.pop(('v', 254))
        a('s_mov_b64 exec, -1')
        a.place(lm)
    else:
        a('s_mov_b64 exec, 1')
        a(f'buffer_load_dword v254, {v(vL16)}, {srd(SH)}, 0 offen'); a.pend.pop(('v', 254))
        a('s_mov_b64 exec, -1')
    lj = a.label(); a(f's_branch {lj}')
    a.place(l[1])
    first_touch()
    a.place(lj)
a(f's_mov_b64 s[{HK}:{HK+1}], s[84:85]')
a(f's_mov_b64 s[{W2}:{W2+1}], s[92:93]')
a(f's_mov_b64 s[{WS}:{WS+1}], s[98:99]')
a(f's_load_dword {sE}, s[{WS}:{WS+1}], {WS_E}')
common2(a)
a(f's_lshl_b32 s60, {sCP}, 2')
a(f's_load_dword {sD}, s[86:87], s60')
a('v_lshrrev_b32 v32, 4, v1')
a('v_xor_b32 v35, v34, v32')
a(f'v_lshl_add_u32 {v(vXA)}, v35, 4, v33')
a(f'v_xor_b32 {v(vXA+1)}, 64, {v(vXA)}')
a(f'v_add_u32 {v(vXA+1)}, 8192, {v(vXA+1)}')
a(f'v_add_u32 {v(vXA+2)}, 16384, {v(vXA)}')
a(f'v_add_u32 {v(vXA+3)}, 16384, {v(vXA+1)}')
a(f's_lshl_b32 s60, {sW}, 15'); a(f's_add_u32 {sXO}, {sXO}, s60')
a(f's_mul_i32 {sW3K}, {sW}, 3072')
a(f's_cmp_lt_u32 {sM1}, 11')
a('s_cselect_b32 s61, 12, 8')
a(f'v_mov_b32 v3, {OOB}')
for j in range(3):
    if j: a(f'v_add_u32 v36, {64*j}, v1')
    src = 'v36' if j else 'v1'
    a(f'v_mul_u32_u24 v37, 5462, {src}')
    a('v_lshrrev_b32 v37, 16, v37')
    a('v_mul_u32_u24 v35, 12, v37')
    a(f'v_sub_u32 v35, {src}, v35')
    a('v_cmp_gt_u32 vcc, s61, v35')
    a('v_mul_u32_u24 v37, 2752, v37')
    a(f'v_lshl_add_u32 {v(vWA+j)}, v35, 4, v37')
    a(f'v_cndmask_b32 {v(vWA+j)}, v3, {v(vWA+j)}, vcc')
a(f's_mul_i32 {sW1O}, {sW}, {16*2752}'); a(f's_lshl_b32 s60, {sP0}, 6'); a(f's_add_u32 {sW1O}, {sW1O}, s60')
if OPT['rot'] == 1: a(f's_and_b32 {sROT}, {sM1}, 7')
elif OPT['rot'] == 2:
    a(f's_lshl_b32 {sROT}, {sT}, 2'); a(f's_add_u32 {sROT}, {sROT}, {sM1}')
elif OPT['rot'] == 3:
    a(f's_lshr_b32 {sROT}, {sT}, 1'); a(f's_add_u32 {sROT}, {sROT}, {sM1}')
elif OPT['rot'] == 5:
    a(f's_lshl_b32 {sROT}, {sT}, 1'); a(f's_add_u32 {sROT}, {sROT}, {sM1}')
elif OPT['rot'] == 6:
    a(f's_lshl_b32 {sROT}, {sT}, 1')
elif OPT['rot'] == 7:
    a(f's_lshl_b32 {sROT}, {sT}, 2')
elif OPT['rot'] == 4:
    a(f's_add_u32 {sROT}, {sT}, {sM1}')
for r, n in ((HK, 2097152), (W2, 1409024)):
    a(f's_mov_b32 s{r+2}, {n}'); a(f's_mov_b32 s{r+3}, 0x20000')

ops = []
def op(name, gate, fn): ops.append((name, gate, fn))
def touch2():
    if OPT['t2mode']:
        a(f's_lshl_b32 {sG}, {sI}, 2'); a(f's_add_u32 {sG}, {sG}, {sW}')
        if OPT['map'] == 1:
            a(f's_mul_i32 {sG}, {sG}, 43'); a('v_min_u32 v253, 42, v1'); a(f'v_add_u32 v253, {sG}, v253')
            a('v_and_b32 v252, 3, v253'); a('v_lshrrev_b32 v253, 2, v253'); a('v_lshlrev_b32 v253, 10, v253'); a('v_lshl_add_u32 v253, v252, 7, v253')
            a(f's_and_b32 {sG}, {sDS}, 4'); a(f's_lshl_b32 {sG}, {sG}, 7')
            a(f'buffer_load_dword v254, v253, {srd(W2)}, {sG} offen')
        else:
            a(f's_mul_i32 {sG}, {sG}, {86*128}')
            a(f'buffer_load_dword v254, {v(vT43)}, {srd(W2)}, {sG} offen')
            a(f's_add_u32 {sG}, {sG}, {43*128}')
            a(f'buffer_load_dword v253, {v(vT43)}, {srd(W2)}, {sG} offen')
        return
    l = a.label()
    a(f's_cmp_lg_u32 {sW}, 2'); a(f's_cbranch_scc1 {l}')
    a(f's_mul_i32 {sG}, s2, {43*128}')
    a(f'buffer_load_dword v254, {v(vT43)}, {srd(W2)}, {sG} offen', track=False)
    a.place(l)
def touch3():
    l = a.label()
    a(f's_cmp_lg_u32 {sW}, 3'); a(f's_cbranch_scc1 {l}')
    a(f's_mul_i32 {sG}, {sI}, {43*1024}'); a(f'v_lshlrev_b32 v253, 3, {v(vT43)}')
    a(f'buffer_load_dword v254, v253, {srd(W2)}, {sG} offen offset:384', track=False)
    a.place(l)
def add_chunk(c):
    slot = (c % 4) * SLOT
    gate = f'c{c-3}' if c >= 4 else None
    def w(j):
        def f():
            if j == 0:
                if c == OPT['t2at']: touch2()
                if c == OPT['t3at']: touch3()
                if OPT['rot']:
                    a(f's_add_u32 {sC}, {sROT}, {c}'); a(f's_and_b32 {sC}, {sC}, 7')
                    a(f's_mul_i32 {sB}, {sC}, {64*2752}'); a(f's_add_u32 {sB}, {sB}, {sW1O}')
                    a(f's_lshl_b32 {sA}, {sC}, 7'); a(f's_add_u32 {sA}, {sA}, {sXO}')
                else:
                    a(f's_add_u32 {sB}, {sW1O}, {c*64*2752}')
            return a.dma(vWA+j, W1, sB, f's_add_u32 m0, {sW3K}, {slot + 16384 + j*1024}')
        return f
    for j in range(3): op(f'w{c}_{j}', gate, w(j))
    def xo(n):
        if n == 0 and not OPT['rot']: a(f's_add_u32 {sA}, {sXO}, {c*128}')
        return a.dma(vXA+n, Q, sA, f's_add_u32 m0, {sW4K}, {slot + n*1024}')
    for n in range(4): op(f'x{c}_{n}', gate, lambda n=n: xo(n))
def add_h():
    for n in range(4):
        def f(n=n):
            if n == 0 and OPT['t2at'] == -2: touch2()
            if n == 0 and OPT['t3at'] == -2: touch3()
            a(f's_mov_b32 m0, {sHM0}')
            return a(f'buffer_load_dwordx4 {v(vL16)}, {srd(HK)}, {sHSO} offen offset:{n*1024}{" nt" * OPT["nth"]} lds')
        op(f'h{n}', None, f)
def w2op(s):
    if s == 28 and OPT['t2at'] == -3: touch2()
    if s == 28 and OPT['t3at'] == -3: touch3()
    a(f's_add_u32 {sO0}, {sW2O}, {s*16384}')
    return a(f'buffer_load_dwordx4 {v(WT+4*s,4)}, {v(vW2A)}, {srd(W2)}, {sO0} offen')
def uload():
    a.poll_check(vP1, 20, '0x1ff')
    a(f'buffer_load_dwordx4 {v(UR,4)}, {v(vUL)}, {srd(WS)}, {sUL} offen sc1')
    a(f'buffer_load_dwordx4 {v(UR+4,4)}, {v(vUL)}, {srd(WS)}, {sUL} offen offset:16 sc1')
    return a(f'buffer_load_dword {v(UR+8)}, {v(vULp)}, {srd(WS)}, {sUL} offen sc1')
def ubuild():
    if OPT['hp']: a('s_setprio 2')
    a(f'ds_write_b128 {v(vZU)}, v[60:63]'); a(f'ds_write_b32 {v(vZH)}, v60')
    for c in range(2):
        sel = sSELLO if c == 0 else sSELHI
        for k in range(4):
            hi0 = UR + 5 - 2*k if k < 3 else UR + 8
            a(f'v_perm_b32 {v(PO+8*c+k)}, {v(hi0)}, {v(UR+6-2*k)}, {sel}')
        a(f'ds_write_b128 {v(vUW)}, {v(PO+8*c,4)} offset:{c*CVCH}')
        for k in range(4): a(f'v_perm_b32 {v(PO+8*c+4+k)}, {v(UR+6-2*k)}, {v(UR+7-2*k)}, {sel}')
        a(f'ds_write_b128 {v(vUW)}, {v(PO+8*c+4,4)} offset:{c*CVCH+U1OFF}')
    flush_posts(True)
    a.wait_all_lg()
    for c in range(2):
        for jj in range(2):
            for h in range(2): a(f'ds_read_b32 {v(DRL+4*c+2*jj+h)}, {v(vDU)} offset:{c*CVCH + 512*jj + 64*h}')
    a.wait_vm(max(seq['st1'], seq['h3']))
    a.post(4); a.stamp(0, True)
    if OPT['hp']: a('s_setprio 0')
    return a.vm_n
nbg = 0
wlist = list(range(28, 43)) + list(range(OPT['nx']))
for c in range(8):
    if c == OPT['hat']: add_h()
    add_chunk(c)
    if OPT['bgfrom'] <= c < 7:
        for _ in range(OPT['bg']):
            op(f'W{wlist[nbg]}', None, lambda s_=wlist[nbg]: w2op(s_)); nbg += 1
if OPT['pair']:
    assert not OPT['rot']
    d = {o[0]: o for o in ops}
    groups = {1: [(0, 1), (2, 3), (4, 5), (6, 7)], 2: [(0,), (1, 2), (3, 4), (5, 6), (7,)], 3: [(0,), (1, 2, 3), (4, 5), (6, 7)]}[OPT['pair']]
    ops[:] = [d[f'{k}{c}_{j}'] for g in groups for k, n in (('w', 3), ('x', 4)) for c in g for j in range(n)]
for n in range(2): op(f'st{n}', None, lambda n=n: a.dma(vXA+n, Q, sSTASH, f's_add_u32 m0, {sW2K}, {XST + n*1024}'))
if OPT['hat'] == 8: add_h()
for s_ in wlist[nbg:]: op(f'W{s_}', None, lambda s_=s_: w2op(s_))
b0 = [o[0] for o in ops].index('x7_3') - 6
for nm, pos, fn in (('ub', OPT['ubat'], ubuild), ('ul', OPT['ulat'], uload), ('up', OPT['upat'], lambda: a.poll_issue(vP1, 20, '0x1ff'))):
    ops.insert(b0 + pos, (nm, 'c4', fn))
names = [o[0] for o in ops]
nxt = [0]
posts = [('x5_3', 1), ('x6_3', 2), ('x7_3', 3)]
capped = [False]
dbg = []
def flush_posts(force=False):
    while posts and posts[0][0] in seq and (force or a.vm_done >= seq[posts[0][0]]):
        a.wait_vm(seq[posts[0][0]]); a.post(posts[0][1], False); a.stamp(); posts.pop(0)
def issue_upto(idx):
    while nxt[0] <= min(idx, len(ops) - 1):
        name, gate, fn = ops[nxt[0]]
        if gate is not None and gate not in a.bars: return
        if capped[0]:
            a.wait_vm(a.vm_n - (OPT['cap1'] if posts else OPT['cap']) + 1); flush_posts()
        nxt[0] += 1
        seq[name] = fn()
        if capped[0] and (name in ('x7_3', 'st1', 'h3', 'up', 'ul', 'ub') or (name[0] == 'W' and int(name[1:]) % 3 == 0)):
            a.stamp(2); dbg.append(name)
issue_upto(OPT['lookkv'] - 1)
a('s_branch L_loader2')
L1lines = a.lines; a.lines = ['L_loader2:']
a(f's_mul_i32 s60, {sKH}, {HCH}'); a(f's_mul_i32 s61, {sTH}, {HBD}'); a('s_add_u32 s61, s61, s60'); a(f's_add_u32 {sHM0}, s61, {HBASE+64}')
a(f's_lshl_b32 {sHSO}, {sCP}, 13'); a(f's_add_u32 {sUL}, {sHSO}, {WS_U}'); a(f's_lshl_b32 s61, {sKH}, 12'); a(f's_add_u32 {sHSO}, {sHSO}, s61')
a('s_waitcnt lgkmcnt(0)')
a(f's_add_u32 {sTAG}, {sE}, 1'); a(f's_not_b32 {sNTAG}, {sTAG}')
a.post(0)
a('v_and_b32 v35, 1, v32'); a('v_lshlrev_b32 v35, 2, v35'); a('v_xor_b32 v35, v35, v34')
a(f'v_lshl_add_u32 {v(vW2A)}, v35, 4, v33')
a(f's_mul_i32 {sW2O}, {sKH}, {43*16*1024}'); a(f's_lshl_b32 s61, {sTH}, 13'); a(f's_add_u32 {sW2O}, {sW2O}, s61')
a(f's_lshl_b32 s61, {sDS}, 7'); a(f's_add_u32 {sW2O}, {sW2O}, s61')
a(f'v_add_u32 {v(vW2W)}, {sM0W}, {v(vL16)}')
a(f'v_add_u32 {v(vW2W2)}, 61440, {v(vW2W)}'); a(f'v_add_u32 {v(vW2W3)}, 122880, {v(vW2W)}')
a(f's_lshl_b32 s60, {st}, 1'); a(f's_add_u32 s60, s60, {sTH}'); a('s_mul_i32 s60, s60, 86')
a(f's_mul_i32 s61, {sKH}, 43'); a('s_add_u32 s60, s60, s61'); a('s_lshl_b32 s60, s60, 10')
a(f's_add_u32 {sHL}, s60, {WS_H}')
a(f's_mul_i32 s60, {sKH}, 7'); a('v_min_u32 v38, 8, v1'); a('v_add_u32 v35, s60, v38')
a('v_lshrrev_b32 v36, 1, v35'); a(f'v_xor_b32 v36, {OPT["dsx"]}, v36'); a('v_lshlrev_b32 v36, 12, v36'); a('v_and_b32 v35, 1, v35'); a('v_lshl_add_u32 v37, v35, 7, v36')
a(f's_lshl_b32 s60, {sT}, 8'); a(f's_add_u32 s60, s60, {WS_FLAG + FPH}')
a(f's_and_b32 s61, {st}, 1'); a('s_lshl_b32 s61, s61, 1'); a(f's_add_u32 s61, s61, {sTH}')
a('s_lshl_b32 s61, s61, 15'); a('s_add_u32 s61, s61, s60')
a(f'v_add_u32 {v(vP2)}, s61, v37')
a(f's_lshl_b32 s60, {sDS}, 12'); a(f's_and_b32 s61, {st}, 24'); a('s_lshl_b32 s61, s61, 12'); a('s_add_u32 s60, s60, s61'); a(f's_add_u32 s60, s60, {WS_FLAG}')
a(f's_lshl_b32 s61, {sW}, 3'); a('v_add_u32 v35, s61, v38'); a('v_max_u32 v35, 1, v35'); a('v_subrev_u32 v35, 1, v35')
a('v_lshlrev_b32 v35, 7, v35'); a(f'v_add_u32 {v(vP1)}, s60, v35')
a(f's_add_u32 s60, s60, {sM0W}'); a(f's_add_u32 s60, s60, {2*FPH}')
a('v_lshlrev_b32 v35, 7, v34'); a(f'v_add_u32 {v(vP3)}, s60, v35')
a(f's_lshl_b32 s60, {st}, 16'); a(f's_lshl_b32 s61, {sDS}, 13'); a('s_add_u32 s60, s60, s61'); a(f's_add_u32 s60, s60, {sW2K}')
a(f's_add_u32 {sYL}, s60, {WS_Y}')
a(f'v_lshlrev_b32 {v(vUL)}, 5, v0'); a(f'v_subrev_u32 {v(vULp)}, 4, {v(vUL)}')
a(f'v_add_u32 {v(vUW)}, {CV+448}, {v(vW2W)}')
a(f's_mul_i32 s60, {sKH}, {CVCH}'); a(f's_mul_i32 s61, {sTH}, {U1OFF}'); a('s_add_u32 s61, s61, s60'); a(f's_add_u32 s61, s61, {CV}')
a('v_min_u32 v35, 27, v1'); a('v_lshlrev_b32 v35, 4, v35'); a(f'v_add_u32 {v(vZU)}, s61, v35')
a(f's_sub_u32 s61, {sHM0}, 64'); a('v_and_b32 v35, 15, v1'); a('v_lshlrev_b32 v35, 2, v35'); a(f'v_add_u32 {v(vZH)}, s61, v35')
a(f's_mov_b32 {sSELLO}, 0x05040100'); a(f's_mov_b32 {sSELHI}, 0x07060302')
a(f's_mov_b32 {sMASK}, 0xffff0000'); a(f's_lshl_b32 {sD0}, {sD}, 16'); a(f's_and_b32 {sD1}, {sD}, {sMASK}')
a('v_and_b32 v36, 15, v1')
a('v_bfe_u32 v35, v1, 2, 2'); a('v_lshlrev_b32 v35, 4, v35'); a('v_lshl_add_u32 v35, v32, 7, v35')
a('v_and_b32 v37, 3, v1'); a('v_xor_b32 v37, 3, v37'); a('v_lshl_add_u32 v35, v37, 2, v35')
a(f's_add_u32 s60, {sM0W}, {CV+U1OFF+448}'); a(f'v_add_u32 {v(vDU)}, s60, v35')
a(f's_add_u32 s60, {sW2K}, {CV}'); a(f'v_add_u32 {v(vXRd)}, s60, {v(vL16)}')
a(f'v_lshlrev_b32 {v(vYS)}, 16, v32'); a(f'v_lshl_add_u32 {v(vYS)}, v36, 4, {v(vYS)}')
a(f's_lshl_b32 s60, {sW}, 19'); a(f's_lshl_b32 s61, {sCP}, 8'); a('s_add_u32 s60, s60, s61'); a(f's_add_u32 {sYS0}, s60, {WS_Y}')
a(f's_add_u32 {sYS1}, {sYS0}, 0x40000')
a(f's_lshl_b32 s60, {sCP}, 7'); a(f's_lshl_b32 s61, {sW}, 15'); a('s_add_u32 s60, s60, s61'); a(f's_add_u32 s60, s60, {WS_FLAG}')
a(f'v_lshlrev_b32 {v(vFL)}, 3, v36'); a(f'v_add_u32 {v(vFL)}, s60, {v(vFL)}')
a(f'v_mul_u32_u24 {v(TB)}, 5, v34'); a(f'v_add_u32 {v(TB)}, {sTAG}, {v(TB)}')
for r in range(1, 4): a(f'v_lshrrev_b32 {v(TB+r)}, {r}, {v(TB)}')
for i in range(4): a(f'v_mov_b32 v{60+i}, 0')
if OPT['tlb'] > 1:
    a('s_mov_b32 exec_lo, 0x10001'); a('s_mov_b32 exec_hi, 0x10001')
    for q, so in enumerate((sYS0, sYS1)): a(f'buffer_load_dword v{(249, 252)[q]}, {v(vYS)}, {srd(WS)}, {so} offen sc1')
    a('s_mov_b64 exec, 1')
    a(f'buffer_load_dword v250, {v(vL16)}, {srd(WS)}, {sYL} offen sc1')
    a(f'buffer_load_dword v251, {v(vW2A)}, {srd(W2)}, {sW2O} offen')
    a('s_mov_b64 exec, -1')
a.wait_vm(seq['kv']); a.bar('kv'); a.stamp()
D = OPT['look']
for c in range(5):
    issue_upto(names.index(f'x{c}_3') + (D if c else OPT['look0']))
    a.wait_vm(seq[f'x{c}_3'])
    a.bar(f'c{c}', False)
    a.stamp()
capped[0] = True
def wr(s_):
    if OPT['notail']: return
    o = w2slot(s_); k = o // 61440
    if OPT['w64'] == 1:
        for q in range(2): a(f'ds_write_b64 {v((vW2W, vW2W2, vW2W3)[k])}, {v(WT+4*s_+2*q,2)} offset:{o - 61440*k + 8*q}')
    elif OPT['w64'] == 2:
        for q in range(4): a(f'ds_write_b32 {v((vW2W, vW2W2, vW2W3)[k])}, {v(WT+4*s_+q)} offset:{o - 61440*k + 4*q}')
    else: a(f'ds_write_b128 {v((vW2W, vW2W2, vW2W3)[k])}, {v(WT+4*s_,4)} offset:{o - 61440*k}')
    if OPT['wsl']: a(f's_sleep {OPT["wsl"]}')
def wdma(s_):
    if OPT['nodma']: return
    a.wait_vm(a.vm_n - (OPT['cap2'] if s_ < OPT['wm'] else OPT['cap3']) + 1)
    a(f's_add_u32 {sO0}, {sW2O}, {s_*16384}')
    return a.dma(vW2A, W2, sO0, f's_add_u32 m0, {sM0W}, {w2slot(s_)}')
issue_upto(999)
flush_posts(True)
a.stamp()
a(f's_or_b32 s60, {sCP}, {sW}')
a('s_cmp_lg_u32 s60, 0')
a('s_cbranch_scc1 L_noep')
for q in range(4): a(f'v_add_u32 v{40+q}, {WS_FLAG + 8192*q}, v39')
a(f's_mov_b32 {sSPIN}, 0')
a.place('L_ep')
for q in range(4): a(f'buffer_load_dwordx2 v[{44+2*q}:{45+2*q}], v{40+q}, {srd(WS)}, 0 offen sc1', track=False)
a('s_waitcnt vmcnt(0)')
a('s_mov_b64 s[60:61], exec')
for q in range(4):
    a(f'v_cmp_eq_u32 vcc, {sTAG}, v{44+2*q}'); a('s_and_b64 s[60:61], s[60:61], vcc')
    a(f'v_cmp_eq_u32 vcc, {sNTAG}, v{45+2*q}'); a('s_and_b64 s[60:61], s[60:61], vcc')
a('s_cmp_eq_u64 s[60:61], exec')
a('s_cbranch_scc1 L_epok')
a(f's_add_u32 {sSPIN}, {sSPIN}, 1'); a(f's_cmp_lt_u32 {sSPIN}, {0 if OPT["nosync"] else 0x20000}'); a('s_cbranch_scc1 L_ep')
a.place('L_epok')
a(f'v_mov_b32 v40, {WS_E}'); a(f'v_mov_b32 v41, {sTAG}')
a('s_mov_b64 exec, 1')
a(f'buffer_store_dword v41, v40, {srd(WS)}, 0 offen sc1', track=False)
a('s_mov_b64 exec, -1')
a.place('L_noep')
a.expect(1, 1, sleep=OPT['esl'])
a.stamp()
def dumul():
    for c in range(2):
        for jj in range(2):
            for h in range(2):
                src = DRL+4*c+2*jj+h; d = DUL+8*jj+4*c+2*h
                for x in (hi(d, src), lo(d+1, src), f'v_mul_f32 {v(d)}, {(sD0, sD1)[c]}, {v(d)}', f'v_mul_f32 {v(d+1)}, {(sD0, sD1)[c]}, {v(d+1)}'): a(x)
for s_ in range(28):
    if s_ == OPT['duat']: dumul()
    if OPT['s2skip']:
        if s_ == OPT['s2skip']: a.post(5, False); a.stamp(0, True)
        wl = wdma(s_); continue
    if s_ == OPT['wm']: a.expect(1, 2, sleep=OPT['esl'])
    if s_ == OPT['wm'] + OPT['wk']:
        a.stamp(); a.poll_issue(vP2, 20, '0x1ff')
    if s_ == OPT['wm'] + OPT['wk'] + OPT['wc']:
        a.poll_check(vP2, 20, '0x1ff'); a.post(5, False); a.stamp(0, True)
    wl = wdma(s_)
if OPT['wm'] + OPT['wk'] >= 28:
    a.stamp(); a.poll_issue(vP2, 20, '0x1ff')
if OPT['wm'] + OPT['wk'] + OPT['wc'] >= 28 and not OPT['s2skip']:
    a.poll_check(vP2, 20, '0x1ff')
    a.post(5, False)
    a.stamp(0, True)
a.wait_vm(wl); a.post(6, False)
if OPT['duat'] >= 28: dumul()
a.expect(1, 4, sleep=1)
a(f's_setprio {OPT["yprio"]}')
for jj in range(2):
    for sw in range(4): a(f'ds_read_b128 {v(XRL+16*jj+4*sw,4)}, {v(vXRd)} offset:{8192*sw + 1024*jj}')
for jj in range(2):
    for hf in range(2):
        for c in range(2):
            for r in range(4): a(f'v_add_f32 {v(DUL+8*jj+4*c+r)}, {v(DUL+8*jj+4*c+r)}, {v(XRL+16*jj+8*c+4*hf+r)}')
    for r in range(4):
        a(f'v_cvt_pk_bf16_f32 {v(XRL+16*jj+r)}, {v(DUL+8*jj+4+r)}, {v(DUL+8*jj+4+r)}')
        a(f'v_add_u32 {v(DUL+8*jj+r)}, 0x10000, {v(DUL+8*jj+r)}')
    for r in range(4): a(f'v_perm_b32 {v(XRL+16*jj+r)}, {v(XRL+16*jj+r)}, {v(DUL+8*jj+r)}, {sSELHI}')
    for r in range(4): a(f'v_bfi_b32 {v(XRL+16*jj+r)}, 1, {v(TB+r)}, {v(XRL+16*jj+r)}')
    yst = a(f'buffer_store_dwordx4 {v(XRL+16*jj,4)}, {v(vYS)}, {srd(WS)}, {(sYS0, sYS1)[jj]} offen sc1')
a.post(7)
a.stamp(0, True)
a(f's_setprio {OPT["tp"]}')
a.expect(0, 7)
YB = 120
def yld(track=True):
    for n in range(2): a(f'buffer_load_dwordx4 {v(YB+4*n,4)}, {v(vL16)}, {srd(WS)}, {sYL} offen offset:{1024*n} sc1', track=track)
for s_ in range(28, 44):
    if s_ == 36:
        a.post(8); a.expect(1, 6, sleep=OPT['esl'])
    if s_ == 28 + OPT['yp']: yld()
    if s_ == 43: a.post(9); a.stamp(0, True); a('s_setprio 0')
    if s_ < 43: wr(s_)
for _ in range(OPT['ydelay']): a('s_sleep 4')
if OPT['yp'] > 15: yld()
top, done = a.label(), a.label()
a(f's_mov_b32 {sSPIN}, 0')
a.wait_all_vm()
a.place(top)
a(f'v_xor_b32 v20, {v(YB)}, {v(TB)}')
for k in range(1, 8): a(f'v_bitop3_b32 v20, v20, {v(YB+k)}, {v(TB+(k&3))} bitop3:0xf6')
a('v_and_b32 v20, 1, v20')
a('v_cmp_ne_u32 vcc, 0, v20')
a(f's_cbranch_vccz {done}')
a(f's_add_u32 {sSPIN}, {sSPIN}, 1'); a(f's_cmp_gt_u32 {sSPIN}, 0x20000'); a(f's_cbranch_scc1 {done}')
a(f's_sleep {OPT["psleep"]}')
yld(False)
a('s_waitcnt vmcnt(0)')
a(f's_branch {top}')
a.place(done)
a.stamp(0, True)
a('s_setprio 2')
a(f's_add_u32 s60, {sW2K}, {YT}'); a(f'v_add_u32 v20, s60, {v(vL16)}')
for k in range(8): a(f'v_and_b32 {v(YB+k)}, -2, {v(YB+k)}')
for n in range(2): a(f'ds_write_b128 v20, {v(YB+4*n,4)} offset:{1024*n}')
a.post(10)
a.wait_all_lg()
a.finish()

C = a = Prog('C', 4)
a.gap = 0
vCSR, vSTW, vXR, vWR, vYR, vCSW = 3, 11, 12, 20, 9, 8
vKA, vKB, vSHR, vUS = 212, 213, 214, 215
(vUA, vHA, vDU, vXW, vXRd, vYS, vE2W, vE2R, vSTa, vSTb, vSTS, vOTa, vOTb, vOTR, vOUT) = range(216, 231)
AR = 234
F = {k: 198 + i for i, k in enumerate(('l4', 'n', 'g', 'b', 'l1', 'l3', 'r', 'x', 'h', 't0', 't1', 't2'))}
def fx(s):
    for k, r in F.items(): s = s.replace('%' + k, f'v{r}')
    return s
def e(s): a(fx(s))
if OPT['prio']: a(f's_setprio {OPT["prio"]}')
a(f's_mov_b32 {sMASK}, 0xffff0000')
e('v_lshrrev_b32 %l4, 4, v1'); e('v_lshrrev_b32 %g, 5, v1'); e('v_and_b32 %b, 15, v1'); e('v_and_b32 %h, 1, %l4')
a(f's_lshl_b32 s60, {sW}, 1'); e('v_add_u32 %t0, s60, %g')
e('v_add_u32 %t1, 1, %b'); e('v_and_b32 %t1, 7, %t1'); e('v_xor_b32 %t1, %t1, %t0')
e('v_lshlrev_b32 %t2, 9, %b'); e('v_lshl_add_u32 %t2, %h, 3, %t2'); e(f'v_add_u32 %t2, {KB + 5*128}, %t2')
e(f'v_lshl_add_u32 {v(vKA)}, %t1, 4, %t2')
e('v_add_u32 %t1, 2, %b'); e('v_and_b32 %t1, 7, %t1'); e('v_xor_b32 %t1, %t1, %t0')
e(f'v_lshl_add_u32 {v(vKB)}, %t1, 4, %t2')
a(f's_lshl_b32 s60, {sW}, 7'); a(f's_add_u32 s60, s60, {SB}')
e(f'v_lshlrev_b32 {v(vSHR)}, 5, %l4'); a(f'v_add_u32 {v(vSHR)}, s60, {v(vSHR)}')
e(f'v_lshlrev_b32 {v(vUS)}, 14, %l4'); e(f'v_lshl_add_u32 {v(vUS)}, %b, 4, {v(vUS)}')
common2(a)
a('s_waitcnt lgkmcnt(0)')
a(f's_mov_b64 s[{OUT}:{OUT+1}], s[94:95]')
a(f's_mov_b64 s[{WS}:{WS+1}], s[98:99]')
a(f's_load_dword {sE}, s[{WS}:{WS+1}], {WS_E}')
spf = []
if OPT['spf']:
    a(f's_lshl_b32 s60, {sCP}, 13'); a(f's_add_u32 s60, s60, {sW2K}')
    a('s_add_u32 s84, s84, s60'); a('s_addc_u32 s85, s85, 0')
    a(f's_lshl_b32 s60, s2, 2'); a(f's_add_u32 s60, s60, {sW}'); a(f's_mul_i32 s60, s60, {11*128}'); a(f's_min_u32 s60, s60, {1409024 - 11*128}')
    a('s_add_u32 s92, s92, s60'); a('s_addc_u32 s93, s93, 0')
    for j in range(11): a(f's_load_dword s100, s[92:93], {128*j}')
    for j in range(32): a(f's_load_dword s100, s[84:85], {64*j}')
a(f's_lshl_b32 s60, {sDS}, 18'); a(f's_lshl_b32 s61, {st}, 8'); a('s_add_u32 s60, s60, s61')
a(f's_lshl_b32 s61, {sW}, 16'); a('s_add_u32 s60, s60, s61'); a(f's_add_u32 {sUS0}, s60, {WS_U}'); a(f's_add_u32 {sUS1}, {sUS0}, 8192')
a(f's_mov_b32 {sONES}, 0x3f803f80')
e('v_and_b32 %n, 31, v1'); e('v_and_b32 %l1, 1, v1'); e('v_and_b32 %l3, 3, v1'); e('v_bfe_u32 %r, v1, 2, 2')
e('v_bfe_u32 %t0, v1, 1, 3'); e('v_xor_b32 %t0, %t0, %g'); e('v_lshlrev_b32 %t0, 4, %t0')
e('v_lshl_add_u32 %x, %n, 7, %t0')
e(f'v_add_u32 %t0, {sW4K}, %x')
e('v_lshl_add_u32 %t1, %g, 3, %r'); e('v_mul_u32_u24 %t1, 192, %t1')
e('v_lshl_add_u32 %t1, %h, 5, %t1'); e('v_lshl_add_u32 %t1, %l3, 3, %t1')
for i in range(4):
    a(f's_add_u32 s60, {sW}, {i}'); a('s_and_b32 s60, s60, 3'); a('s_lshl_b32 s61, s60, 5')
    e(f'v_xor_b32 {v(vXR+i)}, s61, %t0')
    a('s_mul_i32 s61, s60, 3072')
    e(f'v_add_u32 {v(vWR+i)}, s61, %t1')
ACC, XF, WF, SU, SQ, CS = 32, 80, 112, 160, 162, 164
for r in range(SU, CS+3): a(f'v_mov_b32 {v(r)}, 0')
a('s_waitcnt lgkmcnt(0)')
a(f's_add_u32 {sTAG}, {sE}, 1'); a(f's_not_b32 {sNTAG}, {sTAG}')
a.post(0)
a.stamp()
a.reserve = OPT['res']
S = []
def s_(*xs):
    for x in xs: S.append(fx(x))
for i in range(4): s_(f'v_add_u32 {v(vXR+4+i)}, {2*SLOT}, {v(vXR+i)}', f'v_add_u32 {v(vWR+4+i)}, {2*SLOT}, {v(vWR+i)}')
s_(f'v_mov_b32 v252, {sTAG}', f'v_mov_b32 v253, {sNTAG}')
s_(f's_lshl_b32 s60, {sCP}, 7', f's_lshl_b32 s61, {sW}, 15', 's_add_u32 s60, s60, s61', f's_add_u32 s60, s60, {WS_FLAG}')
s_(f'v_lshlrev_b32 {v(vFL)}, 3, %b', f'v_add_u32 {v(vFL)}, s60, {v(vFL)}')
NS1 = len(S)
s_(f's_mov_b32 s{OUT+2}, 2097152', f's_mov_b32 s{OUT+3}, 0x20000', f's_mov_b32 {sSELLO}, 0x05040100')
s_(f's_and_b32 s61, {st}, 1', 's_lshl_b32 s61, s61, 1', f's_add_u32 s61, s61, {sTH}', 's_lshl_b32 s61, s61, 8', f's_add_u32 s61, s61, {STATS}')
s_('v_lshlrev_b32 %t0, 3, %n', f'v_add_u32 {v(vSTS)}, s61, %t0')
s_(f's_lshl_b32 s60, {sW}, 8', f's_add_u32 s60, s60, {STATS}', f'v_add_u32 {v(vSTW)}, s60, %t0')
s_(f'v_add_u32 {v(vCSR)}, {CSUM}, {v(vL16)}', f's_lshl_b32 s60, {sW}, 2', f'v_add_u32 {v(vCSW)}, s60, {v(vCSR)}')
s_(f's_lshl_b32 s60, {sT}, 2', f's_add_u32 s60, s60, {sW}', 's_mul_i32 s60, s60, 86', f's_lshl_b32 s61, {sP0}, 1', 's_add_u32 s60, s60, s61', 's_lshl_b32 s60, s60, 10')
s_(f's_add_u32 {sHS}, s60, {WS_H}', f's_add_u32 {sHS3}, {sHS}, 4096')
S.append([f's_cmp_lt_u32 {sM1}, 11', f's_cselect_b32 {sHS3}, {sHS3}, {OOB}', 's_cselect_b32 s85, 0xffff, 0'])
s_('s_mov_b32 s84, -1', 'v_lshlrev_b32 v10, 7, v1')
sSELF = 's[84:85]'
s_(f's_mul_i32 s60, {sKH}, {CVCH}', f's_add_u32 s60, s60, {CV+448-192}', f's_lshl_b32 s61, {sTH}, 8', 's_sub_u32 s60, s60, s61')
s_(f'v_mul_u32_u24 {v(vUA)}, {U1OFF}, %l1', 'v_lshrrev_b32 %t0, 1, %b', 'v_lshl_add_u32 %t0, %t0, 2, %l4')
s_(f'v_lshl_add_u32 {v(vUA)}, %t0, 4, {v(vUA)}', f'v_add_u32 {v(vUA)}, s60, {v(vUA)}')
s_('v_xor_b32 %t0, 1, %l1', f'v_mul_u32_u24 {v(vHA)}, {HBD}, %t0', f'v_lshl_add_u32 {v(vHA)}, %b, 2, {v(vHA)}')
s_('v_lshlrev_b32 %t0, 4, %l4', f'v_sub_u32 {v(vHA)}, {v(vHA)}, %t0')
s_(f's_mul_i32 s60, {sKH}, {HCH}', 's_add_u32 s61, s60, s61', f's_add_u32 s61, s61, {HBASE+64-12}', f'v_add_u32 {v(vHA)}, s61, {v(vHA)}')
s_(f's_lshl_b32 s60, {st}, 1', f's_add_u32 s60, s60, {sTH}', 's_mul_i32 s60, s60, 86', f's_mul_i32 s61, {sKH}, 43', 's_add_u32 s60, s60, s61', 's_lshl_b32 s60, s60, 10')
s_(f's_add_u32 {sHL}, s60, {WS_H}')
s_(f's_lshl_b32 s60, {sW}, 13', f's_add_u32 s60, s60, {CV}', f'v_add_u32 {v(vXW)}, s60, {v(vL16)}')
s_('v_lshl_add_u32 %t0, %g, 2, %r', 'v_lshlrev_b32 %t0, 7, %t0', 'v_bfe_u32 %t1, v1, 3, 1', 'v_lshl_add_u32 %t0, %t1, 6, %t0')
s_('v_lshl_add_u32 %t0, %h, 5, %t0', 'v_lshl_add_u32 %t0, %l1, 4, %t0', 'v_bfe_u32 %t1, v1, 1, 1', 'v_lshl_add_u32 %t0, %t1, 3, %t0')
s_(f's_lshl_b32 s60, {sKH}, 6', 'v_xor_b32 %t0, s60, %t0', f's_lshl_b32 s61, {sKH}, 11')
s_(f'v_add_u32 {v(AR)}, s61, %t0', f'v_xor_b32 {v(AR+1)}, 64, {v(AR)}')
for k in (1, 2): s_(f'v_add_u32 {v(AR+2*k)}, {61440*k}, {v(AR)}', f'v_add_u32 {v(AR+2*k+1)}, {61440*k}, {v(AR+1)}')
s_(f'v_lshlrev_b32 {v(vYR)}, 10, %g', 'v_bfe_u32 %t1, v1, 1, 4', f'v_lshl_add_u32 {v(vYR)}, %t1, 4, {v(vYR)}', f'v_lshl_add_u32 {v(vYR)}, %l1, 2, {v(vYR)}')
s_(f's_lshl_b32 s61, {sKH}, 12', f's_lshl_b32 {sO0}, {sTH}, 3', f's_add_u32 s61, s61, {sO0}', f's_add_u32 s61, s61, {YT}', f'v_add_u32 {v(vYR)}, s61, {v(vYR)}')
s_('v_xor_b32 %t0, s60, %x', f's_lshl_b32 s61, {sTH}, 12', f's_add_u32 s61, s61, {XST}', f'v_add_u32 {v(vSTa)}, s61, %t0', f'v_xor_b32 {v(vSTb)}, 32, {v(vSTa)}')
s_(f's_add_u32 s61, {sW4K}, {EX}', f'v_add_u32 {v(vE2W)}, s61, {v(vL16)}')
s_(f's_xor_b32 s61, {sW4K}, 8192', f's_add_u32 s61, s61, {EX}', f'v_add_u32 {v(vE2R)}, s61, {v(vL16)}')
s_(f's_add_u32 s61, {sW2K}, {OT}', 'v_bfe_u32 %t0, v1, 1, 2', 'v_xor_b32 %t0, %t0, %g', 'v_lshlrev_b32 %t0, 4, %t0')
s_('v_lshl_add_u32 %t0, %n, 6, %t0', f'v_add_u32 {v(vOTa)}, s61, %t0', f'v_xor_b32 {v(vOTb)}, 32, {v(vOTa)}')
s_('v_lshrrev_b32 %t1, 2, v1', 'v_bfe_u32 %t0, v1, 3, 2', 'v_xor_b32 %t0, %t0, %l3', 'v_lshlrev_b32 %t0, 4, %t0', 'v_lshl_add_u32 %t0, %t1, 6, %t0')
s_(f'v_add_u32 {v(vOTR)}, s61, %t0', 'v_lshlrev_b32 %t1, 10, %t1', f'v_lshl_add_u32 {v(vOUT)}, %l3, 4, %t1')
s_(f's_lshl_b32 {sO0}, {st}, 16', f's_lshl_b32 s61, {sDS}, 7', f's_add_u32 {sO0}, {sO0}, s61', f's_lshl_b32 s61, {sTH}, 15')
s_(f's_add_u32 {sO0}, {sO0}, s61', f's_add_u32 {sO0}, {sO0}, s60', f's_add_u32 {sO1}, {sO0}, 16384')

KR, VR, SR, PA = 168, 182, 190, 240
WP, KU, VU, TP = 32, 48, 76, 92
if OPT['fpre']:
    for x in S[:NS1]: a(x)
    S = S[NS1:]; NS1 = 0
    a(f'v_mov_b32 v252, {sNTAG}')
    for ph in (1, 2)[2-OPT['fpre']:]: a.flag_store(ph)
    a(f'v_mov_b32 v252, {sTAG}')
if OPT['early']:
    for x in S: a.do(x)
    S = []; NS1 = 0
if OPT['tlb']:
    assert OPT['early']
    a('v_mul_u32_u24 v244, 5120, v1'); a('v_mul_u32_u24 v245, 14336, v1')
    a('s_mov_b64 exec, 3')
    if OPT['tlbm'] & 1: a(f'buffer_load_dword v254, v244, {srd(WS)}, {sHS} offen sc1', track=False)
    a('s_mov_b64 exec, 15')
    if OPT['tlbm'] & 2: a(f'buffer_load_dword v254, v245, {srd(WS)}, {sHL} offen sc1', track=False)
    a('s_mov_b64 exec, 1')
    if OPT['tlbm'] & 4: a(f'buffer_load_dword v254, {v(vOUT)}, {srd(OUT)}, {sO0} offen sc1', track=False)
    a('s_mov_b64 exec, -1')
if OPT['pc'] < 0:
    for x in S[:NS1]: a(x)
    S = S[NS1:]; NS1 = 0
    for jj in range(2): a(f'buffer_store_dwordx4 v[248:251], {v(vYS)}, {srd(WS)}, {(sYS0, sYS1)[jj]} offen sc1')
a.bar('kv')
a.stamp()
for p in range(2): a(f'ds_read_b128 {v(SR+4*p,4)}, {v(vSHR)} offset:{16*p}')
for r in range(7): a(f'ds_read_b64 {v(KR+2*r,2)}, {v(vKA if r < 3 else vKB)} offset:{128*r}')
for r in range(4): a(f'ds_read_b64 {v(VR+2*r,2)}, {v(vKB)} offset:{VB-KB+128*(r+3)}')
for x in S[:NS1]: a(x)
S = S[NS1:]
for c in range(4):
    p, e_ = c >> 1, c & 1
    for jj in range(2): a(lo(WP+8*p+4*jj+e_, SR+2*c+jj)); a(hi(WP+8*p+4*jj+2+e_, SR+2*c+jj))
for p in range(2):
    for r in range(7): a(lo(KU+4*r+2*p, KR+2*r+p)); a(hi(KU+4*r+2*p+1, KR+2*r+p))
    for r in range(4): a(lo(VU+4*r+2*p, VR+2*r+p)); a(hi(VU+4*r+2*p+1, VR+2*r+p))
    for i in range(4): a(f'v_pk_mul_f32 {v(TP+2*i,2)}, {v(KU+4*i+2*p,2)}, {v(WP+8*p+6,2)}')
    for j in (2, 1, 0):
        for i in range(4): a(f'v_pk_fma_f32 {v(TP+2*i,2)}, {v(KU+4*(i+3-j)+2*p,2)}, {v(WP+8*p+2*j,2)}, {v(TP+2*i,2)}')
    for i in range(4): a(f'v_pk_mul_f32 {v(TP+2*i,2)}, {v(TP+2*i,2)}, {v(VU+4*i+2*p,2)}')
    for i in range(4): a(f'v_cvt_pk_bf16_f32 {v(PA+4*p+i)}, {v(TP+2*i)}, {v(TP+2*i+1)}')
    if not OPT['udef']: ust = a(f'buffer_store_dwordx4 {v(PA+4*p,4)}, {v(vUS)}, {srd(WS)}, {(sUS0, sUS1)[p]} offen sc1')
if OPT['pc'] == 0:
    for jj in range(2): ust = a(f'buffer_store_dwordx4 v[248:251], {v(vYS)}, {srd(WS)}, {(sYS0, sYS1)[jj]} offen sc1')
ust_t = a.t

AX, BX, vM, vRS, vS, vC3 = 168, 180, 184, 185, 186, 188
stats = [
    f'v_add_f32 {v(SU)}, {v(SU)}, {v(SU+1)}', f'v_add_f32 {v(SQ)}, {v(SQ)}, {v(SQ+1)}',
    f'v_mov_b32 {v(SU+1)}, {v(SU)}', f'v_mov_b32 {v(SQ+1)}, {v(SQ)}',
    f'v_permlane32_swap_b32 {v(SU)}, {v(SU+1)}', f'v_permlane32_swap_b32 {v(SQ)}, {v(SQ+1)}',
    f'v_add_f32 {v(SU)}, {v(SU)}, {v(SU+1)}', f'v_add_f32 {v(SQ)}, {v(SQ)}, {v(SQ+1)}',
    f'v_mul_f32 {v(SU)}, 0x3b000000, {v(SU)}', f'v_mul_f32 {v(SQ)}, 0x3b000000, {v(SQ)}',
    f'v_fma_f32 {v(SQ)}, -{v(SU)}, {v(SU)}, {v(SQ)}', f'v_max_f32 {v(SQ)}, 0, {v(SQ)}',
    f'v_cvt_pk_bf16_f32 v190, {v(SU)}, {v(SQ)}', 'v_xor_b32 v191, 0x8000, v190',
    f'v_perm_b32 {v(BX)}, v191, v191, {sSELLO}', f'v_mov_b32 {v(BX+1)}, {v(BX)}', f'v_mov_b32 {v(BX+2)}, {v(BX)}', f'v_mov_b32 {v(BX+3)}, {v(BX)}',
    lo(vM, 190), hi(191, 190), 'v_add_f32 v191, 0x3727c5ac, v191',
    'v_cvt_pk_bf16_f32 v191, v191, v191', lo(191, 191), 'v_sqrt_f32 v191, v191',
    'v_cvt_pk_bf16_f32 v191, v191, v191', lo(vS, 191), f'v_rcp_f32 {v(vRS)}, {v(vS)}',
    f'v_mul_f32 {v(vC3)}, 0xbfb8aa3b, {v(vRS)}', f'ds_write_b64 {v(vSTW)}, {v(vM,2)}']
def rdx(c):
    st_ = 4 * ((c % 4) >> 1); off = (c & 1) * SLOT
    return [f'ds_read_b128 {v(XF+16*(c&1)+4*i,4)}, {v(vXR+st_+i)} offset:{off}' for i in range(4)]
def rdw(c, i):
    st_ = 4 * ((c % 4) >> 1); off = (c & 1) * SLOT
    return [f'ds_read_b64_tr_b16 {v(WF+12*i+4*ft+2*rd,2)}, {v(vWR+st_+i)} offset:{off+16384+rd*768+ft*64}' for ft in range(3) for rd in range(2)]
a.stamp()
a.bar('c0')
a.stamp(0, True)
for x in rdx(0) + rdw(0, 0) + rdw(0, 1): a(x)
a.fq = S
flag1 = False
for c in range(8):
    X = XF + 16*(c & 1)
    late = rdw(c, 2) + rdw(c, 3)
    if OPT['w1']: a.wait_lg(a.pend[('v', X+12)][1])
    for i in range(4):
        if OPT['w1'] and i == 2: a.wait_lg(a.pend[('v', WF+10)][1])
        for d in range(4 if OPT['nodot'] < 2 else 0):
            a(f'v_dot2c_f32_bf16 {v(SU+(d&1))}, {sONES}, {v(X+4*i+d)}'); a(f'v_dot2c_f32_bf16 {v(SQ+(d&1))}, {v(X+4*i+d)}, {v(X+4*i+d)}')
    ncs = OPT['csv'] if 1 <= c < 7 else 0
    if ncs:
        cq = []
        for d in range(4 - ncs, 4):
            for ft in range(3): cq += [lo(240+2*ft, WF+4*ft+d), hi(241+2*ft, WF+4*ft+d)]
            for ft in range(3): cq += [f'v_add_f32 v{246+ft}, v{246+ft}, v{240+2*ft}', f'v_add_f32 v{249+ft}, v{249+ft}, v{241+2*ft}']
        a.fq = cq + a.fq; nrest = len(a.fq) - len(cq)
    for d in range(4 - ncs):
        for ft in range(3): a(f'v_dot2c_f32_bf16 {v(CS+ft)}, {sONES}, {v(WF+4*ft+d)}')
    if c == 7:
        a.drain_f()
        if OPT['csv']:
            for ft in range(3): a.fq += [f'v_add_f32 v{246+ft}, v{246+ft}, v{249+ft}']
            for ft in range(3): a.fq += [f'v_add_f32 {v(CS+ft)}, {v(CS+ft)}, v{246+ft}']
        for ft in range(3): a.fq += [hi(192+ft, CS+ft), f'v_sub_f32 v{195+ft}, {v(CS+ft)}, v{192+ft}']
        for ft in range(3): a.fq += [f'v_cvt_pk_bf16_f32 v{192+ft}, v{192+ft}, v{195+ft}', f'ds_write_b32 {v(vCSW)}, v{192+ft} offset:{1024*ft}']
        a.fq += stats
    def mm(i, ft):
        cin = '0' if (c == 0 and i == 0) else v(ACC+16*ft, 16)
        return f'v_mfma_f32_32x32x16_bf16 {v(ACC+16*ft,16)}, {v(WF+12*i+4*ft,4)}, {v(X+4*i,4)}, {cin}'
    for i in range(3):
        for ft in range(3):
            a(mm(i, ft))
            for x in late[:3]: a(x)
            late = late[3:]
            if 4 <= c < 7 and (i, ft) == (2, 0): a.peek(0)
            if c == 7 and (i, ft) == (2, 0):
                a.drain_f(len(a.fq) - len(stats))
                a.post(1)
    if OPT['udef'] and c == 0:
        for p in range(2): ust = a(f'buffer_store_dwordx4 {v(PA+4*p,4)}, {v(vUS)}, {srd(WS)}, {(sUS0, sUS1)[p]} offen sc1')
        ust_t = a.t
    if ncs: a.drain_f(len(a.fq) - nrest)
    if c == 0 and OPT['csv']:
        for q in range(6): a(f'v_mov_b32 v{246+q}, 0')
    if not flag1 and a.t - ust_t > OPT['f1d']:
        a.wait_vm(ust); a.flag_store(1); flag1 = True
    if c < 4: a.bar(f'c{c+1}')
    elif c < 7: a.expect(0, c - 3, True)
    a.stamp(1)
    nxt_ = rdx(c+1) + rdw(c+1, 0) + rdw(c+1, 1) if c < 7 else []
    for ft in range(3):
        a(mm(3, ft))
        if c == 7 and ft == 0: a.peek(1)
        if c == 7 and ft == 1:
            a.expect(1, 1, True)
            nxt_ = [f'ds_read_b128 {v(AX+4*q,4)}, {v(vCSR)} offset:{1024*q}' for q in range(3)]
        for x in nxt_[:6]: a(x)
        nxt_ = nxt_[6:]
a.drain_f()
for ft in range(3):
    a(f'v_mfma_f32_32x32x16_bf16 {v(ACC+16*ft,16)}, {v(AX+4*ft,4)}, {v(BX,4)}, {v(ACC+16*ft,16)}')
a.stamp(0, True); a.stamp(4)

CA, DU, DR = 160, 192, 208
def FA(set_, mu): return (80 if set_ == 0 else 32) + 4*mu
def FB(set_, nu): return 112 + 4*nu if set_ == 0 else (64 + 4*nu if nu < 4 else 144 + 4*(nu-4))
def rdA(rp, mu): return f'ds_read_b128 {v(FA(rp&1,mu),4)}, {v(vUA)} offset:{512*mu - 64*rp + 192}'
def rdB(rp, nu): return [f'ds_read_b64 {v(FB(rp&1,nu)+2*h,2)}, {v(vHA)} offset:{512*nu + 64*rp + 8*h}' for h in range(2)]
def reads(rp):
    r = rdB(rp, 0) + [rdA(rp, mu) for mu in range(8)]
    for nu in range(1, 8): r += rdB(rp, nu)
    return r
TS, HO = 144, 168
first = reads(0)
for fr in range(6):
    base = ACC + 8*fr; t = TS + 8*(fr & 1); o = HO + 4*(fr & 1)
    if fr == OPT['ubar']: a.expect(0, 4, True)
    def side(n):
        if fr >= OPT['ubar']:
            for x in first[:n]: a(x)
            del first[:n]
    for p in range(4): a(f'v_pk_mul_f32 {v(t+2*p,2)}, {v(base+2*p,2)}, {v(vC3,2)} op_sel_hi:[1,0]')
    side(6)
    for q in range(8): a(f'v_exp_f32 {v(t+q)}, {v(t+q)}')
    side(6)
    for p in range(4): a(f'v_pk_fma_f32 {v(t+2*p,2)}, {v(t+2*p,2)}, {v(vS,2)}, {v(vS,2)} op_sel_hi:[1,0,0]')
    if fr == OPT['ubar'] - 1: a.peek(0)
    for q in range(8): a(f'v_rcp_f32 {v(t+q)}, {v(t+q)}')
    for p in range(4): a(f'v_pk_mul_f32 {v(t+2*p,2)}, {v(t+2*p,2)}, {v(base+2*p,2)}')
    for p in range(4): a(f'v_cvt_pk_bf16_f32 {v(o+p)}, {v(t+2*p)}, {v(t+2*p+1)}')
    so, im = (sHS, fr*1024) if fr < 4 else (sHS3, (fr-4)*1024)
    a.stamp(4)
    hst = a(f'buffer_store_dwordx4 {v(o,4)}, {v(vL16)}, {srd(WS)}, {so} offen offset:{im} sc1')
    a.stamp(4)
a.stamp(0, True)
if OPT['ubar'] == 6:
    a.expect(0, 4, True)
    for x in first[:12]: a(x)
    del first[:12]

G2A, XR, XS, YR, XU, DM, YU = 32, 32, 152, 208, 160, 176, 192
AFD = OPT['afd']
AFB = [64, 72, 144, 12, 20][:AFD+1]
RING = list(range(80, 144, 4)) + [240, 244, 248] + [24, 20, 16, 12][:2*(4-AFD)]
NR = len(RING)
def hreg(s): return RING[s % NR]
def rd2(s):
    o = w2slot(s); k = 2 * (o // 61440); o -= 30720 * k
    return [f'ds_read_b64_tr_b16 {v(AFB[s%(AFD+1)]+4*dt+2*rd,2)}, {v(AR+k+dt)} offset:{o + rd*1024}' for dt in (1, 0) for rd in range(2)]
hops = {}
def hld(s):
    def f():
        if OPT['nohl']: return
        if s % 4 == 0: a(f's_add_u32 {sA}, {sHL}, {0 if OPT["hhot"] else s*1024}')
        a(f'buffer_load_dwordx4 {v(hreg(s),4)}, {v(vL16)}, {srd(WS)}, {sA} offen offset:{(s%4)*1024}' + ['', ' sc1', ' nt'][OPT['hfl']])
    hops[s] = f
    return f
def hgate(peeked):
    a.stamp(); a.expect(0, 5, peeked); a.stamp()
    for s in range(OPT['hburst']):
        if s == OPT['hburst'] - 2 and OPT['gate'] == 1: a.peek(0)
        a.do(hld(s))
    a.gap = OPT['hgap']
    a.vq = [hld(s) for s in range(OPT['hburst'], NR)]
cnt = 0
for rp in range(4):
    rd = (first if rp == 0 else []) + (reads(rp + 1) if rp < 3 else [])
    order = [(nu, mu) for nu in range(8) for mu in range(8 - nu)]
    if rp == 3: order = [(nu, j - nu) for j in range(8) for nu in range(j + 1)]
    wq = []
    for idx, (nu, mu) in enumerate(order):
        j = nu + mu
        if rp == 2 and idx == 27:
            assert not rd
            a.post(3)
        if rp == 2 and idx == 33: a.peek(1)
        if rp == 3 and idx == 3: a.expect(1, 3, True)
        if rp == 3 and OPT['gate'] == 0:
            if idx == max(OPT['gidx'] - 5, 3): a.peek(0)
            if idx == max(OPT['gidx'], 6): hgate(True)
        if cnt == OPT['sig2']:
            a.stamp(); a.wait_vm(hst); a.stamp(); a.flag_store(2)
            if OPT['selft']:
                a.do([f's_mov_b64 exec, {sSELF}', f'buffer_load_dword v254, v10, {srd(WS)}, {sHS} offen sc1', 's_mov_b64 exec, -1'])
            a.post(2, False)
        cin = '0' if (rp == 0 and nu == 0) else v(CA+4*j, 4)
        a(f'v_mfma_f32_16x16x32_bf16 {v(CA+4*j,4)}, {v(FA(rp&1,mu),4)}, {v(FB(rp&1,nu),4)}, {cin}')
        cnt += 1
        for _ in range(2 if (rp == 0 and cnt <= 8) else 1):
            if rd: a(rd.pop(0))
        if rp == 3:
            if mu == 0: wq.append((idx + 6, j))
            if idx >= 7 and idx % 4 == 3 and wq and wq[0][0] <= idx:
                jj_ = wq.pop(0)[1]; a(f'ds_write_b128 {v(vXW)}, {v(CA+4*jj_,4)} offset:{1024*jj_}')
    assert not rd
a.drain_f()
a.stamp()
for _, j in wq: a(f'ds_write_b128 {v(vXW)}, {v(CA+4*j,4)} offset:{1024*j}')
if OPT['gate'] == 1: a.peek(0)
a.post(4)
a.stamp(0, True)
if OPT['gate'] == 1: hgate(True)
a.stamp(5); a.expect(0, 6, OPT['gate'] == 1); a.stamp(5)
for q in range(AFD):
    for x in rd2(q): a(x)

pre = []
for k in range(8): pre += [lo(XU+2*k, XS+k), hi(XU+2*k+1, XS+k)]
for k in range(16): pre.append(f'v_sub_f32 {v(DM+k)}, {v(XU+k)}, v232')
for k in range(16): pre.append(f'v_mul_f32 {v(DM+k)}, {v(DM+k)}, v233')
post_ = []
for k in range(8): post_ += [lo(YU+2*k, YR+k), hi(YU+2*k+1, YR+k)]
for k in range(16): post_.append(f'v_fmac_f32 {v(XU+k)}, {v(DM+k)}, {v(YU+k)}')
yreads = [f'ds_read_b32 {v(YR+4*grp+q)}, {v(vYR)} offset:{(8*grp+q)*256}' for grp in range(2) for q in range(4)]
def g2mm(s, dt):
    cin = '0' if s == 0 else v(G2A+16*dt, 16)
    return f'v_mfma_f32_32x32x16_bf16 {v(G2A+16*dt,16)}, {v(AFB[s%(AFD+1)]+4*dt,4)}, {v(hreg(s),4)}, {cin}'
assert OPT['lastk'] <= AFD
for s in range(43):
    if s > 0 and s + NR - 1 < 43: a.vq.append(hld(s + NR - 1))
    if s == 10: a.post(6, False); a.stamp()
    if s == 20: a.post(8, False)
    if s == 28 - AFD: a.stamp(5); a.expect(0, 8, True); a.stamp(); a.stamp(5)
    side = rd2(s + AFD) if s + AFD < 43 else []
    if s == OPT['pres']: side += [f'ds_read_b128 {v(XS,4)}, {v(vSTa)}', f'ds_read_b128 {v(XS+4,4)}, {v(vSTb)}', f'ds_read_b64 v[232:233], {v(vSTS)}']
    if s == OPT['pres'] + 2: a.fq += pre
    if s == 28: a.expect(1, 8, True)
    if s == 36 - AFD: a.stamp(5); a.expect(0, 9, True); a.stamp(5)
    if s == OPT['ybar']:
        a.stamp(); a.stamp(5); a.expect(0, 10, True); a.stamp(); a.stamp(5)
        side += yreads
    if s == OPT['ybar'] + 2: a.fq += post_
    if hops[s] in a.vq: a.drain_v(hops[s])
    h = (len(side) + 1) // 2
    for dt in (1, 0):
        if dt == 0 and s >= 43 - OPT['lastk']: continue
        if OPT['onew'] and dt == 1:
            a.service(True)
            if ('v', hreg(s)) in a.pend: a.wait_vm(a.pend[('v', hreg(s))][1])
            a.wait_lg(a.pend[('v', AFB[s%(AFD+1)]+2)][1])
        a(g2mm(s, dt))
        for x in side[:h]: a(x)
        side = side[h:]
    for x in side: a(x)
    if s + 2 in (28 - AFD, 36 - AFD, OPT['ybar']): a.peek(0)
    if s == 26: a.peek(1)
wr_ = [f'ds_write_b128 {v(vE2W)}, {v(G2A+16+4*k,4)} offset:{1024*k}' for k in range(4)]
for s in range(43 - OPT['lastk'], 43):
    a(g2mm(s, 0))
    if s > 43 - OPT['lastk']: a(wr_.pop(0))
for x in wr_: a(x)
a.stamp(0, True); a.stamp(5)
if not OPT['fbar']: a.post(9)
a.drain_f()
for k in range(8): a(f'v_pk_add_f32 {v(XU+2*k,2)}, {v(XU+2*k,2)}, {v(G2A+2*k,2)}')
if OPT['fbar']:
    a.wait_all_lg(); a('s_barrier')
else: a.expect(1, 9)
for k in range(4): a(f'ds_read_b128 {v(64+4*k,4)}, {v(vE2R)} offset:{1024*k}')
for h in range(2):
    for k in range(4*h, 4*h+4): a(f'v_pk_add_f32 {v(XU+2*k,2)}, {v(XU+2*k,2)}, {v(64+2*k,2)}')
    for k in range(4*h, 4*h+4): a(f'v_cvt_pk_bf16_f32 {v(96+k)}, {v(XU+2*k)}, {v(XU+2*k+1)}')
    a(f'ds_write_b128 {v((vOTa, vOTb)[h])}, {v(96+4*h,4)}')
a.wait_all_lg()
a(f'ds_read_b128 v[104:107], {v(vOTR)}'); a(f'ds_read_b128 v[108:111], {v(vOTR)} offset:1024')
a(f'buffer_store_dwordx4 v[104:107], {v(vOUT)}, {srd(OUT)}, {sO0} offen{OSC}')
a(f'buffer_store_dwordx4 v[108:111], {v(vOUT)}, {srd(OUT)}, {sO1} offen{OSC}')
a.stamp()
print('estimated compute cycles', a.est, file=sys.stderr)
a.finish()
assert L.bars == C.bars, (L.bars, C.bars)

lines = P.lines + L1lines + ['L_compute:'] + C.lines + L.lines + ['L_end:', '    s_endpgm']
if OPT['skel']:
    drop = ('v_mfma', 'v_dot', 'v_pk_', 'v_exp', 'v_rcp', 'ds_read_b64', 'v_fmac', 'v_mul_f32', 'v_cvt_pk', 'ds_write_b128', 'v_perm_b32', 'v_add_f32', 'v_sub_f32')
    lines = [l for l in lines if not l.strip().startswith(drop)]
hdr = open('parallel_sum__ssm_conv_h3__dense_activation_silu__prompt.s.ref').read().split('\n')
hdr = [l for l in hdr if l.startswith(';') and '@launch' not in l]
out = '\n'.join(hdr) + f'\n; @launch grid=(256,1,1) block=(512,1,1) lds={LDS_SIZE}\n'
out += f'''.amdgcn_target "amdgcn-amd-amdhsa--gfx950"
.text
.globl {NAME}
.p2align 8
.type {NAME},@function
{NAME}:
''' + '\n'.join(lines) + f'''
.section .rodata,"a"
.p2align 6
.amdhsa_kernel {NAME}
  .amdhsa_next_free_vgpr 256
  .amdhsa_next_free_sgpr 102
  .amdhsa_accum_offset 256
  .amdhsa_group_segment_fixed_size 0
  .amdhsa_kernarg_size 96
  .amdhsa_user_sgpr_count 2
  .amdhsa_user_sgpr_kernarg_segment_ptr 1
  .amdhsa_system_sgpr_workgroup_id_x 1
.end_amdhsa_kernel
'''
open(sys.argv[1], 'w').write(out)
print(dbg, file=sys.stderr)
print('lines', len(lines), 'stamps L/C', L.nstamp, C.nstamp, file=sys.stderr)
```

```python
import sys
from emit import Asm

NAME = "parallel_sum__ssm_conv_h3__dense_activation_silu__prompt_kernel"
OPT = dict(stamps=0, sg=0, probe=-2, base=60000, who=1, skel=0,
           map=0, rot=0, prio=1, look=10, lookkv=4, cap=8, hat=8, t2at=-2, t3at=-2, upat=8, ulat=16, ubat=24,
           pwat=34, s2at=42, psleep=2, pdelay=0, f1d=1000, ubar=5, sig2=50, sig3=2, hburst=7, hgap=46,
           g2at=24, ybar=37, osc=1, ht=0, ydelay=0, lprio=0, t2mode=0, spf=0, sw2=0, hp=1, dsx=4, ntkv=1, ntx=0, nth=0, na=43, wper=2, gate=1, afd=4, nx=0, esl=4, nodma=0, nohl=0, notail=0, nodot=0, nosync=0, kvfirst=1, yk=3, yp=12, yc=4, lspf=0, t1=1, pc=9, res=4, lastk=4, fbar=1, fpre=1, tp=0, duat=20, cpf=0, th=0, w1=1, csv=0, early=1, cap1=10, pair=0, s2skip=0, cap3=6, pres=2, udef=1, tlb=3, tlbm=1, look0=7, onew=1, w64=0, wsl=0, yprio=2, jit=0, wc=20, gidx=0, hhot=0, hfl=1, wm=14, wk=10, bg=0, bgfrom=2, selft=0, tw=1, cap2=6)
for x in sys.argv[2:]:
    k, v = x.split('='); assert k in OPT, k; OPT[k] = int(v)

WS_E, WS_FLAG, WS_STAMP, WS_U, WS_Y, WS_H, WS_SIZE = 0, 0x80000, 0x40000, 0x100000, 0x300000, 0x500000, 0x1000000
FPH = 0x20000
OOB = 0x7f000000
SLOT = 28672
CV = 114688; CVCH = 9216; U1OFF = 4640; HBASE = CV + 18432; HCH = 8448; HBD = 4228
KB, VB, SB = CV, CV + 8192, CV + 9216 + 8192
XST = 150016; STATS = 158208; CSUM = 159232; PW = CSUM + 3072
LDS_SIZE = 163840
def w2slot(s): return (s if s < 36 else s - 36) * 4096
YT, EX, OT = 8*4096, 12*4096, 10*4096
Q, K, V, SH, HK, W1, W2, OUT, WS = 4, 8, 12, 16, 20, 24, 28, 32, 36
def srd(r): return f's[{r}:{r+3}]'
sD, sE, sT, sM1, st, sDS, sCP, sW, sWV, sTAG, sNTAG, sP0 = [f's{i}' for i in range(42, 54)]
sXO, sW1O, sHS, sHS3, sW2O, sHL = [f's{i}' for i in range(54, 60)]
sM0W, sW4K, sW3K, sSELLO, sSELHI, sONES = [f's{i}' for i in range(62, 68)]
sPAIR = 's[68:69]'
sSPIN, sTH, sKH, sMASK, sW2K, sI = [f's{i}' for i in range(70, 76)]
sHM0, sHSO, sD0, sD1, sA, sB, sG, sUS0 = [f's{i}' for i in range(76, 84)]
sUS1 = 's86'
sUL, sYS0, sYS1, sYL, sO0, sO1, sROT, sC = [f's{i}' for i in range(88, 96)]
sSTASH = 's101'
def v(n, c=1): return f'v{n}' if c == 1 else f'v[{n}:{n+c-1}]'
OSC = ' sc1' if OPT['osc'] else ''
vL16, vSTAMP, vFL, vPWB, vPWM, vPWT = 2, 31, 28, 29, 30, 255

class Prog(Asm):
    def __init__(self, name, pwr):
        super().__init__(); self.name = name; self.bars = []; self.nstamp = 0; self.pwr = pwr
    def label(self):
        self.nlabel += 1; return f'{self.name}{self.nlabel}'
    def bar(self, tag, lg=True):
        self.lock()
        if lg: self.wait_all_lg()
        self('s_barrier'); self.bars.append(tag)
        self.unlock()
    def post(self, n, lg=True):
        self.lock()
        self(f'v_mov_b32 {v(vPWT)}, {n}')
        if lg: self.wait_all_lg()
        self('s_mov_b64 exec, 1')
        self(f'ds_write_b32 {v(vPWM)}, {v(vPWT)}')
        self('s_mov_b64 exec, -1')
        self.unlock()
    def peek(self, grp):
        self(f'ds_read_b128 {v(self.pwr,4)}, {v(vPWB)} offset:{16*grp}')
    def expect(self, grp, n, peeked=False, sleep=0):
        r = self.pwr
        self.lock()
        if not peeked: self.peek(grp)
        top, done = self.label(), self.label()
        self.wait_lg(self.pend[('v', r)][1])
        self.place(top)
        self(f'v_min3_u32 {v(r)}, {v(r)}, {v(r+1)}, {v(r+2)}')
        self(f'v_min_u32 {v(r)}, {v(r)}, {v(r+3)}')
        self(f'v_cmp_gt_u32 vcc, {n}, {v(r)}')
        self(f's_cbranch_vccz {done}')
        t0 = self.t
        if sleep: self(f's_sleep {sleep}')
        self(f'ds_read_b128 {v(r,4)}, {v(vPWB)} offset:{16*grp}', track=False)
        self('s_waitcnt lgkmcnt(0)')
        self(f's_branch {top}')
        self.place(done)
        self.t = t0 + (0 if peeked else 100)
        self.unlock()
    def stamp(self, g=0, coarse=False):
        if coarse and OPT['sg'] == 3: g = 3
        if OPT['jit'] and self.name != 'P':
            self.njit = getattr(self, 'njit', 0) + 1
            self.lock()
            l = self.label()
            self(f's_lshl_b32 s96, s2, 3'); self(f's_add_u32 s96, s96, {sWV}'); self(f's_add_u32 s96, s96, {sTAG}')
            self(f's_mul_i32 s96, s96, {(2654435761 * (2 * self.njit + 1 + OPT["jit"] * 64)) & 0xffffffff}'); self('s_lshr_b32 s96, s96, 28')
            self('s_cmp_gt_u32 s96, 2'); self(f's_cbranch_scc1 {l}')
            self(f's_sleep {(20, 60, 127)[self.njit % 3]}')
            self.place(l)
            self.unlock()
        if g == 0: self.est = getattr(self, 'est', []) + [int(self.t)]
        if not OPT['stamps'] or g != OPT['sg']: return
        k = self.nstamp; self.nstamp += 1
        self.lock(); self.wait_all_lg()
        self('s_memtime s[96:97]'); self('s_waitcnt lgkmcnt(0)')
        self('s_sub_u32 s96, s96, s3')
        self(f'v_writelane_b32 {v(vSTAMP)}, s96, {k}')
        self.unlock()
    def dma(self, vaddr, rs, soff, m0expr, extra='', track=True):
        self(m0expr)
        return self(f'buffer_load_dwordx4 {v(vaddr)}, {srd(rs)}, {soff} offen{extra} lds', track=track)
    def flag_store(self, phase):
        self.lock()
        self(f's_mov_b32 {sG}, {(phase-1)*FPH}')
        self('s_mov_b64 exec, 0xffff')
        self(f'buffer_store_dwordx2 v[252:253], {v(vFL)}, {srd(WS)}, {sG} offen sc1')
        self('s_mov_b64 exec, -1')
        self.unlock()
    def poll_issue(self, vaddr, dst, mask):
        self(f's_mov_b64 exec, {mask}')
        r = self(f'buffer_load_dwordx2 {v(dst,2)}, {v(vaddr)}, {srd(WS)}, 0 offen sc1')
        self('s_mov_b64 exec, -1')
        return r
    def poll_check(self, vaddr, dst, mask):
        self.lock()
        top, done = self.label(), self.label()
        self(f's_mov_b32 {sSPIN}, 0')
        self(f's_mov_b64 exec, {mask}')
        self.wait_vm(self.pend[('v', dst)][1])
        self.place(top)
        self(f'v_cmp_eq_u32 vcc, {sTAG}, {v(dst)}')
        self(f'v_cmp_eq_u32 {sPAIR}, {sNTAG}, {v(dst+1)}')
        self(f's_and_b64 vcc, vcc, {sPAIR}')
        self('s_cmp_eq_u64 vcc, exec')
        self(f's_cbranch_scc1 {done}')
        self(f's_add_u32 {sSPIN}, {sSPIN}, 1')
        self(f's_cmp_gt_u32 {sSPIN}, {0 if OPT["nosync"] else 0x20000}')
        self(f's_cbranch_scc1 {done}')
        self(f's_sleep {OPT["psleep"]}')
        self(f'buffer_load_dwordx2 {v(dst,2)}, {v(vaddr)}, {srd(WS)}, 0 offen sc1', track=False)
        self('s_waitcnt vmcnt(0)')
        self(f's_branch {top}')
        self.place(done)
        self('s_mov_b64 exec, -1')
        self.unlock()
    def finish(self):
        a = self
        if OPT['stamps']:
            a('s_waitcnt vmcnt(0)')
            a.stamp(OPT['sg'])
            if OPT['probe'] > -2 and (a.name == 'C') == (OPT['who'] == 1):
                a(f's_mov_b32 s60, {OPT["base"]}')
                if OPT['probe'] == 99:
                    a('s_load_dwordx2 s[84:85], s[0:1], 80'); a('s_mov_b32 s86, 256'); a('s_mov_b32 s87, 0x20000'); a('s_waitcnt lgkmcnt(0)')
                    a(f'v_readlane_b32 s61, {v(vSTAMP)}, 31'); a('v_mov_b32 v128, 0'); a('v_mov_b32 v129, s61'); a('v_not_b32 v130, v129')
                    lz = a.label()
                    a(f's_cmp_lg_u32 {sW}, 0'); a(f's_cbranch_scc1 {lz}')
                    a('s_mov_b64 exec, 1')
                    a('buffer_atomic_umax v129, v128, s[84:87], 0 offen sc1'); a('buffer_atomic_umax v130, v128, s[84:87], 0 offen offset:128 sc1')
                    a('s_mov_b64 exec, -1')
                    a.place(lz)
                    l = a.label(); a.place(l)
                    a('s_memtime s[96:97]'); a('s_waitcnt lgkmcnt(0)'); a('s_sub_u32 s96, s96, s3'); a('s_cmp_lt_u32 s96, 70000'); a(f's_cbranch_scc1 {l}')
                    a('buffer_load_dword v131, v128, s[84:87], 0 offen sc1'); a('buffer_load_dword v132, v128, s[84:87], 0 offen offset:128 sc1')
                    a('v_not_b32 v132, v132'); a('v_sub_u32 v131, v131, v132'); a('v_readfirstlane_b32 s61, v131'); a('s_mul_i32 s61, s61, 95'); a('s_add_u32 s60, s60, s61')
                elif OPT['probe'] >= 0:
                    a(f'v_readlane_b32 s61, {v(vSTAMP)}, {OPT["probe"]}'); a('s_add_u32 s60, s60, s61')
                l = a.label(); a.place(l)
                a('s_memtime s[96:97]'); a('s_waitcnt lgkmcnt(0)'); a('s_sub_u32 s96, s96, s3'); a('s_cmp_lt_u32 s96, s60'); a(f's_cbranch_scc1 {l}')
            a('s_lshl_b32 s60, s2, 3'); a(f's_add_u32 s60, s60, {sWV}'); a('s_lshl_b32 s60, s60, 7'); a(f's_add_u32 s60, s60, {WS_STAMP}')
            a('v_lshlrev_b32 v128, 2, v1')
            a('s_mov_b64 exec, 0xffffffff')
            a(f'buffer_store_dword {v(vSTAMP)}, v128, {srd(WS)}, s60 offen')
        a('s_endpgm')

def lo(d, s): return f'v_lshlrev_b32 {v(d)}, 16, {v(s)}'
def hi(d, s): return f'v_and_b32 {v(d)}, {sMASK}, {v(s)}'

P = a = Prog('P', 0)
a('s_cmp_ge_u32 s2, 256')
a('s_cbranch_scc1 L_end')
if OPT['stamps']:
    a('s_memtime s[68:69]'); a('s_memrealtime s[70:71]'); a('s_waitcnt lgkmcnt(0)'); a('s_mov_b32 s3, s68')
    a(f'v_mov_b32 {v(vSTAMP)}, 0'); a(f'v_writelane_b32 {v(vSTAMP)}, s70, 31')
a('s_load_dwordx16 s[76:91], s[0:1], 0')
a('s_load_dwordx8 s[92:99], s[0:1], 64')
a('v_lshrrev_b32 v3, 6, v0')
a('v_and_b32 v1, 63, v0')
a('s_getpc_b64 s[60:61]')
a.place('L_pc')
a(f'v_readfirstlane_b32 {sWV}, v3')
a(f's_lshr_b32 {sI}, s2, 3')
a('v_lshlrev_b32 v39, 7, v1')
if OPT['cpf']:
    a(f's_lshl_b32 s62, {sWV}, 5'); a(f's_add_u32 s62, s62, {sI}'); a('s_mul_i32 s63, s62, 683'); a('s_lshr_b32 s63, s63, 16')
    a('s_mul_i32 s63, s63, 96'); a('s_sub_u32 s62, s62, s63'); a('s_lshl_b32 s62, s62, 8')
    a('v_add_u32 v3, s62, v39')
    a('v_min_u32 v3, L_end-L_pc, v3')
    a('s_mov_b64 exec, 3')
else:
    a(f's_and_b32 s62, {sI}, 7'); a('s_lshl_b32 s62, s62, 12')
    a(f's_cmp_ge_u32 {sWV}, 4'); a('s_cselect_b32 s62, s62, 0')
    a(f's_lshl_b32 s63, {sWV}, 10'); a('s_add_u32 s62, s62, s63')
    a('v_add_u32 v3, s62, v39')
    a('v_min_u32 v3, L_end-L_pc, v3')
    a('s_mov_b64 exec, 0xff')
a('global_load_dword v254, v3, s[60:61]', track=False)
a('s_mov_b64 exec, -1')
a(f's_and_b32 {sW}, {sWV}, 3')
a('s_and_b32 s60, s2, 7')
lg = OPT['map']
a(f's_lshr_b32 {sT}, s60, {lg}'); a(f's_lshl_b32 {sT}, {sT}, {1+lg}')
a(f's_and_b32 s61, {sI}, {(2<<lg)-1}'); a(f's_add_u32 {sT}, {sT}, s61')
a(f's_and_b32 {sM1}, s60, {(1<<lg)-1}'); a(f's_lshl_b32 {sM1}, {sM1}, {4-lg}')
a(f's_lshr_b32 s61, {sI}, {1+lg}'); a(f's_add_u32 {sM1}, {sM1}, s61')
a(f's_and_b32 s61, {sM1}, 1')
a(f's_lshl_b32 {st}, {sT}, 1')
a(f's_add_u32 {st}, {st}, s61')
a(f's_lshr_b32 {sDS}, {sM1}, 1')
if OPT['dsx']: a(f's_xor_b32 {sDS}, {sDS}, {OPT["dsx"]}')
a(f's_lshl_b32 {sW2K}, {sW}, 11')
a(f'v_lshlrev_b32 {v(vL16)}, 4, v1')
a(f's_cmp_ge_u32 {sWV}, 4')
a('s_cbranch_scc1 L_compute')
def common2(a):
    a(f's_lshl_b32 {sCP}, {sDS}, 5'); a(f's_add_u32 {sCP}, {sCP}, {st}')
    a(f's_lshl_b32 {sW4K}, {sW}, 12'); a(f's_lshl_b32 {sM0W}, {sW}, 10')
    a(f's_and_b32 {sTH}, {sW}, 1'); a(f's_lshr_b32 {sKH}, {sW}, 1')
    a(f's_mul_i32 {sP0}, {sM1}, 3'); a(f's_lshl_b32 s60, {sM1}, 1'); a('s_add_u32 s60, s60, 11'); a(f's_min_u32 {sP0}, {sP0}, s60')
    a(f's_mov_b32 s{WS+2}, {WS_SIZE}'); a(f's_mov_b32 s{WS+3}, 0x20000')
    a(f'v_mov_b32 {v(vPWB)}, {PW}'); a(f's_lshl_b32 s60, {sWV}, 2'); a(f'v_add_u32 {v(vPWM)}, s60, {v(vPWB)}')

L = a = Prog('L', 56)
vXA, vWA, vKD, vHALO, vT43, vW2A, vW2W, vP2, vP3 = 4, 8, 12, 14, 15, 16, 17, 18, 19
vP1, vUL, vULp, vUW, vZU, vZH, vW2W2, vW2W3, UR, PO, WT = 22, 23, 24, 25, 26, 27, 11, 3, 236, 40, 64
vXRd, vYS, vDU, XRL, DUL, DRL, TB = 246, 247, 248, 64, 96, 112, 128
if OPT['lprio']: a(f's_setprio {OPT["lprio"]}')
for r, n in ((W1, 1409024), (Q, 2097152), (K, 2097152), (V, 2097152), (SH, 4096)):
    a(f's_mov_b32 s{r+2}, {n}'); a(f's_mov_b32 s{r+3}, 0x20000')
a(f'v_min_u32 {v(vT43)}, {42*128}, v39')
a('v_lshrrev_b32 v33, 3, v1'); a('v_and_b32 v34, 7, v1'); a('v_lshlrev_b32 v33, 10, v33')
a(f's_lshl_b32 s60, {st}, 16'); a(f's_lshl_b32 s61, {sW}, 14'); a('s_add_u32 s60, s60, s61')
a(f's_lshl_b32 s61, {sDS}, 7'); a(f's_add_u32 {sSTASH}, s60, s61')
a('v_lshrrev_b32 v35, 5, v1'); a('v_xor_b32 v35, v35, v34'); a('v_lshl_add_u32 v38, v35, 4, v33')
a(f's_lshl_b32 s60, {sW}, 6'); a('s_and_b32 s60, s60, 64'); a('s_xor_b32 s61, s60, 32')
a(f'v_xor_b32 {v(vKD)}, s61, v38')
a('s_xor_b32 s61, s60, 64')
a(f'v_xor_b32 {v(vKD+1)}, s61, v38'); a(f'v_add_u32 {v(vKD+1)}, 8192, {v(vKD+1)}')
a(f'v_add_u32 v38, {sSTASH}, v38'); a(f'v_subrev_u32 {v(vHALO)}, 8192, v38')
a(f's_lshl_b32 {sXO}, {sT}, 17')
a('s_waitcnt lgkmcnt(0)')
a(f's_mov_b64 s[{W1}:{W1+1}], s[90:91]')
a(f's_mov_b64 s[{Q}:{Q+1}], s[76:77]')
a(f's_mov_b64 s[{K}:{K+1}], s[78:79]')
a(f's_mov_b64 s[{V}:{V+1}], s[80:81]')
a(f's_mov_b64 s[{SH}:{SH+1}], s[82:83]')
seq = {}
def first_touch():
    l = [a.label() for _ in range(2)]
    a(f's_cmp_lg_u32 {sW}, 2'); a(f's_cbranch_scc1 {l[0]}')
    a(f's_mul_i32 s60, s2, {43*128}')
    a(f'buffer_load_dword v254, {v(vT43)}, {srd(W1)}, s60 offen', track=False); a(f's_branch {l[1]}')
    a.place(l[0])
    a(f's_lshl_b32 s61, {sM1}, 13'); a(f's_add_u32 s60, {sXO}, s61')
    a(f'buffer_load_dword v254, v39, {srd(Q)}, s60 offen' + ' nt' * OPT['ntx'], track=False)
    a.place(l[1])
def kv4():
    for rs, base in ((K, KB), (V, VB)):
        for n in range(2): seq['kv'] = a.dma(vKD+n, rs, sSTASH, f's_add_u32 m0, {sW2K}, {base + 1024 + n*1024}', ' nt' * OPT['ntkv'])
l = [a.label() for _ in range(4)]
a(f's_cmp_ge_u32 {sW}, 2'); a(f's_cbranch_scc1 {l[0]}')
a(f's_cmp_lg_u32 {sW}, 0'); a(f's_cbranch_scc1 {l[2]}')
a.dma(vHALO, K, '0', f's_mov_b32 m0, {KB}', track=False); a(f's_branch {l[3]}')
a.place(l[2])
a(f's_lshl_b32 s60, {sDS}, 9')
a.dma(vL16, SH, 's60', f's_mov_b32 m0, {SB}', track=False)
a(f's_branch {l[3]}')
a.place(l[0])
if not OPT['kvfirst']: first_touch()
a.place(l[3])
kv4()
if OPT['kvfirst'] and OPT['t1']:
    a(f's_cmp_ge_u32 {sW}, 2'); a(f's_cbranch_scc1 {l[1]}')
    if OPT['th']:
        lk, lm = a.label(), a.label()
        a(f's_mov_b64 s[{HK}:{HK+1}], s[84:85]'); a(f's_mov_b64 s[{W2}:{W2+1}], s[92:93]')
        for r, n in ((HK, 2097152), (W2, 1409024)):
            a(f's_mov_b32 s{r+2}, {n}'); a(f's_mov_b32 s{r+3}, 0x20000')
        a(f's_cmp_lg_u32 {sW}, 0'); a(f's_cbranch_scc1 {lk}')
        a(f's_mul_i32 s60, s2, {43*128}')
        a(f'buffer_load_dword v254, {v(vT43)}, {srd(W2)}, s60 offen', track=False); a(f's_branch {lm}')
        a.place(lk)
        a(f's_lshl_b32 s60, {sDS}, 5'); a(f's_add_u32 s60, s60, {st}'); a('s_lshl_b32 s60, s60, 13')
        if OPT['th'] == 1: a('s_mov_b64 exec, 1')
        a(f'buffer_load_dword v254, v39, {srd(HK)}, s60 offen'); a.pend.pop(('v', 254))
        a('s_mov_b64 exec, -1')
        a.place(lm)
    else:
        a('s_mov_b64 exec, 1')
        a(f'buffer_load_dword v254, {v(vL16)}, {srd(SH)}, 0 offen'); a.pend.pop(('v', 254))
        a('s_mov_b64 exec, -1')
    lj = a.label(); a(f's_branch {lj}')
    a.place(l[1])
    first_touch()
    a.place(lj)
a(f's_mov_b64 s[{HK}:{HK+1}], s[84:85]')
a(f's_mov_b64 s[{W2}:{W2+1}], s[92:93]')
a(f's_mov_b64 s[{WS}:{WS+1}], s[98:99]')
a(f's_load_dword {sE}, s[{WS}:{WS+1}], {WS_E}')
common2(a)
a(f's_lshl_b32 s60, {sCP}, 2')
a(f's_load_dword {sD}, s[86:87], s60')
a('v_lshrrev_b32 v32, 4, v1')
a('v_xor_b32 v35, v34, v32')
a(f'v_lshl_add_u32 {v(vXA)}, v35, 4, v33')
a(f'v_xor_b32 {v(vXA+1)}, 64, {v(vXA)}')
a(f'v_add_u32 {v(vXA+1)}, 8192, {v(vXA+1)}')
a(f'v_add_u32 {v(vXA+2)}, 16384, {v(vXA)}')
a(f'v_add_u32 {v(vXA+3)}, 16384, {v(vXA+1)}')
a(f's_lshl_b32 s60, {sW}, 15'); a(f's_add_u32 {sXO}, {sXO}, s60')
a(f's_mul_i32 {sW3K}, {sW}, 3072')
a(f's_cmp_lt_u32 {sM1}, 11')
a('s_cselect_b32 s61, 12, 8')
a(f'v_mov_b32 v3, {OOB}')
for j in range(3):
    if j: a(f'v_add_u32 v36, {64*j}, v1')
    src = 'v36' if j else 'v1'
    a(f'v_mul_u32_u24 v37, 5462, {src}')
    a('v_lshrrev_b32 v37, 16, v37')
    a('v_mul_u32_u24 v35, 12, v37')
    a(f'v_sub_u32 v35, {src}, v35')
    a('v_cmp_gt_u32 vcc, s61, v35')
    a('v_mul_u32_u24 v37, 2752, v37')
    a(f'v_lshl_add_u32 {v(vWA+j)}, v35, 4, v37')
    a(f'v_cndmask_b32 {v(vWA+j)}, v3, {v(vWA+j)}, vcc')
a(f's_mul_i32 {sW1O}, {sW}, {16*2752}'); a(f's_lshl_b32 s60, {sP0}, 6'); a(f's_add_u32 {sW1O}, {sW1O}, s60')
if OPT['rot'] == 1: a(f's_and_b32 {sROT}, {sM1}, 7')
elif OPT['rot'] == 2:
    a(f's_lshl_b32 {sROT}, {sT}, 2'); a(f's_add_u32 {sROT}, {sROT}, {sM1}')
elif OPT['rot'] == 3:
    a(f's_lshr_b32 {sROT}, {sT}, 1'); a(f's_add_u32 {sROT}, {sROT}, {sM1}')
elif OPT['rot'] == 5:
    a(f's_lshl_b32 {sROT}, {sT}, 1'); a(f's_add_u32 {sROT}, {sROT}, {sM1}')
elif OPT['rot'] == 6:
    a(f's_lshl_b32 {sROT}, {sT}, 1')
elif OPT['rot'] == 7:
    a(f's_lshl_b32 {sROT}, {sT}, 2')
elif OPT['rot'] == 4:
    a(f's_add_u32 {sROT}, {sT}, {sM1}')
for r, n in ((HK, 2097152), (W2, 1409024)):
    a(f's_mov_b32 s{r+2}, {n}'); a(f's_mov_b32 s{r+3}, 0x20000')

ops = []
def op(name, gate, fn): ops.append((name, gate, fn))
def touch2():
    if OPT['t2mode']:
        a(f's_lshl_b32 {sG}, {sI}, 2'); a(f's_add_u32 {sG}, {sG}, {sW}')
        if OPT['map'] == 1:
            a(f's_mul_i32 {sG}, {sG}, 43'); a('v_min_u32 v253, 42, v1'); a(f'v_add_u32 v253, {sG}, v253')
            a('v_and_b32 v252, 3, v253'); a('v_lshrrev_b32 v253, 2, v253'); a('v_lshlrev_b32 v253, 10, v253'); a('v_lshl_add_u32 v253, v252, 7, v253')
            a(f's_and_b32 {sG}, {sDS}, 4'); a(f's_lshl_b32 {sG}, {sG}, 7')
            a(f'buffer_load_dword v254, v253, {srd(W2)}, {sG} offen')
        else:
            a(f's_mul_i32 {sG}, {sG}, {86*128}')
            a(f'buffer_load_dword v254, {v(vT43)}, {srd(W2)}, {sG} offen')
            a(f's_add_u32 {sG}, {sG}, {43*128}')
            a(f'buffer_load_dword v253, {v(vT43)}, {srd(W2)}, {sG} offen')
        return
    l = a.label()
    a(f's_cmp_lg_u32 {sW}, 2'); a(f's_cbranch_scc1 {l}')
    a(f's_mul_i32 {sG}, s2, {43*128}')
    a(f'buffer_load_dword v254, {v(vT43)}, {srd(W2)}, {sG} offen', track=False)
    a.place(l)
def touch3():
    l = a.label()
    a(f's_cmp_lg_u32 {sW}, 3'); a(f's_cbranch_scc1 {l}')
    a(f's_mul_i32 {sG}, {sI}, {43*1024}'); a(f'v_lshlrev_b32 v253, 3, {v(vT43)}')
    a(f'buffer_load_dword v254, v253, {srd(W2)}, {sG} offen offset:384', track=False)
    a.place(l)
def add_chunk(c):
    slot = (c % 4) * SLOT
    gate = f'c{c-3}' if c >= 4 else None
    def w(j):
        def f():
            if j == 0:
                if c == OPT['t2at']: touch2()
                if c == OPT['t3at']: touch3()
                if OPT['rot']:
                    a(f's_add_u32 {sC}, {sROT}, {c}'); a(f's_and_b32 {sC}, {sC}, 7')
                    a(f's_mul_i32 {sB}, {sC}, {64*2752}'); a(f's_add_u32 {sB}, {sB}, {sW1O}')
                    a(f's_lshl_b32 {sA}, {sC}, 7'); a(f's_add_u32 {sA}, {sA}, {sXO}')
                else:
                    a(f's_add_u32 {sB}, {sW1O}, {c*64*2752}')
            return a.dma(vWA+j, W1, sB, f's_add_u32 m0, {sW3K}, {slot + 16384 + j*1024}')
        return f
    for j in range(3): op(f'w{c}_{j}', gate, w(j))
    def xo(n):
        if n == 0 and not OPT['rot']: a(f's_add_u32 {sA}, {sXO}, {c*128}')
        return a.dma(vXA+n, Q, sA, f's_add_u32 m0, {sW4K}, {slot + n*1024}')
    for n in range(4): op(f'x{c}_{n}', gate, lambda n=n: xo(n))
def add_h():
    for n in range(4):
        def f(n=n):
            if n == 0 and OPT['t2at'] == -2: touch2()
            if n == 0 and OPT['t3at'] == -2: touch3()
            a(f's_mov_b32 m0, {sHM0}')
            return a(f'buffer_load_dwordx4 {v(vL16)}, {srd(HK)}, {sHSO} offen offset:{n*1024}{" nt" * OPT["nth"]} lds')
        op(f'h{n}', None, f)
def w2op(s):
    if s == 28 and OPT['t2at'] == -3: touch2()
    if s == 28 and OPT['t3at'] == -3: touch3()
    a(f's_add_u32 {sO0}, {sW2O}, {s*16384}')
    return a(f'buffer_load_dwordx4 {v(WT+4*s,4)}, {v(vW2A)}, {srd(W2)}, {sO0} offen')
def uload():
    a.poll_check(vP1, 20, '0x1ff')
    a(f'buffer_load_dwordx4 {v(UR,4)}, {v(vUL)}, {srd(WS)}, {sUL} offen sc1')
    a(f'buffer_load_dwordx4 {v(UR+4,4)}, {v(vUL)}, {srd(WS)}, {sUL} offen offset:16 sc1')
    return a(f'buffer_load_dword {v(UR+8)}, {v(vULp)}, {srd(WS)}, {sUL} offen sc1')
def ubuild():
    if OPT['hp']: a('s_setprio 2')
    a(f'ds_write_b128 {v(vZU)}, v[60:63]'); a(f'ds_write_b32 {v(vZH)}, v60')
    for c in range(2):
        sel = sSELLO if c == 0 else sSELHI
        for k in range(4):
            hi0 = UR + 5 - 2*k if k < 3 else UR + 8
            a(f'v_perm_b32 {v(PO+8*c+k)}, {v(hi0)}, {v(UR+6-2*k)}, {sel}')
        a(f'ds_write_b128 {v(vUW)}, {v(PO+8*c,4)} offset:{c*CVCH}')
        for k in range(4): a(f'v_perm_b32 {v(PO+8*c+4+k)}, {v(UR+6-2*k)}, {v(UR+7-2*k)}, {sel}')
        a(f'ds_write_b128 {v(vUW)}, {v(PO+8*c+4,4)} offset:{c*CVCH+U1OFF}')
    flush_posts(True)
    a.wait_all_lg()
    for c in range(2):
        for jj in range(2):
            for h in range(2): a(f'ds_read_b32 {v(DRL+4*c+2*jj+h)}, {v(vDU)} offset:{c*CVCH + 512*jj + 64*h}')
    a.wait_vm(max(seq['st1'], seq['h3']))
    a.post(4); a.stamp(0, True)
    if OPT['hp']: a('s_setprio 0')
    return a.vm_n
nbg = 0
wlist = list(range(28, 43)) + list(range(OPT['nx']))
for c in range(8):
    if c == OPT['hat']: add_h()
    add_chunk(c)
    if OPT['bgfrom'] <= c < 7:
        for _ in range(OPT['bg']):
            op(f'W{wlist[nbg]}', None, lambda s_=wlist[nbg]: w2op(s_)); nbg += 1
if OPT['pair']:
    assert not OPT['rot']
    d = {o[0]: o for o in ops}
    groups = {1: [(0, 1), (2, 3), (4, 5), (6, 7)], 2: [(0,), (1, 2), (3, 4), (5, 6), (7,)], 3: [(0,), (1, 2, 3), (4, 5), (6, 7)]}[OPT['pair']]
    ops[:] = [d[f'{k}{c}_{j}'] for g in groups for k, n in (('w', 3), ('x', 4)) for c in g for j in range(n)]
for n in range(2): op(f'st{n}', None, lambda n=n: a.dma(vXA+n, Q, sSTASH, f's_add_u32 m0, {sW2K}, {XST + n*1024}'))
if OPT['hat'] == 8: add_h()
for s_ in wlist[nbg:]: op(f'W{s_}', None, lambda s_=s_: w2op(s_))
b0 = [o[0] for o in ops].index('x7_3') - 6
for nm, pos, fn in (('ub', OPT['ubat'], ubuild), ('ul', OPT['ulat'], uload), ('up', OPT['upat'], lambda: a.poll_issue(vP1, 20, '0x1ff'))):
    ops.insert(b0 + pos, (nm, 'c4', fn))
names = [o[0] for o in ops]
nxt = [0]
posts = [('x5_3', 1), ('x6_3', 2), ('x7_3', 3)]
capped = [False]
dbg = []
def flush_posts(force=False):
    while posts and posts[0][0] in seq and (force or a.vm_done >= seq[posts[0][0]]):
        a.wait_vm(seq[posts[0][0]]); a.post(posts[0][1], False); a.stamp(); posts.pop(0)
def issue_upto(idx):
    while nxt[0] <= min(idx, len(ops) - 1):
        name, gate, fn = ops[nxt[0]]
        if gate is not None and gate not in a.bars: return
        if capped[0]:
            a.wait_vm(a.vm_n - (OPT['cap1'] if posts else OPT['cap']) + 1); flush_posts()
        nxt[0] += 1
        seq[name] = fn()
        if capped[0] and (name in ('x7_3', 'st1', 'h3', 'up', 'ul', 'ub') or (name[0] == 'W' and int(name[1:]) % 3 == 0)):
            a.stamp(2); dbg.append(name)
issue_upto(OPT['lookkv'] - 1)
a('s_branch L_loader2')
L1lines = a.lines; a.lines = ['L_loader2:']
a(f's_mul_i32 s60, {sKH}, {HCH}'); a(f's_mul_i32 s61, {sTH}, {HBD}'); a('s_add_u32 s61, s61, s60'); a(f's_add_u32 {sHM0}, s61, {HBASE+64}')
a(f's_lshl_b32 {sHSO}, {sCP}, 13'); a(f's_add_u32 {sUL}, {sHSO}, {WS_U}'); a(f's_lshl_b32 s61, {sKH}, 12'); a(f's_add_u32 {sHSO}, {sHSO}, s61')
a('s_waitcnt lgkmcnt(0)')
a(f's_add_u32 {sTAG}, {sE}, 1'); a(f's_not_b32 {sNTAG}, {sTAG}')
a.post(0)
a('v_and_b32 v35, 1, v32'); a('v_lshlrev_b32 v35, 2, v35'); a('v_xor_b32 v35, v35, v34')
a(f'v_lshl_add_u32 {v(vW2A)}, v35, 4, v33')
a(f's_mul_i32 {sW2O}, {sKH}, {43*16*1024}'); a(f's_lshl_b32 s61, {sTH}, 13'); a(f's_add_u32 {sW2O}, {sW2O}, s61')
a(f's_lshl_b32 s61, {sDS}, 7'); a(f's_add_u32 {sW2O}, {sW2O}, s61')
a(f'v_add_u32 {v(vW2W)}, {sM0W}, {v(vL16)}')
a(f'v_add_u32 {v(vW2W2)}, 61440, {v(vW2W)}'); a(f'v_add_u32 {v(vW2W3)}, 122880, {v(vW2W)}')
a(f's_lshl_b32 s60, {st}, 1'); a(f's_add_u32 s60, s60, {sTH}'); a('s_mul_i32 s60, s60, 86')
a(f's_mul_i32 s61, {sKH}, 43'); a('s_add_u32 s60, s60, s61'); a('s_lshl_b32 s60, s60, 10')
a(f's_add_u32 {sHL}, s60, {WS_H}')
a(f's_mul_i32 s60, {sKH}, 7'); a('v_min_u32 v38, 8, v1'); a('v_add_u32 v35, s60, v38')
a('v_lshrrev_b32 v36, 1, v35'); a(f'v_xor_b32 v36, {OPT["dsx"]}, v36'); a('v_lshlrev_b32 v36, 12, v36'); a('v_and_b32 v35, 1, v35'); a('v_lshl_add_u32 v37, v35, 7, v36')
a(f's_lshl_b32 s60, {sT}, 8'); a(f's_add_u32 s60, s60, {WS_FLAG + FPH}')
a(f's_and_b32 s61, {st}, 1'); a('s_lshl_b32 s61, s61, 1'); a(f's_add_u32 s61, s61, {sTH}')
a('s_lshl_b32 s61, s61, 15'); a('s_add_u32 s61, s61, s60')
a(f'v_add_u32 {v(vP2)}, s61, v37')
a(f's_lshl_b32 s60, {sDS}, 12'); a(f's_and_b32 s61, {st}, 24'); a('s_lshl_b32 s61, s61, 12'); a('s_add_u32 s60, s60, s61'); a(f's_add_u32 s60, s60, {WS_FLAG}')
a(f's_lshl_b32 s61, {sW}, 3'); a('v_add_u32 v35, s61, v38'); a('v_max_u32 v35, 1, v35'); a('v_subrev_u32 v35, 1, v35')
a('v_lshlrev_b32 v35, 7, v35'); a(f'v_add_u32 {v(vP1)}, s60, v35')
a(f's_add_u32 s60, s60, {sM0W}'); a(f's_add_u32 s60, s60, {2*FPH}')
a('v_lshlrev_b32 v35, 7, v34'); a(f'v_add_u32 {v(vP3)}, s60, v35')
a(f's_lshl_b32 s60, {st}, 16'); a(f's_lshl_b32 s61, {sDS}, 13'); a('s_add_u32 s60, s60, s61'); a(f's_add_u32 s60, s60, {sW2K}')
a(f's_add_u32 {sYL}, s60, {WS_Y}')
a(f'v_lshlrev_b32 {v(vUL)}, 5, v0'); a(f'v_subrev_u32 {v(vULp)}, 4, {v(vUL)}')
a(f'v_add_u32 {v(vUW)}, {CV+448}, {v(vW2W)}')
a(f's_mul_i32 s60, {sKH}, {CVCH}'); a(f's_mul_i32 s61, {sTH}, {U1OFF}'); a('s_add_u32 s61, s61, s60'); a(f's_add_u32 s61, s61, {CV}')
a('v_min_u32 v35, 27, v1'); a('v_lshlrev_b32 v35, 4, v35'); a(f'v_add_u32 {v(vZU)}, s61, v35')
a(f's_sub_u32 s61, {sHM0}, 64'); a('v_and_b32 v35, 15, v1'); a('v_lshlrev_b32 v35, 2, v35'); a(f'v_add_u32 {v(vZH)}, s61, v35')
a(f's_mov_b32 {sSELLO}, 0x05040100'); a(f's_mov_b32 {sSELHI}, 0x07060302')
a(f's_mov_b32 {sMASK}, 0xffff0000'); a(f's_lshl_b32 {sD0}, {sD}, 16'); a(f's_and_b32 {sD1}, {sD}, {sMASK}')
a('v_and_b32 v36, 15, v1')
a('v_bfe_u32 v35, v1, 2, 2'); a('v_lshlrev_b32 v35, 4, v35'); a('v_lshl_add_u32 v35, v32, 7, v35')
a('v_and_b32 v37, 3, v1'); a('v_xor_b32 v37, 3, v37'); a('v_lshl_add_u32 v35, v37, 2, v35')
a(f's_add_u32 s60, {sM0W}, {CV+U1OFF+448}'); a(f'v_add_u32 {v(vDU)}, s60, v35')
a(f's_add_u32 s60, {sW2K}, {CV}'); a(f'v_add_u32 {v(vXRd)}, s60, {v(vL16)}')
a(f'v_lshlrev_b32 {v(vYS)}, 16, v32'); a(f'v_lshl_add_u32 {v(vYS)}, v36, 4, {v(vYS)}')
a(f's_lshl_b32 s60, {sW}, 19'); a(f's_lshl_b32 s61, {sCP}, 8'); a('s_add_u32 s60, s60, s61'); a(f's_add_u32 {sYS0}, s60, {WS_Y}')
a(f's_add_u32 {sYS1}, {sYS0}, 0x40000')
a(f's_lshl_b32 s60, {sCP}, 7'); a(f's_lshl_b32 s61, {sW}, 15'); a('s_add_u32 s60, s60, s61'); a(f's_add_u32 s60, s60, {WS_FLAG}')
a(f'v_lshlrev_b32 {v(vFL)}, 3, v36'); a(f'v_add_u32 {v(vFL)}, s60, {v(vFL)}')
a(f'v_mul_u32_u24 {v(TB)}, 5, v34'); a(f'v_add_u32 {v(TB)}, {sTAG}, {v(TB)}')
for r in range(1, 4): a(f'v_lshrrev_b32 {v(TB+r)}, {r}, {v(TB)}')
for i in range(4): a(f'v_mov_b32 v{60+i}, 0')
if OPT['tlb'] == 2:
    a('s_mov_b32 exec_lo, 0x10001'); a('s_mov_b32 exec_hi, 0x10001')
    for q, so in enumerate((sYS0, sYS1)): a(f'buffer_load_dword v{(249, 252)[q]}, {v(vYS)}, {srd(WS)}, {so} offen sc1')
    a('s_mov_b64 exec, 1')
    a(f'buffer_load_dword v250, {v(vL16)}, {srd(WS)}, {sYL} offen sc1')
    a(f'buffer_load_dword v251, {v(vW2A)}, {srd(W2)}, {sW2O} offen')
    a('s_mov_b64 exec, -1')
a.wait_vm(seq['kv']); a.bar('kv'); a.stamp()
D = OPT['look']
for c in range(5):
    issue_upto(names.index(f'x{c}_3') + (D if c else OPT['look0']))
    a.wait_vm(seq[f'x{c}_3'])
    a.bar(f'c{c}', False)
    a.stamp()
capped[0] = True
def wr(s_):
    if OPT['notail']: return
    o = w2slot(s_); k = o // 61440
    if OPT['w64'] == 1:
        for q in range(2): a(f'ds_write_b64 {v((vW2W, vW2W2, vW2W3)[k])}, {v(WT+4*s_+2*q,2)} offset:{o - 61440*k + 8*q}')
    elif OPT['w64'] == 2:
        for q in range(4): a(f'ds_write_b32 {v((vW2W, vW2W2, vW2W3)[k])}, {v(WT+4*s_+q)} offset:{o - 61440*k + 4*q}')
    else: a(f'ds_write_b128 {v((vW2W, vW2W2, vW2W3)[k])}, {v(WT+4*s_,4)} offset:{o - 61440*k}')
    if OPT['wsl']: a(f's_sleep {OPT["wsl"]}')
def wdma(s_):
    if OPT['nodma']: return
    a.wait_vm(a.vm_n - (OPT['cap2'] if s_ < OPT['wm'] else OPT['cap3']) + 1)
    a(f's_add_u32 {sO0}, {sW2O}, {s_*16384}')
    return a.dma(vW2A, W2, sO0, f's_add_u32 m0, {sM0W}, {w2slot(s_)}')
issue_upto(999)
flush_posts(True)
a.stamp()
a(f's_or_b32 s60, {sCP}, {sW}')
a('s_cmp_lg_u32 s60, 0')
a('s_cbranch_scc1 L_noep')
for q in range(4): a(f'v_add_u32 v{40+q}, {WS_FLAG + 8192*q}, v39')
a(f's_mov_b32 {sSPIN}, 0')
a.place('L_ep')
for q in range(4): a(f'buffer_load_dwordx2 v[{44+2*q}:{45+2*q}], v{40+q}, {srd(WS)}, 0 offen sc1', track=False)
a('s_waitcnt vmcnt(0)')
a('s_mov_b64 s[60:61], exec')
for q in range(4):
    a(f'v_cmp_eq_u32 vcc, {sTAG}, v{44+2*q}'); a('s_and_b64 s[60:61], s[60:61], vcc')
    a(f'v_cmp_eq_u32 vcc, {sNTAG}, v{45+2*q}'); a('s_and_b64 s[60:61], s[60:61], vcc')
a('s_cmp_eq_u64 s[60:61], exec')
a('s_cbranch_scc1 L_epok')
a(f's_add_u32 {sSPIN}, {sSPIN}, 1'); a(f's_cmp_lt_u32 {sSPIN}, {0 if OPT["nosync"] else 0x20000}'); a('s_cbranch_scc1 L_ep')
a.place('L_epok')
a(f'v_mov_b32 v40, {WS_E}'); a(f'v_mov_b32 v41, {sTAG}')
a('s_mov_b64 exec, 1')
a(f'buffer_store_dword v41, v40, {srd(WS)}, 0 offen sc1', track=False)
a('s_mov_b64 exec, -1')
a.place('L_noep')
a.expect(1, 1, sleep=OPT['esl'])
a.stamp()
def dumul():
    for c in range(2):
        for jj in range(2):
            for h in range(2):
                src = DRL+4*c+2*jj+h; d = DUL+8*jj+4*c+2*h
                for x in (hi(d, src), lo(d+1, src), f'v_mul_f32 {v(d)}, {(sD0, sD1)[c]}, {v(d)}', f'v_mul_f32 {v(d+1)}, {(sD0, sD1)[c]}, {v(d+1)}'): a(x)
for s_ in range(28):
    if s_ == OPT['duat']: dumul()
    if OPT['s2skip']:
        if s_ == OPT['s2skip']: a.post(5, False); a.stamp(0, True)
        wl = wdma(s_); continue
    if s_ == OPT['wm']: a.expect(1, 2, sleep=OPT['esl'])
    if s_ == OPT['wm'] + OPT['wk']:
        a.stamp(); a.poll_issue(vP2, 20, '0x1ff')
    if s_ == OPT['wm'] + OPT['wk'] + OPT['wc']:
        a.poll_check(vP2, 20, '0x1ff'); a.post(5, False); a.stamp(0, True)
    wl = wdma(s_)
if OPT['wm'] + OPT['wk'] >= 28:
    a.stamp(); a.poll_issue(vP2, 20, '0x1ff')
if OPT['wm'] + OPT['wk'] + OPT['wc'] >= 28 and not OPT['s2skip']:
    a.poll_check(vP2, 20, '0x1ff')
    a.post(5, False)
    a.stamp(0, True)
a.wait_vm(wl); a.post(6, False)
if OPT['duat'] >= 28: dumul()
a.expect(1, 4, sleep=1)
a(f's_setprio {OPT["yprio"]}')
for jj in range(2):
    for sw in range(4): a(f'ds_read_b128 {v(XRL+16*jj+4*sw,4)}, {v(vXRd)} offset:{8192*sw + 1024*jj}')
for jj in range(2):
    for hf in range(2):
        for c in range(2):
            for r in range(4): a(f'v_add_f32 {v(DUL+8*jj+4*c+r)}, {v(DUL+8*jj+4*c+r)}, {v(XRL+16*jj+8*c+4*hf+r)}')
    for r in range(4):
        a(f'v_cvt_pk_bf16_f32 {v(XRL+16*jj+r)}, {v(DUL+8*jj+4+r)}, {v(DUL+8*jj+4+r)}')
        a(f'v_add_u32 {v(DUL+8*jj+r)}, 0x10000, {v(DUL+8*jj+r)}')
    for r in range(4): a(f'v_perm_b32 {v(XRL+16*jj+r)}, {v(XRL+16*jj+r)}, {v(DUL+8*jj+r)}, {sSELHI}')
    for r in range(4): a(f'v_bfi_b32 {v(XRL+16*jj+r)}, 1, {v(TB+r)}, {v(XRL+16*jj+r)}')
    yst = a(f'buffer_store_dwordx4 {v(XRL+16*jj,4)}, {v(vYS)}, {srd(WS)}, {(sYS0, sYS1)[jj]} offen sc1')
a.post(7)
a.stamp(0, True)
a(f's_setprio {OPT["tp"]}')
a.expect(0, 7)
YB = 120
def yld(track=True):
    for n in range(2): a(f'buffer_load_dwordx4 {v(YB+4*n,4)}, {v(vL16)}, {srd(WS)}, {sYL} offen offset:{1024*n} sc1', track=track)
for s_ in range(28, 44):
    if s_ == 36:
        a.post(8); a.expect(1, 6, sleep=OPT['esl'])
    if s_ == 28 + OPT['yp']: yld()
    if s_ == 43: a.post(9); a.stamp(0, True); a('s_setprio 0')
    if s_ < 43: wr(s_)
for _ in range(OPT['ydelay']): a('s_sleep 4')
if OPT['yp'] > 15: yld()
top, done = a.label(), a.label()
a(f's_mov_b32 {sSPIN}, 0')
a.wait_all_vm()
a.place(top)
a(f'v_xor_b32 v20, {v(YB)}, {v(TB)}')
for k in range(1, 8): a(f'v_bitop3_b32 v20, v20, {v(YB+k)}, {v(TB+(k&3))} bitop3:0xf6')
a('v_and_b32 v20, 1, v20')
a('v_cmp_ne_u32 vcc, 0, v20')
a(f's_cbranch_vccz {done}')
a(f's_add_u32 {sSPIN}, {sSPIN}, 1'); a(f's_cmp_gt_u32 {sSPIN}, 0x20000'); a(f's_cbranch_scc1 {done}')
a(f's_sleep {OPT["psleep"]}')
yld(False)
a('s_waitcnt vmcnt(0)')
a(f's_branch {top}')
a.place(done)
a.stamp(0, True)
a('s_setprio 2')
a(f's_add_u32 s60, {sW2K}, {YT}'); a(f'v_add_u32 v20, s60, {v(vL16)}')
for k in range(8): a(f'v_and_b32 {v(YB+k)}, -2, {v(YB+k)}')
for n in range(2): a(f'ds_write_b128 v20, {v(YB+4*n,4)} offset:{1024*n}')
a.post(10)
a.wait_all_lg()
a.finish()

C = a = Prog('C', 4)
a.gap = 0
vCSR, vSTW, vXR, vWR, vYR, vCSW = 3, 11, 12, 20, 9, 8
vKA, vKB, vSHR, vUS = 212, 213, 214, 215
(vUA, vHA, vDU, vXW, vXRd, vYS, vE2W, vE2R, vSTa, vSTb, vSTS, vOTa, vOTb, vOTR, vOUT) = range(216, 231)
AR = 234
F = {k: 198 + i for i, k in enumerate(('l4', 'n', 'g', 'b', 'l1', 'l3', 'r', 'x', 'h', 't0', 't1', 't2'))}
def fx(s):
    for k, r in F.items(): s = s.replace('%' + k, f'v{r}')
    return s
def e(s): a(fx(s))
if OPT['prio']: a(f's_setprio {OPT["prio"]}')
a(f's_mov_b32 {sMASK}, 0xffff0000')
e('v_lshrrev_b32 %l4, 4, v1'); e('v_lshrrev_b32 %g, 5, v1'); e('v_and_b32 %b, 15, v1'); e('v_and_b32 %h, 1, %l4')
a(f's_lshl_b32 s60, {sW}, 1'); e('v_add_u32 %t0, s60, %g')
e('v_add_u32 %t1, 1, %b'); e('v_and_b32 %t1, 7, %t1'); e('v_xor_b32 %t1, %t1, %t0')
e('v_lshlrev_b32 %t2, 9, %b'); e('v_lshl_add_u32 %t2, %h, 3, %t2'); e(f'v_add_u32 %t2, {KB + 5*128}, %t2')
e(f'v_lshl_add_u32 {v(vKA)}, %t1, 4, %t2')
e('v_add_u32 %t1, 2, %b'); e('v_and_b32 %t1, 7, %t1'); e('v_xor_b32 %t1, %t1, %t0')
e(f'v_lshl_add_u32 {v(vKB)}, %t1, 4, %t2')
a(f's_lshl_b32 s60, {sW}, 7'); a(f's_add_u32 s60, s60, {SB}')
e(f'v_lshlrev_b32 {v(vSHR)}, 5, %l4'); a(f'v_add_u32 {v(vSHR)}, s60, {v(vSHR)}')
e(f'v_lshlrev_b32 {v(vUS)}, 14, %l4'); e(f'v_lshl_add_u32 {v(vUS)}, %b, 4, {v(vUS)}')
common2(a)
a('s_waitcnt lgkmcnt(0)')
a(f's_mov_b64 s[{OUT}:{OUT+1}], s[94:95]')
a(f's_mov_b64 s[{WS}:{WS+1}], s[98:99]')
a(f's_load_dword {sE}, s[{WS}:{WS+1}], {WS_E}')
spf = []
if OPT['spf']:
    a(f's_lshl_b32 s60, {sCP}, 13'); a(f's_add_u32 s60, s60, {sW2K}')
    a('s_add_u32 s84, s84, s60'); a('s_addc_u32 s85, s85, 0')
    a(f's_lshl_b32 s60, s2, 2'); a(f's_add_u32 s60, s60, {sW}'); a(f's_mul_i32 s60, s60, {11*128}'); a(f's_min_u32 s60, s60, {1409024 - 11*128}')
    a('s_add_u32 s92, s92, s60'); a('s_addc_u32 s93, s93, 0')
    for j in range(11): a(f's_load_dword s100, s[92:93], {128*j}')
    for j in range(32): a(f's_load_dword s100, s[84:85], {64*j}')
a(f's_lshl_b32 s60, {sDS}, 18'); a(f's_lshl_b32 s61, {st}, 8'); a('s_add_u32 s60, s60, s61')
a(f's_lshl_b32 s61, {sW}, 16'); a('s_add_u32 s60, s60, s61'); a(f's_add_u32 {sUS0}, s60, {WS_U}'); a(f's_add_u32 {sUS1}, {sUS0}, 8192')
a(f's_mov_b32 {sONES}, 0x3f803f80')
e('v_and_b32 %n, 31, v1'); e('v_and_b32 %l1, 1, v1'); e('v_and_b32 %l3, 3, v1'); e('v_bfe_u32 %r, v1, 2, 2')
e('v_bfe_u32 %t0, v1, 1, 3'); e('v_xor_b32 %t0, %t0, %g'); e('v_lshlrev_b32 %t0, 4, %t0')
e('v_lshl_add_u32 %x, %n, 7, %t0')
e(f'v_add_u32 %t0, {sW4K}, %x')
e('v_lshl_add_u32 %t1, %g, 3, %r'); e('v_mul_u32_u24 %t1, 192, %t1')
e('v_lshl_add_u32 %t1, %h, 5, %t1'); e('v_lshl_add_u32 %t1, %l3, 3, %t1')
for i in range(4):
    a(f's_add_u32 s60, {sW}, {i}'); a('s_and_b32 s60, s60, 3'); a('s_lshl_b32 s61, s60, 5')
    e(f'v_xor_b32 {v(vXR+i)}, s61, %t0')
    a('s_mul_i32 s61, s60, 3072')
    e(f'v_add_u32 {v(vWR+i)}, s61, %t1')
ACC, XF, WF, SU, SQ, CS = 32, 80, 112, 160, 162, 164
for r in range(SU, CS+3): a(f'v_mov_b32 {v(r)}, 0')
a('s_waitcnt lgkmcnt(0)')
a(f's_add_u32 {sTAG}, {sE}, 1'); a(f's_not_b32 {sNTAG}, {sTAG}')
a.post(0)
a.stamp()
a.reserve = OPT['res']
S = []
def s_(*xs):
    for x in xs: S.append(fx(x))
for i in range(4): s_(f'v_add_u32 {v(vXR+4+i)}, {2*SLOT}, {v(vXR+i)}', f'v_add_u32 {v(vWR+4+i)}, {2*SLOT}, {v(vWR+i)}')
s_(f'v_mov_b32 v252, {sTAG}', f'v_mov_b32 v253, {sNTAG}')
s_(f's_lshl_b32 s60, {sCP}, 7', f's_lshl_b32 s61, {sW}, 15', 's_add_u32 s60, s60, s61', f's_add_u32 s60, s60, {WS_FLAG}')
s_(f'v_lshlrev_b32 {v(vFL)}, 3, %b', f'v_add_u32 {v(vFL)}, s60, {v(vFL)}')
NS1 = len(S)
s_(f's_mov_b32 s{OUT+2}, 2097152', f's_mov_b32 s{OUT+3}, 0x20000', f's_mov_b32 {sSELLO}, 0x05040100')
s_(f's_and_b32 s61, {st}, 1', 's_lshl_b32 s61, s61, 1', f's_add_u32 s61, s61, {sTH}', 's_lshl_b32 s61, s61, 8', f's_add_u32 s61, s61, {STATS}')
s_('v_lshlrev_b32 %t0, 3, %n', f'v_add_u32 {v(vSTS)}, s61, %t0')
s_(f's_lshl_b32 s60, {sW}, 8', f's_add_u32 s60, s60, {STATS}', f'v_add_u32 {v(vSTW)}, s60, %t0')
s_(f'v_add_u32 {v(vCSR)}, {CSUM}, {v(vL16)}', f's_lshl_b32 s60, {sW}, 2', f'v_add_u32 {v(vCSW)}, s60, {v(vCSR)}')
s_(f's_lshl_b32 s60, {sT}, 2', f's_add_u32 s60, s60, {sW}', 's_mul_i32 s60, s60, 86', f's_lshl_b32 s61, {sP0}, 1', 's_add_u32 s60, s60, s61', 's_lshl_b32 s60, s60, 10')
s_(f's_add_u32 {sHS}, s60, {WS_H}', f's_add_u32 {sHS3}, {sHS}, 4096')
S.append([f's_cmp_lt_u32 {sM1}, 11', f's_cselect_b32 {sHS3}, {sHS3}, {OOB}', 's_cselect_b32 s85, 0xffff, 0'])
s_('s_mov_b32 s84, -1', 'v_lshlrev_b32 v10, 7, v1')
sSELF = 's[84:85]'
s_(f's_mul_i32 s60, {sKH}, {CVCH}', f's_add_u32 s60, s60, {CV+448-192}', f's_lshl_b32 s61, {sTH}, 8', 's_sub_u32 s60, s60, s61')
s_(f'v_mul_u32_u24 {v(vUA)}, {U1OFF}, %l1', 'v_lshrrev_b32 %t0, 1, %b', 'v_lshl_add_u32 %t0, %t0, 2, %l4')
s_(f'v_lshl_add_u32 {v(vUA)}, %t0, 4, {v(vUA)}', f'v_add_u32 {v(vUA)}, s60, {v(vUA)}')
s_('v_xor_b32 %t0, 1, %l1', f'v_mul_u32_u24 {v(vHA)}, {HBD}, %t0', f'v_lshl_add_u32 {v(vHA)}, %b, 2, {v(vHA)}')
s_('v_lshlrev_b32 %t0, 4, %l4', f'v_sub_u32 {v(vHA)}, {v(vHA)}, %t0')
s_(f's_mul_i32 s60, {sKH}, {HCH}', 's_add_u32 s61, s60, s61', f's_add_u32 s61, s61, {HBASE+64-12}', f'v_add_u32 {v(vHA)}, s61, {v(vHA)}')
s_(f's_lshl_b32 s60, {st}, 1', f's_add_u32 s60, s60, {sTH}', 's_mul_i32 s60, s60, 86', f's_mul_i32 s61, {sKH}, 43', 's_add_u32 s60, s60, s61', 's_lshl_b32 s60, s60, 10')
s_(f's_add_u32 {sHL}, s60, {WS_H}')
s_(f's_lshl_b32 s60, {sW}, 13', f's_add_u32 s60, s60, {CV}', f'v_add_u32 {v(vXW)}, s60, {v(vL16)}')
s_('v_lshl_add_u32 %t0, %g, 2, %r', 'v_lshlrev_b32 %t0, 7, %t0', 'v_bfe_u32 %t1, v1, 3, 1', 'v_lshl_add_u32 %t0, %t1, 6, %t0')
s_('v_lshl_add_u32 %t0, %h, 5, %t0', 'v_lshl_add_u32 %t0, %l1, 4, %t0', 'v_bfe_u32 %t1, v1, 1, 1', 'v_lshl_add_u32 %t0, %t1, 3, %t0')
s_(f's_lshl_b32 s60, {sKH}, 6', 'v_xor_b32 %t0, s60, %t0', f's_lshl_b32 s61, {sKH}, 11')
s_(f'v_add_u32 {v(AR)}, s61, %t0', f'v_xor_b32 {v(AR+1)}, 64, {v(AR)}')
for k in (1, 2): s_(f'v_add_u32 {v(AR+2*k)}, {61440*k}, {v(AR)}', f'v_add_u32 {v(AR+2*k+1)}, {61440*k}, {v(AR+1)}')
s_(f'v_lshlrev_b32 {v(vYR)}, 10, %g', 'v_bfe_u32 %t1, v1, 1, 4', f'v_lshl_add_u32 {v(vYR)}, %t1, 4, {v(vYR)}', f'v_lshl_add_u32 {v(vYR)}, %l1, 2, {v(vYR)}')
s_(f's_lshl_b32 s61, {sKH}, 12', f's_lshl_b32 {sO0}, {sTH}, 3', f's_add_u32 s61, s61, {sO0}', f's_add_u32 s61, s61, {YT}', f'v_add_u32 {v(vYR)}, s61, {v(vYR)}')
s_('v_xor_b32 %t0, s60, %x', f's_lshl_b32 s61, {sTH}, 12', f's_add_u32 s61, s61, {XST}', f'v_add_u32 {v(vSTa)}, s61, %t0', f'v_xor_b32 {v(vSTb)}, 32, {v(vSTa)}')
s_(f's_add_u32 s61, {sW4K}, {EX}', f'v_add_u32 {v(vE2W)}, s61, {v(vL16)}')
s_(f's_xor_b32 s61, {sW4K}, 8192', f's_add_u32 s61, s61, {EX}', f'v_add_u32 {v(vE2R)}, s61, {v(vL16)}')
s_(f's_add_u32 s61, {sW2K}, {OT}', 'v_bfe_u32 %t0, v1, 1, 2', 'v_xor_b32 %t0, %t0, %g', 'v_lshlrev_b32 %t0, 4, %t0')
s_('v_lshl_add_u32 %t0, %n, 6, %t0', f'v_add_u32 {v(vOTa)}, s61, %t0', f'v_xor_b32 {v(vOTb)}, 32, {v(vOTa)}')
s_('v_lshrrev_b32 %t1, 2, v1', 'v_bfe_u32 %t0, v1, 3, 2', 'v_xor_b32 %t0, %t0, %l3', 'v_lshlrev_b32 %t0, 4, %t0', 'v_lshl_add_u32 %t0, %t1, 6, %t0')
s_(f'v_add_u32 {v(vOTR)}, s61, %t0', 'v_lshlrev_b32 %t1, 10, %t1', f'v_lshl_add_u32 {v(vOUT)}, %l3, 4, %t1')
s_(f's_lshl_b32 {sO0}, {st}, 16', f's_lshl_b32 s61, {sDS}, 7', f's_add_u32 {sO0}, {sO0}, s61', f's_lshl_b32 s61, {sTH}, 15')
s_(f's_add_u32 {sO0}, {sO0}, s61', f's_add_u32 {sO0}, {sO0}, s60', f's_add_u32 {sO1}, {sO0}, 16384')

KR, VR, SR, PA = 168, 182, 190, 240
WP, KU, VU, TP = 32, 48, 76, 92
if OPT['fpre']:
    for x in S[:NS1]: a(x)
    S = S[NS1:]; NS1 = 0
    a(f'v_mov_b32 v252, {sNTAG}')
    for ph in (1, 2)[2-OPT['fpre']:]: a.flag_store(ph)
    a(f'v_mov_b32 v252, {sTAG}')
if OPT['early']:
    for x in S: a.do(x)
    S = []; NS1 = 0
if OPT['tlb'] == 3:
    assert OPT['early']
    l = [a.label() for _ in range(2)]
    a(f's_lshl_b32 s60, {sCP}, 8'); a(f's_add_u32 s60, s60, {WS_Y}')
    a(f's_cmp_eq_u32 {sW}, 1'); a(f's_cselect_b32 s60, s60, {sHS}'); a(f's_cselect_b32 exec_lo, 3, 1'); a('s_mov_b32 exec_hi, 0')
    a(f'v_mul_u32_u24 v244, {31*65536}, v1')
    a(f's_cmp_eq_u32 {sW}, 2'); a(f's_cbranch_scc1 {l[0]}')
    a(f'buffer_load_dword v254, v244, {srd(WS)}, s60 offen sc1', track=False); a(f's_branch {l[1]}')
    a.place(l[0])
    a(f'buffer_load_dword v254, v244, {srd(OUT)}, {sO0} offen sc1', track=False)
    a.place(l[1])
    a('s_mov_b64 exec, -1')
elif OPT['tlb']:
    assert OPT['early']
    a('v_mul_u32_u24 v244, 5120, v1'); a('v_mul_u32_u24 v245, 14336, v1')
    a('s_mov_b64 exec, 3')
    if OPT['tlbm'] & 1: a(f'buffer_load_dword v254, v244, {srd(WS)}, {sHS} offen sc1', track=False)
    a('s_mov_b64 exec, 15')
    if OPT['tlbm'] & 2: a(f'buffer_load_dword v254, v245, {srd(WS)}, {sHL} offen sc1', track=False)
    a('s_mov_b64 exec, 1')
    if OPT['tlbm'] & 4: a(f'buffer_load_dword v254, {v(vOUT)}, {srd(OUT)}, {sO0} offen sc1', track=False)
    a('s_mov_b64 exec, -1')
if OPT['pc'] < 0:
    for x in S[:NS1]: a(x)
    S = S[NS1:]; NS1 = 0
    for jj in range(2): a(f'buffer_store_dwordx4 v[248:251], {v(vYS)}, {srd(WS)}, {(sYS0, sYS1)[jj]} offen sc1')
a.bar('kv')
a.stamp()
for p in range(2): a(f'ds_read_b128 {v(SR+4*p,4)}, {v(vSHR)} offset:{16*p}')
for r in range(7): a(f'ds_read_b64 {v(KR+2*r,2)}, {v(vKA if r < 3 else vKB)} offset:{128*r}')
for r in range(4): a(f'ds_read_b64 {v(VR+2*r,2)}, {v(vKB)} offset:{VB-KB+128*(r+3)}')
for x in S[:NS1]: a(x)
S = S[NS1:]
for c in range(4):
    p, e_ = c >> 1, c & 1
    for jj in range(2): a(lo(WP+8*p+4*jj+e_, SR+2*c+jj)); a(hi(WP+8*p+4*jj+2+e_, SR+2*c+jj))
for p in range(2):
    for r in range(7): a(lo(KU+4*r+2*p, KR+2*r+p)); a(hi(KU+4*r+2*p+1, KR+2*r+p))
    for r in range(4): a(lo(VU+4*r+2*p, VR+2*r+p)); a(hi(VU+4*r+2*p+1, VR+2*r+p))
    for i in range(4): a(f'v_pk_mul_f32 {v(TP+2*i,2)}, {v(KU+4*i+2*p,2)}, {v(WP+8*p+6,2)}')
    for j in (2, 1, 0):
        for i in range(4): a(f'v_pk_fma_f32 {v(TP+2*i,2)}, {v(KU+4*(i+3-j)+2*p,2)}, {v(WP+8*p+2*j,2)}, {v(TP+2*i,2)}')
    for i in range(4): a(f'v_pk_mul_f32 {v(TP+2*i,2)}, {v(TP+2*i,2)}, {v(VU+4*i+2*p,2)}')
    for i in range(4): a(f'v_cvt_pk_bf16_f32 {v(PA+4*p+i)}, {v(TP+2*i)}, {v(TP+2*i+1)}')
    if not OPT['udef']: ust = a(f'buffer_store_dwordx4 {v(PA+4*p,4)}, {v(vUS)}, {srd(WS)}, {(sUS0, sUS1)[p]} offen sc1')
if OPT['pc'] == 0:
    for jj in range(2): ust = a(f'buffer_store_dwordx4 v[248:251], {v(vYS)}, {srd(WS)}, {(sYS0, sYS1)[jj]} offen sc1')
ust_t = a.t

AX, BX, vM, vRS, vS, vC3 = 168, 180, 184, 185, 186, 188
stats = [
    f'v_add_f32 {v(SU)}, {v(SU)}, {v(SU+1)}', f'v_add_f32 {v(SQ)}, {v(SQ)}, {v(SQ+1)}',
    f'v_mov_b32 {v(SU+1)}, {v(SU)}', f'v_mov_b32 {v(SQ+1)}, {v(SQ)}',
    f'v_permlane32_swap_b32 {v(SU)}, {v(SU+1)}', f'v_permlane32_swap_b32 {v(SQ)}, {v(SQ+1)}',
    f'v_add_f32 {v(SU)}, {v(SU)}, {v(SU+1)}', f'v_add_f32 {v(SQ)}, {v(SQ)}, {v(SQ+1)}',
    f'v_mul_f32 {v(SU)}, 0x3b000000, {v(SU)}', f'v_mul_f32 {v(SQ)}, 0x3b000000, {v(SQ)}',
    f'v_fma_f32 {v(SQ)}, -{v(SU)}, {v(SU)}, {v(SQ)}', f'v_max_f32 {v(SQ)}, 0, {v(SQ)}',
    f'v_cvt_pk_bf16_f32 v190, {v(SU)}, {v(SQ)}', 'v_xor_b32 v191, 0x8000, v190',
    f'v_perm_b32 {v(BX)}, v191, v191, {sSELLO}', f'v_mov_b32 {v(BX+1)}, {v(BX)}', f'v_mov_b32 {v(BX+2)}, {v(BX)}', f'v_mov_b32 {v(BX+3)}, {v(BX)}',
    lo(vM, 190), hi(191, 190), 'v_add_f32 v191, 0x3727c5ac, v191',
    'v_cvt_pk_bf16_f32 v191, v191, v191', lo(191, 191), 'v_sqrt_f32 v191, v191',
    'v_cvt_pk_bf16_f32 v191, v191, v191', lo(vS, 191), f'v_rcp_f32 {v(vRS)}, {v(vS)}',
    f'v_mul_f32 {v(vC3)}, 0xbfb8aa3b, {v(vRS)}', f'ds_write_b64 {v(vSTW)}, {v(vM,2)}']
def rdx(c):
    st_ = 4 * ((c % 4) >> 1); off = (c & 1) * SLOT
    return [f'ds_read_b128 {v(XF+16*(c&1)+4*i,4)}, {v(vXR+st_+i)} offset:{off}' for i in range(4)]
def rdw(c, i):
    st_ = 4 * ((c % 4) >> 1); off = (c & 1) * SLOT
    return [f'ds_read_b64_tr_b16 {v(WF+12*i+4*ft+2*rd,2)}, {v(vWR+st_+i)} offset:{off+16384+rd*768+ft*64}' for ft in range(3) for rd in range(2)]
a.stamp()
a.bar('c0')
a.stamp(0, True)
for x in rdx(0) + rdw(0, 0) + rdw(0, 1): a(x)
a.fq = S
flag1 = False
for c in range(8):
    X = XF + 16*(c & 1)
    late = rdw(c, 2) + rdw(c, 3)
    if OPT['w1']: a.wait_lg(a.pend[('v', X+12)][1])
    for i in range(4):
        if OPT['w1'] and i == 2: a.wait_lg(a.pend[('v', WF+10)][1])
        for d in range(4 if OPT['nodot'] < 2 else 0):
            a(f'v_dot2c_f32_bf16 {v(SU+(d&1))}, {sONES}, {v(X+4*i+d)}'); a(f'v_dot2c_f32_bf16 {v(SQ+(d&1))}, {v(X+4*i+d)}, {v(X+4*i+d)}')
    ncs = OPT['csv'] if 1 <= c < 7 else 0
    if ncs:
        cq = []
        for d in range(4 - ncs, 4):
            for ft in range(3): cq += [lo(240+2*ft, WF+4*ft+d), hi(241+2*ft, WF+4*ft+d)]
            for ft in range(3): cq += [f'v_add_f32 v{246+ft}, v{246+ft}, v{240+2*ft}', f'v_add_f32 v{249+ft}, v{249+ft}, v{241+2*ft}']
        a.fq = cq + a.fq; nrest = len(a.fq) - len(cq)
    for d in range(4 - ncs):
        for ft in range(3): a(f'v_dot2c_f32_bf16 {v(CS+ft)}, {sONES}, {v(WF+4*ft+d)}')
    if c == 7:
        a.drain_f()
        if OPT['csv']:
            for ft in range(3): a.fq += [f'v_add_f32 v{246+ft}, v{246+ft}, v{249+ft}']
            for ft in range(3): a.fq += [f'v_add_f32 {v(CS+ft)}, {v(CS+ft)}, v{246+ft}']
        for ft in range(3): a.fq += [hi(192+ft, CS+ft), f'v_sub_f32 v{195+ft}, {v(CS+ft)}, v{192+ft}']
        for ft in range(3): a.fq += [f'v_cvt_pk_bf16_f32 v{192+ft}, v{192+ft}, v{195+ft}', f'ds_write_b32 {v(vCSW)}, v{192+ft} offset:{1024*ft}']
        a.fq += stats
    def mm(i, ft):
        cin = '0' if (c == 0 and i == 0) else v(ACC+16*ft, 16)
        return f'v_mfma_f32_32x32x16_bf16 {v(ACC+16*ft,16)}, {v(WF+12*i+4*ft,4)}, {v(X+4*i,4)}, {cin}'
    for i in range(3):
        for ft in range(3):
            a(mm(i, ft))
            for x in late[:3]: a(x)
            late = late[3:]
            if 4 <= c < 7 and (i, ft) == (2, 0): a.peek(0)
            if c == 7 and (i, ft) == (2, 0):
                a.drain_f(len(a.fq) - len(stats))
                a.post(1)
    if OPT['udef'] and c == 0:
        for p in range(2): ust = a(f'buffer_store_dwordx4 {v(PA+4*p,4)}, {v(vUS)}, {srd(WS)}, {(sUS0, sUS1)[p]} offen sc1')
        ust_t = a.t
    if ncs: a.drain_f(len(a.fq) - nrest)
    if c == 0 and OPT['csv']:
        for q in range(6): a(f'v_mov_b32 v{246+q}, 0')
    if not flag1 and a.t - ust_t > OPT['f1d']:
        a.wait_vm(ust); a.flag_store(1); flag1 = True
    if c < 4: a.bar(f'c{c+1}')
    elif c < 7: a.expect(0, c - 3, True)
    a.stamp(1)
    nxt_ = rdx(c+1) + rdw(c+1, 0) + rdw(c+1, 1) if c < 7 else []
    for ft in range(3):
        a(mm(3, ft))
        if c == 7 and ft == 0: a.peek(1)
        if c == 7 and ft == 1:
            a.expect(1, 1, True)
            nxt_ = [f'ds_read_b128 {v(AX+4*q,4)}, {v(vCSR)} offset:{1024*q}' for q in range(3)]
        for x in nxt_[:6]: a(x)
        nxt_ = nxt_[6:]
a.drain_f()
for ft in range(3):
    a(f'v_mfma_f32_32x32x16_bf16 {v(ACC+16*ft,16)}, {v(AX+4*ft,4)}, {v(BX,4)}, {v(ACC+16*ft,16)}')
a.stamp(0, True); a.stamp(4)

CA, DU, DR = 160, 192, 208
def FA(set_, mu): return (80 if set_ == 0 else 32) + 4*mu
def FB(set_, nu): return 112 + 4*nu if set_ == 0 else (64 + 4*nu if nu < 4 else 144 + 4*(nu-4))
def rdA(rp, mu): return f'ds_read_b128 {v(FA(rp&1,mu),4)}, {v(vUA)} offset:{512*mu - 64*rp + 192}'
def rdB(rp, nu): return [f'ds_read_b64 {v(FB(rp&1,nu)+2*h,2)}, {v(vHA)} offset:{512*nu + 64*rp + 8*h}' for h in range(2)]
def reads(rp):
    r = rdB(rp, 0) + [rdA(rp, mu) for mu in range(8)]
    for nu in range(1, 8): r += rdB(rp, nu)
    return r
TS, HO = 144, 168
first = reads(0)
for fr in range(6):
    base = ACC + 8*fr; t = TS + 8*(fr & 1); o = HO + 4*(fr & 1)
    if fr == OPT['ubar']: a.expect(0, 4, True)
    def side(n):
        if fr >= OPT['ubar']:
            for x in first[:n]: a(x)
            del first[:n]
    for p in range(4): a(f'v_pk_mul_f32 {v(t+2*p,2)}, {v(base+2*p,2)}, {v(vC3,2)} op_sel_hi:[1,0]')
    side(6)
    for q in range(8): a(f'v_exp_f32 {v(t+q)}, {v(t+q)}')
    side(6)
    for p in range(4): a(f'v_pk_fma_f32 {v(t+2*p,2)}, {v(t+2*p,2)}, {v(vS,2)}, {v(vS,2)} op_sel_hi:[1,0,0]')
    if fr == OPT['ubar'] - 1: a.peek(0)
    for q in range(8): a(f'v_rcp_f32 {v(t+q)}, {v(t+q)}')
    for p in range(4): a(f'v_pk_mul_f32 {v(t+2*p,2)}, {v(t+2*p,2)}, {v(base+2*p,2)}')
    for p in range(4): a(f'v_cvt_pk_bf16_f32 {v(o+p)}, {v(t+2*p)}, {v(t+2*p+1)}')
    so, im = (sHS, fr*1024) if fr < 4 else (sHS3, (fr-4)*1024)
    a.stamp(4)
    hst = a(f'buffer_store_dwordx4 {v(o,4)}, {v(vL16)}, {srd(WS)}, {so} offen offset:{im} sc1')
    a.stamp(4)
a.stamp(0, True)
if OPT['ubar'] == 6:
    a.expect(0, 4, True)
    for x in first[:12]: a(x)
    del first[:12]

G2A, XR, XS, YR, XU, DM, YU = 32, 32, 152, 208, 160, 176, 192
AFD = OPT['afd']
AFB = [64, 72, 144, 12, 20][:AFD+1]
RING = list(range(80, 144, 4)) + [240, 244, 248] + [24, 20, 16, 12][:2*(4-AFD)]
NR = len(RING)
def hreg(s): return RING[s % NR]
def rd2(s):
    o = w2slot(s); k = 2 * (o // 61440); o -= 30720 * k
    return [f'ds_read_b64_tr_b16 {v(AFB[s%(AFD+1)]+4*dt+2*rd,2)}, {v(AR+k+dt)} offset:{o + rd*1024}' for dt in (1, 0) for rd in range(2)]
hops = {}
def hld(s):
    def f():
        if OPT['nohl']: return
        if s % 4 == 0: a(f's_add_u32 {sA}, {sHL}, {0 if OPT["hhot"] else s*1024}')
        a(f'buffer_load_dwordx4 {v(hreg(s),4)}, {v(vL16)}, {srd(WS)}, {sA} offen offset:{(s%4)*1024}' + ['', ' sc1', ' nt'][OPT['hfl']])
    hops[s] = f
    return f
def hgate(peeked):
    a.stamp(); a.expect(0, 5, peeked); a.stamp()
    for s in range(OPT['hburst']):
        if s == OPT['hburst'] - 2 and OPT['gate'] == 1: a.peek(0)
        a.do(hld(s))
    a.gap = OPT['hgap']
    a.vq = [hld(s) for s in range(OPT['hburst'], NR)]
cnt = 0
for rp in range(4):
    rd = (first if rp == 0 else []) + (reads(rp + 1) if rp < 3 else [])
    order = [(nu, mu) for nu in range(8) for mu in range(8 - nu)]
    if rp == 3: order = [(nu, j - nu) for j in range(8) for nu in range(j + 1)]
    wq = []
    for idx, (nu, mu) in enumerate(order):
        j = nu + mu
        if rp == 2 and idx == 27:
            assert not rd
            a.post(3)
        if rp == 2 and idx == 33: a.peek(1)
        if rp == 3 and idx == 3: a.expect(1, 3, True)
        if rp == 3 and OPT['gate'] == 0:
            if idx == max(OPT['gidx'] - 5, 3): a.peek(0)
            if idx == max(OPT['gidx'], 6): hgate(True)
        if cnt == OPT['sig2']:
            a.stamp(); a.wait_vm(hst); a.stamp(); a.flag_store(2)
            if OPT['selft']:
                a.do([f's_mov_b64 exec, {sSELF}', f'buffer_load_dword v254, v10, {srd(WS)}, {sHS} offen sc1', 's_mov_b64 exec, -1'])
            a.post(2, False)
        cin = '0' if (rp == 0 and nu == 0) else v(CA+4*j, 4)
        a(f'v_mfma_f32_16x16x32_bf16 {v(CA+4*j,4)}, {v(FA(rp&1,mu),4)}, {v(FB(rp&1,nu),4)}, {cin}')
        cnt += 1
        for _ in range(2 if (rp == 0 and cnt <= 8) else 1):
            if rd: a(rd.pop(0))
        if rp == 3:
            if mu == 0: wq.append((idx + 6, j))
            if idx >= 7 and idx % 4 == 3 and wq and wq[0][0] <= idx:
                jj_ = wq.pop(0)[1]; a(f'ds_write_b128 {v(vXW)}, {v(CA+4*jj_,4)} offset:{1024*jj_}')
    assert not rd
a.drain_f()
a.stamp()
for _, j in wq: a(f'ds_write_b128 {v(vXW)}, {v(CA+4*j,4)} offset:{1024*j}')
if OPT['gate'] == 1: a.peek(0)
a.post(4)
a.stamp(0, True)
if OPT['gate'] == 1: hgate(True)
a.stamp(5); a.expect(0, 6, OPT['gate'] == 1); a.stamp(5)
for q in range(AFD):
    for x in rd2(q): a(x)

pre = []
for k in range(8): pre += [lo(XU+2*k, XS+k), hi(XU+2*k+1, XS+k)]
for k in range(16): pre.append(f'v_sub_f32 {v(DM+k)}, {v(XU+k)}, v232')
for k in range(16): pre.append(f'v_mul_f32 {v(DM+k)}, {v(DM+k)}, v233')
post_ = []
for k in range(8): post_ += [lo(YU+2*k, YR+k), hi(YU+2*k+1, YR+k)]
for k in range(16): post_.append(f'v_fmac_f32 {v(XU+k)}, {v(DM+k)}, {v(YU+k)}')
yreads = [f'ds_read_b32 {v(YR+4*grp+q)}, {v(vYR)} offset:{(8*grp+q)*256}' for grp in range(2) for q in range(4)]
def g2mm(s, dt):
    cin = '0' if s == 0 else v(G2A+16*dt, 16)
    return f'v_mfma_f32_32x32x16_bf16 {v(G2A+16*dt,16)}, {v(AFB[s%(AFD+1)]+4*dt,4)}, {v(hreg(s),4)}, {cin}'
assert OPT['lastk'] <= AFD
for s in range(43):
    if s > 0 and s + NR - 1 < 43: a.vq.append(hld(s + NR - 1))
    if s == 10: a.post(6, False); a.stamp()
    if s == 20: a.post(8, False)
    if s == 28 - AFD: a.stamp(5); a.expect(0, 8, True); a.stamp(); a.stamp(5)
    side = rd2(s + AFD) if s + AFD < 43 else []
    if s == OPT['pres']: side += [f'ds_read_b128 {v(XS,4)}, {v(vSTa)}', f'ds_read_b128 {v(XS+4,4)}, {v(vSTb)}', f'ds_read_b64 v[232:233], {v(vSTS)}']
    if s == OPT['pres'] + 2: a.fq += pre
    if s == 28: a.expect(1, 8, True)
    if s == 36 - AFD: a.stamp(5); a.expect(0, 9, True); a.stamp(5)
    if s == OPT['ybar']:
        a.stamp(); a.stamp(5); a.expect(0, 10, True); a.stamp(); a.stamp(5)
        side += yreads
    if s == OPT['ybar'] + 2: a.fq += post_
    if hops[s] in a.vq: a.drain_v(hops[s])
    h = (len(side) + 1) // 2
    for dt in (1, 0):
        if dt == 0 and s >= 43 - OPT['lastk']: continue
        if OPT['onew'] and dt == 1:
            a.service(True)
            if ('v', hreg(s)) in a.pend: a.wait_vm(a.pend[('v', hreg(s))][1])
            a.wait_lg(a.pend[('v', AFB[s%(AFD+1)]+2)][1])
        a(g2mm(s, dt))
        for x in side[:h]: a(x)
        side = side[h:]
    for x in side: a(x)
    if s + 2 in (28 - AFD, 36 - AFD, OPT['ybar']): a.peek(0)
    if s == 26: a.peek(1)
wr_ = [f'ds_write_b128 {v(vE2W)}, {v(G2A+16+4*k,4)} offset:{1024*k}' for k in range(4)]
for s in range(43 - OPT['lastk'], 43):
    a(g2mm(s, 0))
    if s > 43 - OPT['lastk']: a(wr_.pop(0))
for x in wr_: a(x)
a.stamp(0, True); a.stamp(5)
if not OPT['fbar']: a.post(9)
a.drain_f()
for k in range(8): a(f'v_pk_add_f32 {v(XU+2*k,2)}, {v(XU+2*k,2)}, {v(G2A+2*k,2)}')
if OPT['fbar']:
    a.wait_all_lg(); a('s_barrier')
else: a.expect(1, 9)
for k in range(4): a(f'ds_read_b128 {v(64+4*k,4)}, {v(vE2R)} offset:{1024*k}')
for h in range(2):
    for k in range(4*h, 4*h+4): a(f'v_pk_add_f32 {v(XU+2*k,2)}, {v(XU+2*k,2)}, {v(64+2*k,2)}')
    for k in range(4*h, 4*h+4): a(f'v_cvt_pk_bf16_f32 {v(96+k)}, {v(XU+2*k)}, {v(XU+2*k+1)}')
    a(f'ds_write_b128 {v((vOTa, vOTb)[h])}, {v(96+4*h,4)}')
a.wait_all_lg()
a(f'ds_read_b128 v[104:107], {v(vOTR)}'); a(f'ds_read_b128 v[108:111], {v(vOTR)} offset:1024')
a(f'buffer_store_dwordx4 v[104:107], {v(vOUT)}, {srd(OUT)}, {sO0} offen{OSC}')
a(f'buffer_store_dwordx4 v[108:111], {v(vOUT)}, {srd(OUT)}, {sO1} offen{OSC}')
a.stamp()
print('estimated compute cycles', a.est, file=sys.stderr)
a.finish()
assert L.bars == C.bars, (L.bars, C.bars)

lines = P.lines + L1lines + ['L_compute:'] + C.lines + L.lines + ['L_end:', '    s_endpgm']
if OPT['skel']:
    drop = ('v_mfma', 'v_dot', 'v_pk_', 'v_exp', 'v_rcp', 'ds_read_b64', 'v_fmac', 'v_mul_f32', 'v_cvt_pk', 'ds_write_b128', 'v_perm_b32', 'v_add_f32', 'v_sub_f32')
    lines = [l for l in lines if not l.strip().startswith(drop)]
hdr = open('parallel_sum__ssm_conv_h3__dense_activation_silu__prompt.s.ref').read().split('\n')
hdr = [l for l in hdr if l.startswith(';') and '@launch' not in l]
out = '\n'.join(hdr) + f'\n; @launch grid=(256,1,1) block=(512,1,1) lds={LDS_SIZE}\n'
out += f'''.amdgcn_target "amdgcn-amd-amdhsa--gfx950"
.text
.globl {NAME}
.p2align 8
.type {NAME},@function
{NAME}:
''' + '\n'.join(lines) + f'''
.section .rodata,"a"
.p2align 6
.amdhsa_kernel {NAME}
  .amdhsa_next_free_vgpr 256
  .amdhsa_next_free_sgpr 102
  .amdhsa_accum_offset 256
  .amdhsa_group_segment_fixed_size 0
  .amdhsa_kernarg_size 96
  .amdhsa_user_sgpr_count 2
  .amdhsa_user_sgpr_kernarg_segment_ptr 1
  .amdhsa_system_sgpr_workgroup_id_x 1
.end_amdhsa_kernel
'''
open(sys.argv[1], 'w').write(out)
print(dbg, file=sys.stderr)
print('lines', len(lines), 'stamps L/C', L.nstamp, C.nstamp, file=sys.stderr)
```

```python
import sys
from emit import Asm

NAME = "parallel_sum__ssm_conv_h3__dense_activation_silu__prompt_kernel"
OPT = dict(stamps=0, sg=0, probe=-2, base=60000, who=1, skel=0,
           map=0, rot=3, prio=1, look=10, lookkv=4, cap=8, hat=8, t2at=-2, t3at=-2, upat=8, ulat=16, ubat=24,
           pwat=34, s2at=42, psleep=2, pdelay=0, f1d=1000, ubar=5, sig2=50, sig3=2, hburst=7, hgap=46,
           g2at=24, ybar=37, osc=1, ht=0, ydelay=0, lprio=0, t2mode=0, spf=0, sw2=0, hp=1, dsx=4, ntkv=1, ntx=0, nth=0, na=43, wper=2, gate=1, afd=4, nx=0, esl=4, nodma=0, nohl=0, notail=0, nodot=0, nosync=0, kvfirst=1, yk=3, yp=12, yc=4, lspf=0, t1=0, pc=9, res=4, lastk=4, fbar=1, fpre=1, tp=0, duat=20, cpf=0, th=0, w1=1, csv=0, early=1, cap1=10, pair=0, s2skip=0, cap3=6, pres=2, udef=1, tlb=4, tlbm=1, look0=7, onew=1, w64=0, wsl=0, yprio=2, jit=0, wc=20, gidx=0, hhot=0, hfl=1, wm=14, wk=10, bg=0, bgfrom=2, selft=0, tw=1, cap2=6)
for x in sys.argv[2:]:
    k, v = x.split('='); assert k in OPT, k; OPT[k] = int(v)

WS_E, WS_FLAG, WS_STAMP, WS_U, WS_Y, WS_H, WS_SIZE = 0, 0x80000, 0x40000, 0x100000, 0x300000, 0x500000, 0x1000000
FPH = 0x20000
OOB = 0x7f000000
SLOT = 28672
CV = 114688; CVCH = 9216; U1OFF = 4640; HBASE = CV + 18432; HCH = 8448; HBD = 4228
KB, VB, SB = CV, CV + 8192, CV + 9216 + 8192
XST = 150016; STATS = 158208; CSUM = 159232; PW = CSUM + 3072
LDS_SIZE = 163840
def w2slot(s): return (s if s < 36 else s - 36) * 4096
YT, EX, OT = 8*4096, 12*4096, 10*4096
Q, K, V, SH, HK, W1, W2, OUT, WS = 4, 8, 12, 16, 20, 24, 28, 32, 36
def srd(r): return f's[{r}:{r+3}]'
sD, sE, sT, sM1, st, sDS, sCP, sW, sWV, sTAG, sNTAG, sP0 = [f's{i}' for i in range(42, 54)]
sXO, sW1O, sHS, sHS3, sW2O, sHL = [f's{i}' for i in range(54, 60)]
sM0W, sW4K, sW3K, sSELLO, sSELHI, sONES = [f's{i}' for i in range(62, 68)]
sPAIR = 's[68:69]'
sSPIN, sTH, sKH, sMASK, sW2K, sI = [f's{i}' for i in range(70, 76)]
sHM0, sHSO, sD0, sD1, sA, sB, sG, sUS0 = [f's{i}' for i in range(76, 84)]
sUS1 = 's86'
sUL, sYS0, sYS1, sYL, sO0, sO1, sROT, sC = [f's{i}' for i in range(88, 96)]
sSTASH = 's101'
def v(n, c=1): return f'v{n}' if c == 1 else f'v[{n}:{n+c-1}]'
OSC = ' sc1' if OPT['osc'] else ''
vL16, vSTAMP, vFL, vPWB, vPWM, vPWT = 2, 31, 28, 29, 30, 255

class Prog(Asm):
    def __init__(self, name, pwr):
        super().__init__(); self.name = name; self.bars = []; self.nstamp = 0; self.pwr = pwr
    def label(self):
        self.nlabel += 1; return f'{self.name}{self.nlabel}'
    def bar(self, tag, lg=True):
        self.lock()
        if lg: self.wait_all_lg()
        self('s_barrier'); self.bars.append(tag)
        self.unlock()
    def post(self, n, lg=True):
        self.lock()
        self(f'v_mov_b32 {v(vPWT)}, {n}')
        if lg: self.wait_all_lg()
        self('s_mov_b64 exec, 1')
        self(f'ds_write_b32 {v(vPWM)}, {v(vPWT)}')
        self('s_mov_b64 exec, -1')
        self.unlock()
    def peek(self, grp):
        self(f'ds_read_b128 {v(self.pwr,4)}, {v(vPWB)} offset:{16*grp}')
    def expect(self, grp, n, peeked=False, sleep=0):
        r = self.pwr
        self.lock()
        if not peeked: self.peek(grp)
        top, done = self.label(), self.label()
        self.wait_lg(self.pend[('v', r)][1])
        self.place(top)
        self(f'v_min3_u32 {v(r)}, {v(r)}, {v(r+1)}, {v(r+2)}')
        self(f'v_min_u32 {v(r)}, {v(r)}, {v(r+3)}')
        self(f'v_cmp_gt_u32 vcc, {n}, {v(r)}')
        self(f's_cbranch_vccz {done}')
        t0 = self.t
        if sleep: self(f's_sleep {sleep}')
        self(f'ds_read_b128 {v(r,4)}, {v(vPWB)} offset:{16*grp}', track=False)
        self('s_waitcnt lgkmcnt(0)')
        self(f's_branch {top}')
        self.place(done)
        self.t = t0 + (0 if peeked else 100)
        self.unlock()
    def stamp(self, g=0, coarse=False):
        if coarse and OPT['sg'] == 3: g = 3
        if OPT['jit'] and self.name != 'P':
            self.njit = getattr(self, 'njit', 0) + 1
            self.lock()
            l = self.label()
            self(f's_lshl_b32 s96, s2, 3'); self(f's_add_u32 s96, s96, {sWV}'); self(f's_add_u32 s96, s96, {sTAG}')
            self(f's_mul_i32 s96, s96, {(2654435761 * (2 * self.njit + 1 + OPT["jit"] * 64)) & 0xffffffff}'); self('s_lshr_b32 s96, s96, 28')
            self('s_cmp_gt_u32 s96, 2'); self(f's_cbranch_scc1 {l}')
            self(f's_sleep {(20, 60, 127)[self.njit % 3]}')
            self.place(l)
            self.unlock()
        if g == 0: self.est = getattr(self, 'est', []) + [int(self.t)]
        if not OPT['stamps'] or g != OPT['sg']: return
        k = self.nstamp; self.nstamp += 1
        self.lock(); self.wait_all_lg()
        self('s_memtime s[96:97]'); self('s_waitcnt lgkmcnt(0)')
        self('s_sub_u32 s96, s96, s3')
        self(f'v_writelane_b32 {v(vSTAMP)}, s96, {k}')
        self.unlock()
    def dma(self, vaddr, rs, soff, m0expr, extra='', track=True):
        self(m0expr)
        return self(f'buffer_load_dwordx4 {v(vaddr)}, {srd(rs)}, {soff} offen{extra} lds', track=track)
    def flag_store(self, phase):
        self.lock()
        self(f's_mov_b32 {sG}, {(phase-1)*FPH}')
        self('s_mov_b64 exec, 0xffff')
        self(f'buffer_store_dwordx2 v[252:253], {v(vFL)}, {srd(WS)}, {sG} offen sc1')
        self('s_mov_b64 exec, -1')
        self.unlock()
    def poll_issue(self, vaddr, dst, mask):
        self(f's_mov_b64 exec, {mask}')
        r = self(f'buffer_load_dwordx2 {v(dst,2)}, {v(vaddr)}, {srd(WS)}, 0 offen sc1')
        self('s_mov_b64 exec, -1')
        return r
    def poll_check(self, vaddr, dst, mask):
        self.lock()
        top, done = self.label(), self.label()
        self(f's_mov_b32 {sSPIN}, 0')
        self(f's_mov_b64 exec, {mask}')
        self.wait_vm(self.pend[('v', dst)][1])
        self.place(top)
        self(f'v_cmp_eq_u32 vcc, {sTAG}, {v(dst)}')
        self(f'v_cmp_eq_u32 {sPAIR}, {sNTAG}, {v(dst+1)}')
        self(f's_and_b64 vcc, vcc, {sPAIR}')
        self('s_cmp_eq_u64 vcc, exec')
        self(f's_cbranch_scc1 {done}')
        self(f's_add_u32 {sSPIN}, {sSPIN}, 1')
        self(f's_cmp_gt_u32 {sSPIN}, {0 if OPT["nosync"] else 0x20000}')
        self(f's_cbranch_scc1 {done}')
        self(f's_sleep {OPT["psleep"]}')
        self(f'buffer_load_dwordx2 {v(dst,2)}, {v(vaddr)}, {srd(WS)}, 0 offen sc1', track=False)
        self('s_waitcnt vmcnt(0)')
        self(f's_branch {top}')
        self.place(done)
        self('s_mov_b64 exec, -1')
        self.unlock()
    def finish(self):
        a = self
        if OPT['stamps']:
            a('s_waitcnt vmcnt(0)')
            a.stamp(OPT['sg'])
            if OPT['probe'] > -2 and (a.name == 'C') == (OPT['who'] == 1):
                a(f's_mov_b32 s60, {OPT["base"]}')
                if OPT['probe'] == 99:
                    a('s_load_dwordx2 s[84:85], s[0:1], 80'); a('s_mov_b32 s86, 256'); a('s_mov_b32 s87, 0x20000'); a('s_waitcnt lgkmcnt(0)')
                    a(f'v_readlane_b32 s61, {v(vSTAMP)}, 31'); a('v_mov_b32 v128, 0'); a('v_mov_b32 v129, s61'); a('v_not_b32 v130, v129')
                    lz = a.label()
                    a(f's_cmp_lg_u32 {sW}, 0'); a(f's_cbranch_scc1 {lz}')
                    a('s_mov_b64 exec, 1')
                    a('buffer_atomic_umax v129, v128, s[84:87], 0 offen sc1'); a('buffer_atomic_umax v130, v128, s[84:87], 0 offen offset:128 sc1')
                    a('s_mov_b64 exec, -1')
                    a.place(lz)
                    l = a.label(); a.place(l)
                    a('s_memtime s[96:97]'); a('s_waitcnt lgkmcnt(0)'); a('s_sub_u32 s96, s96, s3'); a('s_cmp_lt_u32 s96, 70000'); a(f's_cbranch_scc1 {l}')
                    a('buffer_load_dword v131, v128, s[84:87], 0 offen sc1'); a('buffer_load_dword v132, v128, s[84:87], 0 offen offset:128 sc1')
                    a('v_not_b32 v132, v132'); a('v_sub_u32 v131, v131, v132'); a('v_readfirstlane_b32 s61, v131'); a('s_mul_i32 s61, s61, 95'); a('s_add_u32 s60, s60, s61')
                elif OPT['probe'] >= 0:
                    a(f'v_readlane_b32 s61, {v(vSTAMP)}, {OPT["probe"]}'); a('s_add_u32 s60, s60, s61')
                l = a.label(); a.place(l)
                a('s_memtime s[96:97]'); a('s_waitcnt lgkmcnt(0)'); a('s_sub_u32 s96, s96, s3'); a('s_cmp_lt_u32 s96, s60'); a(f's_cbranch_scc1 {l}')
            a('s_lshl_b32 s60, s2, 3'); a(f's_add_u32 s60, s60, {sWV}'); a('s_lshl_b32 s60, s60, 7'); a(f's_add_u32 s60, s60, {WS_STAMP}')
            a('v_lshlrev_b32 v128, 2, v1')
            a('s_mov_b64 exec, 0xffffffff')
            a(f'buffer_store_dword {v(vSTAMP)}, v128, {srd(WS)}, s60 offen')
        a('s_endpgm')

def lo(d, s): return f'v_lshlrev_b32 {v(d)}, 16, {v(s)}'
def hi(d, s): return f'v_and_b32 {v(d)}, {sMASK}, {v(s)}'

P = a = Prog('P', 0)
a('s_cmp_ge_u32 s2, 256')
a('s_cbranch_scc1 L_end')
if OPT['stamps']:
    a('s_memtime s[68:69]'); a('s_memrealtime s[70:71]'); a('s_waitcnt lgkmcnt(0)'); a('s_mov_b32 s3, s68')
    a(f'v_mov_b32 {v(vSTAMP)}, 0'); a(f'v_writelane_b32 {v(vSTAMP)}, s70, 31')
a('s_load_dwordx16 s[76:91], s[0:1], 0')
a('s_load_dwordx8 s[92:99], s[0:1], 64')
a('v_lshrrev_b32 v3, 6, v0')
a('v_and_b32 v1, 63, v0')
a('s_getpc_b64 s[60:61]')
a.place('L_pc')
a(f'v_readfirstlane_b32 {sWV}, v3')
a(f's_lshr_b32 {sI}, s2, 3')
a('v_lshlrev_b32 v39, 7, v1')
if OPT['cpf']:
    a(f's_lshl_b32 s62, {sWV}, 5'); a(f's_add_u32 s62, s62, {sI}'); a('s_mul_i32 s63, s62, 683'); a('s_lshr_b32 s63, s63, 16')
    a('s_mul_i32 s63, s63, 96'); a('s_sub_u32 s62, s62, s63'); a('s_lshl_b32 s62, s62, 8')
    a('v_add_u32 v3, s62, v39')
    a('v_min_u32 v3, L_end-L_pc, v3')
    a('s_mov_b64 exec, 3')
else:
    a(f's_and_b32 s62, {sI}, 7'); a('s_lshl_b32 s62, s62, 12')
    a(f's_cmp_ge_u32 {sWV}, 4'); a('s_cselect_b32 s62, s62, 0')
    a(f's_lshl_b32 s63, {sWV}, 10'); a('s_add_u32 s62, s62, s63')
    a('v_add_u32 v3, s62, v39')
    a('v_min_u32 v3, L_end-L_pc, v3')
    a('s_mov_b64 exec, 0xff')
a('global_load_dword v254, v3, s[60:61]', track=False)
a('s_mov_b64 exec, -1')
a(f's_and_b32 {sW}, {sWV}, 3')
a('s_and_b32 s60, s2, 7')
lg = OPT['map']
a(f's_lshr_b32 {sT}, s60, {lg}'); a(f's_lshl_b32 {sT}, {sT}, {1+lg}')
a(f's_and_b32 s61, {sI}, {(2<<lg)-1}'); a(f's_add_u32 {sT}, {sT}, s61')
a(f's_and_b32 {sM1}, s60, {(1<<lg)-1}'); a(f's_lshl_b32 {sM1}, {sM1}, {4-lg}')
a(f's_lshr_b32 s61, {sI}, {1+lg}'); a(f's_add_u32 {sM1}, {sM1}, s61')
a(f's_and_b32 s61, {sM1}, 1')
a(f's_lshl_b32 {st}, {sT}, 1')
a(f's_add_u32 {st}, {st}, s61')
a(f's_lshr_b32 {sDS}, {sM1}, 1')
if OPT['dsx']: a(f's_xor_b32 {sDS}, {sDS}, {OPT["dsx"]}')
a(f's_lshl_b32 {sW2K}, {sW}, 11')
a(f'v_lshlrev_b32 {v(vL16)}, 4, v1')
a(f's_cmp_ge_u32 {sWV}, 4')
a('s_cbranch_scc1 L_compute')
def common2(a):
    a(f's_lshl_b32 {sCP}, {sDS}, 5'); a(f's_add_u32 {sCP}, {sCP}, {st}')
    a(f's_lshl_b32 {sW4K}, {sW}, 12'); a(f's_lshl_b32 {sM0W}, {sW}, 10')
    a(f's_and_b32 {sTH}, {sW}, 1'); a(f's_lshr_b32 {sKH}, {sW}, 1')
    a(f's_mul_i32 {sP0}, {sM1}, 3'); a(f's_lshl_b32 s60, {sM1}, 1'); a('s_add_u32 s60, s60, 11'); a(f's_min_u32 {sP0}, {sP0}, s60')
    a(f's_mov_b32 s{WS+2}, {WS_SIZE}'); a(f's_mov_b32 s{WS+3}, 0x20000')
    a(f'v_mov_b32 {v(vPWB)}, {PW}'); a(f's_lshl_b32 s60, {sWV}, 2'); a(f'v_add_u32 {v(vPWM)}, s60, {v(vPWB)}')

L = a = Prog('L', 56)
vXA, vWA, vKD, vHALO, vT43, vW2A, vW2W, vP2, vP3 = 4, 8, 12, 14, 15, 16, 17, 18, 19
vP1, vUL, vULp, vUW, vZU, vZH, vW2W2, vW2W3, UR, PO, WT = 22, 23, 24, 25, 26, 27, 11, 3, 236, 40, 64
vXRd, vYS, vDU, XRL, DUL, DRL, TB = 246, 247, 248, 64, 96, 112, 128
if OPT['lprio']: a(f's_setprio {OPT["lprio"]}')
for r, n in ((W1, 1409024), (Q, 2097152), (K, 2097152), (V, 2097152), (SH, 4096)):
    a(f's_mov_b32 s{r+2}, {n}'); a(f's_mov_b32 s{r+3}, 0x20000')
a(f'v_min_u32 {v(vT43)}, {42*128}, v39')
a('v_lshrrev_b32 v33, 3, v1'); a('v_and_b32 v34, 7, v1'); a('v_lshlrev_b32 v33, 10, v33')
a(f's_lshl_b32 s60, {st}, 16'); a(f's_lshl_b32 s61, {sW}, 14'); a('s_add_u32 s60, s60, s61')
a(f's_lshl_b32 s61, {sDS}, 7'); a(f's_add_u32 {sSTASH}, s60, s61')
a('v_lshrrev_b32 v35, 5, v1'); a('v_xor_b32 v35, v35, v34'); a('v_lshl_add_u32 v38, v35, 4, v33')
a(f's_lshl_b32 s60, {sW}, 6'); a('s_and_b32 s60, s60, 64'); a('s_xor_b32 s61, s60, 32')
a(f'v_xor_b32 {v(vKD)}, s61, v38')
a('s_xor_b32 s61, s60, 64')
a(f'v_xor_b32 {v(vKD+1)}, s61, v38'); a(f'v_add_u32 {v(vKD+1)}, 8192, {v(vKD+1)}')
a(f'v_add_u32 v38, {sSTASH}, v38'); a(f'v_subrev_u32 {v(vHALO)}, 8192, v38')
a(f's_lshl_b32 {sXO}, {sT}, 17')
a('s_waitcnt lgkmcnt(0)')
a(f's_mov_b64 s[{W1}:{W1+1}], s[90:91]')
a(f's_mov_b64 s[{Q}:{Q+1}], s[76:77]')
a(f's_mov_b64 s[{K}:{K+1}], s[78:79]')
a(f's_mov_b64 s[{V}:{V+1}], s[80:81]')
a(f's_mov_b64 s[{SH}:{SH+1}], s[82:83]')
seq = {}
def first_touch():
    l = [a.label() for _ in range(2)]
    a(f's_cmp_lg_u32 {sW}, 2'); a(f's_cbranch_scc1 {l[0]}')
    a(f's_mul_i32 s60, s2, {43*128}')
    a(f'buffer_load_dword v254, {v(vT43)}, {srd(W1)}, s60 offen', track=False); a(f's_branch {l[1]}')
    a.place(l[0])
    a(f's_lshl_b32 s61, {sM1}, 13'); a(f's_add_u32 s60, {sXO}, s61')
    a(f'buffer_load_dword v254, v39, {srd(Q)}, s60 offen' + ' nt' * OPT['ntx'], track=False)
    a.place(l[1])
def kv4():
    for rs, base in ((K, KB), (V, VB)):
        for n in range(2): seq['kv'] = a.dma(vKD+n, rs, sSTASH, f's_add_u32 m0, {sW2K}, {base + 1024 + n*1024}', ' nt' * OPT['ntkv'])
l = [a.label() for _ in range(4)]
a(f's_cmp_ge_u32 {sW}, 2'); a(f's_cbranch_scc1 {l[0]}')
a(f's_cmp_lg_u32 {sW}, 0'); a(f's_cbranch_scc1 {l[2]}')
a.dma(vHALO, K, '0', f's_mov_b32 m0, {KB}', track=False); a(f's_branch {l[3]}')
a.place(l[2])
a(f's_lshl_b32 s60, {sDS}, 9')
a.dma(vL16, SH, 's60', f's_mov_b32 m0, {SB}', track=False)
a(f's_branch {l[3]}')
a.place(l[0])
if not OPT['kvfirst']: first_touch()
a.place(l[3])
kv4()
if OPT['kvfirst'] and OPT['t1']:
    a(f's_cmp_ge_u32 {sW}, 2'); a(f's_cbranch_scc1 {l[1]}')
    if OPT['th']:
        lk, lm = a.label(), a.label()
        a(f's_mov_b64 s[{HK}:{HK+1}], s[84:85]'); a(f's_mov_b64 s[{W2}:{W2+1}], s[92:93]')
        for r, n in ((HK, 2097152), (W2, 1409024)):
            a(f's_mov_b32 s{r+2}, {n}'); a(f's_mov_b32 s{r+3}, 0x20000')
        a(f's_cmp_lg_u32 {sW}, 0'); a(f's_cbranch_scc1 {lk}')
        a(f's_mul_i32 s60, s2, {43*128}')
        a(f'buffer_load_dword v254, {v(vT43)}, {srd(W2)}, s60 offen', track=False); a(f's_branch {lm}')
        a.place(lk)
        a(f's_lshl_b32 s60, {sDS}, 5'); a(f's_add_u32 s60, s60, {st}'); a('s_lshl_b32 s60, s60, 13')
        if OPT['th'] == 1: a('s_mov_b64 exec, 1')
        a(f'buffer_load_dword v254, v39, {srd(HK)}, s60 offen'); a.pend.pop(('v', 254))
        a('s_mov_b64 exec, -1')
        a.place(lm)
    else:
        a('s_mov_b64 exec, 1')
        a(f'buffer_load_dword v254, {v(vL16)}, {srd(SH)}, 0 offen'); a.pend.pop(('v', 254))
        a('s_mov_b64 exec, -1')
    lj = a.label(); a(f's_branch {lj}')
    a.place(l[1])
    first_touch()
    a.place(lj)
a(f's_mov_b64 s[{HK}:{HK+1}], s[84:85]')
a(f's_mov_b64 s[{W2}:{W2+1}], s[92:93]')
a(f's_mov_b64 s[{WS}:{WS+1}], s[98:99]')
a(f's_load_dword {sE}, s[{WS}:{WS+1}], {WS_E}')
common2(a)
a(f's_lshl_b32 s60, {sCP}, 2')
a(f's_load_dword {sD}, s[86:87], s60')
a('v_lshrrev_b32 v32, 4, v1')
a('v_xor_b32 v35, v34, v32')
a(f'v_lshl_add_u32 {v(vXA)}, v35, 4, v33')
a(f'v_xor_b32 {v(vXA+1)}, 64, {v(vXA)}')
a(f'v_add_u32 {v(vXA+1)}, 8192, {v(vXA+1)}')
a(f'v_add_u32 {v(vXA+2)}, 16384, {v(vXA)}')
a(f'v_add_u32 {v(vXA+3)}, 16384, {v(vXA+1)}')
a(f's_lshl_b32 s60, {sW}, 15'); a(f's_add_u32 {sXO}, {sXO}, s60')
a(f's_mul_i32 {sW3K}, {sW}, 3072')
a(f's_cmp_lt_u32 {sM1}, 11')
a('s_cselect_b32 s61, 12, 8')
a(f'v_mov_b32 v3, {OOB}')
for j in range(3):
    if j: a(f'v_add_u32 v36, {64*j}, v1')
    src = 'v36' if j else 'v1'
    a(f'v_mul_u32_u24 v37, 5462, {src}')
    a('v_lshrrev_b32 v37, 16, v37')
    a('v_mul_u32_u24 v35, 12, v37')
    a(f'v_sub_u32 v35, {src}, v35')
    a('v_cmp_gt_u32 vcc, s61, v35')
    a('v_mul_u32_u24 v37, 2752, v37')
    a(f'v_lshl_add_u32 {v(vWA+j)}, v35, 4, v37')
    a(f'v_cndmask_b32 {v(vWA+j)}, v3, {v(vWA+j)}, vcc')
a(f's_mul_i32 {sW1O}, {sW}, {16*2752}'); a(f's_lshl_b32 s60, {sP0}, 6'); a(f's_add_u32 {sW1O}, {sW1O}, s60')
if OPT['rot'] == 1: a(f's_and_b32 {sROT}, {sM1}, 7')
elif OPT['rot'] == 2:
    a(f's_lshl_b32 {sROT}, {sT}, 2'); a(f's_add_u32 {sROT}, {sROT}, {sM1}')
elif OPT['rot'] == 3:
    a(f's_lshr_b32 {sROT}, {sT}, 1'); a(f's_add_u32 {sROT}, {sROT}, {sM1}')
elif OPT['rot'] == 5:
    a(f's_lshl_b32 {sROT}, {sT}, 1'); a(f's_add_u32 {sROT}, {sROT}, {sM1}')
elif OPT['rot'] == 6:
    a(f's_lshl_b32 {sROT}, {sT}, 1')
elif OPT['rot'] == 7:
    a(f's_lshl_b32 {sROT}, {sT}, 2')
elif OPT['rot'] == 4:
    a(f's_add_u32 {sROT}, {sT}, {sM1}')
for r, n in ((HK, 2097152), (W2, 1409024)):
    a(f's_mov_b32 s{r+2}, {n}'); a(f's_mov_b32 s{r+3}, 0x20000')

ops = []
def op(name, gate, fn): ops.append((name, gate, fn))
def touch2():
    if OPT['t2mode']:
        a(f's_lshl_b32 {sG}, {sI}, 2'); a(f's_add_u32 {sG}, {sG}, {sW}')
        if OPT['map'] == 1:
            a(f's_mul_i32 {sG}, {sG}, 43'); a('v_min_u32 v253, 42, v1'); a(f'v_add_u32 v253, {sG}, v253')
            a('v_and_b32 v252, 3, v253'); a('v_lshrrev_b32 v253, 2, v253'); a('v_lshlrev_b32 v253, 10, v253'); a('v_lshl_add_u32 v253, v252, 7, v253')
            a(f's_and_b32 {sG}, {sDS}, 4'); a(f's_lshl_b32 {sG}, {sG}, 7')
            a(f'buffer_load_dword v254, v253, {srd(W2)}, {sG} offen')
        else:
            a(f's_mul_i32 {sG}, {sG}, {86*128}')
            a(f'buffer_load_dword v254, {v(vT43)}, {srd(W2)}, {sG} offen')
            a(f's_add_u32 {sG}, {sG}, {43*128}')
            a(f'buffer_load_dword v253, {v(vT43)}, {srd(W2)}, {sG} offen')
        return
    l = a.label()
    a(f's_cmp_lg_u32 {sW}, 2'); a(f's_cbranch_scc1 {l}')
    a(f's_mul_i32 {sG}, s2, {43*128}')
    a(f'buffer_load_dword v254, {v(vT43)}, {srd(W2)}, {sG} offen', track=False)
    a.place(l)
def touch3():
    l = a.label()
    a(f's_cmp_lg_u32 {sW}, 3'); a(f's_cbranch_scc1 {l}')
    a(f's_mul_i32 {sG}, {sI}, {43*1024}'); a(f'v_lshlrev_b32 v253, 3, {v(vT43)}')
    a(f'buffer_load_dword v254, v253, {srd(W2)}, {sG} offen offset:384', track=False)
    a.place(l)
def add_chunk(c):
    slot = (c % 4) * SLOT
    gate = f'c{c-3}' if c >= 4 else None
    def w(j):
        def f():
            if j == 0:
                if c == OPT['t2at']: touch2()
                if c == OPT['t3at']: touch3()
                if OPT['rot']:
                    a(f's_add_u32 {sC}, {sROT}, {c}'); a(f's_and_b32 {sC}, {sC}, 7')
                    a(f's_mul_i32 {sB}, {sC}, {64*2752}'); a(f's_add_u32 {sB}, {sB}, {sW1O}')
                    a(f's_lshl_b32 {sA}, {sC}, 7'); a(f's_add_u32 {sA}, {sA}, {sXO}')
                else:
                    a(f's_add_u32 {sB}, {sW1O}, {c*64*2752}')
            return a.dma(vWA+j, W1, sB, f's_add_u32 m0, {sW3K}, {slot + 16384 + j*1024}')
        return f
    for j in range(3): op(f'w{c}_{j}', gate, w(j))
    def xo(n):
        if n == 0 and not OPT['rot']: a(f's_add_u32 {sA}, {sXO}, {c*128}')
        return a.dma(vXA+n, Q, sA, f's_add_u32 m0, {sW4K}, {slot + n*1024}')
    for n in range(4): op(f'x{c}_{n}', gate, lambda n=n: xo(n))
def add_h():
    for n in range(4):
        def f(n=n):
            if n == 0 and OPT['t2at'] == -2: touch2()
            if n == 0 and OPT['t3at'] == -2: touch3()
            a(f's_mov_b32 m0, {sHM0}')
            return a(f'buffer_load_dwordx4 {v(vL16)}, {srd(HK)}, {sHSO} offen offset:{n*1024}{" nt" * OPT["nth"]} lds')
        op(f'h{n}', None, f)
def w2op(s):
    if s == 28 and OPT['t2at'] == -3: touch2()
    if s == 28 and OPT['t3at'] == -3: touch3()
    a(f's_add_u32 {sO0}, {sW2O}, {s*16384}')
    return a(f'buffer_load_dwordx4 {v(WT+4*s,4)}, {v(vW2A)}, {srd(W2)}, {sO0} offen')
def uload():
    a.poll_check(vP1, 20, '0x1ff')
    a(f'buffer_load_dwordx4 {v(UR,4)}, {v(vUL)}, {srd(WS)}, {sUL} offen sc1')
    a(f'buffer_load_dwordx4 {v(UR+4,4)}, {v(vUL)}, {srd(WS)}, {sUL} offen offset:16 sc1')
    return a(f'buffer_load_dword {v(UR+8)}, {v(vULp)}, {srd(WS)}, {sUL} offen sc1')
def ubuild():
    if OPT['hp']: a('s_setprio 2')
    a(f'ds_write_b128 {v(vZU)}, v[60:63]'); a(f'ds_write_b32 {v(vZH)}, v60')
    for c in range(2):
        sel = sSELLO if c == 0 else sSELHI
        for k in range(4):
            hi0 = UR + 5 - 2*k if k < 3 else UR + 8
            a(f'v_perm_b32 {v(PO+8*c+k)}, {v(hi0)}, {v(UR+6-2*k)}, {sel}')
        a(f'ds_write_b128 {v(vUW)}, {v(PO+8*c,4)} offset:{c*CVCH}')
        for k in range(4): a(f'v_perm_b32 {v(PO+8*c+4+k)}, {v(UR+6-2*k)}, {v(UR+7-2*k)}, {sel}')
        a(f'ds_write_b128 {v(vUW)}, {v(PO+8*c+4,4)} offset:{c*CVCH+U1OFF}')
    flush_posts(True)
    a.wait_all_lg()
    for c in range(2):
        for jj in range(2):
            for h in range(2): a(f'ds_read_b32 {v(DRL+4*c+2*jj+h)}, {v(vDU)} offset:{c*CVCH + 512*jj + 64*h}')
    a.wait_vm(max(seq['st1'], seq['h3']))
    a.post(4); a.stamp(0, True)
    if OPT['hp']: a('s_setprio 0')
    return a.vm_n
nbg = 0
wlist = list(range(28, 43)) + list(range(OPT['nx']))
for c in range(8):
    if c == OPT['hat']: add_h()
    add_chunk(c)
    if OPT['bgfrom'] <= c < 7:
        for _ in range(OPT['bg']):
            op(f'W{wlist[nbg]}', None, lambda s_=wlist[nbg]: w2op(s_)); nbg += 1
if OPT['pair']:
    assert not OPT['rot']
    d = {o[0]: o for o in ops}
    groups = {1: [(0, 1), (2, 3), (4, 5), (6, 7)], 2: [(0,), (1, 2), (3, 4), (5, 6), (7,)], 3: [(0,), (1, 2, 3), (4, 5), (6, 7)]}[OPT['pair']]
    ops[:] = [d[f'{k}{c}_{j}'] for g in groups for k, n in (('w', 3), ('x', 4)) for c in g for j in range(n)]
for n in range(2): op(f'st{n}', None, lambda n=n: a.dma(vXA+n, Q, sSTASH, f's_add_u32 m0, {sW2K}, {XST + n*1024}'))
if OPT['hat'] == 8: add_h()
for s_ in wlist[nbg:]: op(f'W{s_}', None, lambda s_=s_: w2op(s_))
b0 = [o[0] for o in ops].index('x7_3') - 6
for nm, pos, fn in (('ub', OPT['ubat'], ubuild), ('ul', OPT['ulat'], uload), ('up', OPT['upat'], lambda: a.poll_issue(vP1, 20, '0x1ff'))):
    ops.insert(b0 + pos, (nm, 'c4', fn))
names = [o[0] for o in ops]
nxt = [0]
posts = [('x5_3', 1), ('x6_3', 2), ('x7_3', 3)]
capped = [False]
dbg = []
def flush_posts(force=False):
    while posts and posts[0][0] in seq and (force or a.vm_done >= seq[posts[0][0]]):
        a.wait_vm(seq[posts[0][0]]); a.post(posts[0][1], False); a.stamp(); posts.pop(0)
def issue_upto(idx):
    while nxt[0] <= min(idx, len(ops) - 1):
        name, gate, fn = ops[nxt[0]]
        if gate is not None and gate not in a.bars: return
        if capped[0]:
            a.wait_vm(a.vm_n - (OPT['cap1'] if posts else OPT['cap']) + 1); flush_posts()
        nxt[0] += 1
        seq[name] = fn()
        if capped[0] and (name in ('x7_3', 'st1', 'h3', 'up', 'ul', 'ub') or (name[0] == 'W' and int(name[1:]) % 3 == 0)):
            a.stamp(2); dbg.append(name)
issue_upto(OPT['lookkv'] - 1)
a('s_branch L_loader2')
L1lines = a.lines; a.lines = ['L_loader2:']
a(f's_mul_i32 s60, {sKH}, {HCH}'); a(f's_mul_i32 s61, {sTH}, {HBD}'); a('s_add_u32 s61, s61, s60'); a(f's_add_u32 {sHM0}, s61, {HBASE+64}')
a(f's_lshl_b32 {sHSO}, {sCP}, 13'); a(f's_add_u32 {sUL}, {sHSO}, {WS_U}'); a(f's_lshl_b32 s61, {sKH}, 12'); a(f's_add_u32 {sHSO}, {sHSO}, s61')
a('s_waitcnt lgkmcnt(0)')
a(f's_add_u32 {sTAG}, {sE}, 1'); a(f's_not_b32 {sNTAG}, {sTAG}')
a.post(0)
a('v_and_b32 v35, 1, v32'); a('v_lshlrev_b32 v35, 2, v35'); a('v_xor_b32 v35, v35, v34')
a(f'v_lshl_add_u32 {v(vW2A)}, v35, 4, v33')
a(f's_mul_i32 {sW2O}, {sKH}, {43*16*1024}'); a(f's_lshl_b32 s61, {sTH}, 13'); a(f's_add_u32 {sW2O}, {sW2O}, s61')
a(f's_lshl_b32 s61, {sDS}, 7'); a(f's_add_u32 {sW2O}, {sW2O}, s61')
a(f'v_add_u32 {v(vW2W)}, {sM0W}, {v(vL16)}')
a(f'v_add_u32 {v(vW2W2)}, 61440, {v(vW2W)}'); a(f'v_add_u32 {v(vW2W3)}, 122880, {v(vW2W)}')
a(f's_lshl_b32 s60, {st}, 1'); a(f's_add_u32 s60, s60, {sTH}'); a('s_mul_i32 s60, s60, 86')
a(f's_mul_i32 s61, {sKH}, 43'); a('s_add_u32 s60, s60, s61'); a('s_lshl_b32 s60, s60, 10')
a(f's_add_u32 {sHL}, s60, {WS_H}')
a(f's_mul_i32 s60, {sKH}, 7'); a('v_min_u32 v38, 8, v1'); a('v_add_u32 v35, s60, v38')
a('v_lshrrev_b32 v36, 1, v35'); a(f'v_xor_b32 v36, {OPT["dsx"]}, v36'); a('v_lshlrev_b32 v36, 12, v36'); a('v_and_b32 v35, 1, v35'); a('v_lshl_add_u32 v37, v35, 7, v36')
a(f's_lshl_b32 s60, {sT}, 8'); a(f's_add_u32 s60, s60, {WS_FLAG + FPH}')
a(f's_and_b32 s61, {st}, 1'); a('s_lshl_b32 s61, s61, 1'); a(f's_add_u32 s61, s61, {sTH}')
a('s_lshl_b32 s61, s61, 15'); a('s_add_u32 s61, s61, s60')
a(f'v_add_u32 {v(vP2)}, s61, v37')
a(f's_lshl_b32 s60, {sDS}, 12'); a(f's_and_b32 s61, {st}, 24'); a('s_lshl_b32 s61, s61, 12'); a('s_add_u32 s60, s60, s61'); a(f's_add_u32 s60, s60, {WS_FLAG}')
a(f's_lshl_b32 s61, {sW}, 3'); a('v_add_u32 v35, s61, v38'); a('v_max_u32 v35, 1, v35'); a('v_subrev_u32 v35, 1, v35')
a('v_lshlrev_b32 v35, 7, v35'); a(f'v_add_u32 {v(vP1)}, s60, v35')
a(f's_add_u32 s60, s60, {sM0W}'); a(f's_add_u32 s60, s60, {2*FPH}')
a('v_lshlrev_b32 v35, 7, v34'); a(f'v_add_u32 {v(vP3)}, s60, v35')
a(f's_lshl_b32 s60, {st}, 16'); a(f's_lshl_b32 s61, {sDS}, 13'); a('s_add_u32 s60, s60, s61'); a(f's_add_u32 s60, s60, {sW2K}')
a(f's_add_u32 {sYL}, s60, {WS_Y}')
a(f'v_lshlrev_b32 {v(vUL)}, 5, v0'); a(f'v_subrev_u32 {v(vULp)}, 4, {v(vUL)}')
a(f'v_add_u32 {v(vUW)}, {CV+448}, {v(vW2W)}')
a(f's_mul_i32 s60, {sKH}, {CVCH}'); a(f's_mul_i32 s61, {sTH}, {U1OFF}'); a('s_add_u32 s61, s61, s60'); a(f's_add_u32 s61, s61, {CV}')
a('v_min_u32 v35, 27, v1'); a('v_lshlrev_b32 v35, 4, v35'); a(f'v_add_u32 {v(vZU)}, s61, v35')
a(f's_sub_u32 s61, {sHM0}, 64'); a('v_and_b32 v35, 15, v1'); a('v_lshlrev_b32 v35, 2, v35'); a(f'v_add_u32 {v(vZH)}, s61, v35')
a(f's_mov_b32 {sSELLO}, 0x05040100'); a(f's_mov_b32 {sSELHI}, 0x07060302')
a(f's_mov_b32 {sMASK}, 0xffff0000'); a(f's_lshl_b32 {sD0}, {sD}, 16'); a(f's_and_b32 {sD1}, {sD}, {sMASK}')
a('v_and_b32 v36, 15, v1')
a('v_bfe_u32 v35, v1, 2, 2'); a('v_lshlrev_b32 v35, 4, v35'); a('v_lshl_add_u32 v35, v32, 7, v35')
a('v_and_b32 v37, 3, v1'); a('v_xor_b32 v37, 3, v37'); a('v_lshl_add_u32 v35, v37, 2, v35')
a(f's_add_u32 s60, {sM0W}, {CV+U1OFF+448}'); a(f'v_add_u32 {v(vDU)}, s60, v35')
a(f's_add_u32 s60, {sW2K}, {CV}'); a(f'v_add_u32 {v(vXRd)}, s60, {v(vL16)}')
a(f'v_lshlrev_b32 {v(vYS)}, 16, v32'); a(f'v_lshl_add_u32 {v(vYS)}, v36, 4, {v(vYS)}')
a(f's_lshl_b32 s60, {sW}, 19'); a(f's_lshl_b32 s61, {sCP}, 8'); a('s_add_u32 s60, s60, s61'); a(f's_add_u32 {sYS0}, s60, {WS_Y}')
a(f's_add_u32 {sYS1}, {sYS0}, 0x40000')
a(f's_lshl_b32 s60, {sCP}, 7'); a(f's_lshl_b32 s61, {sW}, 15'); a('s_add_u32 s60, s60, s61'); a(f's_add_u32 s60, s60, {WS_FLAG}')
a(f'v_lshlrev_b32 {v(vFL)}, 3, v36'); a(f'v_add_u32 {v(vFL)}, s60, {v(vFL)}')
a(f'v_mul_u32_u24 {v(TB)}, 5, v34'); a(f'v_add_u32 {v(TB)}, {sTAG}, {v(TB)}')
for r in range(1, 4): a(f'v_lshrrev_b32 {v(TB+r)}, {r}, {v(TB)}')
for i in range(4): a(f'v_mov_b32 v{60+i}, 0')
if OPT['tlb'] == 2:
    a('s_mov_b32 exec_lo, 0x10001'); a('s_mov_b32 exec_hi, 0x10001')
    for q, so in enumerate((sYS0, sYS1)): a(f'buffer_load_dword v{(249, 252)[q]}, {v(vYS)}, {srd(WS)}, {so} offen sc1')
    a('s_mov_b64 exec, 1')
    a(f'buffer_load_dword v250, {v(vL16)}, {srd(WS)}, {sYL} offen sc1')
    a(f'buffer_load_dword v251, {v(vW2A)}, {srd(W2)}, {sW2O} offen')
    a('s_mov_b64 exec, -1')
a.wait_vm(seq['kv']); a.bar('kv'); a.stamp()
D = OPT['look']
for c in range(5):
    issue_upto(names.index(f'x{c}_3') + (D if c else OPT['look0']))
    a.wait_vm(seq[f'x{c}_3'])
    a.bar(f'c{c}', False)
    a.stamp()
capped[0] = True
def wr(s_):
    if OPT['notail']: return
    o = w2slot(s_); k = o // 61440
    if OPT['w64'] == 1:
        for q in range(2): a(f'ds_write_b64 {v((vW2W, vW2W2, vW2W3)[k])}, {v(WT+4*s_+2*q,2)} offset:{o - 61440*k + 8*q}')
    elif OPT['w64'] == 2:
        for q in range(4): a(f'ds_write_b32 {v((vW2W, vW2W2, vW2W3)[k])}, {v(WT+4*s_+q)} offset:{o - 61440*k + 4*q}')
    else: a(f'ds_write_b128 {v((vW2W, vW2W2, vW2W3)[k])}, {v(WT+4*s_,4)} offset:{o - 61440*k}')
    if OPT['wsl']: a(f's_sleep {OPT["wsl"]}')
def wdma(s_):
    if OPT['nodma']: return
    a.wait_vm(a.vm_n - (OPT['cap2'] if s_ < OPT['wm'] else OPT['cap3']) + 1)
    a(f's_add_u32 {sO0}, {sW2O}, {s_*16384}')
    return a.dma(vW2A, W2, sO0, f's_add_u32 m0, {sM0W}, {w2slot(s_)}')
issue_upto(999)
flush_posts(True)
a.stamp()
a(f's_or_b32 s60, {sCP}, {sW}')
a('s_cmp_lg_u32 s60, 0')
a('s_cbranch_scc1 L_noep')
for q in range(4): a(f'v_add_u32 v{40+q}, {WS_FLAG + 8192*q}, v39')
a(f's_mov_b32 {sSPIN}, 0')
a.place('L_ep')
for q in range(4): a(f'buffer_load_dwordx2 v[{44+2*q}:{45+2*q}], v{40+q}, {srd(WS)}, 0 offen sc1', track=False)
a('s_waitcnt vmcnt(0)')
a('s_mov_b64 s[60:61], exec')
for q in range(4):
    a(f'v_cmp_eq_u32 vcc, {sTAG}, v{44+2*q}'); a('s_and_b64 s[60:61], s[60:61], vcc')
    a(f'v_cmp_eq_u32 vcc, {sNTAG}, v{45+2*q}'); a('s_and_b64 s[60:61], s[60:61], vcc')
a('s_cmp_eq_u64 s[60:61], exec')
a('s_cbranch_scc1 L_epok')
a(f's_add_u32 {sSPIN}, {sSPIN}, 1'); a(f's_cmp_lt_u32 {sSPIN}, {0 if OPT["nosync"] else 0x20000}'); a('s_cbranch_scc1 L_ep')
a.place('L_epok')
a(f'v_mov_b32 v40, {WS_E}'); a(f'v_mov_b32 v41, {sTAG}')
a('s_mov_b64 exec, 1')
a(f'buffer_store_dword v41, v40, {srd(WS)}, 0 offen sc1', track=False)
a('s_mov_b64 exec, -1')
a.place('L_noep')
a.expect(1, 1, sleep=OPT['esl'])
a.stamp()
def dumul():
    for c in range(2):
        for jj in range(2):
            for h in range(2):
                src = DRL+4*c+2*jj+h; d = DUL+8*jj+4*c+2*h
                for x in (hi(d, src), lo(d+1, src), f'v_mul_f32 {v(d)}, {(sD0, sD1)[c]}, {v(d)}', f'v_mul_f32 {v(d+1)}, {(sD0, sD1)[c]}, {v(d+1)}'): a(x)
for s_ in range(28):
    if s_ == OPT['duat']: dumul()
    if OPT['s2skip']:
        if s_ == OPT['s2skip']: a.post(5, False); a.stamp(0, True)
        wl = wdma(s_); continue
    if s_ == OPT['wm']: a.expect(1, 2, sleep=OPT['esl'])
    if s_ == OPT['wm'] + OPT['wk']:
        a.stamp(); a.poll_issue(vP2, 20, '0x1ff')
    if s_ == OPT['wm'] + OPT['wk'] + OPT['wc']:
        a.poll_check(vP2, 20, '0x1ff'); a.post(5, False); a.stamp(0, True)
    wl = wdma(s_)
if OPT['wm'] + OPT['wk'] >= 28:
    a.stamp(); a.poll_issue(vP2, 20, '0x1ff')
if OPT['wm'] + OPT['wk'] + OPT['wc'] >= 28 and not OPT['s2skip']:
    a.poll_check(vP2, 20, '0x1ff')
    a.post(5, False)
    a.stamp(0, True)
a.wait_vm(wl); a.post(6, False)
if OPT['duat'] >= 28: dumul()
a.expect(1, 4, sleep=1)
a(f's_setprio {OPT["yprio"]}')
for jj in range(2):
    for sw in range(4): a(f'ds_read_b128 {v(XRL+16*jj+4*sw,4)}, {v(vXRd)} offset:{8192*sw + 1024*jj}')
for jj in range(2):
    for hf in range(2):
        for c in range(2):
            for r in range(4): a(f'v_add_f32 {v(DUL+8*jj+4*c+r)}, {v(DUL+8*jj+4*c+r)}, {v(XRL+16*jj+8*c+4*hf+r)}')
    for r in range(4):
        a(f'v_cvt_pk_bf16_f32 {v(XRL+16*jj+r)}, {v(DUL+8*jj+4+r)}, {v(DUL+8*jj+4+r)}')
        a(f'v_add_u32 {v(DUL+8*jj+r)}, 0x10000, {v(DUL+8*jj+r)}')
    for r in range(4): a(f'v_perm_b32 {v(XRL+16*jj+r)}, {v(XRL+16*jj+r)}, {v(DUL+8*jj+r)}, {sSELHI}')
    for r in range(4): a(f'v_bfi_b32 {v(XRL+16*jj+r)}, 1, {v(TB+r)}, {v(XRL+16*jj+r)}')
    yst = a(f'buffer_store_dwordx4 {v(XRL+16*jj,4)}, {v(vYS)}, {srd(WS)}, {(sYS0, sYS1)[jj]} offen sc1')
a.post(7)
a.stamp(0, True)
a(f's_setprio {OPT["tp"]}')
a.expect(0, 7)
YB = 120
def yld(track=True):
    for n in range(2): a(f'buffer_load_dwordx4 {v(YB+4*n,4)}, {v(vL16)}, {srd(WS)}, {sYL} offen offset:{1024*n} sc1', track=track)
for s_ in range(28, 44):
    if s_ == 36:
        a.post(8); a.expect(1, 6, sleep=OPT['esl'])
    if s_ == 28 + OPT['yp']: yld()
    if s_ == 43: a.post(9); a.stamp(0, True); a('s_setprio 0')
    if s_ < 43: wr(s_)
for _ in range(OPT['ydelay']): a('s_sleep 4')
if OPT['yp'] > 15: yld()
top, done = a.label(), a.label()
a(f's_mov_b32 {sSPIN}, 0')
a.wait_all_vm()
a.place(top)
a(f'v_xor_b32 v20, {v(YB)}, {v(TB)}')
for k in range(1, 8): a(f'v_bitop3_b32 v20, v20, {v(YB+k)}, {v(TB+(k&3))} bitop3:0xf6')
a('v_and_b32 v20, 1, v20')
a('v_cmp_ne_u32 vcc, 0, v20')
a(f's_cbranch_vccz {done}')
a(f's_add_u32 {sSPIN}, {sSPIN}, 1'); a(f's_cmp_gt_u32 {sSPIN}, 0x20000'); a(f's_cbranch_scc1 {done}')
a(f's_sleep {OPT["psleep"]}')
yld(False)
a('s_waitcnt vmcnt(0)')
a(f's_branch {top}')
a.place(done)
a.stamp(0, True)
a('s_setprio 2')
a(f's_add_u32 s60, {sW2K}, {YT}'); a(f'v_add_u32 v20, s60, {v(vL16)}')
for k in range(8): a(f'v_and_b32 {v(YB+k)}, -2, {v(YB+k)}')
for n in range(2): a(f'ds_write_b128 v20, {v(YB+4*n,4)} offset:{1024*n}')
a.post(10)
a.wait_all_lg()
a.finish()

C = a = Prog('C', 4)
a.gap = 0
vCSR, vSTW, vXR, vWR, vYR, vCSW = 3, 11, 12, 20, 9, 8
vKA, vKB, vSHR, vUS = 212, 213, 214, 215
(vUA, vHA, vDU, vXW, vXRd, vYS, vE2W, vE2R, vSTa, vSTb, vSTS, vOTa, vOTb, vOTR, vOUT) = range(216, 231)
AR = 234
F = {k: 198 + i for i, k in enumerate(('l4', 'n', 'g', 'b', 'l1', 'l3', 'r', 'x', 'h', 't0', 't1', 't2'))}
def fx(s):
    for k, r in F.items(): s = s.replace('%' + k, f'v{r}')
    return s
def e(s): a(fx(s))
if OPT['prio']: a(f's_setprio {OPT["prio"]}')
a(f's_mov_b32 {sMASK}, 0xffff0000')
e('v_lshrrev_b32 %l4, 4, v1'); e('v_lshrrev_b32 %g, 5, v1'); e('v_and_b32 %b, 15, v1'); e('v_and_b32 %h, 1, %l4')
a(f's_lshl_b32 s60, {sW}, 1'); e('v_add_u32 %t0, s60, %g')
e('v_add_u32 %t1, 1, %b'); e('v_and_b32 %t1, 7, %t1'); e('v_xor_b32 %t1, %t1, %t0')
e('v_lshlrev_b32 %t2, 9, %b'); e('v_lshl_add_u32 %t2, %h, 3, %t2'); e(f'v_add_u32 %t2, {KB + 5*128}, %t2')
e(f'v_lshl_add_u32 {v(vKA)}, %t1, 4, %t2')
e('v_add_u32 %t1, 2, %b'); e('v_and_b32 %t1, 7, %t1'); e('v_xor_b32 %t1, %t1, %t0')
e(f'v_lshl_add_u32 {v(vKB)}, %t1, 4, %t2')
a(f's_lshl_b32 s60, {sW}, 7'); a(f's_add_u32 s60, s60, {SB}')
e(f'v_lshlrev_b32 {v(vSHR)}, 5, %l4'); a(f'v_add_u32 {v(vSHR)}, s60, {v(vSHR)}')
e(f'v_lshlrev_b32 {v(vUS)}, 14, %l4'); e(f'v_lshl_add_u32 {v(vUS)}, %b, 4, {v(vUS)}')
common2(a)
if OPT['tlb'] == 4:
    a(f's_lshl_b32 s60, {sT}, 2'); a(f's_add_u32 s60, s60, {sW}'); a('s_mul_i32 s60, s60, 86'); a(f's_lshl_b32 s61, {sP0}, 1')
    a('s_add_u32 s60, s60, s61'); a('s_lshl_b32 s60, s60, 10'); a(f's_add_u32 s40, s60, {WS_H}')
    a(f's_lshl_b32 s60, {sCP}, 8'); a(f's_add_u32 s60, s60, {WS_Y}')
    a(f's_cmp_eq_u32 {sW}, 1'); a('s_cselect_b32 s40, s60, s40'); a('s_cselect_b32 s41, 3, 1')
    a(f'v_mul_u32_u24 v244, {31*65536}, v1')
    a(f's_lshl_b32 s60, {st}, 16'); a(f's_lshl_b32 s61, {sDS}, 7'); a('s_add_u32 s61, s61, s60'); a(f's_lshl_b32 s60, {sCP}, 12')
    a(f's_cmp_eq_u32 {sW}, 2'); a('s_cselect_b32 s60, s61, s60'); a('v_mov_b32 v245, s60')
a('s_waitcnt lgkmcnt(0)')
a(f's_mov_b64 s[{OUT}:{OUT+1}], s[94:95]')
a(f's_mov_b64 s[{WS}:{WS+1}], s[98:99]')
if OPT['tlb'] == 4:
    l = [a.label() for _ in range(3)]
    a('s_mov_b32 exec_lo, s41'); a('s_mov_b32 exec_hi, 0')
    a(f'buffer_load_dword v254, v244, {srd(WS)}, s40 offen sc1', track=False)
    a('s_mov_b64 exec, 1')
    a(f's_cmp_lg_u32 {sW}, 0'); a(f's_cbranch_scc1 {l[0]}')
    a('global_load_dword v254, v245, s[84:85]', track=False)
    a.place(l[0])
    a(f's_cmp_lg_u32 {sW}, 2'); a(f's_cbranch_scc1 {l[1]}')
    a('global_load_dword v254, v245, s[94:95] sc1', track=False)
    a.place(l[1])
    a(f's_cmp_lg_u32 {sW}, 3'); a(f's_cbranch_scc1 {l[2]}')
    a('global_load_dword v254, v245, s[92:93]', track=False)
    a.place(l[2])
    a('s_mov_b64 exec, -1')
a(f's_load_dword {sE}, s[{WS}:{WS+1}], {WS_E}')
spf = []
if OPT['spf']:
    a(f's_lshl_b32 s60, {sCP}, 13'); a(f's_add_u32 s60, s60, {sW2K}')
    a('s_add_u32 s84, s84, s60'); a('s_addc_u32 s85, s85, 0')
    a(f's_lshl_b32 s60, s2, 2'); a(f's_add_u32 s60, s60, {sW}'); a(f's_mul_i32 s60, s60, {11*128}'); a(f's_min_u32 s60, s60, {1409024 - 11*128}')
    a('s_add_u32 s92, s92, s60'); a('s_addc_u32 s93, s93, 0')
    for j in range(11): a(f's_load_dword s100, s[92:93], {128*j}')
    for j in range(32): a(f's_load_dword s100, s[84:85], {64*j}')
a(f's_lshl_b32 s60, {sDS}, 18'); a(f's_lshl_b32 s61, {st}, 8'); a('s_add_u32 s60, s60, s61')
a(f's_lshl_b32 s61, {sW}, 16'); a('s_add_u32 s60, s60, s61'); a(f's_add_u32 {sUS0}, s60, {WS_U}'); a(f's_add_u32 {sUS1}, {sUS0}, 8192')
a(f's_mov_b32 {sONES}, 0x3f803f80')
e('v_and_b32 %n, 31, v1'); e('v_and_b32 %l1, 1, v1'); e('v_and_b32 %l3, 3, v1'); e('v_bfe_u32 %r, v1, 2, 2')
e('v_bfe_u32 %t0, v1, 1, 3'); e('v_xor_b32 %t0, %t0, %g'); e('v_lshlrev_b32 %t0, 4, %t0')
e('v_lshl_add_u32 %x, %n, 7, %t0')
e(f'v_add_u32 %t0, {sW4K}, %x')
e('v_lshl_add_u32 %t1, %g, 3, %r'); e('v_mul_u32_u24 %t1, 192, %t1')
e('v_lshl_add_u32 %t1, %h, 5, %t1'); e('v_lshl_add_u32 %t1, %l3, 3, %t1')
for i in range(4):
    a(f's_add_u32 s60, {sW}, {i}'); a('s_and_b32 s60, s60, 3'); a('s_lshl_b32 s61, s60, 5')
    e(f'v_xor_b32 {v(vXR+i)}, s61, %t0')
    a('s_mul_i32 s61, s60, 3072')
    e(f'v_add_u32 {v(vWR+i)}, s61, %t1')
ACC, XF, WF, SU, SQ, CS = 32, 80, 112, 160, 162, 164
for r in range(SU, CS+3): a(f'v_mov_b32 {v(r)}, 0')
a('s_waitcnt lgkmcnt(0)')
a(f's_add_u32 {sTAG}, {sE}, 1'); a(f's_not_b32 {sNTAG}, {sTAG}')
a.post(0)
a.stamp()
a.reserve = OPT['res']
S = []
def s_(*xs):
    for x in xs: S.append(fx(x))
for i in range(4): s_(f'v_add_u32 {v(vXR+4+i)}, {2*SLOT}, {v(vXR+i)}', f'v_add_u32 {v(vWR+4+i)}, {2*SLOT}, {v(vWR+i)}')
s_(f'v_mov_b32 v252, {sTAG}', f'v_mov_b32 v253, {sNTAG}')
s_(f's_lshl_b32 s60, {sCP}, 7', f's_lshl_b32 s61, {sW}, 15', 's_add_u32 s60, s60, s61', f's_add_u32 s60, s60, {WS_FLAG}')
s_(f'v_lshlrev_b32 {v(vFL)}, 3, %b', f'v_add_u32 {v(vFL)}, s60, {v(vFL)}')
NS1 = len(S)
s_(f's_mov_b32 s{OUT+2}, 2097152', f's_mov_b32 s{OUT+3}, 0x20000', f's_mov_b32 {sSELLO}, 0x05040100')
s_(f's_and_b32 s61, {st}, 1', 's_lshl_b32 s61, s61, 1', f's_add_u32 s61, s61, {sTH}', 's_lshl_b32 s61, s61, 8', f's_add_u32 s61, s61, {STATS}')
s_('v_lshlrev_b32 %t0, 3, %n', f'v_add_u32 {v(vSTS)}, s61, %t0')
s_(f's_lshl_b32 s60, {sW}, 8', f's_add_u32 s60, s60, {STATS}', f'v_add_u32 {v(vSTW)}, s60, %t0')
s_(f'v_add_u32 {v(vCSR)}, {CSUM}, {v(vL16)}', f's_lshl_b32 s60, {sW}, 2', f'v_add_u32 {v(vCSW)}, s60, {v(vCSR)}')
s_(f's_lshl_b32 s60, {sT}, 2', f's_add_u32 s60, s60, {sW}', 's_mul_i32 s60, s60, 86', f's_lshl_b32 s61, {sP0}, 1', 's_add_u32 s60, s60, s61', 's_lshl_b32 s60, s60, 10')
s_(f's_add_u32 {sHS}, s60, {WS_H}', f's_add_u32 {sHS3}, {sHS}, 4096')
S.append([f's_cmp_lt_u32 {sM1}, 11', f's_cselect_b32 {sHS3}, {sHS3}, {OOB}', 's_cselect_b32 s85, 0xffff, 0'])
s_('s_mov_b32 s84, -1', 'v_lshlrev_b32 v10, 7, v1')
sSELF = 's[84:85]'
s_(f's_mul_i32 s60, {sKH}, {CVCH}', f's_add_u32 s60, s60, {CV+448-192}', f's_lshl_b32 s61, {sTH}, 8', 's_sub_u32 s60, s60, s61')
s_(f'v_mul_u32_u24 {v(vUA)}, {U1OFF}, %l1', 'v_lshrrev_b32 %t0, 1, %b', 'v_lshl_add_u32 %t0, %t0, 2, %l4')
s_(f'v_lshl_add_u32 {v(vUA)}, %t0, 4, {v(vUA)}', f'v_add_u32 {v(vUA)}, s60, {v(vUA)}')
s_('v_xor_b32 %t0, 1, %l1', f'v_mul_u32_u24 {v(vHA)}, {HBD}, %t0', f'v_lshl_add_u32 {v(vHA)}, %b, 2, {v(vHA)}')
s_('v_lshlrev_b32 %t0, 4, %l4', f'v_sub_u32 {v(vHA)}, {v(vHA)}, %t0')
s_(f's_mul_i32 s60, {sKH}, {HCH}', 's_add_u32 s61, s60, s61', f's_add_u32 s61, s61, {HBASE+64-12}', f'v_add_u32 {v(vHA)}, s61, {v(vHA)}')
s_(f's_lshl_b32 s60, {st}, 1', f's_add_u32 s60, s60, {sTH}', 's_mul_i32 s60, s60, 86', f's_mul_i32 s61, {sKH}, 43', 's_add_u32 s60, s60, s61', 's_lshl_b32 s60, s60, 10')
s_(f's_add_u32 {sHL}, s60, {WS_H}')
s_(f's_lshl_b32 s60, {sW}, 13', f's_add_u32 s60, s60, {CV}', f'v_add_u32 {v(vXW)}, s60, {v(vL16)}')
s_('v_lshl_add_u32 %t0, %g, 2, %r', 'v_lshlrev_b32 %t0, 7, %t0', 'v_bfe_u32 %t1, v1, 3, 1', 'v_lshl_add_u32 %t0, %t1, 6, %t0')
s_('v_lshl_add_u32 %t0, %h, 5, %t0', 'v_lshl_add_u32 %t0, %l1, 4, %t0', 'v_bfe_u32 %t1, v1, 1, 1', 'v_lshl_add_u32 %t0, %t1, 3, %t0')
s_(f's_lshl_b32 s60, {sKH}, 6', 'v_xor_b32 %t0, s60, %t0', f's_lshl_b32 s61, {sKH}, 11')
s_(f'v_add_u32 {v(AR)}, s61, %t0', f'v_xor_b32 {v(AR+1)}, 64, {v(AR)}')
for k in (1, 2): s_(f'v_add_u32 {v(AR+2*k)}, {61440*k}, {v(AR)}', f'v_add_u32 {v(AR+2*k+1)}, {61440*k}, {v(AR+1)}')
s_(f'v_lshlrev_b32 {v(vYR)}, 10, %g', 'v_bfe_u32 %t1, v1, 1, 4', f'v_lshl_add_u32 {v(vYR)}, %t1, 4, {v(vYR)}', f'v_lshl_add_u32 {v(vYR)}, %l1, 2, {v(vYR)}')
s_(f's_lshl_b32 s61, {sKH}, 12', f's_lshl_b32 {sO0}, {sTH}, 3', f's_add_u32 s61, s61, {sO0}', f's_add_u32 s61, s61, {YT}', f'v_add_u32 {v(vYR)}, s61, {v(vYR)}')
s_('v_xor_b32 %t0, s60, %x', f's_lshl_b32 s61, {sTH}, 12', f's_add_u32 s61, s61, {XST}', f'v_add_u32 {v(vSTa)}, s61, %t0', f'v_xor_b32 {v(vSTb)}, 32, {v(vSTa)}')
s_(f's_add_u32 s61, {sW4K}, {EX}', f'v_add_u32 {v(vE2W)}, s61, {v(vL16)}')
s_(f's_xor_b32 s61, {sW4K}, 8192', f's_add_u32 s61, s61, {EX}', f'v_add_u32 {v(vE2R)}, s61, {v(vL16)}')
s_(f's_add_u32 s61, {sW2K}, {OT}', 'v_bfe_u32 %t0, v1, 1, 2', 'v_xor_b32 %t0, %t0, %g', 'v_lshlrev_b32 %t0, 4, %t0')
s_('v_lshl_add_u32 %t0, %n, 6, %t0', f'v_add_u32 {v(vOTa)}, s61, %t0', f'v_xor_b32 {v(vOTb)}, 32, {v(vOTa)}')
s_('v_lshrrev_b32 %t1, 2, v1', 'v_bfe_u32 %t0, v1, 3, 2', 'v_xor_b32 %t0, %t0, %l3', 'v_lshlrev_b32 %t0, 4, %t0', 'v_lshl_add_u32 %t0, %t1, 6, %t0')
s_(f'v_add_u32 {v(vOTR)}, s61, %t0', 'v_lshlrev_b32 %t1, 10, %t1', f'v_lshl_add_u32 {v(vOUT)}, %l3, 4, %t1')
s_(f's_lshl_b32 {sO0}, {st}, 16', f's_lshl_b32 s61, {sDS}, 7', f's_add_u32 {sO0}, {sO0}, s61', f's_lshl_b32 s61, {sTH}, 15')
s_(f's_add_u32 {sO0}, {sO0}, s61', f's_add_u32 {sO0}, {sO0}, s60', f's_add_u32 {sO1}, {sO0}, 16384')

KR, VR, SR, PA = 168, 182, 190, 240
WP, KU, VU, TP = 32, 48, 76, 92
if OPT['fpre']:
    for x in S[:NS1]: a(x)
    S = S[NS1:]; NS1 = 0
    a(f'v_mov_b32 v252, {sNTAG}')
    for ph in (1, 2)[2-OPT['fpre']:]: a.flag_store(ph)
    a(f'v_mov_b32 v252, {sTAG}')
if OPT['early']:
    for x in S: a.do(x)
    S = []; NS1 = 0
if OPT['tlb'] == 3:
    assert OPT['early']
    l = [a.label() for _ in range(2)]
    a(f's_lshl_b32 s60, {sCP}, 8'); a(f's_add_u32 s60, s60, {WS_Y}')
    a(f's_cmp_eq_u32 {sW}, 1'); a(f's_cselect_b32 s60, s60, {sHS}'); a(f's_cselect_b32 exec_lo, 3, 1'); a('s_mov_b32 exec_hi, 0')
    a(f'v_mul_u32_u24 v244, {31*65536}, v1')
    a(f's_cmp_eq_u32 {sW}, 2'); a(f's_cbranch_scc1 {l[0]}')
    a(f'buffer_load_dword v254, v244, {srd(WS)}, s60 offen sc1', track=False); a(f's_branch {l[1]}')
    a.place(l[0])
    a(f'buffer_load_dword v254, v244, {srd(OUT)}, {sO0} offen sc1', track=False)
    a.place(l[1])
    a('s_mov_b64 exec, -1')
elif OPT['tlb'] in (1, 2):
    assert OPT['early']
    a('v_mul_u32_u24 v244, 5120, v1'); a('v_mul_u32_u24 v245, 14336, v1')
    a('s_mov_b64 exec, 3')
    if OPT['tlbm'] & 1: a(f'buffer_load_dword v254, v244, {srd(WS)}, {sHS} offen sc1', track=False)
    a('s_mov_b64 exec, 15')
    if OPT['tlbm'] & 2: a(f'buffer_load_dword v254, v245, {srd(WS)}, {sHL} offen sc1', track=False)
    a('s_mov_b64 exec, 1')
    if OPT['tlbm'] & 4: a(f'buffer_load_dword v254, {v(vOUT)}, {srd(OUT)}, {sO0} offen sc1', track=False)
    a('s_mov_b64 exec, -1')
if OPT['pc'] < 0:
    for x in S[:NS1]: a(x)
    S = S[NS1:]; NS1 = 0
    for jj in range(2): a(f'buffer_store_dwordx4 v[248:251], {v(vYS)}, {srd(WS)}, {(sYS0, sYS1)[jj]} offen sc1')
a.bar('kv')
a.stamp()
for p in range(2): a(f'ds_read_b128 {v(SR+4*p,4)}, {v(vSHR)} offset:{16*p}')
for r in range(7): a(f'ds_read_b64 {v(KR+2*r,2)}, {v(vKA if r < 3 else vKB)} offset:{128*r}')
for r in range(4): a(f'ds_read_b64 {v(VR+2*r,2)}, {v(vKB)} offset:{VB-KB+128*(r+3)}')
for x in S[:NS1]: a(x)
S = S[NS1:]
for c in range(4):
    p, e_ = c >> 1, c & 1
    for jj in range(2): a(lo(WP+8*p+4*jj+e_, SR+2*c+jj)); a(hi(WP+8*p+4*jj+2+e_, SR+2*c+jj))
for p in range(2):
    for r in range(7): a(lo(KU+4*r+2*p, KR+2*r+p)); a(hi(KU+4*r+2*p+1, KR+2*r+p))
    for r in range(4): a(lo(VU+4*r+2*p, VR+2*r+p)); a(hi(VU+4*r+2*p+1, VR+2*r+p))
    for i in range(4): a(f'v_pk_mul_f32 {v(TP+2*i,2)}, {v(KU+4*i+2*p,2)}, {v(WP+8*p+6,2)}')
    for j in (2, 1, 0):
        for i in range(4): a(f'v_pk_fma_f32 {v(TP+2*i,2)}, {v(KU+4*(i+3-j)+2*p,2)}, {v(WP+8*p+2*j,2)}, {v(TP+2*i,2)}')
    for i in range(4): a(f'v_pk_mul_f32 {v(TP+2*i,2)}, {v(TP+2*i,2)}, {v(VU+4*i+2*p,2)}')
    for i in range(4): a(f'v_cvt_pk_bf16_f32 {v(PA+4*p+i)}, {v(TP+2*i)}, {v(TP+2*i+1)}')
    if not OPT['udef']: ust = a(f'buffer_store_dwordx4 {v(PA+4*p,4)}, {v(vUS)}, {srd(WS)}, {(sUS0, sUS1)[p]} offen sc1')
if OPT['pc'] == 0:
    for jj in range(2): ust = a(f'buffer_store_dwordx4 v[248:251], {v(vYS)}, {srd(WS)}, {(sYS0, sYS1)[jj]} offen sc1')
ust_t = a.t

AX, BX, vM, vRS, vS, vC3 = 168, 180, 184, 185, 186, 188
stats = [
    f'v_add_f32 {v(SU)}, {v(SU)}, {v(SU+1)}', f'v_add_f32 {v(SQ)}, {v(SQ)}, {v(SQ+1)}',
    f'v_mov_b32 {v(SU+1)}, {v(SU)}', f'v_mov_b32 {v(SQ+1)}, {v(SQ)}',
    f'v_permlane32_swap_b32 {v(SU)}, {v(SU+1)}', f'v_permlane32_swap_b32 {v(SQ)}, {v(SQ+1)}',
    f'v_add_f32 {v(SU)}, {v(SU)}, {v(SU+1)}', f'v_add_f32 {v(SQ)}, {v(SQ)}, {v(SQ+1)}',
    f'v_mul_f32 {v(SU)}, 0x3b000000, {v(SU)}', f'v_mul_f32 {v(SQ)}, 0x3b000000, {v(SQ)}',
    f'v_fma_f32 {v(SQ)}, -{v(SU)}, {v(SU)}, {v(SQ)}', f'v_max_f32 {v(SQ)}, 0, {v(SQ)}',
    f'v_cvt_pk_bf16_f32 v190, {v(SU)}, {v(SQ)}', 'v_xor_b32 v191, 0x8000, v190',
    f'v_perm_b32 {v(BX)}, v191, v191, {sSELLO}', f'v_mov_b32 {v(BX+1)}, {v(BX)}', f'v_mov_b32 {v(BX+2)}, {v(BX)}', f'v_mov_b32 {v(BX+3)}, {v(BX)}',
    lo(vM, 190), hi(191, 190), 'v_add_f32 v191, 0x3727c5ac, v191',
    'v_cvt_pk_bf16_f32 v191, v191, v191', lo(191, 191), 'v_sqrt_f32 v191, v191',
    'v_cvt_pk_bf16_f32 v191, v191, v191', lo(vS, 191), f'v_rcp_f32 {v(vRS)}, {v(vS)}',
    f'v_mul_f32 {v(vC3)}, 0xbfb8aa3b, {v(vRS)}', f'ds_write_b64 {v(vSTW)}, {v(vM,2)}']
def rdx(c):
    st_ = 4 * ((c % 4) >> 1); off = (c & 1) * SLOT
    return [f'ds_read_b128 {v(XF+16*(c&1)+4*i,4)}, {v(vXR+st_+i)} offset:{off}' for i in range(4)]
def rdw(c, i):
    st_ = 4 * ((c % 4) >> 1); off = (c & 1) * SLOT
    return [f'ds_read_b64_tr_b16 {v(WF+12*i+4*ft+2*rd,2)}, {v(vWR+st_+i)} offset:{off+16384+rd*768+ft*64}' for ft in range(3) for rd in range(2)]
a.stamp()
a.bar('c0')
a.stamp(0, True)
for x in rdx(0) + rdw(0, 0) + rdw(0, 1): a(x)
a.fq = S
flag1 = False
for c in range(8):
    X = XF + 16*(c & 1)
    late = rdw(c, 2) + rdw(c, 3)
    if OPT['w1']: a.wait_lg(a.pend[('v', X+12)][1])
    for i in range(4):
        if OPT['w1'] and i == 2: a.wait_lg(a.pend[('v', WF+10)][1])
        for d in range(4 if OPT['nodot'] < 2 else 0):
            a(f'v_dot2c_f32_bf16 {v(SU+(d&1))}, {sONES}, {v(X+4*i+d)}'); a(f'v_dot2c_f32_bf16 {v(SQ+(d&1))}, {v(X+4*i+d)}, {v(X+4*i+d)}')
    ncs = OPT['csv'] if 1 <= c < 7 else 0
    if ncs:
        cq = []
        for d in range(4 - ncs, 4):
            for ft in range(3): cq += [lo(240+2*ft, WF+4*ft+d), hi(241+2*ft, WF+4*ft+d)]
            for ft in range(3): cq += [f'v_add_f32 v{246+ft}, v{246+ft}, v{240+2*ft}', f'v_add_f32 v{249+ft}, v{249+ft}, v{241+2*ft}']
        a.fq = cq + a.fq; nrest = len(a.fq) - len(cq)
    for d in range(4 - ncs):
        for ft in range(3): a(f'v_dot2c_f32_bf16 {v(CS+ft)}, {sONES}, {v(WF+4*ft+d)}')
    if c == 7:
        a.drain_f()
        if OPT['csv']:
            for ft in range(3): a.fq += [f'v_add_f32 v{246+ft}, v{246+ft}, v{249+ft}']
            for ft in range(3): a.fq += [f'v_add_f32 {v(CS+ft)}, {v(CS+ft)}, v{246+ft}']
        for ft in range(3): a.fq += [hi(192+ft, CS+ft), f'v_sub_f32 v{195+ft}, {v(CS+ft)}, v{192+ft}']
        for ft in range(3): a.fq += [f'v_cvt_pk_bf16_f32 v{192+ft}, v{192+ft}, v{195+ft}', f'ds_write_b32 {v(vCSW)}, v{192+ft} offset:{1024*ft}']
        a.fq += stats
    def mm(i, ft):
        cin = '0' if (c == 0 and i == 0) else v(ACC+16*ft, 16)
        return f'v_mfma_f32_32x32x16_bf16 {v(ACC+16*ft,16)}, {v(WF+12*i+4*ft,4)}, {v(X+4*i,4)}, {cin}'
    for i in range(3):
        for ft in range(3):
            a(mm(i, ft))
            for x in late[:3]: a(x)
            late = late[3:]
            if 4 <= c < 7 and (i, ft) == (2, 0): a.peek(0)
            if c == 7 and (i, ft) == (2, 0):
                a.drain_f(len(a.fq) - len(stats))
                a.post(1)
    if OPT['udef'] and c == 0:
        for p in range(2): ust = a(f'buffer_store_dwordx4 {v(PA+4*p,4)}, {v(vUS)}, {srd(WS)}, {(sUS0, sUS1)[p]} offen sc1')
        ust_t = a.t
    if ncs: a.drain_f(len(a.fq) - nrest)
    if c == 0 and OPT['csv']:
        for q in range(6): a(f'v_mov_b32 v{246+q}, 0')
    if not flag1 and a.t - ust_t > OPT['f1d']:
        a.wait_vm(ust); a.flag_store(1); flag1 = True
    if c < 4: a.bar(f'c{c+1}')
    elif c < 7: a.expect(0, c - 3, True)
    a.stamp(1)
    nxt_ = rdx(c+1) + rdw(c+1, 0) + rdw(c+1, 1) if c < 7 else []
    for ft in range(3):
        a(mm(3, ft))
        if c == 7 and ft == 0: a.peek(1)
        if c == 7 and ft == 1:
            a.expect(1, 1, True)
            nxt_ = [f'ds_read_b128 {v(AX+4*q,4)}, {v(vCSR)} offset:{1024*q}' for q in range(3)]
        for x in nxt_[:6]: a(x)
        nxt_ = nxt_[6:]
a.drain_f()
for ft in range(3):
    a(f'v_mfma_f32_32x32x16_bf16 {v(ACC+16*ft,16)}, {v(AX+4*ft,4)}, {v(BX,4)}, {v(ACC+16*ft,16)}')
a.stamp(0, True); a.stamp(4)

CA, DU, DR = 160, 192, 208
def FA(set_, mu): return (80 if set_ == 0 else 32) + 4*mu
def FB(set_, nu): return 112 + 4*nu if set_ == 0 else (64 + 4*nu if nu < 4 else 144 + 4*(nu-4))
def rdA(rp, mu): return f'ds_read_b128 {v(FA(rp&1,mu),4)}, {v(vUA)} offset:{512*mu - 64*rp + 192}'
def rdB(rp, nu): return [f'ds_read_b64 {v(FB(rp&1,nu)+2*h,2)}, {v(vHA)} offset:{512*nu + 64*rp + 8*h}' for h in range(2)]
def reads(rp):
    r = rdB(rp, 0) + [rdA(rp, mu) for mu in range(8)]
    for nu in range(1, 8): r += rdB(rp, nu)
    return r
TS, HO = 144, 168
first = reads(0)
for fr in range(6):
    base = ACC + 8*fr; t = TS + 8*(fr & 1); o = HO + 4*(fr & 1)
    if fr == OPT['ubar']: a.expect(0, 4, True)
    def side(n):
        if fr >= OPT['ubar']:
            for x in first[:n]: a(x)
            del first[:n]
    for p in range(4): a(f'v_pk_mul_f32 {v(t+2*p,2)}, {v(base+2*p,2)}, {v(vC3,2)} op_sel_hi:[1,0]')
    side(6)
    for q in range(8): a(f'v_exp_f32 {v(t+q)}, {v(t+q)}')
    side(6)
    for p in range(4): a(f'v_pk_fma_f32 {v(t+2*p,2)}, {v(t+2*p,2)}, {v(vS,2)}, {v(vS,2)} op_sel_hi:[1,0,0]')
    if fr == OPT['ubar'] - 1: a.peek(0)
    for q in range(8): a(f'v_rcp_f32 {v(t+q)}, {v(t+q)}')
    for p in range(4): a(f'v_pk_mul_f32 {v(t+2*p,2)}, {v(t+2*p,2)}, {v(base+2*p,2)}')
    for p in range(4): a(f'v_cvt_pk_bf16_f32 {v(o+p)}, {v(t+2*p)}, {v(t+2*p+1)}')
    so, im = (sHS, fr*1024) if fr < 4 else (sHS3, (fr-4)*1024)
    a.stamp(4)
    hst = a(f'buffer_store_dwordx4 {v(o,4)}, {v(vL16)}, {srd(WS)}, {so} offen offset:{im} sc1')
    a.stamp(4)
a.stamp(0, True)
if OPT['ubar'] == 6:
    a.expect(0, 4, True)
    for x in first[:12]: a(x)
    del first[:12]

G2A, XR, XS, YR, XU, DM, YU = 32, 32, 152, 208, 160, 176, 192
AFD = OPT['afd']
AFB = [64, 72, 144, 12, 20][:AFD+1]
RING = list(range(80, 144, 4)) + [240, 244, 248] + [24, 20, 16, 12][:2*(4-AFD)]
NR = len(RING)
def hreg(s): return RING[s % NR]
def rd2(s):
    o = w2slot(s); k = 2 * (o // 61440); o -= 30720 * k
    return [f'ds_read_b64_tr_b16 {v(AFB[s%(AFD+1)]+4*dt+2*rd,2)}, {v(AR+k+dt)} offset:{o + rd*1024}' for dt in (1, 0) for rd in range(2)]
hops = {}
def hld(s):
    def f():
        if OPT['nohl']: return
        if s % 4 == 0: a(f's_add_u32 {sA}, {sHL}, {0 if OPT["hhot"] else s*1024}')
        a(f'buffer_load_dwordx4 {v(hreg(s),4)}, {v(vL16)}, {srd(WS)}, {sA} offen offset:{(s%4)*1024}' + ['', ' sc1', ' nt'][OPT['hfl']])
    hops[s] = f
    return f
def hgate(peeked):
    a.stamp(); a.expect(0, 5, peeked); a.stamp()
    for s in range(OPT['hburst']):
        if s == OPT['hburst'] - 2 and OPT['gate'] == 1: a.peek(0)
        a.do(hld(s))
    a.gap = OPT['hgap']
    a.vq = [hld(s) for s in range(OPT['hburst'], NR)]
cnt = 0
for rp in range(4):
    rd = (first if rp == 0 else []) + (reads(rp + 1) if rp < 3 else [])
    order = [(nu, mu) for nu in range(8) for mu in range(8 - nu)]
    if rp == 3: order = [(nu, j - nu) for j in range(8) for nu in range(j + 1)]
    wq = []
    for idx, (nu, mu) in enumerate(order):
        j = nu + mu
        if rp == 2 and idx == 27:
            assert not rd
            a.post(3)
        if rp == 2 and idx == 33: a.peek(1)
        if rp == 3 and idx == 3: a.expect(1, 3, True)
        if rp == 3 and OPT['gate'] == 0:
            if idx == max(OPT['gidx'] - 5, 3): a.peek(0)
            if idx == max(OPT['gidx'], 6): hgate(True)
        if cnt == OPT['sig2']:
            a.stamp(); a.wait_vm(hst); a.stamp(); a.flag_store(2)
            if OPT['selft']:
                a.do([f's_mov_b64 exec, {sSELF}', f'buffer_load_dword v254, v10, {srd(WS)}, {sHS} offen sc1', 's_mov_b64 exec, -1'])
            a.post(2, False)
        cin = '0' if (rp == 0 and nu == 0) else v(CA+4*j, 4)
        a(f'v_mfma_f32_16x16x32_bf16 {v(CA+4*j,4)}, {v(FA(rp&1,mu),4)}, {v(FB(rp&1,nu),4)}, {cin}')
        cnt += 1
        for _ in range(2 if (rp == 0 and cnt <= 8) else 1):
            if rd: a(rd.pop(0))
        if rp == 3:
            if mu == 0: wq.append((idx + 6, j))
            if idx >= 7 and idx % 4 == 3 and wq and wq[0][0] <= idx:
                jj_ = wq.pop(0)[1]; a(f'ds_write_b128 {v(vXW)}, {v(CA+4*jj_,4)} offset:{1024*jj_}')
    assert not rd
a.drain_f()
a.stamp()
for _, j in wq: a(f'ds_write_b128 {v(vXW)}, {v(CA+4*j,4)} offset:{1024*j}')
if OPT['gate'] == 1: a.peek(0)
a.post(4)
a.stamp(0, True)
if OPT['gate'] == 1: hgate(True)
a.stamp(5); a.expect(0, 6, OPT['gate'] == 1); a.stamp(5)
for q in range(AFD):
    for x in rd2(q): a(x)

pre = []
for k in range(8): pre += [lo(XU+2*k, XS+k), hi(XU+2*k+1, XS+k)]
for k in range(16): pre.append(f'v_sub_f32 {v(DM+k)}, {v(XU+k)}, v232')
for k in range(16): pre.append(f'v_mul_f32 {v(DM+k)}, {v(DM+k)}, v233')
post_ = []
for k in range(8): post_ += [lo(YU+2*k, YR+k), hi(YU+2*k+1, YR+k)]
for k in range(16): post_.append(f'v_fmac_f32 {v(XU+k)}, {v(DM+k)}, {v(YU+k)}')
yreads = [f'ds_read_b32 {v(YR+4*grp+q)}, {v(vYR)} offset:{(8*grp+q)*256}' for grp in range(2) for q in range(4)]
def g2mm(s, dt):
    cin = '0' if s == 0 else v(G2A+16*dt, 16)
    return f'v_mfma_f32_32x32x16_bf16 {v(G2A+16*dt,16)}, {v(AFB[s%(AFD+1)]+4*dt,4)}, {v(hreg(s),4)}, {cin}'
assert OPT['lastk'] <= AFD
for s in range(43):
    if s > 0 and s + NR - 1 < 43: a.vq.append(hld(s + NR - 1))
    if s == 10: a.post(6, False); a.stamp()
    if s == 20: a.post(8, False)
    if s == 28 - AFD: a.stamp(5); a.expect(0, 8, True); a.stamp(); a.stamp(5)
    side = rd2(s + AFD) if s + AFD < 43 else []
    if s == OPT['pres']: side += [f'ds_read_b128 {v(XS,4)}, {v(vSTa)}', f'ds_read_b128 {v(XS+4,4)}, {v(vSTb)}', f'ds_read_b64 v[232:233], {v(vSTS)}']
    if s == OPT['pres'] + 2: a.fq += pre
    if s == 28: a.expect(1, 8, True)
    if s == 36 - AFD: a.stamp(5); a.expect(0, 9, True); a.stamp(5)
    if s == OPT['ybar']:
        a.stamp(); a.stamp(5); a.expect(0, 10, True); a.stamp(); a.stamp(5)
        side += yreads
    if s == OPT['ybar'] + 2: a.fq += post_
    if hops[s] in a.vq: a.drain_v(hops[s])
    h = (len(side) + 1) // 2
    for dt in (1, 0):
        if dt == 0 and s >= 43 - OPT['lastk']: continue
        if OPT['onew'] and dt == 1:
            a.service(True)
            if ('v', hreg(s)) in a.pend: a.wait_vm(a.pend[('v', hreg(s))][1])
            a.wait_lg(a.pend[('v', AFB[s%(AFD+1)]+2)][1])
        a(g2mm(s, dt))
        for x in side[:h]: a(x)
        side = side[h:]
    for x in side: a(x)
    if s + 2 in (28 - AFD, 36 - AFD, OPT['ybar']): a.peek(0)
    if s == 26: a.peek(1)
wr_ = [f'ds_write_b128 {v(vE2W)}, {v(G2A+16+4*k,4)} offset:{1024*k}' for k in range(4)]
for s in range(43 - OPT['lastk'], 43):
    a(g2mm(s, 0))
    if s > 43 - OPT['lastk']: a(wr_.pop(0))
for x in wr_: a(x)
a.stamp(0, True); a.stamp(5)
if not OPT['fbar']: a.post(9)
a.drain_f()
for k in range(8): a(f'v_pk_add_f32 {v(XU+2*k,2)}, {v(XU+2*k,2)}, {v(G2A+2*k,2)}')
if OPT['fbar']:
    a.wait_all_lg(); a('s_barrier')
else: a.expect(1, 9)
for k in range(4): a(f'ds_read_b128 {v(64+4*k,4)}, {v(vE2R)} offset:{1024*k}')
for h in range(2):
    for k in range(4*h, 4*h+4): a(f'v_pk_add_f32 {v(XU+2*k,2)}, {v(XU+2*k,2)}, {v(64+2*k,2)}')
    for k in range(4*h, 4*h+4): a(f'v_cvt_pk_bf16_f32 {v(96+k)}, {v(XU+2*k)}, {v(XU+2*k+1)}')
    a(f'ds_write_b128 {v((vOTa, vOTb)[h])}, {v(96+4*h,4)}')
a.wait_all_lg()
a(f'ds_read_b128 v[104:107], {v(vOTR)}'); a(f'ds_read_b128 v[108:111], {v(vOTR)} offset:1024')
a(f'buffer_store_dwordx4 v[104:107], {v(vOUT)}, {srd(OUT)}, {sO0} offen{OSC}')
a(f'buffer_store_dwordx4 v[108:111], {v(vOUT)}, {srd(OUT)}, {sO1} offen{OSC}')
a.stamp()
print('estimated compute cycles', a.est, file=sys.stderr)
a.finish()
assert L.bars == C.bars, (L.bars, C.bars)

lines = P.lines + L1lines + ['L_compute:'] + C.lines + L.lines + ['L_end:', '    s_endpgm']
if OPT['skel']:
    drop = ('v_mfma', 'v_dot', 'v_pk_', 'v_exp', 'v_rcp', 'ds_read_b64', 'v_fmac', 'v_mul_f32', 'v_cvt_pk', 'ds_write_b128', 'v_perm_b32', 'v_add_f32', 'v_sub_f32')
    lines = [l for l in lines if not l.strip().startswith(drop)]
hdr = open('parallel_sum__ssm_conv_h3__dense_activation_silu__prompt.s.ref').read().split('\n')
hdr = [l for l in hdr if l.startswith(';') and '@launch' not in l]
out = '\n'.join(hdr) + f'\n; @launch grid=(256,1,1) block=(512,1,1) lds={LDS_SIZE}\n'
out += f'''.amdgcn_target "amdgcn-amd-amdhsa--gfx950"
.text
.globl {NAME}
.p2align 8
.type {NAME},@function
{NAME}:
''' + '\n'.join(lines) + f'''
.section .rodata,"a"
.p2align 6
.amdhsa_kernel {NAME}
  .amdhsa_next_free_vgpr 256
  .amdhsa_next_free_sgpr 102
  .amdhsa_accum_offset 256
  .amdhsa_group_segment_fixed_size 0
  .amdhsa_kernarg_size 96
  .amdhsa_user_sgpr_count 2
  .amdhsa_user_sgpr_kernarg_segment_ptr 1
  .amdhsa_system_sgpr_workgroup_id_x 1
.end_amdhsa_kernel
'''
open(sys.argv[1], 'w').write(out)
print(dbg, file=sys.stderr)
print('lines', len(lines), 'stamps L/C', L.nstamp, C.nstamp, file=sys.stderr)
```

```python
import sys
from emit import Asm

NAME = "parallel_sum__ssm_conv_h3__dense_activation_silu__prompt_kernel"
OPT = dict(stamps=0, sg=0, probe=-2, base=60000, who=1, skel=0,
           map=0, rot=3, prio=1, look=10, lookkv=4, cap=8, hat=8, t2at=-2, t3at=-2, upat=8, ulat=16, ubat=24,
           pwat=34, s2at=42, psleep=2, pdelay=0, f1d=1000, ubar=5, sig2=50, sig3=2, hburst=7, hgap=46,
           g2at=24, ybar=37, osc=1, ht=0, ydelay=0, lprio=0, t2mode=0, spf=0, sw2=0, hp=1, dsx=4, ntkv=1, ntx=0, nth=0, na=43, wper=2, gate=1, afd=4, nx=0, esl=4, nodma=0, nohl=0, notail=0, nodot=0, nosync=0, kvfirst=1, yk=3, yp=12, yc=4, lspf=0, t1=0, pc=9, res=4, lastk=4, fbar=1, fpre=1, tp=0, duat=20, cpf=0, th=0, w1=1, csv=0, early=1, cap1=10, pair=0, s2skip=0, cap3=6, pres=2, udef=1, tlb=4, tlbm=1, look0=7, onew=1, w64=0, wsl=0, yprio=2, jit=0, wc=20, gidx=0, hhot=0, hfl=1, wm=14, wk=10, bg=0, bgfrom=2, selft=0, tw=1, cap2=6)
for x in sys.argv[2:]:
    k, v = x.split('='); assert k in OPT, k; OPT[k] = int(v)

WS_E, WS_FLAG, WS_STAMP, WS_U, WS_Y, WS_H, WS_SIZE = 0, 0x80000, 0x40000, 0x100000, 0x300000, 0x500000, 0x1000000
FPH = 0x20000
OOB = 0x7f000000
SLOT = 28672
CV = 114688; CVCH = 9216; U1OFF = 4640; HBASE = CV + 18432; HCH = 8448; HBD = 4228
KB, VB, SB = CV, CV + 8192, CV + 9216 + 8192
XST = 150016; STATS = 158208; CSUM = 159232; PW = CSUM + 3072
LDS_SIZE = 163840
def w2slot(s): return (s if s < 36 else s - 36) * 4096
YT, EX, OT = 8*4096, 12*4096, 10*4096
Q, K, V, SH, HK, W1, W2, OUT, WS = 4, 8, 12, 16, 20, 24, 28, 32, 36
def srd(r): return f's[{r}:{r+3}]'
sD, sE, sT, sM1, st, sDS, sCP, sW, sWV, sTAG, sNTAG, sP0 = [f's{i}' for i in range(42, 54)]
sXO, sW1O, sHS, sHS3, sW2O, sHL = [f's{i}' for i in range(54, 60)]
sM0W, sW4K, sW3K, sSELLO, sSELHI, sONES = [f's{i}' for i in range(62, 68)]
sPAIR = 's[68:69]'
sSPIN, sTH, sKH, sMASK, sW2K, sI = [f's{i}' for i in range(70, 76)]
sHM0, sHSO, sD0, sD1, sA, sB, sG, sUS0 = [f's{i}' for i in range(76, 84)]
sUS1 = 's86'
sUL, sYS0, sYS1, sYL, sO0, sO1, sROT, sC = [f's{i}' for i in range(88, 96)]
sSTASH = 's101'
def v(n, c=1): return f'v{n}' if c == 1 else f'v[{n}:{n+c-1}]'
OSC = ' sc1' if OPT['osc'] else ''
vL16, vSTAMP, vFL, vPWB, vPWM, vPWT = 2, 31, 28, 29, 30, 255

class Prog(Asm):
    def __init__(self, name, pwr):
        super().__init__(); self.name = name; self.bars = []; self.nstamp = 0; self.pwr = pwr
    def label(self):
        self.nlabel += 1; return f'{self.name}{self.nlabel}'
    def bar(self, tag, lg=True):
        self.lock()
        if lg: self.wait_all_lg()
        self('s_barrier'); self.bars.append(tag)
        self.unlock()
    def post(self, n, lg=True):
        self.lock()
        self(f'v_mov_b32 {v(vPWT)}, {n}')
        if lg: self.wait_all_lg()
        self('s_mov_b64 exec, 1')
        self(f'ds_write_b32 {v(vPWM)}, {v(vPWT)}')
        self('s_mov_b64 exec, -1')
        self.unlock()
    def peek(self, grp):
        self(f'ds_read_b128 {v(self.pwr,4)}, {v(vPWB)} offset:{16*grp}')
    def expect(self, grp, n, peeked=False, sleep=0):
        r = self.pwr
        self.lock()
        if not peeked: self.peek(grp)
        top, done = self.label(), self.label()
        self.wait_lg(self.pend[('v', r)][1])
        self.place(top)
        self(f'v_min3_u32 {v(r)}, {v(r)}, {v(r+1)}, {v(r+2)}')
        self(f'v_min_u32 {v(r)}, {v(r)}, {v(r+3)}')
        self(f'v_cmp_gt_u32 vcc, {n}, {v(r)}')
        self(f's_cbranch_vccz {done}')
        t0 = self.t
        if sleep: self(f's_sleep {sleep}')
        self(f'ds_read_b128 {v(r,4)}, {v(vPWB)} offset:{16*grp}', track=False)
        self('s_waitcnt lgkmcnt(0)')
        self(f's_branch {top}')
        self.place(done)
        self.t = t0 + (0 if peeked else 100)
        self.unlock()
    def stamp(self, g=0, coarse=False):
        if coarse and OPT['sg'] == 3: g = 3
        if OPT['jit'] and self.name != 'P':
            self.njit = getattr(self, 'njit', 0) + 1
            self.lock()
            l = self.label()
            self(f's_lshl_b32 s96, s2, 3'); self(f's_add_u32 s96, s96, {sWV}'); self(f's_add_u32 s96, s96, {sTAG}')
            self(f's_mul_i32 s96, s96, {(2654435761 * (2 * self.njit + 1 + OPT["jit"] * 64)) & 0xffffffff}'); self('s_lshr_b32 s96, s96, 28')
            self('s_cmp_gt_u32 s96, 2'); self(f's_cbranch_scc1 {l}')
            self(f's_sleep {(20, 60, 127)[self.njit % 3]}')
            self.place(l)
            self.unlock()
        if g == 0: self.est = getattr(self, 'est', []) + [int(self.t)]
        if not OPT['stamps'] or g != OPT['sg']: return
        k = self.nstamp; self.nstamp += 1
        self.lock(); self.wait_all_lg()
        self('s_memtime s[96:97]'); self('s_waitcnt lgkmcnt(0)')
        self('s_sub_u32 s96, s96, s3')
        self(f'v_writelane_b32 {v(vSTAMP)}, s96, {k}')
        self.unlock()
    def dma(self, vaddr, rs, soff, m0expr, extra='', track=True):
        self(m0expr)
        return self(f'buffer_load_dwordx4 {v(vaddr)}, {srd(rs)}, {soff} offen{extra} lds', track=track)
    def flag_store(self, phase):
        self.lock()
        self(f's_mov_b32 {sG}, {(phase-1)*FPH}')
        self('s_mov_b64 exec, 0xffff')
        self(f'buffer_store_dwordx2 v[252:253], {v(vFL)}, {srd(WS)}, {sG} offen sc1')
        self('s_mov_b64 exec, -1')
        self.unlock()
    def poll_issue(self, vaddr, dst, mask):
        self(f's_mov_b64 exec, {mask}')
        r = self(f'buffer_load_dwordx2 {v(dst,2)}, {v(vaddr)}, {srd(WS)}, 0 offen sc1')
        self('s_mov_b64 exec, -1')
        return r
    def poll_check(self, vaddr, dst, mask):
        self.lock()
        top, done = self.label(), self.label()
        self(f's_mov_b32 {sSPIN}, 0')
        self(f's_mov_b64 exec, {mask}')
        self.wait_vm(self.pend[('v', dst)][1])
        self.place(top)
        self(f'v_cmp_eq_u32 vcc, {sTAG}, {v(dst)}')
        self(f'v_cmp_eq_u32 {sPAIR}, {sNTAG}, {v(dst+1)}')
        self(f's_and_b64 vcc, vcc, {sPAIR}')
        self('s_cmp_eq_u64 vcc, exec')
        self(f's_cbranch_scc1 {done}')
        self(f's_add_u32 {sSPIN}, {sSPIN}, 1')
        self(f's_cmp_gt_u32 {sSPIN}, {0 if OPT["nosync"] else 0x20000}')
        self(f's_cbranch_scc1 {done}')
        self(f's_sleep {OPT["psleep"]}')
        self(f'buffer_load_dwordx2 {v(dst,2)}, {v(vaddr)}, {srd(WS)}, 0 offen sc1', track=False)
        self('s_waitcnt vmcnt(0)')
        self(f's_branch {top}')
        self.place(done)
        self('s_mov_b64 exec, -1')
        self.unlock()
    def finish(self):
        a = self
        if OPT['stamps']:
            a('s_waitcnt vmcnt(0)')
            a.stamp(OPT['sg'])
            if OPT['probe'] > -2 and (a.name == 'C') == (OPT['who'] == 1):
                a(f's_mov_b32 s60, {OPT["base"]}')
                if OPT['probe'] == 99:
                    a('s_load_dwordx2 s[84:85], s[0:1], 80'); a('s_mov_b32 s86, 256'); a('s_mov_b32 s87, 0x20000'); a('s_waitcnt lgkmcnt(0)')
                    a(f'v_readlane_b32 s61, {v(vSTAMP)}, 31'); a('v_mov_b32 v128, 0'); a('v_mov_b32 v129, s61'); a('v_not_b32 v130, v129')
                    lz = a.label()
                    a(f's_cmp_lg_u32 {sW}, 0'); a(f's_cbranch_scc1 {lz}')
                    a('s_mov_b64 exec, 1')
                    a('buffer_atomic_umax v129, v128, s[84:87], 0 offen sc1'); a('buffer_atomic_umax v130, v128, s[84:87], 0 offen offset:128 sc1')
                    a('s_mov_b64 exec, -1')
                    a.place(lz)
                    l = a.label(); a.place(l)
                    a('s_memtime s[96:97]'); a('s_waitcnt lgkmcnt(0)'); a('s_sub_u32 s96, s96, s3'); a('s_cmp_lt_u32 s96, 70000'); a(f's_cbranch_scc1 {l}')
                    a('buffer_load_dword v131, v128, s[84:87], 0 offen sc1'); a('buffer_load_dword v132, v128, s[84:87], 0 offen offset:128 sc1')
                    a('v_not_b32 v132, v132'); a('v_sub_u32 v131, v131, v132'); a('v_readfirstlane_b32 s61, v131'); a('s_mul_i32 s61, s61, 95'); a('s_add_u32 s60, s60, s61')
                elif OPT['probe'] >= 0:
                    a(f'v_readlane_b32 s61, {v(vSTAMP)}, {OPT["probe"]}'); a('s_add_u32 s60, s60, s61')
                l = a.label(); a.place(l)
                a('s_memtime s[96:97]'); a('s_waitcnt lgkmcnt(0)'); a('s_sub_u32 s96, s96, s3'); a('s_cmp_lt_u32 s96, s60'); a(f's_cbranch_scc1 {l}')
            a('s_lshl_b32 s60, s2, 3'); a(f's_add_u32 s60, s60, {sWV}'); a('s_lshl_b32 s60, s60, 7'); a(f's_add_u32 s60, s60, {WS_STAMP}')
            a('v_lshlrev_b32 v128, 2, v1')
            a('s_mov_b64 exec, 0xffffffff')
            a(f'buffer_store_dword {v(vSTAMP)}, v128, {srd(WS)}, s60 offen')
        a('s_endpgm')

def lo(d, s): return f'v_lshlrev_b32 {v(d)}, 16, {v(s)}'
def hi(d, s): return f'v_and_b32 {v(d)}, {sMASK}, {v(s)}'

P = a = Prog('P', 0)
a('s_cmp_ge_u32 s2, 256')
a('s_cbranch_scc1 L_end')
if OPT['stamps']:
    a('s_memtime s[68:69]'); a('s_memrealtime s[70:71]'); a('s_waitcnt lgkmcnt(0)'); a('s_mov_b32 s3, s68')
    a(f'v_mov_b32 {v(vSTAMP)}, 0'); a(f'v_writelane_b32 {v(vSTAMP)}, s70, 31')
a('s_load_dwordx16 s[76:91], s[0:1], 0')
a('s_load_dwordx8 s[92:99], s[0:1], 64')
a('v_lshrrev_b32 v3, 6, v0')
a('v_and_b32 v1, 63, v0')
a('s_getpc_b64 s[60:61]')
a.place('L_pc')
a(f'v_readfirstlane_b32 {sWV}, v3')
a(f's_lshr_b32 {sI}, s2, 3')
a('v_lshlrev_b32 v39, 7, v1')
if OPT['cpf']:
    a(f's_lshl_b32 s62, {sWV}, 5'); a(f's_add_u32 s62, s62, {sI}'); a('s_mul_i32 s63, s62, 683'); a('s_lshr_b32 s63, s63, 16')
    a('s_mul_i32 s63, s63, 96'); a('s_sub_u32 s62, s62, s63'); a('s_lshl_b32 s62, s62, 8')
    a('v_add_u32 v3, s62, v39')
    a('v_min_u32 v3, L_end-L_pc, v3')
    a('s_mov_b64 exec, 3')
else:
    a(f's_and_b32 s62, {sI}, 7'); a('s_lshl_b32 s62, s62, 12')
    a(f's_cmp_ge_u32 {sWV}, 4'); a('s_cselect_b32 s62, s62, 0')
    a(f's_lshl_b32 s63, {sWV}, 10'); a('s_add_u32 s62, s62, s63')
    a('v_add_u32 v3, s62, v39')
    a('v_min_u32 v3, L_end-L_pc, v3')
    a('s_mov_b64 exec, 0xff')
a('global_load_dword v254, v3, s[60:61]', track=False)
a('s_mov_b64 exec, -1')
a(f's_and_b32 {sW}, {sWV}, 3')
a('s_and_b32 s60, s2, 7')
lg = OPT['map']
a(f's_lshr_b32 {sT}, s60, {lg}'); a(f's_lshl_b32 {sT}, {sT}, {1+lg}')
a(f's_and_b32 s61, {sI}, {(2<<lg)-1}'); a(f's_add_u32 {sT}, {sT}, s61')
a(f's_and_b32 {sM1}, s60, {(1<<lg)-1}'); a(f's_lshl_b32 {sM1}, {sM1}, {4-lg}')
a(f's_lshr_b32 s61, {sI}, {1+lg}'); a(f's_add_u32 {sM1}, {sM1}, s61')
a(f's_and_b32 s61, {sM1}, 1')
a(f's_lshl_b32 {st}, {sT}, 1')
a(f's_add_u32 {st}, {st}, s61')
a(f's_lshr_b32 {sDS}, {sM1}, 1')
if OPT['dsx']: a(f's_xor_b32 {sDS}, {sDS}, {OPT["dsx"]}')
a(f's_lshl_b32 {sW2K}, {sW}, 11')
a(f'v_lshlrev_b32 {v(vL16)}, 4, v1')
a(f's_cmp_ge_u32 {sWV}, 4')
a('s_cbranch_scc1 L_compute')
def common2(a):
    a(f's_lshl_b32 {sCP}, {sDS}, 5'); a(f's_add_u32 {sCP}, {sCP}, {st}')
    a(f's_lshl_b32 {sW4K}, {sW}, 12'); a(f's_lshl_b32 {sM0W}, {sW}, 10')
    a(f's_and_b32 {sTH}, {sW}, 1'); a(f's_lshr_b32 {sKH}, {sW}, 1')
    a(f's_mul_i32 {sP0}, {sM1}, 3'); a(f's_lshl_b32 s60, {sM1}, 1'); a('s_add_u32 s60, s60, 11'); a(f's_min_u32 {sP0}, {sP0}, s60')
    a(f's_mov_b32 s{WS+2}, {WS_SIZE}'); a(f's_mov_b32 s{WS+3}, 0x20000')
    a(f'v_mov_b32 {v(vPWB)}, {PW}'); a(f's_lshl_b32 s60, {sWV}, 2'); a(f'v_add_u32 {v(vPWM)}, s60, {v(vPWB)}')

L = a = Prog('L', 56)
vXA, vWA, vKD, vHALO, vT43, vW2A, vW2W, vP2, vP3 = 4, 8, 12, 14, 15, 16, 17, 18, 19
vP1, vUL, vULp, vUW, vZU, vZH, vW2W2, vW2W3, UR, PO, WT = 22, 23, 24, 25, 26, 27, 11, 3, 236, 40, 64
vXRd, vYS, vDU, XRL, DUL, DRL, TB = 246, 247, 248, 64, 96, 112, 128
if OPT['lprio']: a(f's_setprio {OPT["lprio"]}')
for r, n in ((W1, 1409024), (Q, 2097152), (K, 2097152), (V, 2097152), (SH, 4096)):
    a(f's_mov_b32 s{r+2}, {n}'); a(f's_mov_b32 s{r+3}, 0x20000')
a(f'v_min_u32 {v(vT43)}, {42*128}, v39')
a('v_lshrrev_b32 v33, 3, v1'); a('v_and_b32 v34, 7, v1'); a('v_lshlrev_b32 v33, 10, v33')
a(f's_lshl_b32 s60, {st}, 16'); a(f's_lshl_b32 s61, {sW}, 14'); a('s_add_u32 s60, s60, s61')
a(f's_lshl_b32 s61, {sDS}, 7'); a(f's_add_u32 {sSTASH}, s60, s61')
a('v_lshrrev_b32 v35, 5, v1'); a('v_xor_b32 v35, v35, v34'); a('v_lshl_add_u32 v38, v35, 4, v33')
a(f's_lshl_b32 s60, {sW}, 6'); a('s_and_b32 s60, s60, 64'); a('s_xor_b32 s61, s60, 32')
a(f'v_xor_b32 {v(vKD)}, s61, v38')
a('s_xor_b32 s61, s60, 64')
a(f'v_xor_b32 {v(vKD+1)}, s61, v38'); a(f'v_add_u32 {v(vKD+1)}, 8192, {v(vKD+1)}')
a(f'v_add_u32 v38, {sSTASH}, v38'); a(f'v_subrev_u32 {v(vHALO)}, 8192, v38')
a(f's_lshl_b32 {sXO}, {sT}, 17')
a('s_waitcnt lgkmcnt(0)')
a(f's_mov_b64 s[{W1}:{W1+1}], s[90:91]')
a(f's_mov_b64 s[{Q}:{Q+1}], s[76:77]')
a(f's_mov_b64 s[{K}:{K+1}], s[78:79]')
a(f's_mov_b64 s[{V}:{V+1}], s[80:81]')
a(f's_mov_b64 s[{SH}:{SH+1}], s[82:83]')
seq = {}
def first_touch():
    l = [a.label() for _ in range(2)]
    a(f's_cmp_lg_u32 {sW}, 2'); a(f's_cbranch_scc1 {l[0]}')
    a(f's_mul_i32 s60, s2, {43*128}')
    a(f'buffer_load_dword v254, {v(vT43)}, {srd(W1)}, s60 offen', track=False); a(f's_branch {l[1]}')
    a.place(l[0])
    a(f's_lshl_b32 s61, {sM1}, 13'); a(f's_add_u32 s60, {sXO}, s61')
    a(f'buffer_load_dword v254, v39, {srd(Q)}, s60 offen' + ' nt' * OPT['ntx'], track=False)
    a.place(l[1])
def kv4():
    for rs, base in ((K, KB), (V, VB)):
        for n in range(2): seq['kv'] = a.dma(vKD+n, rs, sSTASH, f's_add_u32 m0, {sW2K}, {base + 1024 + n*1024}', ' nt' * OPT['ntkv'])
l = [a.label() for _ in range(4)]
a(f's_cmp_ge_u32 {sW}, 2'); a(f's_cbranch_scc1 {l[0]}')
a(f's_cmp_lg_u32 {sW}, 0'); a(f's_cbranch_scc1 {l[2]}')
a.dma(vHALO, K, '0', f's_mov_b32 m0, {KB}', track=False); a(f's_branch {l[3]}')
a.place(l[2])
a(f's_lshl_b32 s60, {sDS}, 9')
a.dma(vL16, SH, 's60', f's_mov_b32 m0, {SB}', track=False)
a(f's_branch {l[3]}')
a.place(l[0])
if not OPT['kvfirst']: first_touch()
a.place(l[3])
kv4()
if OPT['kvfirst'] and OPT['t1']:
    a(f's_cmp_ge_u32 {sW}, 2'); a(f's_cbranch_scc1 {l[1]}')
    if OPT['th']:
        lk, lm = a.label(), a.label()
        a(f's_mov_b64 s[{HK}:{HK+1}], s[84:85]'); a(f's_mov_b64 s[{W2}:{W2+1}], s[92:93]')
        for r, n in ((HK, 2097152), (W2, 1409024)):
            a(f's_mov_b32 s{r+2}, {n}'); a(f's_mov_b32 s{r+3}, 0x20000')
        a(f's_cmp_lg_u32 {sW}, 0'); a(f's_cbranch_scc1 {lk}')
        a(f's_mul_i32 s60, s2, {43*128}')
        a(f'buffer_load_dword v254, {v(vT43)}, {srd(W2)}, s60 offen', track=False); a(f's_branch {lm}')
        a.place(lk)
        a(f's_lshl_b32 s60, {sDS}, 5'); a(f's_add_u32 s60, s60, {st}'); a('s_lshl_b32 s60, s60, 13')
        if OPT['th'] == 1: a('s_mov_b64 exec, 1')
        a(f'buffer_load_dword v254, v39, {srd(HK)}, s60 offen'); a.pend.pop(('v', 254))
        a('s_mov_b64 exec, -1')
        a.place(lm)
    else:
        a('s_mov_b64 exec, 1')
        a(f'buffer_load_dword v254, {v(vL16)}, {srd(SH)}, 0 offen'); a.pend.pop(('v', 254))
        a('s_mov_b64 exec, -1')
    lj = a.label(); a(f's_branch {lj}')
    a.place(l[1])
    first_touch()
    a.place(lj)
a(f's_mov_b64 s[{HK}:{HK+1}], s[84:85]')
a(f's_mov_b64 s[{W2}:{W2+1}], s[92:93]')
a(f's_mov_b64 s[{WS}:{WS+1}], s[98:99]')
a(f's_load_dword {sE}, s[{WS}:{WS+1}], {WS_E}')
common2(a)
a(f's_lshl_b32 s60, {sCP}, 2')
a(f's_load_dword {sD}, s[86:87], s60')
a('v_lshrrev_b32 v32, 4, v1')
a('v_xor_b32 v35, v34, v32')
a(f'v_lshl_add_u32 {v(vXA)}, v35, 4, v33')
a(f'v_xor_b32 {v(vXA+1)}, 64, {v(vXA)}')
a(f'v_add_u32 {v(vXA+1)}, 8192, {v(vXA+1)}')
a(f'v_add_u32 {v(vXA+2)}, 16384, {v(vXA)}')
a(f'v_add_u32 {v(vXA+3)}, 16384, {v(vXA+1)}')
a(f's_lshl_b32 s60, {sW}, 15'); a(f's_add_u32 {sXO}, {sXO}, s60')
a(f's_mul_i32 {sW3K}, {sW}, 3072')
a(f's_cmp_lt_u32 {sM1}, 11')
a('s_cselect_b32 s61, 12, 8')
a(f'v_mov_b32 v3, {OOB}')
for j in range(3):
    if j: a(f'v_add_u32 v36, {64*j}, v1')
    src = 'v36' if j else 'v1'
    a(f'v_mul_u32_u24 v37, 5462, {src}')
    a('v_lshrrev_b32 v37, 16, v37')
    a('v_mul_u32_u24 v35, 12, v37')
    a(f'v_sub_u32 v35, {src}, v35')
    a('v_cmp_gt_u32 vcc, s61, v35')
    a('v_mul_u32_u24 v37, 2752, v37')
    a(f'v_lshl_add_u32 {v(vWA+j)}, v35, 4, v37')
    a(f'v_cndmask_b32 {v(vWA+j)}, v3, {v(vWA+j)}, vcc')
a(f's_mul_i32 {sW1O}, {sW}, {16*2752}'); a(f's_lshl_b32 s60, {sP0}, 6'); a(f's_add_u32 {sW1O}, {sW1O}, s60')
if OPT['rot'] == 1: a(f's_and_b32 {sROT}, {sM1}, 7')
elif OPT['rot'] == 2:
    a(f's_lshl_b32 {sROT}, {sT}, 2'); a(f's_add_u32 {sROT}, {sROT}, {sM1}')
elif OPT['rot'] == 3:
    a(f's_lshr_b32 {sROT}, {sT}, 1'); a(f's_add_u32 {sROT}, {sROT}, {sM1}')
elif OPT['rot'] == 5:
    a(f's_lshl_b32 {sROT}, {sT}, 1'); a(f's_add_u32 {sROT}, {sROT}, {sM1}')
elif OPT['rot'] == 6:
    a(f's_lshl_b32 {sROT}, {sT}, 1')
elif OPT['rot'] == 7:
    a(f's_lshl_b32 {sROT}, {sT}, 2')
elif OPT['rot'] == 4:
    a(f's_add_u32 {sROT}, {sT}, {sM1}')
for r, n in ((HK, 2097152), (W2, 1409024)):
    a(f's_mov_b32 s{r+2}, {n}'); a(f's_mov_b32 s{r+3}, 0x20000')

ops = []
def op(name, gate, fn): ops.append((name, gate, fn))
def touch2():
    if OPT['t2mode']:
        a(f's_lshl_b32 {sG}, {sI}, 2'); a(f's_add_u32 {sG}, {sG}, {sW}')
        if OPT['map'] == 1:
            a(f's_mul_i32 {sG}, {sG}, 43'); a('v_min_u32 v253, 42, v1'); a(f'v_add_u32 v253, {sG}, v253')
            a('v_and_b32 v252, 3, v253'); a('v_lshrrev_b32 v253, 2, v253'); a('v_lshlrev_b32 v253, 10, v253'); a('v_lshl_add_u32 v253, v252, 7, v253')
            a(f's_and_b32 {sG}, {sDS}, 4'); a(f's_lshl_b32 {sG}, {sG}, 7')
            a(f'buffer_load_dword v254, v253, {srd(W2)}, {sG} offen')
        else:
            a(f's_mul_i32 {sG}, {sG}, {86*128}')
            a(f'buffer_load_dword v254, {v(vT43)}, {srd(W2)}, {sG} offen')
            a(f's_add_u32 {sG}, {sG}, {43*128}')
            a(f'buffer_load_dword v253, {v(vT43)}, {srd(W2)}, {sG} offen')
        return
    l = a.label()
    a(f's_cmp_lg_u32 {sW}, 2'); a(f's_cbranch_scc1 {l}')
    a(f's_mul_i32 {sG}, s2, {43*128}')
    a(f'buffer_load_dword v254, {v(vT43)}, {srd(W2)}, {sG} offen', track=False)
    a.place(l)
def touch3():
    l = a.label()
    a(f's_cmp_lg_u32 {sW}, 3'); a(f's_cbranch_scc1 {l}')
    a(f's_mul_i32 {sG}, {sI}, {43*1024}'); a(f'v_lshlrev_b32 v253, 3, {v(vT43)}')
    a(f'buffer_load_dword v254, v253, {srd(W2)}, {sG} offen offset:384', track=False)
    a.place(l)
def add_chunk(c):
    slot = (c % 4) * SLOT
    gate = f'c{c-3}' if c >= 4 else None
    def w(j):
        def f():
            if j == 0:
                if c == OPT['t2at']: touch2()
                if c == OPT['t3at']: touch3()
                if OPT['rot']:
                    a(f's_add_u32 {sC}, {sROT}, {c}'); a(f's_and_b32 {sC}, {sC}, 7')
                    a(f's_mul_i32 {sB}, {sC}, {64*2752}'); a(f's_add_u32 {sB}, {sB}, {sW1O}')
                    a(f's_lshl_b32 {sA}, {sC}, 7'); a(f's_add_u32 {sA}, {sA}, {sXO}')
                else:
                    a(f's_add_u32 {sB}, {sW1O}, {c*64*2752}')
            return a.dma(vWA+j, W1, sB, f's_add_u32 m0, {sW3K}, {slot + 16384 + j*1024}')
        return f
    for j in range(3): op(f'w{c}_{j}', gate, w(j))
    def xo(n):
        if n == 0 and not OPT['rot']: a(f's_add_u32 {sA}, {sXO}, {c*128}')
        return a.dma(vXA+n, Q, sA, f's_add_u32 m0, {sW4K}, {slot + n*1024}')
    for n in range(4): op(f'x{c}_{n}', gate, lambda n=n: xo(n))
def add_h():
    for n in range(4):
        def f(n=n):
            if n == 0 and OPT['t2at'] == -2: touch2()
            if n == 0 and OPT['t3at'] == -2: touch3()
            a(f's_mov_b32 m0, {sHM0}')
            return a(f'buffer_load_dwordx4 {v(vL16)}, {srd(HK)}, {sHSO} offen offset:{n*1024}{" nt" * OPT["nth"]} lds')
        op(f'h{n}', None, f)
def w2op(s):
    if s == 28 and OPT['t2at'] == -3: touch2()
    if s == 28 and OPT['t3at'] == -3: touch3()
    a(f's_add_u32 {sO0}, {sW2O}, {s*16384}')
    return a(f'buffer_load_dwordx4 {v(WT+4*s,4)}, {v(vW2A)}, {srd(W2)}, {sO0} offen')
def uload():
    a.poll_check(vP1, 20, '0x1ff')
    a(f'buffer_load_dwordx4 {v(UR,4)}, {v(vUL)}, {srd(WS)}, {sUL} offen sc1')
    a(f'buffer_load_dwordx4 {v(UR+4,4)}, {v(vUL)}, {srd(WS)}, {sUL} offen offset:16 sc1')
    return a(f'buffer_load_dword {v(UR+8)}, {v(vULp)}, {srd(WS)}, {sUL} offen sc1')
def ubuild():
    if OPT['hp']: a('s_setprio 2')
    a(f'ds_write_b128 {v(vZU)}, v[60:63]'); a(f'ds_write_b32 {v(vZH)}, v60')
    for c in range(2):
        sel = sSELLO if c == 0 else sSELHI
        for k in range(4):
            hi0 = UR + 5 - 2*k if k < 3 else UR + 8
            a(f'v_perm_b32 {v(PO+8*c+k)}, {v(hi0)}, {v(UR+6-2*k)}, {sel}')
        a(f'ds_write_b128 {v(vUW)}, {v(PO+8*c,4)} offset:{c*CVCH}')
        for k in range(4): a(f'v_perm_b32 {v(PO+8*c+4+k)}, {v(UR+6-2*k)}, {v(UR+7-2*k)}, {sel}')
        a(f'ds_write_b128 {v(vUW)}, {v(PO+8*c+4,4)} offset:{c*CVCH+U1OFF}')
    flush_posts(True)
    a.wait_all_lg()
    for c in range(2):
        for jj in range(2):
            for h in range(2): a(f'ds_read_b32 {v(DRL+4*c+2*jj+h)}, {v(vDU)} offset:{c*CVCH + 512*jj + 64*h}')
    a.wait_vm(max(seq['st1'], seq['h3']))
    a.post(4); a.stamp(0, True)
    if OPT['hp']: a('s_setprio 0')
    return a.vm_n
nbg = 0
wlist = list(range(28, 43)) + list(range(OPT['nx']))
for c in range(8):
    if c == OPT['hat']: add_h()
    add_chunk(c)
    if OPT['bgfrom'] <= c < 7:
        for _ in range(OPT['bg']):
            op(f'W{wlist[nbg]}', None, lambda s_=wlist[nbg]: w2op(s_)); nbg += 1
if OPT['pair']:
    assert not OPT['rot']
    d = {o[0]: o for o in ops}
    groups = {1: [(0, 1), (2, 3), (4, 5), (6, 7)], 2: [(0,), (1, 2), (3, 4), (5, 6), (7,)], 3: [(0,), (1, 2, 3), (4, 5), (6, 7)]}[OPT['pair']]
    ops[:] = [d[f'{k}{c}_{j}'] for g in groups for k, n in (('w', 3), ('x', 4)) for c in g for j in range(n)]
for n in range(2): op(f'st{n}', None, lambda n=n: a.dma(vXA+n, Q, sSTASH, f's_add_u32 m0, {sW2K}, {XST + n*1024}'))
if OPT['hat'] == 8: add_h()
for s_ in wlist[nbg:]: op(f'W{s_}', None, lambda s_=s_: w2op(s_))
b0 = [o[0] for o in ops].index('x7_3') - 6
for nm, pos, fn in (('ub', OPT['ubat'], ubuild), ('ul', OPT['ulat'], uload), ('up', OPT['upat'], lambda: a.poll_issue(vP1, 20, '0x1ff'))):
    ops.insert(b0 + pos, (nm, 'c4', fn))
names = [o[0] for o in ops]
nxt = [0]
posts = [('x5_3', 1), ('x6_3', 2), ('x7_3', 3)]
capped = [False]
dbg = []
def flush_posts(force=False):
    while posts and posts[0][0] in seq and (force or a.vm_done >= seq[posts[0][0]]):
        a.wait_vm(seq[posts[0][0]]); a.post(posts[0][1], False); a.stamp(); posts.pop(0)
def issue_upto(idx):
    while nxt[0] <= min(idx, len(ops) - 1):
        name, gate, fn = ops[nxt[0]]
        if gate is not None and gate not in a.bars: return
        if capped[0]:
            a.wait_vm(a.vm_n - (OPT['cap1'] if posts else OPT['cap']) + 1); flush_posts()
        nxt[0] += 1
        seq[name] = fn()
        if capped[0] and (name in ('x7_3', 'st1', 'h3', 'up', 'ul', 'ub') or (name[0] == 'W' and int(name[1:]) % 3 == 0)):
            a.stamp(2); dbg.append(name)
issue_upto(OPT['lookkv'] - 1)
a('s_branch L_loader2')
L1lines = a.lines; a.lines = ['L_loader2:']
a(f's_mul_i32 s60, {sKH}, {HCH}'); a(f's_mul_i32 s61, {sTH}, {HBD}'); a('s_add_u32 s61, s61, s60'); a(f's_add_u32 {sHM0}, s61, {HBASE+64}')
a(f's_lshl_b32 {sHSO}, {sCP}, 13'); a(f's_add_u32 {sUL}, {sHSO}, {WS_U}'); a(f's_lshl_b32 s61, {sKH}, 12'); a(f's_add_u32 {sHSO}, {sHSO}, s61')
a('s_waitcnt lgkmcnt(0)')
a(f's_add_u32 {sTAG}, {sE}, 1'); a(f's_not_b32 {sNTAG}, {sTAG}')
a.post(0)
a('v_and_b32 v35, 1, v32'); a('v_lshlrev_b32 v35, 2, v35'); a('v_xor_b32 v35, v35, v34')
a(f'v_lshl_add_u32 {v(vW2A)}, v35, 4, v33')
a(f's_mul_i32 {sW2O}, {sKH}, {43*16*1024}'); a(f's_lshl_b32 s61, {sTH}, 13'); a(f's_add_u32 {sW2O}, {sW2O}, s61')
a(f's_lshl_b32 s61, {sDS}, 7'); a(f's_add_u32 {sW2O}, {sW2O}, s61')
a(f'v_add_u32 {v(vW2W)}, {sM0W}, {v(vL16)}')
a(f'v_add_u32 {v(vW2W2)}, 61440, {v(vW2W)}'); a(f'v_add_u32 {v(vW2W3)}, 122880, {v(vW2W)}')
a(f's_lshl_b32 s60, {st}, 1'); a(f's_add_u32 s60, s60, {sTH}'); a('s_mul_i32 s60, s60, 86')
a(f's_mul_i32 s61, {sKH}, 43'); a('s_add_u32 s60, s60, s61'); a('s_lshl_b32 s60, s60, 10')
a(f's_add_u32 {sHL}, s60, {WS_H}')
a(f's_mul_i32 s60, {sKH}, 7'); a('v_min_u32 v38, 8, v1'); a('v_add_u32 v35, s60, v38')
a('v_lshrrev_b32 v36, 1, v35'); a(f'v_xor_b32 v36, {OPT["dsx"]}, v36'); a('v_lshlrev_b32 v36, 12, v36'); a('v_and_b32 v35, 1, v35'); a('v_lshl_add_u32 v37, v35, 7, v36')
a(f's_lshl_b32 s60, {sT}, 8'); a(f's_add_u32 s60, s60, {WS_FLAG + FPH}')
a(f's_and_b32 s61, {st}, 1'); a('s_lshl_b32 s61, s61, 1'); a(f's_add_u32 s61, s61, {sTH}')
a('s_lshl_b32 s61, s61, 15'); a('s_add_u32 s61, s61, s60')
a(f'v_add_u32 {v(vP2)}, s61, v37')
a(f's_lshl_b32 s60, {sDS}, 12'); a(f's_and_b32 s61, {st}, 24'); a('s_lshl_b32 s61, s61, 12'); a('s_add_u32 s60, s60, s61'); a(f's_add_u32 s60, s60, {WS_FLAG}')
a(f's_lshl_b32 s61, {sW}, 3'); a('v_add_u32 v35, s61, v38'); a('v_max_u32 v35, 1, v35'); a('v_subrev_u32 v35, 1, v35')
a('v_lshlrev_b32 v35, 7, v35'); a(f'v_add_u32 {v(vP1)}, s60, v35')
a(f's_add_u32 s60, s60, {sM0W}'); a(f's_add_u32 s60, s60, {2*FPH}')
a('v_lshlrev_b32 v35, 7, v34'); a(f'v_add_u32 {v(vP3)}, s60, v35')
a(f's_lshl_b32 s60, {st}, 16'); a(f's_lshl_b32 s61, {sDS}, 13'); a('s_add_u32 s60, s60, s61'); a(f's_add_u32 s60, s60, {sW2K}')
a(f's_add_u32 {sYL}, s60, {WS_Y}')
a(f'v_lshlrev_b32 {v(vUL)}, 5, v0'); a(f'v_subrev_u32 {v(vULp)}, 4, {v(vUL)}')
a(f'v_add_u32 {v(vUW)}, {CV+448}, {v(vW2W)}')
a(f's_mul_i32 s60, {sKH}, {CVCH}'); a(f's_mul_i32 s61, {sTH}, {U1OFF}'); a('s_add_u32 s61, s61, s60'); a(f's_add_u32 s61, s61, {CV}')
a('v_min_u32 v35, 27, v1'); a('v_lshlrev_b32 v35, 4, v35'); a(f'v_add_u32 {v(vZU)}, s61, v35')
a(f's_sub_u32 s61, {sHM0}, 64'); a('v_and_b32 v35, 15, v1'); a('v_lshlrev_b32 v35, 2, v35'); a(f'v_add_u32 {v(vZH)}, s61, v35')
a(f's_mov_b32 {sSELLO}, 0x05040100'); a(f's_mov_b32 {sSELHI}, 0x07060302')
a(f's_mov_b32 {sMASK}, 0xffff0000'); a(f's_lshl_b32 {sD0}, {sD}, 16'); a(f's_and_b32 {sD1}, {sD}, {sMASK}')
a('v_and_b32 v36, 15, v1')
a('v_bfe_u32 v35, v1, 2, 2'); a('v_lshlrev_b32 v35, 4, v35'); a('v_lshl_add_u32 v35, v32, 7, v35')
a('v_and_b32 v37, 3, v1'); a('v_xor_b32 v37, 3, v37'); a('v_lshl_add_u32 v35, v37, 2, v35')
a(f's_add_u32 s60, {sM0W}, {CV+U1OFF+448}'); a(f'v_add_u32 {v(vDU)}, s60, v35')
a(f's_add_u32 s60, {sW2K}, {CV}'); a(f'v_add_u32 {v(vXRd)}, s60, {v(vL16)}')
a(f'v_lshlrev_b32 {v(vYS)}, 16, v32'); a(f'v_lshl_add_u32 {v(vYS)}, v36, 4, {v(vYS)}')
a(f's_lshl_b32 s60, {sW}, 19'); a(f's_lshl_b32 s61, {sCP}, 8'); a('s_add_u32 s60, s60, s61'); a(f's_add_u32 {sYS0}, s60, {WS_Y}')
a(f's_add_u32 {sYS1}, {sYS0}, 0x40000')
a(f's_lshl_b32 s60, {sCP}, 7'); a(f's_lshl_b32 s61, {sW}, 15'); a('s_add_u32 s60, s60, s61'); a(f's_add_u32 s60, s60, {WS_FLAG}')
a(f'v_lshlrev_b32 {v(vFL)}, 3, v36'); a(f'v_add_u32 {v(vFL)}, s60, {v(vFL)}')
a(f'v_mul_u32_u24 {v(TB)}, 5, v34'); a(f'v_add_u32 {v(TB)}, {sTAG}, {v(TB)}')
for r in range(1, 4): a(f'v_lshrrev_b32 {v(TB+r)}, {r}, {v(TB)}')
for i in range(4): a(f'v_mov_b32 v{60+i}, 0')
if OPT['tlb'] == 2:
    a('s_mov_b32 exec_lo, 0x10001'); a('s_mov_b32 exec_hi, 0x10001')
    for q, so in enumerate((sYS0, sYS1)): a(f'buffer_load_dword v{(249, 252)[q]}, {v(vYS)}, {srd(WS)}, {so} offen sc1')
    a('s_mov_b64 exec, 1')
    a(f'buffer_load_dword v250, {v(vL16)}, {srd(WS)}, {sYL} offen sc1')
    a(f'buffer_load_dword v251, {v(vW2A)}, {srd(W2)}, {sW2O} offen')
    a('s_mov_b64 exec, -1')
a.wait_vm(seq['kv']); a.bar('kv'); a.stamp()
D = OPT['look']
for c in range(5):
    issue_upto(names.index(f'x{c}_3') + (D if c else OPT['look0']))
    a.wait_vm(seq[f'x{c}_3'])
    a.bar(f'c{c}', False)
    a.stamp()
capped[0] = True
def wr(s_):
    if OPT['notail']: return
    o = w2slot(s_); k = o // 61440
    if OPT['w64'] == 1:
        for q in range(2): a(f'ds_write_b64 {v((vW2W, vW2W2, vW2W3)[k])}, {v(WT+4*s_+2*q,2)} offset:{o - 61440*k + 8*q}')
    elif OPT['w64'] == 2:
        for q in range(4): a(f'ds_write_b32 {v((vW2W, vW2W2, vW2W3)[k])}, {v(WT+4*s_+q)} offset:{o - 61440*k + 4*q}')
    else: a(f'ds_write_b128 {v((vW2W, vW2W2, vW2W3)[k])}, {v(WT+4*s_,4)} offset:{o - 61440*k}')
    if OPT['wsl']: a(f's_sleep {OPT["wsl"]}')
def wdma(s_):
    if OPT['nodma']: return
    a.wait_vm(a.vm_n - (OPT['cap2'] if s_ < OPT['wm'] else OPT['cap3']) + 1)
    a(f's_add_u32 {sO0}, {sW2O}, {s_*16384}')
    return a.dma(vW2A, W2, sO0, f's_add_u32 m0, {sM0W}, {w2slot(s_)}')
issue_upto(999)
flush_posts(True)
a.stamp()
a(f's_or_b32 s60, {sCP}, {sW}')
a('s_cmp_lg_u32 s60, 0')
a('s_cbranch_scc1 L_noep')
for q in range(4): a(f'v_add_u32 v{40+q}, {WS_FLAG + 8192*q}, v39')
a(f's_mov_b32 {sSPIN}, 0')
a.place('L_ep')
for q in range(4): a(f'buffer_load_dwordx2 v[{44+2*q}:{45+2*q}], v{40+q}, {srd(WS)}, 0 offen sc1', track=False)
a('s_waitcnt vmcnt(0)')
a('s_mov_b64 s[60:61], exec')
for q in range(4):
    a(f'v_cmp_eq_u32 vcc, {sTAG}, v{44+2*q}'); a('s_and_b64 s[60:61], s[60:61], vcc')
    a(f'v_cmp_eq_u32 vcc, {sNTAG}, v{45+2*q}'); a('s_and_b64 s[60:61], s[60:61], vcc')
a('s_cmp_eq_u64 s[60:61], exec')
a('s_cbranch_scc1 L_epok')
a(f's_add_u32 {sSPIN}, {sSPIN}, 1'); a(f's_cmp_lt_u32 {sSPIN}, {0 if OPT["nosync"] else 0x20000}'); a('s_cbranch_scc1 L_ep')
a.place('L_epok')
a(f'v_mov_b32 v40, {WS_E}'); a(f'v_mov_b32 v41, {sTAG}')
a('s_mov_b64 exec, 1')
a(f'buffer_store_dword v41, v40, {srd(WS)}, 0 offen sc1', track=False)
a('s_mov_b64 exec, -1')
a.place('L_noep')
a.expect(1, 1, sleep=OPT['esl'])
a.stamp()
def dumul():
    for c in range(2):
        for jj in range(2):
            for h in range(2):
                src = DRL+4*c+2*jj+h; d = DUL+8*jj+4*c+2*h
                for x in (hi(d, src), lo(d+1, src), f'v_mul_f32 {v(d)}, {(sD0, sD1)[c]}, {v(d)}', f'v_mul_f32 {v(d+1)}, {(sD0, sD1)[c]}, {v(d+1)}'): a(x)
for s_ in range(28):
    if s_ == OPT['duat']: dumul()
    if OPT['s2skip']:
        if s_ == OPT['s2skip']: a.post(5, False); a.stamp(0, True)
        wl = wdma(s_); continue
    if s_ == OPT['wm']: a.expect(1, 2, sleep=OPT['esl'])
    if s_ == OPT['wm'] + OPT['wk']:
        a.stamp(); a.poll_issue(vP2, 20, '0x1ff')
    if s_ == OPT['wm'] + OPT['wk'] + OPT['wc']:
        a.poll_check(vP2, 20, '0x1ff'); a.post(5, False); a.stamp(0, True)
    wl = wdma(s_)
if OPT['wm'] + OPT['wk'] >= 28:
    a.stamp(); a.poll_issue(vP2, 20, '0x1ff')
if OPT['wm'] + OPT['wk'] + OPT['wc'] >= 28 and not OPT['s2skip']:
    a.poll_check(vP2, 20, '0x1ff')
    a.post(5, False)
    a.stamp(0, True)
a.wait_vm(wl); a.post(6, False)
if OPT['duat'] >= 28: dumul()
a.expect(1, 4, sleep=1)
a(f's_setprio {OPT["yprio"]}')
for jj in range(2):
    for sw in range(4): a(f'ds_read_b128 {v(XRL+16*jj+4*sw,4)}, {v(vXRd)} offset:{8192*sw + 1024*jj}')
for jj in range(2):
    for hf in range(2):
        for c in range(2):
            for r in range(4): a(f'v_add_f32 {v(DUL+8*jj+4*c+r)}, {v(DUL+8*jj+4*c+r)}, {v(XRL+16*jj+8*c+4*hf+r)}')
    for r in range(4):
        a(f'v_cvt_pk_bf16_f32 {v(XRL+16*jj+r)}, {v(DUL+8*jj+4+r)}, {v(DUL+8*jj+4+r)}')
        a(f'v_add_u32 {v(DUL+8*jj+r)}, 0x10000, {v(DUL+8*jj+r)}')
    for r in range(4): a(f'v_perm_b32 {v(XRL+16*jj+r)}, {v(XRL+16*jj+r)}, {v(DUL+8*jj+r)}, {sSELHI}')
    for r in range(4): a(f'v_bfi_b32 {v(XRL+16*jj+r)}, 1, {v(TB+r)}, {v(XRL+16*jj+r)}')
    yst = a(f'buffer_store_dwordx4 {v(XRL+16*jj,4)}, {v(vYS)}, {srd(WS)}, {(sYS0, sYS1)[jj]} offen sc1')
a.post(7)
a.stamp(0, True)
a(f's_setprio {OPT["tp"]}')
a.expect(0, 7)
YB = 120
def yld(track=True):
    for n in range(2): a(f'buffer_load_dwordx4 {v(YB+4*n,4)}, {v(vL16)}, {srd(WS)}, {sYL} offen offset:{1024*n} sc1', track=track)
for s_ in range(28, 44):
    if s_ == 36:
        a.post(8); a.expect(1, 6, sleep=OPT['esl'])
    if s_ == 28 + OPT['yp']: yld()
    if s_ == 43: a.post(9); a.stamp(0, True); a('s_setprio 0')
    if s_ < 43: wr(s_)
for _ in range(OPT['ydelay']): a('s_sleep 4')
if OPT['yp'] > 15: yld()
top, done = a.label(), a.label()
a(f's_mov_b32 {sSPIN}, 0')
a.wait_all_vm()
a.place(top)
a(f'v_xor_b32 v20, {v(YB)}, {v(TB)}')
for k in range(1, 8): a(f'v_bitop3_b32 v20, v20, {v(YB+k)}, {v(TB+(k&3))} bitop3:0xf6')
a('v_and_b32 v20, 1, v20')
a('v_cmp_ne_u32 vcc, 0, v20')
a(f's_cbranch_vccz {done}')
a(f's_add_u32 {sSPIN}, {sSPIN}, 1'); a(f's_cmp_gt_u32 {sSPIN}, 0x20000'); a(f's_cbranch_scc1 {done}')
a(f's_sleep {OPT["psleep"]}')
yld(False)
a('s_waitcnt vmcnt(0)')
a(f's_branch {top}')
a.place(done)
a.stamp(0, True)
a('s_setprio 2')
a(f's_add_u32 s60, {sW2K}, {YT}'); a(f'v_add_u32 v20, s60, {v(vL16)}')
for k in range(8): a(f'v_and_b32 {v(YB+k)}, -2, {v(YB+k)}')
for n in range(2): a(f'ds_write_b128 v20, {v(YB+4*n,4)} offset:{1024*n}')
a.post(10)
a.wait_all_lg()
a.finish()

C = a = Prog('C', 4)
a.gap = 0
vCSR, vSTW, vXR, vWR, vYR, vCSW = 3, 11, 12, 20, 9, 8
vKA, vKB, vSHR, vUS = 212, 213, 214, 215
(vUA, vHA, vDU, vXW, vXRd, vYS, vE2W, vE2R, vSTa, vSTb, vSTS, vOTa, vOTb, vOTR, vOUT) = range(216, 231)
AR = 234
F = {k: 198 + i for i, k in enumerate(('l4', 'n', 'g', 'b', 'l1', 'l3', 'r', 'x', 'h', 't0', 't1', 't2'))}
def fx(s):
    for k, r in F.items(): s = s.replace('%' + k, f'v{r}')
    return s
def e(s): a(fx(s))
if OPT['prio']: a(f's_setprio {OPT["prio"]}')
a(f's_mov_b32 {sMASK}, 0xffff0000')
e('v_lshrrev_b32 %l4, 4, v1'); e('v_lshrrev_b32 %g, 5, v1'); e('v_and_b32 %b, 15, v1'); e('v_and_b32 %h, 1, %l4')
a(f's_lshl_b32 s60, {sW}, 1'); e('v_add_u32 %t0, s60, %g')
e('v_add_u32 %t1, 1, %b'); e('v_and_b32 %t1, 7, %t1'); e('v_xor_b32 %t1, %t1, %t0')
e('v_lshlrev_b32 %t2, 9, %b'); e('v_lshl_add_u32 %t2, %h, 3, %t2'); e(f'v_add_u32 %t2, {KB + 5*128}, %t2')
e(f'v_lshl_add_u32 {v(vKA)}, %t1, 4, %t2')
e('v_add_u32 %t1, 2, %b'); e('v_and_b32 %t1, 7, %t1'); e('v_xor_b32 %t1, %t1, %t0')
e(f'v_lshl_add_u32 {v(vKB)}, %t1, 4, %t2')
a(f's_lshl_b32 s60, {sW}, 7'); a(f's_add_u32 s60, s60, {SB}')
e(f'v_lshlrev_b32 {v(vSHR)}, 5, %l4'); a(f'v_add_u32 {v(vSHR)}, s60, {v(vSHR)}')
e(f'v_lshlrev_b32 {v(vUS)}, 14, %l4'); e(f'v_lshl_add_u32 {v(vUS)}, %b, 4, {v(vUS)}')
common2(a)
if OPT['tlb'] == 4:
    a(f's_lshl_b32 s60, {sT}, 2'); a(f's_add_u32 s60, s60, {sW}'); a('s_mul_i32 s60, s60, 86'); a(f's_lshl_b32 s61, {sP0}, 1')
    a('s_add_u32 s60, s60, s61'); a('s_lshl_b32 s60, s60, 10'); a(f's_add_u32 s40, s60, {WS_H}')
    a(f's_lshl_b32 s60, {sCP}, 8'); a(f's_add_u32 s60, s60, {WS_Y}')
    a(f's_cmp_eq_u32 {sW}, 1'); a('s_cselect_b32 s40, s60, s40'); a('s_cselect_b32 s41, 3, 1')
    a(f'v_mul_u32_u24 v244, {31*65536}, v1')
    a(f's_lshl_b32 s60, {st}, 16'); a(f's_lshl_b32 s61, {sDS}, 7'); a('s_add_u32 s61, s61, s60'); a(f's_lshl_b32 s60, {sCP}, 12')
    a(f's_cmp_eq_u32 {sW}, 2'); a('s_cselect_b32 s60, s61, s60'); a('v_mov_b32 v245, s60')
a('s_waitcnt lgkmcnt(0)')
a(f's_mov_b64 s[{OUT}:{OUT+1}], s[94:95]')
a(f's_mov_b64 s[{WS}:{WS+1}], s[98:99]')
if OPT['tlb'] == 4:
    l = [a.label() for _ in range(3)]
    a('s_mov_b32 exec_lo, s41'); a('s_mov_b32 exec_hi, 0')
    a(f'buffer_load_dword v254, v244, {srd(WS)}, s40 offen sc1', track=False)
    a('s_mov_b64 exec, 1')
    a(f's_cmp_lg_u32 {sW}, 0'); a(f's_cbranch_scc1 {l[0]}')
    a('global_load_dword v254, v245, s[84:85]', track=False)
    a.place(l[0])
    a(f's_cmp_lg_u32 {sW}, 2'); a(f's_cbranch_scc1 {l[1]}')
    a('global_load_dword v254, v245, s[94:95] sc1', track=False)
    a.place(l[1])
    a(f's_cmp_lg_u32 {sW}, 3'); a(f's_cbranch_scc1 {l[2]}')
    a('global_load_dword v254, v245, s[92:93]', track=False)
    a.place(l[2])
    a('s_mov_b64 exec, -1')
a(f's_load_dword {sE}, s[{WS}:{WS+1}], {WS_E}')
spf = []
if OPT['spf']:
    a(f's_lshl_b32 s60, {sCP}, 13'); a(f's_add_u32 s60, s60, {sW2K}')
    a('s_add_u32 s84, s84, s60'); a('s_addc_u32 s85, s85, 0')
    a(f's_lshl_b32 s60, s2, 2'); a(f's_add_u32 s60, s60, {sW}'); a(f's_mul_i32 s60, s60, {11*128}'); a(f's_min_u32 s60, s60, {1409024 - 11*128}')
    a('s_add_u32 s92, s92, s60'); a('s_addc_u32 s93, s93, 0')
    for j in range(11): a(f's_load_dword s100, s[92:93], {128*j}')
    for j in range(32): a(f's_load_dword s100, s[84:85], {64*j}')
a(f's_lshl_b32 s60, {sDS}, 18'); a(f's_lshl_b32 s61, {st}, 8'); a('s_add_u32 s60, s60, s61')
a(f's_lshl_b32 s61, {sW}, 16'); a('s_add_u32 s60, s60, s61'); a(f's_add_u32 {sUS0}, s60, {WS_U}'); a(f's_add_u32 {sUS1}, {sUS0}, 8192')
a(f's_mov_b32 {sONES}, 0x3f803f80')
e('v_and_b32 %n, 31, v1'); e('v_and_b32 %l1, 1, v1'); e('v_and_b32 %l3, 3, v1'); e('v_bfe_u32 %r, v1, 2, 2')
e('v_bfe_u32 %t0, v1, 1, 3'); e('v_xor_b32 %t0, %t0, %g'); e('v_lshlrev_b32 %t0, 4, %t0')
e('v_lshl_add_u32 %x, %n, 7, %t0')
e(f'v_add_u32 %t0, {sW4K}, %x')
e('v_lshl_add_u32 %t1, %g, 3, %r'); e('v_mul_u32_u24 %t1, 192, %t1')
e('v_lshl_add_u32 %t1, %h, 5, %t1'); e('v_lshl_add_u32 %t1, %l3, 3, %t1')
for i in range(4):
    a(f's_add_u32 s60, {sW}, {i}'); a('s_and_b32 s60, s60, 3'); a('s_lshl_b32 s61, s60, 5')
    e(f'v_xor_b32 {v(vXR+i)}, s61, %t0')
    a('s_mul_i32 s61, s60, 3072')
    e(f'v_add_u32 {v(vWR+i)}, s61, %t1')
ACC, XF, WF, SU, SQ, CS = 32, 80, 112, 160, 162, 164
for r in range(SU, CS+3): a(f'v_mov_b32 {v(r)}, 0')
a('s_waitcnt lgkmcnt(0)')
a(f's_add_u32 {sTAG}, {sE}, 1'); a(f's_not_b32 {sNTAG}, {sTAG}')
a.post(0)
a.stamp()
a.reserve = OPT['res']
S = []
def s_(*xs):
    for x in xs: S.append(fx(x))
for i in range(4): s_(f'v_add_u32 {v(vXR+4+i)}, {2*SLOT}, {v(vXR+i)}', f'v_add_u32 {v(vWR+4+i)}, {2*SLOT}, {v(vWR+i)}')
s_(f'v_mov_b32 v252, {sTAG}', f'v_mov_b32 v253, {sNTAG}')
s_(f's_lshl_b32 s60, {sCP}, 7', f's_lshl_b32 s61, {sW}, 15', 's_add_u32 s60, s60, s61', f's_add_u32 s60, s60, {WS_FLAG}')
s_(f'v_lshlrev_b32 {v(vFL)}, 3, %b', f'v_add_u32 {v(vFL)}, s60, {v(vFL)}')
NS1 = len(S)
s_(f's_mov_b32 s{OUT+2}, 2097152', f's_mov_b32 s{OUT+3}, 0x20000', f's_mov_b32 {sSELLO}, 0x05040100')
s_(f's_and_b32 s61, {st}, 1', 's_lshl_b32 s61, s61, 1', f's_add_u32 s61, s61, {sTH}', 's_lshl_b32 s61, s61, 8', f's_add_u32 s61, s61, {STATS}')
s_('v_lshlrev_b32 %t0, 3, %n', f'v_add_u32 {v(vSTS)}, s61, %t0')
s_(f's_lshl_b32 s60, {sW}, 8', f's_add_u32 s60, s60, {STATS}', f'v_add_u32 {v(vSTW)}, s60, %t0')
s_(f'v_add_u32 {v(vCSR)}, {CSUM}, {v(vL16)}', f's_lshl_b32 s60, {sW}, 2', f'v_add_u32 {v(vCSW)}, s60, {v(vCSR)}')
s_(f's_lshl_b32 s60, {sT}, 2', f's_add_u32 s60, s60, {sW}', 's_mul_i32 s60, s60, 86', f's_lshl_b32 s61, {sP0}, 1', 's_add_u32 s60, s60, s61', 's_lshl_b32 s60, s60, 10')
s_(f's_add_u32 {sHS}, s60, {WS_H}', f's_add_u32 {sHS3}, {sHS}, 4096')
S.append([f's_cmp_lt_u32 {sM1}, 11', f's_cselect_b32 {sHS3}, {sHS3}, {OOB}', 's_cselect_b32 s85, 0xffff, 0'])
s_('s_mov_b32 s84, -1', 'v_lshlrev_b32 v10, 7, v1')
sSELF = 's[84:85]'
s_(f's_mul_i32 s60, {sKH}, {CVCH}', f's_add_u32 s60, s60, {CV+448-192}', f's_lshl_b32 s61, {sTH}, 8', 's_sub_u32 s60, s60, s61')
s_(f'v_mul_u32_u24 {v(vUA)}, {U1OFF}, %l1', 'v_lshrrev_b32 %t0, 1, %b', 'v_lshl_add_u32 %t0, %t0, 2, %l4')
s_(f'v_lshl_add_u32 {v(vUA)}, %t0, 4, {v(vUA)}', f'v_add_u32 {v(vUA)}, s60, {v(vUA)}')
s_('v_xor_b32 %t0, 1, %l1', f'v_mul_u32_u24 {v(vHA)}, {HBD}, %t0', f'v_lshl_add_u32 {v(vHA)}, %b, 2, {v(vHA)}')
s_('v_lshlrev_b32 %t0, 4, %l4', f'v_sub_u32 {v(vHA)}, {v(vHA)}, %t0')
s_(f's_mul_i32 s60, {sKH}, {HCH}', 's_add_u32 s61, s60, s61', f's_add_u32 s61, s61, {HBASE+64-12}', f'v_add_u32 {v(vHA)}, s61, {v(vHA)}')
s_(f's_lshl_b32 s60, {st}, 1', f's_add_u32 s60, s60, {sTH}', 's_mul_i32 s60, s60, 86', f's_mul_i32 s61, {sKH}, 43', 's_add_u32 s60, s60, s61', 's_lshl_b32 s60, s60, 10')
s_(f's_add_u32 {sHL}, s60, {WS_H}')
s_(f's_lshl_b32 s60, {sW}, 13', f's_add_u32 s60, s60, {CV}', f'v_add_u32 {v(vXW)}, s60, {v(vL16)}')
s_('v_lshl_add_u32 %t0, %g, 2, %r', 'v_lshlrev_b32 %t0, 7, %t0', 'v_bfe_u32 %t1, v1, 3, 1', 'v_lshl_add_u32 %t0, %t1, 6, %t0')
s_('v_lshl_add_u32 %t0, %h, 5, %t0', 'v_lshl_add_u32 %t0, %l1, 4, %t0', 'v_bfe_u32 %t1, v1, 1, 1', 'v_lshl_add_u32 %t0, %t1, 3, %t0')
s_(f's_lshl_b32 s60, {sKH}, 6', 'v_xor_b32 %t0, s60, %t0', f's_lshl_b32 s61, {sKH}, 11')
s_(f'v_add_u32 {v(AR)}, s61, %t0', f'v_xor_b32 {v(AR+1)}, 64, {v(AR)}')
for k in (1, 2): s_(f'v_add_u32 {v(AR+2*k)}, {61440*k}, {v(AR)}', f'v_add_u32 {v(AR+2*k+1)}, {61440*k}, {v(AR+1)}')
s_(f'v_lshlrev_b32 {v(vYR)}, 10, %g', 'v_bfe_u32 %t1, v1, 1, 4', f'v_lshl_add_u32 {v(vYR)}, %t1, 4, {v(vYR)}', f'v_lshl_add_u32 {v(vYR)}, %l1, 2, {v(vYR)}')
s_(f's_lshl_b32 s61, {sKH}, 12', f's_lshl_b32 {sO0}, {sTH}, 3', f's_add_u32 s61, s61, {sO0}', f's_add_u32 s61, s61, {YT}', f'v_add_u32 {v(vYR)}, s61, {v(vYR)}')
s_('v_xor_b32 %t0, s60, %x', f's_lshl_b32 s61, {sTH}, 12', f's_add_u32 s61, s61, {XST}', f'v_add_u32 {v(vSTa)}, s61, %t0', f'v_xor_b32 {v(vSTb)}, 32, {v(vSTa)}')
s_(f's_add_u32 s61, {sW4K}, {EX}', f'v_add_u32 {v(vE2W)}, s61, {v(vL16)}')
s_(f's_xor_b32 s61, {sW4K}, 8192', f's_add_u32 s61, s61, {EX}', f'v_add_u32 {v(vE2R)}, s61, {v(vL16)}')
s_(f's_add_u32 s61, {sW2K}, {OT}', 'v_bfe_u32 %t0, v1, 1, 2', 'v_xor_b32 %t0, %t0, %g', 'v_lshlrev_b32 %t0, 4, %t0')
s_('v_lshl_add_u32 %t0, %n, 6, %t0', f'v_add_u32 {v(vOTa)}, s61, %t0', f'v_xor_b32 {v(vOTb)}, 32, {v(vOTa)}')
s_('v_lshrrev_b32 %t1, 2, v1', 'v_bfe_u32 %t0, v1, 3, 2', 'v_xor_b32 %t0, %t0, %l3', 'v_lshlrev_b32 %t0, 4, %t0', 'v_lshl_add_u32 %t0, %t1, 6, %t0')
s_(f'v_add_u32 {v(vOTR)}, s61, %t0', 'v_lshlrev_b32 %t1, 10, %t1', f'v_lshl_add_u32 {v(vOUT)}, %l3, 4, %t1')
s_(f's_lshl_b32 {sO0}, {st}, 16', f's_lshl_b32 s61, {sDS}, 7', f's_add_u32 {sO0}, {sO0}, s61', f's_lshl_b32 s61, {sTH}, 15')
s_(f's_add_u32 {sO0}, {sO0}, s61', f's_add_u32 {sO0}, {sO0}, s60', f's_add_u32 {sO1}, {sO0}, 16384')

KR, VR, SR, PA = 168, 182, 190, 240
WP, KU, VU, TP = 32, 48, 76, 92
if OPT['fpre']:
    for x in S[:NS1]: a(x)
    S = S[NS1:]; NS1 = 0
    a(f'v_mov_b32 v252, {sNTAG}')
    for ph in (1, 2)[2-OPT['fpre']:]: a.flag_store(ph)
    a(f'v_mov_b32 v252, {sTAG}')
if OPT['early']:
    for x in S: a.do(x)
    S = []; NS1 = 0
if OPT['tlb'] == 3:
    assert OPT['early']
    l = [a.label() for _ in range(2)]
    a(f's_lshl_b32 s60, {sCP}, 8'); a(f's_add_u32 s60, s60, {WS_Y}')
    a(f's_cmp_eq_u32 {sW}, 1'); a(f's_cselect_b32 s60, s60, {sHS}'); a(f's_cselect_b32 exec_lo, 3, 1'); a('s_mov_b32 exec_hi, 0')
    a(f'v_mul_u32_u24 v244, {31*65536}, v1')
    a(f's_cmp_eq_u32 {sW}, 2'); a(f's_cbranch_scc1 {l[0]}')
    a(f'buffer_load_dword v254, v244, {srd(WS)}, s60 offen sc1', track=False); a(f's_branch {l[1]}')
    a.place(l[0])
    a(f'buffer_load_dword v254, v244, {srd(OUT)}, {sO0} offen sc1', track=False)
    a.place(l[1])
    a('s_mov_b64 exec, -1')
elif OPT['tlb'] in (1, 2):
    assert OPT['early']
    a('v_mul_u32_u24 v244, 5120, v1'); a('v_mul_u32_u24 v245, 14336, v1')
    a('s_mov_b64 exec, 3')
    if OPT['tlbm'] & 1: a(f'buffer_load_dword v254, v244, {srd(WS)}, {sHS} offen sc1', track=False)
    a('s_mov_b64 exec, 15')
    if OPT['tlbm'] & 2: a(f'buffer_load_dword v254, v245, {srd(WS)}, {sHL} offen sc1', track=False)
    a('s_mov_b64 exec, 1')
    if OPT['tlbm'] & 4: a(f'buffer_load_dword v254, {v(vOUT)}, {srd(OUT)}, {sO0} offen sc1', track=False)
    a('s_mov_b64 exec, -1')
if OPT['pc'] < 0:
    for x in S[:NS1]: a(x)
    S = S[NS1:]; NS1 = 0
    for jj in range(2): a(f'buffer_store_dwordx4 v[248:251], {v(vYS)}, {srd(WS)}, {(sYS0, sYS1)[jj]} offen sc1')
a.bar('kv')
a.stamp()
for p in range(2): a(f'ds_read_b128 {v(SR+4*p,4)}, {v(vSHR)} offset:{16*p}')
for r in range(7): a(f'ds_read_b64 {v(KR+2*r,2)}, {v(vKA if r < 3 else vKB)} offset:{128*r}')
for r in range(4): a(f'ds_read_b64 {v(VR+2*r,2)}, {v(vKB)} offset:{VB-KB+128*(r+3)}')
for x in S[:NS1]: a(x)
S = S[NS1:]
for c in range(4):
    p, e_ = c >> 1, c & 1
    for jj in range(2): a(lo(WP+8*p+4*jj+e_, SR+2*c+jj)); a(hi(WP+8*p+4*jj+2+e_, SR+2*c+jj))
for p in range(2):
    for r in range(7): a(lo(KU+4*r+2*p, KR+2*r+p)); a(hi(KU+4*r+2*p+1, KR+2*r+p))
    for r in range(4): a(lo(VU+4*r+2*p, VR+2*r+p)); a(hi(VU+4*r+2*p+1, VR+2*r+p))
    for i in range(4): a(f'v_pk_mul_f32 {v(TP+2*i,2)}, {v(KU+4*i+2*p,2)}, {v(WP+8*p+6,2)}')
    for j in (2, 1, 0):
        for i in range(4): a(f'v_pk_fma_f32 {v(TP+2*i,2)}, {v(KU+4*(i+3-j)+2*p,2)}, {v(WP+8*p+2*j,2)}, {v(TP+2*i,2)}')
    for i in range(4): a(f'v_pk_mul_f32 {v(TP+2*i,2)}, {v(TP+2*i,2)}, {v(VU+4*i+2*p,2)}')
    for i in range(4): a(f'v_cvt_pk_bf16_f32 {v(PA+4*p+i)}, {v(TP+2*i)}, {v(TP+2*i+1)}')
    if not OPT['udef']: ust = a(f'buffer_store_dwordx4 {v(PA+4*p,4)}, {v(vUS)}, {srd(WS)}, {(sUS0, sUS1)[p]} offen sc1')
if OPT['pc'] == 0:
    for jj in range(2): ust = a(f'buffer_store_dwordx4 v[248:251], {v(vYS)}, {srd(WS)}, {(sYS0, sYS1)[jj]} offen sc1')
ust_t = a.t

AX, BX, vM, vRS, vS, vC3 = 168, 180, 184, 185, 186, 188
stats = [
    f'v_add_f32 {v(SU)}, {v(SU)}, {v(SU+1)}', f'v_add_f32 {v(SQ)}, {v(SQ)}, {v(SQ+1)}',
    f'v_mov_b32 {v(SU+1)}, {v(SU)}', f'v_mov_b32 {v(SQ+1)}, {v(SQ)}',
    f'v_permlane32_swap_b32 {v(SU)}, {v(SU+1)}', f'v_permlane32_swap_b32 {v(SQ)}, {v(SQ+1)}',
    f'v_add_f32 {v(SU)}, {v(SU)}, {v(SU+1)}', f'v_add_f32 {v(SQ)}, {v(SQ)}, {v(SQ+1)}',
    f'v_mul_f32 {v(SU)}, 0x3b000000, {v(SU)}', f'v_mul_f32 {v(SQ)}, 0x3b000000, {v(SQ)}',
    f'v_fma_f32 {v(SQ)}, -{v(SU)}, {v(SU)}, {v(SQ)}', f'v_max_f32 {v(SQ)}, 0, {v(SQ)}',
    f'v_cvt_pk_bf16_f32 v190, {v(SU)}, {v(SQ)}', 'v_xor_b32 v191, 0x8000, v190',
    f'v_perm_b32 {v(BX)}, v191, v191, {sSELLO}', f'v_mov_b32 {v(BX+1)}, {v(BX)}', f'v_mov_b32 {v(BX+2)}, {v(BX)}', f'v_mov_b32 {v(BX+3)}, {v(BX)}',
    lo(vM, 190), hi(191, 190), 'v_add_f32 v191, 0x3727c5ac, v191',
    'v_cvt_pk_bf16_f32 v191, v191, v191', lo(191, 191), 'v_sqrt_f32 v191, v191',
    'v_cvt_pk_bf16_f32 v191, v191, v191', lo(vS, 191), f'v_rcp_f32 {v(vRS)}, {v(vS)}',
    f'v_mul_f32 {v(vC3)}, 0xbfb8aa3b, {v(vRS)}', f'ds_write_b64 {v(vSTW)}, {v(vM,2)}']
def rdx(c):
    st_ = 4 * ((c % 4) >> 1); off = (c & 1) * SLOT
    return [f'ds_read_b128 {v(XF+16*(c&1)+4*i,4)}, {v(vXR+st_+i)} offset:{off}' for i in range(4)]
def rdw(c, i):
    st_ = 4 * ((c % 4) >> 1); off = (c & 1) * SLOT
    return [f'ds_read_b64_tr_b16 {v(WF+12*i+4*ft+2*rd,2)}, {v(vWR+st_+i)} offset:{off+16384+rd*768+ft*64}' for ft in range(3) for rd in range(2)]
a.stamp()
a.bar('c0')
a.stamp(0, True)
for x in rdx(0) + rdw(0, 0) + rdw(0, 1): a(x)
a.fq = S
flag1 = False
for c in range(8):
    X = XF + 16*(c & 1)
    late = rdw(c, 2) + rdw(c, 3)
    if OPT['w1']: a.wait_lg(a.pend[('v', X+12)][1])
    for i in range(4):
        if OPT['w1'] and i == 2: a.wait_lg(a.pend[('v', WF+10)][1])
        for d in range(4 if OPT['nodot'] < 2 else 0):
            a(f'v_dot2c_f32_bf16 {v(SU+(d&1))}, {sONES}, {v(X+4*i+d)}'); a(f'v_dot2c_f32_bf16 {v(SQ+(d&1))}, {v(X+4*i+d)}, {v(X+4*i+d)}')
    ncs = OPT['csv'] if 1 <= c < 7 else 0
    if ncs:
        cq = []
        for d in range(4 - ncs, 4):
            for ft in range(3): cq += [lo(240+2*ft, WF+4*ft+d), hi(241+2*ft, WF+4*ft+d)]
            for ft in range(3): cq += [f'v_add_f32 v{246+ft}, v{246+ft}, v{240+2*ft}', f'v_add_f32 v{249+ft}, v{249+ft}, v{241+2*ft}']
        a.fq = cq + a.fq; nrest = len(a.fq) - len(cq)
    for d in range(4 - ncs):
        for ft in range(3): a(f'v_dot2c_f32_bf16 {v(CS+ft)}, {sONES}, {v(WF+4*ft+d)}')
    if c == 7:
        a.drain_f()
        if OPT['csv']:
            for ft in range(3): a.fq += [f'v_add_f32 v{246+ft}, v{246+ft}, v{249+ft}']
            for ft in range(3): a.fq += [f'v_add_f32 {v(CS+ft)}, {v(CS+ft)}, v{246+ft}']
        for ft in range(3): a.fq += [hi(192+ft, CS+ft), f'v_sub_f32 v{195+ft}, {v(CS+ft)}, v{192+ft}']
        for ft in range(3): a.fq += [f'v_cvt_pk_bf16_f32 v{192+ft}, v{192+ft}, v{195+ft}', f'ds_write_b32 {v(vCSW)}, v{192+ft} offset:{1024*ft}']
        a.fq += stats
    def mm(i, ft):
        cin = '0' if (c == 0 and i == 0) else v(ACC+16*ft, 16)
        return f'v_mfma_f32_32x32x16_bf16 {v(ACC+16*ft,16)}, {v(WF+12*i+4*ft,4)}, {v(X+4*i,4)}, {cin}'
    for i in range(3):
        for ft in range(3):
            a(mm(i, ft))
            for x in late[:3]: a(x)
            late = late[3:]
            if 4 <= c < 7 and (i, ft) == (2, 0): a.peek(0)
            if c == 7 and (i, ft) == (2, 0):
                a.drain_f(len(a.fq) - len(stats))
                a.post(1)
    if OPT['udef'] and c == 0:
        for p in range(2): ust = a(f'buffer_store_dwordx4 {v(PA+4*p,4)}, {v(vUS)}, {srd(WS)}, {(sUS0, sUS1)[p]} offen sc1')
        ust_t = a.t
    if ncs: a.drain_f(len(a.fq) - nrest)
    if c == 0 and OPT['csv']:
        for q in range(6): a(f'v_mov_b32 v{246+q}, 0')
    if not flag1 and a.t - ust_t > OPT['f1d']:
        a.wait_vm(ust); a.flag_store(1); flag1 = True
    if c < 4: a.bar(f'c{c+1}')
    elif c < 7: a.expect(0, c - 3, True)
    a.stamp(1)
    nxt_ = rdx(c+1) + rdw(c+1, 0) + rdw(c+1, 1) if c < 7 else []
    for ft in range(3):
        a(mm(3, ft))
        if c == 7 and ft == 0: a.peek(1)
        if c == 7 and ft == 1:
            a.expect(1, 1, True)
            nxt_ = [f'ds_read_b128 {v(AX+4*q,4)}, {v(vCSR)} offset:{1024*q}' for q in range(3)]
        for x in nxt_[:6]: a(x)
        nxt_ = nxt_[6:]
a.drain_f()
for ft in range(3):
    a(f'v_mfma_f32_32x32x16_bf16 {v(ACC+16*ft,16)}, {v(AX+4*ft,4)}, {v(BX,4)}, {v(ACC+16*ft,16)}')
a.stamp(0, True); a.stamp(4)

CA, DU, DR = 160, 192, 208
def FA(set_, mu): return (80 if set_ == 0 else 32) + 4*mu
def FB(set_, nu): return 112 + 4*nu if set_ == 0 else (64 + 4*nu if nu < 4 else 144 + 4*(nu-4))
def rdA(rp, mu): return f'ds_read_b128 {v(FA(rp&1,mu),4)}, {v(vUA)} offset:{512*mu - 64*rp + 192}'
def rdB(rp, nu): return [f'ds_read_b64 {v(FB(rp&1,nu)+2*h,2)}, {v(vHA)} offset:{512*nu + 64*rp + 8*h}' for h in range(2)]
def reads(rp):
    r = rdB(rp, 0) + [rdA(rp, mu) for mu in range(8)]
    for nu in range(1, 8): r += rdB(rp, nu)
    return r
TS, HO = 144, 168
first = reads(0)
for fr in range(6):
    base = ACC + 8*fr; t = TS + 8*(fr & 1); o = HO + 4*(fr & 1)
    if fr == OPT['ubar']: a.expect(0, 4, True)
    def side(n):
        if fr >= OPT['ubar']:
            for x in first[:n]: a(x)
            del first[:n]
    for p in range(4): a(f'v_pk_mul_f32 {v(t+2*p,2)}, {v(base+2*p,2)}, {v(vC3,2)} op_sel_hi:[1,0]')
    side(6)
    for q in range(8): a(f'v_exp_f32 {v(t+q)}, {v(t+q)}')
    side(6)
    for p in range(4): a(f'v_pk_fma_f32 {v(t+2*p,2)}, {v(t+2*p,2)}, {v(vS,2)}, {v(vS,2)} op_sel_hi:[1,0,0]')
    if fr == OPT['ubar'] - 1: a.peek(0)
    for q in range(8): a(f'v_rcp_f32 {v(t+q)}, {v(t+q)}')
    for p in range(4): a(f'v_pk_mul_f32 {v(t+2*p,2)}, {v(t+2*p,2)}, {v(base+2*p,2)}')
    for p in range(4): a(f'v_cvt_pk_bf16_f32 {v(o+p)}, {v(t+2*p)}, {v(t+2*p+1)}')
    so, im = (sHS, fr*1024) if fr < 4 else (sHS3, (fr-4)*1024)
    a.stamp(4)
    hst = a(f'buffer_store_dwordx4 {v(o,4)}, {v(vL16)}, {srd(WS)}, {so} offen offset:{im} sc1')
    a.stamp(4)
a.stamp(0, True)
if OPT['ubar'] == 6:
    a.expect(0, 4, True)
    for x in first[:12]: a(x)
    del first[:12]

G2A, XR, XS, YR, XU, DM, YU = 32, 32, 152, 208, 160, 176, 192
AFD = OPT['afd']
AFB = [64, 72, 144, 12, 20][:AFD+1]
RING = list(range(80, 144, 4)) + [240, 244, 248] + [24, 20, 16, 12][:2*(4-AFD)]
NR = len(RING)
def hreg(s): return RING[s % NR]
def rd2(s):
    o = w2slot(s); k = 2 * (o // 61440); o -= 30720 * k
    return [f'ds_read_b64_tr_b16 {v(AFB[s%(AFD+1)]+4*dt+2*rd,2)}, {v(AR+k+dt)} offset:{o + rd*1024}' for dt in (1, 0) for rd in range(2)]
hops = {}
def hld(s):
    def f():
        if OPT['nohl']: return
        if s % 4 == 0: a(f's_add_u32 {sA}, {sHL}, {0 if OPT["hhot"] else s*1024}')
        a(f'buffer_load_dwordx4 {v(hreg(s),4)}, {v(vL16)}, {srd(WS)}, {sA} offen offset:{(s%4)*1024}' + ['', ' sc1', ' nt'][OPT['hfl']])
    hops[s] = f
    return f
def hgate(peeked):
    a.stamp(); a.expect(0, 5, peeked); a.stamp()
    for s in range(OPT['hburst']):
        if s == OPT['hburst'] - 2 and OPT['gate'] == 1: a.peek(0)
        a.do(hld(s))
    a.gap = OPT['hgap']
    a.vq = [hld(s) for s in range(OPT['hburst'], NR)]
cnt = 0
for rp in range(4):
    rd = (first if rp == 0 else []) + (reads(rp + 1) if rp < 3 else [])
    order = [(nu, mu) for nu in range(8) for mu in range(8 - nu)]
    if rp == 3: order = [(nu, j - nu) for j in range(8) for nu in range(j + 1)]
    wq = []
    for idx, (nu, mu) in enumerate(order):
        j = nu + mu
        if rp == 2 and idx == 27:
            assert not rd
            a.post(3)
        if rp == 2 and idx == 33: a.peek(1)
        if rp == 3 and idx == 3: a.expect(1, 3, True)
        if rp == 3 and OPT['gate'] == 0:
            if idx == max(OPT['gidx'] - 5, 3): a.peek(0)
            if idx == max(OPT['gidx'], 6): hgate(True)
        if cnt == OPT['sig2']:
            a.stamp(); a.wait_vm(hst); a.stamp(); a.flag_store(2)
            if OPT['selft']:
                a.do([f's_mov_b64 exec, {sSELF}', f'buffer_load_dword v254, v10, {srd(WS)}, {sHS} offen sc1', 's_mov_b64 exec, -1'])
            a.post(2, False)
        cin = '0' if (rp == 0 and nu == 0) else v(CA+4*j, 4)
        a(f'v_mfma_f32_16x16x32_bf16 {v(CA+4*j,4)}, {v(FA(rp&1,mu),4)}, {v(FB(rp&1,nu),4)}, {cin}')
        cnt += 1
        for _ in range(2 if (rp == 0 and cnt <= 8) else 1):
            if rd: a(rd.pop(0))
        if rp == 3:
            if mu == 0: wq.append((idx + 6, j))
            if idx >= 7 and idx % 4 == 3 and wq and wq[0][0] <= idx:
                jj_ = wq.pop(0)[1]; a(f'ds_write_b128 {v(vXW)}, {v(CA+4*jj_,4)} offset:{1024*jj_}')
    assert not rd
a.drain_f()
a.stamp()
for _, j in wq: a(f'ds_write_b128 {v(vXW)}, {v(CA+4*j,4)} offset:{1024*j}')
if OPT['gate'] == 1: a.peek(0)
a.post(4)
a.stamp(0, True)
if OPT['gate'] == 1: hgate(True)
a.stamp(5); a.expect(0, 6, OPT['gate'] == 1); a.stamp(5)
for q in range(AFD):
    for x in rd2(q): a(x)

pre = []
for k in range(8): pre += [lo(XU+2*k, XS+k), hi(XU+2*k+1, XS+k)]
for k in range(16): pre.append(f'v_sub_f32 {v(DM+k)}, {v(XU+k)}, v232')
for k in range(16): pre.append(f'v_mul_f32 {v(DM+k)}, {v(DM+k)}, v233')
post_ = []
for k in range(8): post_ += [lo(YU+2*k, YR+k), hi(YU+2*k+1, YR+k)]
for k in range(16): post_.append(f'v_fmac_f32 {v(XU+k)}, {v(DM+k)}, {v(YU+k)}')
yreads = [f'ds_read_b32 {v(YR+4*grp+q)}, {v(vYR)} offset:{(8*grp+q)*256}' for grp in range(2) for q in range(4)]
def g2mm(s, dt):
    cin = '0' if s == 0 else v(G2A+16*dt, 16)
    return f'v_mfma_f32_32x32x16_bf16 {v(G2A+16*dt,16)}, {v(AFB[s%(AFD+1)]+4*dt,4)}, {v(hreg(s),4)}, {cin}'
assert OPT['lastk'] <= AFD
for s in range(43):
    if s > 0 and s + NR - 1 < 43: a.vq.append(hld(s + NR - 1))
    if s == 10: a.post(6, False); a.stamp()
    if s == 20: a.post(8, False)
    if s == 28 - AFD: a.stamp(5); a.expect(0, 8, True); a.stamp(); a.stamp(5)
    side = rd2(s + AFD) if s + AFD < 43 else []
    if s == OPT['pres']: side += [f'ds_read_b128 {v(XS,4)}, {v(vSTa)}', f'ds_read_b128 {v(XS+4,4)}, {v(vSTb)}', f'ds_read_b64 v[232:233], {v(vSTS)}']
    if s == OPT['pres'] + 2: a.fq += pre
    if s == 28: a.expect(1, 8, True)
    if s == 36 - AFD: a.stamp(5); a.expect(0, 9, True); a.stamp(5)
    if s == OPT['ybar']:
        a.stamp(); a.stamp(5); a.expect(0, 10, True); a.stamp(); a.stamp(5)
        side += yreads
    if s == OPT['ybar'] + 2: a.fq += post_
    if hops[s] in a.vq: a.drain_v(hops[s])
    h = (len(side) + 1) // 2
    for dt in (1, 0):
        if dt == 0 and s >= 43 - OPT['lastk']: continue
        if OPT['onew'] and dt == 1:
            a.service(True)
            if ('v', hreg(s)) in a.pend: a.wait_vm(a.pend[('v', hreg(s))][1])
            a.wait_lg(a.pend[('v', AFB[s%(AFD+1)]+2)][1])
        a(g2mm(s, dt))
        for x in side[:h]: a(x)
        side = side[h:]
    for x in side: a(x)
    if s + 2 in (28 - AFD, 36 - AFD, OPT['ybar']): a.peek(0)
    if s == 26: a.peek(1)
wr_ = [f'ds_write_b128 {v(vE2W)}, {v(G2A+16+4*k,4)} offset:{1024*k}' for k in range(4)]
for s in range(43 - OPT['lastk'], 43):
    a(g2mm(s, 0))
    if s > 43 - OPT['lastk']: a(wr_.pop(0))
for x in wr_: a(x)
a.stamp(0, True); a.stamp(5)
if not OPT['fbar']: a.post(9)
a.drain_f()
for k in range(8): a(f'v_pk_add_f32 {v(XU+2*k,2)}, {v(XU+2*k,2)}, {v(G2A+2*k,2)}')
if OPT['fbar']:
    a.wait_all_lg(); a('s_barrier')
else: a.expect(1, 9)
for k in range(4): a(f'ds_read_b128 {v(64+4*k,4)}, {v(vE2R)} offset:{1024*k}')
for h in range(2):
    for k in range(4*h, 4*h+4): a(f'v_pk_add_f32 {v(XU+2*k,2)}, {v(XU+2*k,2)}, {v(64+2*k,2)}')
    for k in range(4*h, 4*h+4): a(f'v_cvt_pk_bf16_f32 {v(96+k)}, {v(XU+2*k)}, {v(XU+2*k+1)}')
    a(f'ds_write_b128 {v((vOTa, vOTb)[h])}, {v(96+4*h,4)}')
a.wait_all_lg()
a(f'ds_read_b128 v[104:107], {v(vOTR)}'); a(f'ds_read_b128 v[108:111], {v(vOTR)} offset:1024')
a(f'buffer_store_dwordx4 v[104:107], {v(vOUT)}, {srd(OUT)}, {sO0} offen{OSC}')
a(f'buffer_store_dwordx4 v[108:111], {v(vOUT)}, {srd(OUT)}, {sO1} offen{OSC}')
a.stamp()
print('estimated compute cycles', a.est, file=sys.stderr)
a.finish()
assert L.bars == C.bars, (L.bars, C.bars)

lines = P.lines + ['; ---- loader waves, first part'] + L1lines + ['; ---- compute waves', 'L_compute:'] + C.lines + ['; ---- loader waves, second part'] + L.lines + ['L_end:', '    s_endpgm']
if OPT['skel']:
    drop = ('v_mfma', 'v_dot', 'v_pk_', 'v_exp', 'v_rcp', 'ds_read_b64', 'v_fmac', 'v_mul_f32', 'v_cvt_pk', 'ds_write_b128', 'v_perm_b32', 'v_add_f32', 'v_sub_f32')
    lines = [l for l in lines if not l.strip().startswith(drop)]

DOC = """; One persistent launch, 256 workgroups (one per CU), 8 waves each: waves 0-3 stream operands (LDS-DMA), waves 4-7 compute.
; Per workgroup: P1  kv = shiftconv(k)*v for a 64x64 tile -> workspace U (channel-pair major)
; Hand-offs: write-through stores + per-wave flag lines (U, H) or tag bits inside the data (Y); the tag is
; (epoch word found in the workspace)+1 and only tells this launch's hand-offs from earlier contents.
"""
hdr = open('parallel_sum__ssm_conv_h3__dense_activation_silu__prompt.s.ref').read().split('\n')
hdr = [l for l in hdr if l.startswith(';') and '@launch' not in l]
out = '\n'.join(hdr) + f'\n; @launch grid=(256,1,1) block=(512,1,1) lds={LDS_SIZE}\n' + DOC
out += f'''.amdgcn_target "amdgcn-amd-amdhsa--gfx950"
.text
.globl {NAME}
.p2align 8
.type {NAME},@function
{NAME}:
''' + '\n'.join(lines) + f'''
.section .rodata,"a"
.p2align 6
.amdhsa_kernel {NAME}
  .amdhsa_next_free_vgpr 256
  .amdhsa_next_free_sgpr 102
  .amdhsa_accum_offset 256
  .amdhsa_group_segment_fixed_size 0
  .amdhsa_kernarg_size 96
  .amdhsa_user_sgpr_count 2
  .amdhsa_user_sgpr_kernarg_segment_ptr 1
  .amdhsa_system_sgpr_workgroup_id_x 1
.end_amdhsa_kernel
'''
open(sys.argv[1], 'w').write(out)
print(dbg, file=sys.stderr)
print('lines', len(lines), 'stamps L/C', L.nstamp, C.nstamp, file=sys.stderr)
```
